```python
import torch

def _softmax(x, axis=-1):
    return torch.softmax(x, dim=axis)
def _gelu(x):
    return torch.nn.functional.gelu(x, approximate="tanh")
def _silu(x):
    return torch.nn.functional.silu(x)
def _sigmoid(x):
    return torch.sigmoid(x)
def _layernorm(x, axis=-1, eps=1e-5):
    m = x.mean(dim=axis, keepdim=True)
    v = x.var(dim=axis, keepdim=True, unbiased=False)
    return (x - m) / torch.sqrt(v + eps)
def _scatter_add(tgt, idx, src, axis=0):
    return tgt.clone().index_add_(axis, idx, src)
def _segment_sum(src, seg, n):
    out = torch.zeros((n,) + src.shape[1:], dtype=src.dtype)
    return out.index_add_(0, seg, src)
def _pad(x, pw):
    flat = tuple(v for pair in reversed(pw) for v in pair)
    return torch.nn.functional.pad(x, flat)

kernel_name = 'gather_scatter__edge_featured_mpnn_gatedgcn__graph'

def setup_inputs():

    _w = (lambda a: (lambda t: t.to(torch.bfloat16) if t.is_floating_point() else t)(torch.as_tensor(a)))
    N, deg, D, De = 25000, 32, 64, max(4, 1)
    E = N * deg
    return {
        "x": _w((lambda *s: torch.randn(*s, dtype=torch.bfloat16) * 0.8)(N, D)),
        "e_attr": _w((lambda *s: torch.randn(*s, dtype=torch.bfloat16) * 0.8)(E, De)),
        "src": _w((lambda lo, hi, *s: torch.randint(lo, hi, s))(0, N, E).to(torch.int64)),
        "dst": _w((lambda lo, hi, *s: torch.randint(lo, hi, s))(0, N, E).to(torch.int64)),
        "w_a": _w((lambda *s: torch.randn(*s, dtype=torch.bfloat16) * 0.8)(D, D)),
        "w_b": _w((lambda *s: torch.randn(*s, dtype=torch.bfloat16) * 0.8)(D, D)),
        "w_c": _w((lambda *s: torch.randn(*s, dtype=torch.bfloat16) * 0.8)(De, D)),
        "w_u": _w((lambda *s: torch.randn(*s, dtype=torch.bfloat16) * 0.05)(D, D)),
        "w_v": _w((lambda *s: torch.randn(*s, dtype=torch.bfloat16) * 0.05)(D, D)),
    }

def reference(x, e_attr, src, dst, w_a, w_b, w_c, w_u, w_v):
    N, D = x.shape
    hv = x @ w_v
    g = x[dst] @ w_a + x[src] @ w_b + e_attr @ w_c
    eta = _sigmoid(g)
    denom = _segment_sum(eta, dst, N) + 1e-6
    eta_n = eta / denom[dst]
    agg = _segment_sum(eta_n * hv[src], dst, N)
    z = x @ w_u + agg
    relu_z = torch.where(z > 0, z, 0 * z)
    return x + relu_z
```

```python
import re

class Asm:
    def __init__(self):
        self.lines = []
    def __call__(self, s):
        for l in s.strip("\n").split("\n"):
            self.lines.append(l.rstrip())
    def emit(self, fmt, **kw):
        self(fmt.format(**kw))
    def label(self, name):
        self.lines.append(name + ":")
    def text(self):
        return "\n".join(self.lines) + "\n"

def vr(b, n=1, p="v"):
    return f"{p}{b}" if n == 1 else f"{p}[{b}:{b+n-1}]"
def ar(b, n=1):
    return vr(b, n, "a")
def sr(b, n=1):
    return vr(b, n, "s")

_REG = re.compile(r"\b([vas])(?:\[(\d+):(\d+)\]|(\d+))(?![\w.])")
def regs_of(tok):
    out = set()
    for m in _REG.finditer(tok):
        p = m.group(1)
        if m.group(2):
            for i in range(int(m.group(2)), int(m.group(3)) + 1): out.add((p, i))
        else:
            out.add((p, int(m.group(4))))
    if re.search(r"\bvcc\b", tok): out |= {("s", 106), ("s", 107)}
    if re.search(r"\bexec\b", tok): out |= {("s", 126), ("s", 127)}
    if re.search(r"\bm0\b", tok): out.add(("s", 124))
    return out

TRANS = ("v_exp_f32", "v_rcp_f32", "v_log_f32", "v_rsq_f32", "v_sqrt_f32")
def parse(line):
    s = line.split(";")[0].strip()
    if not s or s.endswith(":") or s.startswith("."): return None
    parts = s.split(None, 1)
    op = parts[0]
    ops = [o.strip() for o in parts[1].split(",")] if len(parts) > 1 else []
    d = dict(op=op, ops=ops, text=s)
    W, R = set(), set()
    isv = op.startswith("v_")
    ismfma = op.startswith("v_mfma")
    d["mfma"] = ismfma
    d["valu"] = isv and not ismfma
    d["trans"] = any(op.startswith(t) for t in TRANS)
    d["dpp"] = "_dpp" in op or "row_" in s or "quad_perm" in s
    d["ds"] = op.startswith("ds_")
    d["vmem"] = op.startswith(("buffer_", "global_"))
    d["ldsdma"] = d["vmem"] and re.search(r"\blds\b", s) is not None
    d["salu"] = op.startswith("s_")
    if ismfma:
        W = regs_of(ops[0]); d["A"] = regs_of(ops[1]); d["B"] = regs_of(ops[2]); d["C"] = regs_of(ops[3].split()[0])
        R = d["A"] | d["B"] | d["C"]
        d["passes"] = 16 if "_2b" in op else (4 if "16x16x32" in op or "16x16x16" in op else 8)
    elif isv:
        nd = 1
        if op.startswith(("v_add_co", "v_sub_co", "v_addc_co", "v_subb_co", "v_mad_u64")): nd = 2
        for o in ops[:nd]: W |= regs_of(o)
        for o in ops[nd:]: R |= regs_of(o)
        if op.startswith("v_fmac") or op.startswith("v_cndmask") and len(ops) == 3: R |= W if op.startswith("v_fmac") else {("s",106),("s",107)}
        if d["dpp"]: R |= W
        if op.startswith("v_cmpx"): W |= {("s",126),("s",127)}
        if op.startswith("v_permlane"): R |= W; W |= regs_of(ops[1])
    elif d["ds"]:
        if op.startswith(("ds_read", "ds_bpermute", "ds_permute", "ds_swizzle")) or "_rtn" in op:
            W = regs_of(ops[0])
            for o in ops[1:]: R |= regs_of(o)
        else:
            for o in ops: R |= regs_of(o)
    elif d["vmem"]:
        if ("load" in op and not d["ldsdma"]):
            W = regs_of(ops[0])
            for o in ops[1:]: R |= regs_of(o)
        else:
            for o in ops: R |= regs_of(o)
        d["widestore"] = "store" in op and ("x3" in op or "x4" in op)
        if d.get("widestore"):
            d["data"] = regs_of(ops[0]) if op.startswith("buffer") else regs_of(ops[1])
        if d["ldsdma"]: R.add(("s",124))
    elif d["salu"]:
        if op.startswith(("s_cmp", "s_cbranch", "s_branch", "s_waitcnt", "s_nop", "s_barrier", "s_endpgm", "s_setprio", "s_bitcmp", "s_sleep")):
            for o in ops: R |= regs_of(o)
        else:
            W = regs_of(ops[0]) if ops else set()
            for o in ops[1:]: R |= regs_of(o)
            if "saveexec" in op: W |= {("s",126),("s",127)}
    d["W"], d["R"] = W, R
    d["states"] = int(ops[0], 0) + 1 if op == "s_nop" else 1
    return d

def check_hazards(lines, name=""):
    ins = [(i, parse(l)) for i, l in enumerate(lines)]
    ins = [(i, d) for i, d in ins if d]
    probs = []
    for k, (li, c) in enumerate(ins):
        dist = 0
        for j in range(k - 1, max(-1, k - 24), -1):
            lj, p = ins[j]
            need = 0; why = ""
            def upd(n, w):
                nonlocal need, why
                if n > need: need, why = n, w
            vW = {r for r in p["W"] if r[0] in "va"}
            sW = {r for r in p["W"] if r[0] == "s"}
            if p["valu"]:
                if c["mfma"] and vW & c["R"]: upd(2, "valu->mfma")
                if c["mfma"] and ("s",126) in sW: upd(4, "valu exec->mfma")
                if c["dpp"] and vW & c["R"]: upd(2, "valu->dpp")
                if c["dpp"] and ("s",126) in sW: upd(5, "valu exec->dpp")
                if c["op"].startswith(("v_readlane", "v_readfirstlane")) and vW & regs_of(c["ops"][1]): upd(1, "valu->readlane")
                if c["op"].startswith(("v_readlane", "v_writelane")) and len(c["ops"]) > 2 and sW & regs_of(c["ops"][2]): upd(4, "valu sgpr->lanesel")
                if c["op"].startswith(("v_readlane", "v_readfirstlane","v_writelane")) and ("s",126) in sW: upd(4, "valu exec->readlane")
                if c["valu"] and sW & c["R"]: upd(2, "valu sgpr->valu const")
                if c["vmem"] and sW & c["R"]: upd(5, "valu sgpr->vmem")
                if p["trans"] and c["valu"] and not c["trans"] and vW & c["R"]: upd(1, "trans->valu")
                if p["trans"] and c["mfma"] and vW & c["R"]: upd(2, "trans->mfma")
                if c["op"].startswith("v_permlane") and vW & c["R"]: upd(2, "valu->permlane")
            if p["mfma"]:
                P = p["passes"]
                t = {4: 8, 8: 12, 16: 20}[P]
                if c["mfma"]:
                    if vW & (c["A"] | c["B"]): upd(t, "mfma->mfma AB")
                    if vW & c["C"]:
                        if not (vW == c["C"] and c["passes"] == P): upd({4: 6, 8: 10, 16: 18}[P], "mfma->mfma C overlap")
                    elif vW & c["W"] and not (vW == c["W"]): upd({4: 6, 8: 10, 16: 18}[P], "mfma->mfma D overlap")
                elif (c["valu"] or c["ds"] or c["vmem"]) and vW & (c["R"] | c["W"]): upd(t, "mfma->valu/mem")
                if c["valu"] and p["C"] & c["W"]: upd({4: 3, 8: 7, 16: 15}[P], "mfma C WAR")
            if p["salu"] and ("s",124) in sW and c["ldsdma"]: upd(1, "m0->ldsdma")
            if p.get("widestore") and (c["valu"] or c["ds"] or c["vmem"]) and p["data"] & c["W"]: upd(2, "store WAR")
            if dist < need:
                probs.append(f"{name} L{li}: need {need} have {dist} ({why})\n    {p['text']}\n    {c['text']}")
            dist += p["states"]
            if p["op"] in ("s_branch", "s_endpgm"): break
    return probs
```

```python
import sys
from asmlib import *

NAME = "gather_scatter__edge_featured_mpnn_gatedgcn__graph"
NP, CH = 250, 3200
RECB = CH * 12
OFFS = 0xA00000
IMG = OFFS + 0x40000
NLOG2E = 0xBFB8AA3B
CAPT = 128
EA0, K0 = 0, 32768
CNT, NB, HIST, ORDQ, ORDA, TSV, MISC = 49152, 49664, 50176, 50432, 50944, 51456, 51584
RING = 52224
NODE = RING + 8 * 4096
ROWB = 768
LDS2 = NODE + 99 * ROWB
K1_CNT, K1_START = 38400, 39424
LDS1 = 40448

OPT = dict(st_flags="", ld_flags="", npf=2)
for a_ in sys.argv[2:]:
    k_, v_ = a_.split("=", 1)
    OPT[k_] = int(v_) if v_.lstrip("-").isdigit() else v_

def dpp_scan(a, v):
    for m in ("row_shr:1", "row_shr:2", "row_shr:4", "row_shr:8"):
        a(f"  s_nop 1\n  v_add_u32_dpp v{v}, v{v}, v{v} {m} row_mask:0xf bank_mask:0xf")
    a(f"  s_nop 1\n  v_add_u32_dpp v{v}, v{v}, v{v} row_bcast:15 row_mask:0xa bank_mask:0xf")
    a(f"  s_nop 1\n  v_add_u32_dpp v{v}, v{v}, v{v} row_bcast:31 row_mask:0xc bank_mask:0xf")

def gen_k1(a):
    st = OPT["st_flags"]
    a(f"""
.globl part_kernel
.p2align 8
.type part_kernel,@function
part_kernel:
  s_cmp_ge_u32 s2, {NP+5}
  s_cbranch_scc1 K1_END
  s_load_dwordx8 s[4:11], s[0:1], 8
  s_load_dwordx8 s[12:19], s[0:1], 40
  s_load_dwordx2 s[20:21], s[0:1], 88
  v_lshrrev_b32 v33, 6, v0
  v_lshlrev_b32 v1, 4, v0
  v_readfirstlane_b32 s23, v33
  s_cmp_ge_u32 s2, {NP}
  s_cbranch_scc1 K1_PACK
  s_mul_i32 s22, s2, {CH*4}
  v_add_u32 v2, s22, v1
  v_lshlrev_b32 v3, 1, v2
  v_mov_b32 v32, 1
  v_mov_b32 v36, 0
  v_mov_b32 v37, 0
  v_mov_b32 v38, 0
  v_mov_b32 v39, 0
  s_waitcnt lgkmcnt(0)
  global_load_dwordx4 v[4:7], v2, s[8:9]
  global_load_dwordx4 v[8:11], v2, s[6:7]
  global_load_dwordx4 v[12:15], v3, s[4:5]
  global_load_dwordx4 v[16:19], v3, s[4:5] offset:16
  s_cmp_lg_u32 s23, 0
  s_cbranch_scc1 K1_A
  ds_write_b128 v1, v[36:39] offset:{K1_CNT}
  s_waitcnt lgkmcnt(0)
K1_A:
  s_barrier
  s_waitcnt vmcnt(3)
""")
    for k in range(4):
        a(f"  v_lshlrev_b32_sdwa v{20+k}, 2, v{4+k} dst_sel:DWORD dst_unused:UNUSED_PAD src0_sel:DWORD src1_sel:BYTE_0")
    for k in range(4):
        a(f"  ds_add_rtn_u32 v{24+k}, v{20+k}, v32 offset:{K1_CNT}")
    a("  s_waitcnt vmcnt(2)")
    for k in range(4):
        a(f"  v_lshrrev_b32 v{4+k}, 8, v{4+k}")
        a(f"  v_lshl_or_b32 v{8+k}, v{4+k}, 18, v{8+k}")
    a(f"""
  s_waitcnt lgkmcnt(0)
  s_barrier
  s_cmp_lg_u32 s23, 0
  s_cbranch_scc1 K1_B
  ds_read_b128 v[36:39], v1 offset:{K1_CNT}
  s_waitcnt lgkmcnt(0)
  v_add_u32 v41, v36, v37
  v_add_u32 v42, v41, v38
  v_add_u32 v43, v42, v39
  v_mov_b32 v44, v43
""")
    dpp_scan(a, 44)
    a(f"""
  v_sub_u32 v45, v44, v43
  v_add_u32 v47, v45, v36
  v_add_u32 v48, v45, v41
  v_add_u32 v49, v45, v42
  v_mul_u32_u24 v46, 12, v45
  v_mul_u32_u24 v47, 12, v47
  v_mul_u32_u24 v48, 12, v48
  v_mul_u32_u24 v49, 12, v49
  ds_write_b128 v1, v[46:49] offset:{K1_START}
  v_lshl_or_b32 v50, v36, 16, v46
  v_lshl_or_b32 v51, v37, 16, v47
  v_lshl_or_b32 v52, v38, 16, v48
  v_lshl_or_b32 v53, v39, 16, v49
  s_lshl_b32 s24, s2, 2
  s_add_u32 s24, s24, {OFFS}
  v_lshlrev_b32 v54, 12, v0
  v_add_u32 v54, s24, v54
  global_store_dword v54, v50, s[20:21] {st}
  global_store_dword v54, v51, s[20:21] offset:1024 {st}
  global_store_dword v54, v52, s[20:21] offset:2048 {st}
  global_store_dword v54, v53, s[20:21] offset:3072 {st}
  s_waitcnt lgkmcnt(0)
K1_B:
  s_barrier
""")
    for k in range(4):
        a(f"  ds_read_b32 v{28+k}, v{20+k} offset:{K1_START}")
    for k in range(4):
        a(f"  s_waitcnt lgkmcnt({3-k})" + (" vmcnt(0)" if k == 0 else ""))
        a(f"  v_mad_u32_u24 v{28+k}, v{24+k}, 12, v{28+k}")
    for k in range(4):
        a(f"  ds_write2_b32 v{28+k}, v{12+2*k}, v{13+2*k} offset0:0 offset1:1")
        a(f"  ds_write_b32 v{28+k}, v{8+k} offset:8")
    a(f"""
  s_mul_i32 s22, s2, {RECB}
  v_add_u32 v2, s22, v1
  v_add_u32 v3, {12800}, v2
  v_add_u32 v4, {25600}, v2
  s_waitcnt lgkmcnt(0)
  s_barrier
  ds_read_b128 v[8:11], v1
  ds_read_b128 v[12:15], v1 offset:12800
  ds_read_b128 v[16:19], v1 offset:25600
  s_waitcnt lgkmcnt(2)
  global_store_dwordx4 v2, v[8:11], s[20:21] {st}
  s_waitcnt lgkmcnt(1)
  global_store_dwordx4 v3, v[12:15], s[20:21] {st}
  s_waitcnt lgkmcnt(0)
  global_store_dwordx4 v4, v[16:19], s[20:21] {st}
  s_endpgm
K1_PACK:
  s_cmp_ge_u32 s23, 4
  s_cbranch_scc1 K1_END
  s_waitcnt lgkmcnt(0)
  v_and_b32 v2, 31, v0
  v_bfe_u32 v3, v0, 5, 1
  v_and_b32 v34, 63, v0
  s_cmp_eq_u32 s2, {NP+4}
  s_cbranch_scc1 K1_PACKC
  s_mov_b32 s24, s12
  s_mov_b32 s25, s13
  s_mov_b32 s26, {NLOG2E:#x}
  s_cmp_eq_u32 s2, {NP}
  s_cbranch_scc1 K1_P1
  s_mov_b32 s26, 1.0
  s_mov_b32 s24, s18
  s_mov_b32 s25, s19
  s_cmp_eq_u32 s2, {NP+1}
  s_cbranch_scc1 K1_P1
  s_mov_b32 s24, s10
  s_mov_b32 s25, s11
  s_cmp_eq_u32 s2, {NP+2}
  s_cbranch_scc1 K1_P1
  s_mov_b32 s24, s16
  s_mov_b32 s25, s17
K1_P1:
  v_lshlrev_b32 v4, 12, v3
  v_lshl_add_u32 v4, v2, 2, v4
  s_lshl_b32 s27, s23, 10
  v_add_u32 v4, s27, v4
""")
    for j in range(8):
        a(f"  global_load_dword v{8+j}, v4, s[24:25] offset:{128*j}")
    a("  s_waitcnt vmcnt(0)")
    for j in range(8):
        a(f"  v_lshlrev_b32 v{16+j}, 16, v{8+j}")
        a(f"  v_and_b32 v{24+j}, 0xffff0000, v{8+j}")
        a(f"  v_mul_f32 v{16+j}, s26, v{16+j}")
        a(f"  v_mul_f32 v{24+j}, s26, v{24+j}")
    for jj in range(4):
        a(f"  v_cvt_pk_bf16_f32 v{36+jj}, v{16+2*jj}, v{17+2*jj}")
        a(f"  v_cvt_pk_bf16_f32 v{40+jj}, v{24+2*jj}, v{25+2*jj}")
    a(f"""
  s_sub_u32 s27, s2, {NP}
  s_lshl_b32 s27, s27, 2
  s_add_u32 s27, s27, s23
  s_lshl_b32 s27, s27, 11
  s_add_u32 s27, s27, {IMG}
  v_lshlrev_b32 v5, 4, v34
  v_add_u32 v5, s27, v5
  global_store_dwordx4 v5, v[36:39], s[20:21] {st}
  global_store_dwordx4 v5, v[40:43], s[20:21] offset:1024 {st}
  s_endpgm
K1_PACKC:
  s_cmp_lg_u32 s23, 0
  s_cbranch_scc1 K1_END
  v_lshlrev_b32 v4, 2, v2
  s_mov_b32 s26, {NLOG2E:#x}
""")
    for j in range(4):
        a(f"  global_load_dword v{8+j}, v4, s[14:15] offset:{128*j}")
    a("  s_waitcnt vmcnt(0)")
    for j in range(4):
        a(f"  v_lshlrev_b32 v{16+j}, 16, v{8+j}")
        a(f"  v_and_b32 v{24+j}, 0xffff0000, v{8+j}")
        a(f"  v_mul_f32 v{16+j}, s26, v{16+j}")
        a(f"  v_mul_f32 v{24+j}, s26, v{24+j}")
    a(f"""
  v_cvt_pk_bf16_f32 v36, v16, v17
  v_cvt_pk_bf16_f32 v37, v18, v19
  v_cvt_pk_bf16_f32 v38, v24, v25
  v_cvt_pk_bf16_f32 v39, v26, v27
  v_cmp_eq_u32 vcc, 0, v3
  v_mov_b32 v40, 0x71800000
  v_mov_b32 v41, 0
  v_cndmask_b32 v36, v40, v36, vcc
  v_cndmask_b32 v37, v41, v37, vcc
  v_cndmask_b32 v38, v40, v38, vcc
  v_cndmask_b32 v39, v41, v39, vcc
  v_lshlrev_b32 v5, 4, v34
  v_add_u32 v5, {IMG+32768}, v5
  global_store_dwordx4 v5, v[36:39], s[20:21] {st}
K1_END:
  s_endpgm
""")

G, HV, AC, CI = 32, 64, 96, 128
WB, WV, BE, ONE, EOP, X = 0, 32, 64, 68, 70, 72
vXA = 1
vI = 6
vEs, vEb, vE, vKb, vK = 14, 15, 16, 17, 18
vNA = 20
vN4, vTSV, vOrd, vLane = 24, 25, 26, 27
vT0, vT1, vT2, vT3 = 28, 29, 30, 31
vOne = 5
sXI, sXR, sOUT, sREC, sOFF, sIMG = 8, 12, 16, 20, 24, 28
sM1 = 32
sM2 = 48
sSeg = 64
sW, sSB, sSW, sFirstB = 72, 73, 74, 75
sT, sT0, sT1, sTn, sTn2, sRun, sGam, sFst, sCont, sContEnd, sG0, sM0, sMaxC, sTmp, sTmp2, sEnd, sCur = range(76, 93)
sSlow = 93
sSave = 94

def mfma16(d, A, B, C):
    return f"  v_mfma_f32_32x32x16_bf16 v[{d}:{d+15}], {A}, {B}, {C}"
def mfma8(d, A, B, C):
    return f"  v_mfma_f32_32x32x8_bf16 v[{d}:{d+15}], {A}, {B}, {C}"

def flush_rmw(a):
    for ct in range(2):
        for g in range(4):
            t = G + (ct*4+g)*2
            a(f"  ds_read2_b32 v[{t}:{t+1}], v{vNA+g} offset0:{64+32*ct} offset1:{128+32*ct}")
    for q in range(8):
        r = AC + q*4
        a(f"  v_add_f32 v{r}, v{r}, v{r+1}")
        a(f"  v_add_f32 v{r+2}, v{r+2}, v{r+3}")

def flush_rmw2(a):
    for q in range(8):
        r = AC + q*4; t = G + q*2
        a(f"  v_add_f32 v{r}, v{r}, v{t}")
        a(f"  v_add_f32 v{r+2}, v{r+2}, v{t+1}")
    for ct in range(2):
        for g in range(4):
            r = AC + (ct*4+g)*4
            a(f"  ds_write2_b32 v{vNA+g}, v{r}, v{r+2} offset0:{64+32*ct} offset1:{128+32*ct}")

def next_tile(a, dst, src):
    a(f"""  s_add_u32 s{dst}, s{src}, 1
  s_cmp_eq_u32 s{dst}, s{sT1}
  s_cselect_b32 s{dst}, s{sT0}, s{dst}""")

def dma(i):
    return f"  buffer_load_dwordx4 v[{vI+2*i}:{vI+2*i+1}], s[{sXI}:{sXI+3}], 0 idxen offen lds"

def tile_body(a):
    XR = lambda s: ar(X+4*s, 4)
    wb = lambda s, ct: ar(WB+(s*2+ct)*4, 4)
    wv = lambda s, ct: ar(WV+(s*2+ct)*4, 4)
    G0, G1, H0, H1 = G, G+16, HV, HV+16
    g = lambda d: f"v[{d}:{d+15}]"
    a(f"  s_waitcnt vmcnt(0)")
    a(f"  ds_read2_b32 a[{EOP}:{EOP+1}], v{vE} offset0:0 offset1:1")
    for s in range(4):
        a(f"  ds_read_b128 {XR(s)}, v{vXA+s}")
    next_tile(a, sTn2, sTn)
    a(f"  s_lshl_b32 s{sTmp}, s{sTn2}, 7")
    a(f"  s_waitcnt lgkmcnt(3)")
    a(mfma8(G0, ar(EOP,2), ar(BE,2), g(CI)))
    a(mfma16(G0, XR(0), wb(0,0), g(G0)))
    a(f"  s_waitcnt lgkmcnt(2)")
    a(mfma16(G0, XR(1), wb(1,0), g(G0)))
    a(f"  s_waitcnt lgkmcnt(1)")
    a(mfma16(G0, XR(2), wb(2,0), g(G0)))
    a(f"  s_waitcnt lgkmcnt(0)")
    a(mfma16(G0, XR(3), wb(3,0), g(G0)))
    a(f"  s_mov_b32 m0, s{sM0}")
    a(mfma8(G1, ar(EOP,2), ar(BE+2,2), g(CI+16)))
    a(dma(0))
    a(f"  s_add_u32 m0, s{sM0}, 1024")
    a(mfma16(G1, XR(0), wb(0,1), g(G1)))
    a(dma(1))
    a(f"  s_add_u32 m0, s{sM0}, 2048")
    a(f"  v_add_u32 v{vK}, s{sTmp}, v{vKb}")
    a(dma(2))
    a(f"  s_add_u32 m0, s{sM0}, 3072")
    a(f"  v_mad_u32_u24 v{vE}, v{vEs}, s{sTn}, v{vEb}")
    a(dma(3))
    for i in range(4):
        a(f"  ds_read_b32 v{vI+2*i}, v{vK} offset:{4*i}")
    a(f"  s_mov_b32 s{sTn}, s{sTn2}")
    T = [f"  v_exp_f32 v{G0+i}, v{G0+i}" for i in range(16)] + [f"  v_exp_f32 v{G1+i}, v{G1+i}" for i in range(16)] \
      + [f"  v_rcp_f32 v{G0+i}, v{G0+i}" for i in range(16)] + [f"  v_rcp_f32 v{G1+i}, v{G1+i}" for i in range(16)]
    ti = 0
    def tr(n):
        nonlocal ti
        for _ in range(n):
            a(T[ti]); ti += 1
    tr(3); a(mfma16(G1, XR(1), wb(1,1), g(G1)))
    tr(3); a(mfma16(G1, XR(2), wb(2,1), g(G1)))
    tr(3); a(mfma16(G1, XR(3), wb(3,1), g(G1)))
    tr(3); a(mfma16(H0, XR(0), wv(0,0), "0"))
    tr(3); a(mfma16(H0, XR(1), wv(1,0), g(H0)))
    tr(1); a(mfma16(H0, XR(2), wv(2,0), g(H0)))
    a("  s_nop 0")
    a(mfma8(G0, ar(ONE,2), ar(ONE,2), g(G0)))
    tr(3); a(mfma16(H0, XR(3), wv(3,0), g(H0)))
    tr(3); a(mfma16(H1, XR(0), wv(0,1), "0"))
    tr(3); a(mfma16(H1, XR(1), wv(1,1), g(H1)))
    tr(3); a(mfma16(H1, XR(2), wv(2,1), g(H1)))
    tr(3); a(mfma16(H1, XR(3), wv(3,1), g(H1)))
    tr(3)
    a(mfma8(G1, ar(ONE,2), ar(ONE,2), g(G1)))
    tr(64 - ti)

def p_phase(a, first):
    def pr(r): return f"v[{r}:{r+1}]"
    for ct in range(2):
        for half in range(2):
            for g in range(4):
                e = G + 16*ct + 4*g; h = HV + 16*ct + 4*g; r = AC + (ct*4+g)*4
                if first:
                    if half == 0:
                        a(f"  v_pk_mul_f32 {pr(r)}, {pr(e)}, {pr(h)}")
                        a(f"  v_pk_add_f32 {pr(r+2)}, {pr(e)}, {pr(e+2)}")
                    else:
                        a(f"  v_pk_fma_f32 {pr(r)}, {pr(e+2)}, {pr(h+2)}, {pr(r)}")
                else:
                    a(f"  v_pk_fma_f32 {pr(r)}, {pr(e+2*half)}, {pr(h+2*half)}, {pr(r)}")
                    a(f"  v_pk_add_f32 {pr(r+2)}, {pr(e+2*half)}, {pr(r+2)}")

def gen_k2(a):
    ld = OPT["ld_flags"]
    NPF = OPT["npf"]
    R = lambda k: 32 + 4*k
    A4 = lambda k: 96 + k
    OF = 112
    VA = 120
    a(f"""
.globl main_kernel
.p2align 8
.type main_kernel,@function
main_kernel:
  s_cmp_ge_u32 s2, 256
  s_cbranch_scc1 K2_END
  s_load_dwordx2 s[4:5], s[0:1], 0
  s_load_dwordx2 s[6:7], s[0:1], 72
  s_load_dwordx2 s[96:97], s[0:1], 88
  v_lshrrev_b32 v{vT0}, 6, v0
  v_and_b32 v{vLane}, 63, v0
  v_readfirstlane_b32 s{sW}, v{vT0}
  v_mov_b32 v{vOne}, 1
  s_mov_b32 s{sSB}, 0
  s_mov_b32 s{sSW}, 32
  s_mov_b32 s{sFirstB}, 1
""")
    for i in range(8):
        a(f"  s_mov_b32 s{sSeg+i}, {i*RECB}")
    a(f"""
  v_lshrrev_b32 v{vT1}, 4, v0         ; G = tid>>4
  v_lshlrev_b32 v{vT2}, 5, v{vT1}     ; G*32
  s_waitcnt lgkmcnt(0)
  s_mov_b32 s{sXI}, s4
  s_and_b32 s{sXI+1}, s5, 0xffff
  s_or_b32 s{sXI+1}, s{sXI+1}, 0x800000
  s_mov_b32 s{sXI+2}, 25000
  s_mov_b32 s{sXI+3}, 0x20000
  s_mov_b32 s{sXR}, s4
  s_and_b32 s{sXR+1}, s5, 0xffff
  s_mov_b32 s{sXR+2}, 3200000
  s_mov_b32 s{sXR+3}, 0x20000
  s_mov_b32 s{sOUT}, s6
  s_and_b32 s{sOUT+1}, s7, 0xffff
  s_mov_b32 s{sOUT+2}, 3200000
  s_mov_b32 s{sOUT+3}, 0x20000
  s_mov_b32 s{sREC}, s96
  s_and_b32 s{sREC+1}, s97, 0xffff
  s_mov_b32 s{sREC+2}, {NP*RECB}
  s_mov_b32 s{sREC+3}, 0x20000
  s_lshl_b32 s{sTmp}, s2, 10
  s_add_u32 s{sTmp}, s{sTmp}, {OFFS}
  s_add_u32 s{sOFF}, s96, s{sTmp}
  s_addc_u32 s{sOFF+1}, s97, 0
  s_and_b32 s{sOFF+1}, s{sOFF+1}, 0xffff
  s_mov_b32 s{sOFF+2}, {NP*4}
  s_mov_b32 s{sOFF+3}, 0x20000
  s_add_u32 s{sIMG}, s96, {IMG}
  s_addc_u32 s{sIMG+1}, s97, 0
  s_and_b32 s{sIMG+1}, s{sIMG+1}, 0xffff
  s_mov_b32 s{sIMG+2}, {32768+1024}
  s_mov_b32 s{sIMG+3}, 0x20000
  buffer_load_dwordx4 v[{OF}:{OF+3}], v{vT2}, s[{sOFF}:{sOFF+3}], 0 offen
  buffer_load_dwordx4 v[{OF+4}:{OF+7}], v{vT2}, s[{sOFF}:{sOFF+3}], 0 offen offset:16
  v_and_b32 v{vT0}, 31, v{vLane}
  s_lshr_b32 s{sTmp}, s{sW}, 1
  s_lshl_b32 s{sTmp}, s{sTmp}, 13
  s_add_u32 s{sTmp}, s{sTmp}, s2
  v_lshlrev_b32 v{vT2}, 8, v{vT0}
  v_add_u32 v{vT2}, s{sTmp}, v{vT2}
  v_lshrrev_b32 v{vT3}, 5, v{vLane}
  v_lshlrev_b32 v{vT3}, 6, v{vT3}
  v_lshlrev_b32 v{vK}, 4, v{vLane}     ; lane*16
""")
    for s in range(4):
        a(f"  buffer_load_dwordx4 {ar(X+4*s,4)}, v[{vT2}:{vT3}], s[{sXI}:{sXI+3}], 0 idxen offen offset:{16*s}")
    a(f"""  s_and_b32 s{sTmp}, s{sW}, 1
  s_lshl_b32 s{sTmp}, s{sTmp}, 10
  s_add_u32 s{sTmp}, s{sTmp}, {2*8192}
  s_add_u32 s{sTmp2}, s{sTmp}, 4096""")
    for s in range(4):
        so = sTmp if s < 2 else sTmp2
        a(f"  buffer_load_dwordx4 v[{144+4*s}:{147+4*s}], v{vK}, s[{sIMG}:{sIMG+3}], s{so} offen offset:{(s&1)*2048}")
    a(f"  s_mov_b32 s{sT}, 4096\n  s_mov_b32 s{sT0}, 8192\n  s_mov_b32 s{sT1}, 12288\n  s_mov_b32 s{sTn}, 32768")
    for q in range(16):
        so = ["0", f"s{sT}", f"s{sT0}", f"s{sT1}"][q >> 2]
        a(f"  buffer_load_dwordx4 {ar(4*q,4)}, v{vK}, s[{sIMG}:{sIMG+3}], {so} offen offset:{(q&3)*1024}")
    a(f"  buffer_load_dwordx4 {ar(BE,4)}, v{vK}, s[{sIMG}:{sIMG+3}], s{sTn} offen")
    a(f"""
  v_lshlrev_b32 v{vN4}, 2, v{vT0}              ; n*4
  v_lshrrev_b32 v{vT1}, 5, v{vLane}            ; h
  v_lshlrev_b32 v{vOrd}, 4, v{vT1}
  v_add_u32 v{vOrd}, {ORDA}, v{vOrd}           ; ORDA + h*16
  v_cmp_eq_u32 vcc, 0, v{vT1}
  v_mov_b32 v{vT2}, 0x3f80
  v_mov_b32 v{vT3}, 0
  v_cndmask_b32 v{vT2}, v{vT3}, v{vT2}, vcc
  v_accvgpr_write_b32 a{ONE}, v{vT2}
  v_accvgpr_write_b32 a{ONE+1}, v{vT3}
  v_mov_b32 v{vT2}, 128
  v_mov_b32 v{vT3}, 256
  v_cndmask_b32 v{vEs}, v{vT2}, v{vT3}, vcc    ; stride: h? 128 : 256
  v_lshlrev_b32 v{vT2}, 3, v{vT0}              ; m*8 (+EA0)
  v_add_u32 v{vT3}, {K0}, v{vN4}               ; K0 + m*4
  v_cndmask_b32 v{vEb}, v{vT3}, v{vT2}, vcc
  v_lshrrev_b32 v{vT2}, 3, v{vLane}            ; o = l>>3
  v_lshlrev_b32 v{vKb}, 4, v{vT2}
  v_add_u32 v{vKb}, {K0}, v{vKb}               ; K0 + o*16
  v_and_b32 v{vT2}, 7, v{vLane}
  v_bfe_u32 v{vT3}, v{vLane}, 4, 1
  v_lshlrev_b32 v{vT3}, 2, v{vT3}
  v_xor_b32 v{vT2}, v{vT2}, v{vT3}
""")
    for i in range(4):
        a(f"  v_xor_b32 v{vI+2*i+1}, {i}, v{vT2}\n  v_lshlrev_b32 v{vI+2*i+1}, 4, v{vI+2*i+1}")
    a(f"""
  s_lshl_b32 s{sM0}, s{sW}, 12
  s_add_u32 s{sM0}, s{sM0}, {RING}
  v_and_b32 v{vT2}, 3, v{vT0}                  ; r
  v_bfe_u32 v{vT3}, v{vT0}, 3, 1
  v_xor_b32 v{vT3}, v{vT3}, v{vT1}
  v_lshl_or_b32 v{vT3}, v{vT3}, 2, v{vT2}
  v_lshlrev_b32 v{vT2}, 10, v{vT2}
  v_lshrrev_b32 v{vE}, 2, v{vT0}
  v_lshl_add_u32 v{vT2}, v{vE}, 7, v{vT2}
  v_add_u32 v{vT2}, s{sM0}, v{vT2}
""")
    for s in range(4):
        a(f"  v_xor_b32 v{vXA+s}, {s}, v{vT3}\n  v_lshl_add_u32 v{vXA+s}, v{vXA+s}, 4, v{vT2}")
    a(f"""
  v_mov_b32 v128, 0
  v_mov_b32 v129, 0
  v_mov_b32 v130, 0
  v_mov_b32 v131, 0
  v_lshrrev_b32 v{vT2}, 5, v0
  v_mul_u32_u24 v{vT2}, {ROWB}, v{vT2}
  v_lshl_add_u32 v{vT2}, v{vT0}, 4, v{vT2}
  v_add_u32 v{vT2}, {NODE+256}, v{vT2}
  v_add_u32 v{vT3}, {4*16*ROWB}, v{vT2}
""")
    for k in range(7):
        t = vT2 if k < 4 else vT3
        a(f"  ds_write_b128 v{t}, v[128:131] offset:{(k&3)*16*ROWB}")
    a("K2_RESET:")
    a(f"""
  v_mov_b32 v128, 0
  v_mov_b32 v129, 0
  v_mov_b32 v130, 0
  v_mov_b32 v131, 0
  v_mov_b32 v132, 1.0
  v_mov_b32 v133, 1.0
  v_mov_b32 v134, 1.0
  v_mov_b32 v135, 1.0
  v_lshlrev_b32 v{vT2}, 4, v0
""")
    for k in range(6):
        a(f"  ds_write_b128 v{vT2}, v[132:135] offset:{8192*k}")
    a(f"""
  v_cmp_gt_u32 vcc, {(MISC+64-CNT)//16}, v0
  s_and_saveexec_b64 s[{sSave}:{sSave+1}], vcc
  ds_write_b128 v{vT2}, v[128:131] offset:{CNT}
  s_mov_b64 exec, s[{sSave}:{sSave+1}]
  v_and_b32 v{vT0}, 15, v0
  v_add_u32 v{vT1}, 16, v{vT0}
  v_mov_b32 v{vT3}, 0xffff
  v_cmp_gt_u32 vcc, s{sSW}, v{vT0}
  v_add_u32 v{vT2}, s{sSB}, v{vT0}
  s_nop 0
  v_cndmask_b32 v136, v{vT3}, v{vT2}, vcc
  v_cmp_gt_u32 vcc, s{sSW}, v{vT1}
  v_add_u32 v{vT1}, s{sSB}, v{vT1}
  s_nop 0
  v_cndmask_b32 v137, v{vT3}, v{vT1}, vcc
  v_mul_u32_u24 v{vT2}, 12, v{vT2}
  v_lshrrev_b32 v{vT1}, 4, v0
  s_mov_b32 s{sTmp}, {8*RECB}
  v_mad_u32_u24 v138, v{vT1}, s{sTmp}, v{vT2}
  s_cmp_eq_u32 s{sFirstB}, 1
  s_cbranch_scc1 K2_OFW
  v_lshlrev_b32 v{vT2}, 5, v{vT1}
  buffer_load_dwordx4 v[{OF}:{OF+3}], v{vT2}, s[{sOFF}:{sOFF+3}], 0 offen
  buffer_load_dwordx4 v[{OF+4}:{OF+7}], v{vT2}, s[{sOFF}:{sOFF+3}], 0 offen offset:16
  s_waitcnt vmcnt(0)
K2_OFW:
  s_waitcnt vmcnt(25)
""")
    for i in range(8):
        a(f"  v_add_u32_sdwa v{VA+i}, v{OF+i}, v138 dst_sel:DWORD dst_unused:UNUSED_PAD src0_sel:WORD_0 src1_sel:DWORD")
        a(f"  v_cmp_lt_u32_sdwa s[{sM1+2*i}:{sM1+2*i+1}], v136, v{OF+i} src0_sel:DWORD src1_sel:WORD_1")
        a(f"  v_cmp_lt_u32_sdwa s[{sM2+2*i}:{sM2+2*i+1}], v137, v{OF+i} src0_sel:DWORD src1_sel:WORD_1")
    for i in range(8):
        a(f"  s_mov_b64 exec, s[{sM1+2*i}:{sM1+2*i+1}]")
        a(f"  buffer_load_dwordx3 v[{R(i)}:{R(i)+2}], v{VA+i}, s[{sREC}:{sREC+3}], s{sSeg+i} offen {ld}")
    for i in range(8):
        a(f"  s_mov_b64 exec, s[{sM2+2*i}:{sM2+2*i+1}]")
        a(f"  buffer_load_dwordx3 v[{R(8+i)}:{R(8+i)+2}], v{VA+i}, s[{sREC}:{sREC+3}], s{sSeg+i} offen offset:192 {ld}")
    a("  s_mov_b64 exec, -1")
    a(f"""
  s_lshr_b32 s{sTmp}, s2, 3
  s_mul_i32 s{sTmp}, s{sTmp}, 100096
  v_lshlrev_b32 v{vT2}, 7, v0
  s_add_u32 s{sTmp2}, s{sTmp}, 65536
""")
    for k in range(NPF):
        a(f"  buffer_load_dword a{88+k}, v{vT2}, s[{sXR}:{sXR+3}], s{sTmp if k == 0 else sTmp2} offen")
    a(f"""
  v_max3_u32 v{vT2}, v{OF}, v{OF+1}, v{OF+2}
  v_max3_u32 v{vT3}, v{OF+3}, v{OF+4}, v{OF+5}
  v_max3_u32 v{vT2}, v{OF+6}, v{OF+7}, v{vT2}
  v_max_u32 v{vT2}, v{vT2}, v{vT3}
  v_lshrrev_b32 v19, 16, v{vT2}
  s_cmp_eq_u32 s{sFirstB}, 0
  s_cbranch_scc1 K2_NOA
  s_waitcnt vmcnt({17+16+NPF})
""")
    for s in range(4):
        a(mfma16(128, ar(X+4*s,4), vr(144+4*s,4), "0" if s == 0 else "v[128:143]"))
    a(f"""
  s_lshr_b32 s{sTmp}, s{sW}, 1
  s_mul_i32 s{sTmp}, s{sTmp}, {32*ROWB}
  s_and_b32 s{sTmp2}, s{sW}, 1
  s_lshl_b32 s{sTmp2}, s{sTmp2}, 7
  s_add_u32 s{sTmp}, s{sTmp}, s{sTmp2}
  s_add_u32 s{sTmp}, s{sTmp}, {NODE}
  v_lshrrev_b32 v{vT1}, 5, v{vLane}
  v_mul_u32_u24 v{vT1}, {4*ROWB}, v{vT1}
  v_add3_u32 v{vT1}, v{vT1}, v{vN4}, s{sTmp}
  s_mov_b32 s{sTmp2}, {NLOG2E:#x}
  s_nop 3
""")
    for r in range(16):
        a(f"  v_mul_f32 v{128+r}, s{sTmp2}, v{128+r}")
    for r in range(16):
        a(f"  ds_write_b32 v{vT1}, v{128+r} offset:{(8*(r>>2)+(r&3))*ROWB}")
    a(f"""
K2_NOA:
  s_waitcnt lgkmcnt(0)
  s_barrier
  v_mov_b32 v{vT2}, {MISC}
  s_mov_b32 s{sSave}, 0x00010001
  s_mov_b32 s{sSave+1}, 0x00010001
  s_mov_b64 exec, s[{sSave}:{sSave+1}]
  ds_max_u32 v{vT2}, v19
  s_mov_b64 exec, -1
  s_waitcnt vmcnt({8+NPF})
""")
    for k in range(16):
        if k == 8: a(f"  s_waitcnt vmcnt({NPF})")
        m = (sM1 + 2*k) if k < 8 else (sM2 + 2*(k-8))
        a(f"  s_mov_b64 exec, s[{m}:{m+1}]")
        a(f"  v_lshrrev_b32 v{A4(k)}, 16, v{R(k)+2}")
        a(f"  ds_add_rtn_u32 v{R(k)+3}, v{A4(k)}, v{vOne} offset:{CNT}")
    a("  s_mov_b64 exec, -1")
    a(f"  s_waitcnt lgkmcnt(0)\n  s_barrier")
    a(f"  s_cmp_lg_u32 s{sW}, 0\n  s_cbranch_scc1 K2_NOSORT")
    c0, c1, q0, q1, b0, b1, p0, p1, hv, ex, e0, e1, m0_, m1_, t0_, t1_, u0, u1, l4 = range(128, 147)
    a(f"""
  v_lshlrev_b32 v{l4}, 2, v{vLane}
  ds_read2st64_b32 v[{c0}:{c1}], v{l4} offset0:{CNT//256} offset1:{CNT//256+1}
  s_waitcnt lgkmcnt(0)
  v_add_u32 v{q0}, 3, v{c0}
  v_add_u32 v{q1}, 3, v{c1}
  v_lshrrev_b32 v{q0}, 2, v{q0}
  v_lshrrev_b32 v{q1}, 2, v{q1}
  v_min_u32 v{b0}, 63, v{q0}
  v_min_u32 v{b1}, 63, v{q1}
  v_sub_u32 v{b0}, 63, v{b0}
  v_sub_u32 v{b1}, 63, v{b1}
  v_lshlrev_b32 v{b0}, 2, v{b0}
  v_lshlrev_b32 v{b1}, 2, v{b1}
  ds_add_rtn_u32 v{p0}, v{b0}, v{vOne} offset:{HIST}
  ds_add_rtn_u32 v{p1}, v{b1}, v{vOne} offset:{HIST}
  ds_read_b32 v{hv}, v{l4} offset:{HIST}
  v_lshl_or_b32 v{q0}, v{q0}, 8, v{vLane}
  v_add_u32 v{u1}, 64, v{vLane}
  v_lshl_or_b32 v{q1}, v{q1}, 8, v{u1}
  s_waitcnt lgkmcnt(0)
  v_mov_b32 v{ex}, v{hv}
""")
    dpp_scan(a, ex)
    a(f"""
  v_sub_u32 v{ex}, v{ex}, v{hv}
  ds_bpermute_b32 v{u0}, v{b0}, v{ex}
  ds_bpermute_b32 v{u1}, v{b1}, v{ex}
  s_waitcnt lgkmcnt(0)
  v_add_lshl_u32 v{u0}, v{u0}, v{p0}, 2
  v_add_lshl_u32 v{u1}, v{u1}, v{p1}, 2
  ds_write_b32 v{u0}, v{q0} offset:{ORDQ}
  ds_write_b32 v{u1}, v{q1} offset:{ORDQ}
  ds_read2st64_b32 v[{e0}:{e1}], v{l4} offset0:{ORDQ//256} offset1:{ORDQ//256+1}
  s_waitcnt lgkmcnt(0)
  v_mov_b32 v{m0_}, v{e0}
  v_mov_b32 v{m1_}, v{e1}
""")
    for mode in ("quad_perm:[1,0,3,2]", "quad_perm:[2,3,0,1]", "row_half_mirror"):
        a(f"  s_nop 0\n  v_max_u32_dpp v{m0_}, v{m0_}, v{m0_} {mode} row_mask:0xf bank_mask:0xf")
        a(f"  v_max_u32_dpp v{m1_}, v{m1_}, v{m1_} {mode} row_mask:0xf bank_mask:0xf")
    a(f"""
  v_lshrrev_b32 v{m0_}, 8, v{m0_}
  v_lshrrev_b32 v{m1_}, 8, v{m1_}
  v_mov_b32 v{t0_}, v{m0_}
  v_mov_b32 v{t1_}, v{m1_}
""")
    for mode in ("row_shr:8 row_mask:0xf", "row_bcast:15 row_mask:0xa", "row_bcast:31 row_mask:0xc"):
        a(f"  s_nop 0\n  v_add_u32_dpp v{t0_}, v{t0_}, v{t0_} {mode} bank_mask:0xf")
        a(f"  v_add_u32_dpp v{t1_}, v{t1_}, v{t1_} {mode} bank_mask:0xf")
    a(f"""
  s_nop 0
  v_readlane_b32 s{sTmp}, v{t0_}, 63
  v_sub_u32 v{t0_}, v{t0_}, v{m0_}             ; TS of group (lanes)
  v_sub_u32 v{m1_}, v{t1_}, v{m1_}
  v_add_u32 v{t1_}, s{sTmp}, v{t1_}            ; inclusive
  v_add_u32 v{m1_}, s{sTmp}, v{m1_}            ; TS of groups 8..15
  ; TSV[g] : lanes with (l&7)==0 ; T at lane 63 -> TSV[16]
  v_lshrrev_b32 v{u0}, 1, v{vLane}             ; (l>>3)*4 when l&7==0
  s_mov_b32 s{sSave}, 0x01010101
  s_mov_b32 s{sSave+1}, 0x01010101
  s_mov_b64 exec, s[{sSave}:{sSave+1}]
  ds_write2_b32 v{u0}, v{t0_}, v{m1_} offset0:0 offset1:8
""".replace("offset0:0 offset1:8", "offset0:0 offset1:8"))
    a.lines[-1] = f"  v_add_u32 v{u0}, {TSV}, v{u0}\n  ds_write2_b32 v{u0}, v{t0_}, v{m1_} offset0:0 offset1:8"
    a(f"""
  s_mov_b32 s{sSave}, 0
  s_mov_b32 s{sSave+1}, 0x80000000
  s_mov_b64 exec, s[{sSave}:{sSave+1}]
  v_mov_b32 v{u1}, {TSV+64}
  ds_write_b32 v{u1}, v{t1_}
  s_mov_b64 exec, -1
  v_and_b32 v{u0}, 7, v{vLane}
  v_lshlrev_b32 v{u1}, 4, v{u0}
  v_lshl_add_u32 v{t0_}, v{t0_}, 7, v{u1}
  v_lshl_add_u32 v{m1_}, v{m1_}, 7, v{u1}
  v_and_b32 v{e0}, 0xff, v{e0}
  v_and_b32 v{e1}, 0xff, v{e1}
  v_lshlrev_b32 v{c0}, 2, v{e0}
  v_lshlrev_b32 v{c1}, 2, v{e1}
  ds_write_b32 v{c0}, v{t0_} offset:{NB}
  ds_write_b32 v{c1}, v{m1_} offset:{NB}
  v_min_u32 v{e0}, 98, v{e0}
  v_min_u32 v{e1}, 98, v{e1}
  v_mov_b32 v{c0}, {NODE}
  s_mov_b32 s{sTmp}, {ROWB}
  v_mad_u32_u24 v{e0}, v{e0}, s{sTmp}, v{c0}
  v_mad_u32_u24 v{e1}, v{e1}, s{sTmp}, v{c0}
  v_and_b32 v{c0}, 1, v{vLane}
  v_lshlrev_b32 v{c0}, 4, v{c0}
  v_bfe_u32 v{c1}, v{vLane}, 1, 2
  v_lshl_add_u32 v{c0}, v{c1}, 2, v{c0}
  v_and_b32 v{c1}, 56, v{vLane}
  v_lshl_add_u32 v{c0}, v{c1}, 2, v{c0}
  v_add_u32 v{c0}, {ORDA}, v{c0}
  ds_write2st64_b32 v{c0}, v{e0}, v{e1} offset0:0 offset1:1
K2_NOSORT:
  s_mov_b32 s{sTmp}, -28
""")
    for k in range(16):
        a(f"  v_and_b32 v{vT0}, 3, v{R(k)+3}")
        a(f"  v_lshlrev_b32 v{R(k)+3}, 5, v{R(k)+3}")
        a(f"  v_mad_i32_i24 v{R(k)+3}, v{vT0}, s{sTmp}, v{R(k)+3}")
        a(f"  v_and_b32 v{R(k)+2}, 0x7fff, v{R(k)+2}")
    a(f"""
  v_min_u32 v{vT0}, 16, v{vLane}
  v_lshlrev_b32 v{vT0}, 2, v{vT0}
  v_mov_b32 v{vT1}, {MISC}
  s_waitcnt lgkmcnt(0)
  s_barrier
  ds_read_b32 v{vTSV}, v{vT0} offset:{TSV}
  ds_read_b32 v{vT2}, v{vT1}
""")
    for k in range(16):
        m = (sM1 + 2*k) if k < 8 else (sM2 + 2*(k-8))
        a(f"  s_mov_b64 exec, s[{m}:{m+1}]")
        a(f"  ds_read_b32 v{A4(k)}, v{A4(k)} offset:{NB}")
    a(f"""
  s_mov_b64 exec, -1
  s_waitcnt lgkmcnt(15)
  s_waitcnt lgkmcnt(0)
  v_readlane_b32 s{sT}, v{vTSV}, 16
  v_readfirstlane_b32 s{sMaxC}, v{vT2}
  s_cmp_le_u32 s{sT}, {CAPT}
  s_cbranch_scc1 K2_FIT
  s_lshr_b32 s{sSW}, s{sSW}, 1
  s_mov_b32 s{sFirstB}, 0
  s_barrier
  s_branch K2_RESET
K2_FIT:
""")
    for k in range(16):
        m = (sM1 + 2*k) if k < 8 else (sM2 + 2*(k-8))
        a(f"  s_mov_b64 exec, s[{m}:{m+1}]")
        a(f"  v_add_u32 v{A4(k)}, v{A4(k)}, v{R(k)+3}")
        a(f"  v_lshlrev_b32 v{R(k)+3}, 1, v{A4(k)}")
        a(f"  ds_write_b32 v{A4(k)}, v{R(k)+2} offset:{K0}")
        a(f"  ds_write_b64 v{R(k)+3}, v[{R(k)}:{R(k)+1}] offset:{EA0}")
    a(f"""
  s_mov_b64 exec, -1
  s_mul_i32 s{sT0}, s{sT}, s{sW}
  s_add_u32 s{sT1}, s{sT0}, s{sT}
  s_lshr_b32 s{sT0}, s{sT0}, 3
  s_lshr_b32 s{sT1}, s{sT1}, 3
  v_cmp_ge_u32 vcc, s{sT0}, v{vTSV}
  s_and_b32 s{sTmp}, vcc_lo, 0xffff
  s_bcnt1_i32_b32 s{sG0}, s{sTmp}
  s_sub_u32 s{sG0}, s{sG0}, 1
  s_add_u32 s{sTmp}, s{sG0}, 1
  v_readlane_b32 s{sTmp2}, v{vTSV}, s{sG0}     ; TS[g0]
  v_readlane_b32 s{sContEnd}, v{vTSV}, s{sTmp} ; TS[g0+1]
  s_mov_b32 s{sCont}, 0
  s_mov_b32 s{sSlow}, 0
  s_mov_b32 s{sGam}, s{sG0}
  s_mov_b32 s{sCur}, s{sT0}
  s_waitcnt lgkmcnt(0)
  s_barrier
  s_cmp_ge_u32 s{sT0}, s{sT1}
  s_cbranch_scc1 K2_LOOPDONE
  s_cmp_eq_u32 s{sTmp2}, s{sT0}
  s_cbranch_scc1 K2_GO
  s_mov_b32 s{sCont}, 1
  s_cmp_lt_u32 s{sContEnd}, s{sT1}
  s_cbranch_scc0 K2_ALLCONT
  s_add_u32 s{sGam}, s{sG0}, 1
  s_mov_b32 s{sCur}, s{sContEnd}
  s_branch K2_GO
K2_ALLCONT:
  s_cmp_gt_u32 s{sContEnd}, s{sT1}
  s_cselect_b32 s{sSlow}, 1, 0
  s_mov_b32 s{sContEnd}, s{sT1}
  s_mov_b32 s{sCont}, 2
K2_GO:
  s_lshl_b32 s{sTmp}, s{sCur}, 7
  v_add_u32 v{vK}, s{sTmp}, v{vKb}
""")
    for i in range(4):
        a(f"  ds_read_b32 v{vI+2*i}, v{vK} offset:{4*i}")
    next_tile(a, sTn, sCur)
    a(f"""  s_lshl_b32 s{sTmp}, s{sTn}, 7
  v_add_u32 v{vK}, s{sTmp}, v{vKb}
  v_mad_u32_u24 v{vE}, v{vEs}, s{sCur}, v{vEb}
  s_mov_b32 m0, s{sM0}
  s_waitcnt lgkmcnt(0)""")
    for i in range(4):
        a(dma(i))
        if i < 3: a(f"  s_add_u32 m0, s{sM0}, {1024*(i+1)}\n  s_nop 0")
    for i in range(4):
        a(f"  ds_read_b32 v{vI+2*i}, v{vK} offset:{4*i}")
    a(f"""
K2_RUN:
  s_lshl_b32 s{sTmp}, s{sGam}, 5
  v_add_u32 v{vT0}, s{sTmp}, v{vOrd}
  ds_read_b128 v[{vNA}:{vNA+3}], v{vT0}
  s_add_u32 s{sTmp}, s{sGam}, 1
  v_readlane_b32 s{sEnd}, v{vTSV}, s{sTmp}
  s_mov_b32 s{sFst}, 1
  s_min_u32 s{sEnd}, s{sEnd}, s{sT1}
  s_sub_u32 s{sRun}, s{sEnd}, s{sCur}
  s_waitcnt lgkmcnt(0)
""")
    for g in range(4):
        a(f"  v_add_u32 v{vNA+g}, v{vNA+g}, v{vN4}")
    for ct in range(2):
        for g in range(4):
            for hf in range(2):
                r = CI + 16*ct + 4*g + 2*hf
                a(f"  ds_read2_b32 v[{r}:{r+1}], v{vNA+g} offset0:{32*ct} offset1:{32*ct}")
    a("K2_TILE:")
    tile_body(a)
    a(f"  s_cmp_eq_u32 s{sFst}, 0\n  s_cbranch_scc1 K2_PN")
    p_phase(a, True)
    a(f"  s_mov_b32 s{sFst}, 0\n  s_branch K2_PE\nK2_PN:")
    p_phase(a, False)
    a(f"""K2_PE:
  s_sub_u32 s{sRun}, s{sRun}, 1
  s_cmp_lg_u32 s{sRun}, 0
  s_cbranch_scc1 K2_TILE
  s_cmp_eq_u32 s{sCont}, 2
  s_cbranch_scc1 K2_LOOPDONE
""")
    flush_rmw(a)
    a("  s_waitcnt lgkmcnt(0)")
    flush_rmw2(a)
    a(f"""
  s_add_u32 s{sGam}, s{sGam}, 1
  s_mov_b32 s{sCur}, s{sEnd}
  s_cmp_lt_u32 s{sEnd}, s{sT1}
  s_cbranch_scc1 K2_RUN
  s_cmp_eq_u32 s{sCont}, 0
  s_cbranch_scc1 K2_LOOPDONE
  s_mov_b32 s{sCont}, 2
  s_mov_b32 s{sGam}, s{sG0}
  s_mov_b32 s{sCur}, s{sT0}
  s_branch K2_RUN
K2_LOOPDONE:
  s_add_u32 s{sSB}, s{sSB}, s{sSW}
  v_and_b32 v{vT0}, 15, v{vLane}
  s_lshl_b32 s{sTmp}, s{sW}, 12
  s_add_u32 s{sTmp}, s{sTmp}, s2
  v_lshlrev_b32 v{vT2}, 8, v{vT0}
  v_add_u32 v{vT2}, s{sTmp}, v{vT2}            ; idx = (16w + (m&15))*256 + b
  v_lshrrev_b32 v{vT1}, 5, v{vLane}
  v_lshlrev_b32 v{vT3}, 6, v{vT1}
  v_lshlrev_b32 v{vK}, 4, v{vLane}
  s_lshl_b32 s{sTmp}, s{sTmp}, 7
  v_lshlrev_b32 v{vE}, 17, v{vT1}
  v_add3_u32 v{vE}, v{vE}, v{vN4}, s{sTmp}
  s_waitcnt vmcnt(0)
  s_cmp_gt_u32 s{sMaxC}, s{sSB}
  s_cbranch_scc1 K2_NOFL
""")
    for s in range(4):
        a(f"  buffer_load_dwordx4 {ar(X+4*s,4)}, v[{vT2}:{vT3}], s[{sXI}:{sXI+3}], 0 idxen offen offset:{16*s}")
    a(f"  s_mov_b32 s{sTmp}, {3*8192}\n  s_mov_b32 s{sTmp2}, {3*8192+4096}")
    for q in range(8):
        so = sTmp if q < 4 else sTmp2
        a(f"  buffer_load_dwordx4 {ar(4*q,4)}, v{vK}, s[{sIMG}:{sIMG+3}], s{so} offen offset:{(q&3)*1024}")
    for rr in range(8):
        a(f"  s_mov_b32 s{sSeg+rr}, {(8*(rr>>2)+(rr&3))*32768}")
        a(f"  buffer_load_dword v{CI+rr}, v{vE}, s[{sXR}:{sXR+3}], s{sSeg+rr} offen")
    a(f"""
K2_NOFL:
  s_cmp_eq_u32 s{sSlow}, 0
  s_cbranch_scc1 K2_NS
  v_mov_b32 v{vT0}, {MISC+4}
  ds_write_b32 v{vT0}, v{vOne}
K2_NS:
  s_waitcnt lgkmcnt(0)
  s_barrier
  v_mov_b32 v{vT0}, {MISC+4}
  ds_read_b32 v{vT1}, v{vT0}
  s_waitcnt lgkmcnt(0)
  v_readfirstlane_b32 s{sSlow}, v{vT1}
  s_mov_b32 s{sRun}, 1
K2_MERGE:
  s_cmp_eq_u32 s{sCont}, 0
  s_cbranch_scc1 K2_MSKIP
  s_cmp_eq_u32 s{sSlow}, 0
  s_cbranch_scc1 K2_MDO
  s_cmp_lg_u32 s{sRun}, s{sW}
  s_cbranch_scc1 K2_MSKIP
K2_MDO:
""")
    flush_rmw(a)
    a("  s_waitcnt lgkmcnt(0)")
    flush_rmw2(a)
    a(f"""
K2_MSKIP:
  s_waitcnt lgkmcnt(0)
  s_barrier
  s_cmp_eq_u32 s{sSlow}, 0
  s_cbranch_scc1 K2_MEND
  s_add_u32 s{sRun}, s{sRun}, 1
  s_cmp_lt_u32 s{sRun}, 8
  s_cbranch_scc1 K2_MERGE
K2_MEND:
  s_mov_b32 s{sFirstB}, 0
  s_cmp_gt_u32 s{sMaxC}, s{sSB}
  s_cbranch_scc1 K2_RESET
  s_mul_i32 s{sTmp}, s{sW}, {16*ROWB}
  s_add_u32 s{sTmp}, s{sTmp}, {NODE}
  v_lshrrev_b32 v{vT1}, 5, v{vLane}
  v_mul_u32_u24 v{vT1}, {4*ROWB}, v{vT1}
  v_add3_u32 v{vT1}, v{vT1}, v{vN4}, s{sTmp}
  v_add_u32 v{vT2}, 128, v{vT1}
""")
    for rr in range(8):
        ro = 3 * (8*(rr>>2) + (rr&3))
        a(f"  ds_read2st64_b32 v[{AC+4*rr}:{AC+4*rr+1}], v{vT1} offset0:{ro+1} offset1:{ro+2}")
        a(f"  ds_read2st64_b32 v[{AC+4*rr+2}:{AC+4*rr+3}], v{vT2} offset0:{ro+1} offset1:{ro+2}")
    a("  s_waitcnt vmcnt(8)")
    for ct in range(2):
        for s in range(4):
            a(mfma16(G+16*ct, ar(X+4*s,4), ar((s*2+ct)*4,4), "0" if s == 0 else f"v[{G+16*ct}:{G+16*ct+15}]"))
    a(f"  s_mov_b32 s{sTmp}, 0x358637bd\n  s_waitcnt lgkmcnt(0)")
    for rr in range(8):
        for ct in range(2):
            d = AC + 4*rr + 2*ct + 1
            a(f"  v_add_f32 v{d}, s{sTmp}, v{d}")
    for rr in range(8):
        for ct in range(2):
            d = AC + 4*rr + 2*ct + 1
            a(f"  v_rcp_f32 v{d}, v{d}")
    a("  s_waitcnt vmcnt(0)")
    for rr in range(8):
        for ct in range(2):
            n = AC + 4*rr + 2*ct
            a(f"  v_fma_f32 v{n}, v{n}, v{n+1}, v{G+16*ct+rr}")
            a(f"  v_max_f32 v{n}, 0, v{n}")
        a(f"  v_lshlrev_b32 v{AC+4*rr+1}, 16, v{CI+rr}")
        a(f"  v_and_b32 v{AC+4*rr+3}, 0xffff0000, v{CI+rr}")
        a(f"  v_add_f32 v{AC+4*rr}, v{AC+4*rr}, v{AC+4*rr+1}")
        a(f"  v_add_f32 v{AC+4*rr+2}, v{AC+4*rr+2}, v{AC+4*rr+3}")
        a(f"  v_cvt_pk_bf16_f32 v{AC+4*rr}, v{AC+4*rr}, v{AC+4*rr+2}")
        a(f"  buffer_store_dword v{AC+4*rr}, v{vE}, s[{sOUT}:{sOUT+3}], s{sSeg+rr} offen")
    a("K2_END:\n  s_endpgm")

def kd(name, vgpr, accum, sgpr):
    return f"""
.amdhsa_kernel {name}
  .amdhsa_next_free_vgpr {vgpr}
  .amdhsa_next_free_sgpr {sgpr}
  .amdhsa_accum_offset {accum}
  .amdhsa_group_segment_fixed_size 0
  .amdhsa_kernarg_size 96
  .amdhsa_user_sgpr_count 2
  .amdhsa_user_sgpr_kernarg_segment_ptr 1
  .amdhsa_system_sgpr_workgroup_id_x 1
  .amdhsa_float_denorm_mode_32 3
.end_amdhsa_kernel
"""

def main():
    ref = open(f"cdna_kernels/{NAME}.s.ref").read().split("\n")
    hdr = [l for l in ref if l.startswith(";") and "@launch" not in l and "Override" not in l and "grid=ceil" not in l]
    a = Asm()
    a("\n".join(hdr))
    a(f"; @launch kernel=part_kernel grid=({NP+5},1,1) block=(800,1,1) lds={LDS1}")
    a(f"; @launch kernel=main_kernel grid=(256,1,1) block=(512,1,1) lds={LDS2}")
    a('.amdgcn_target "amdgcn-amd-amdhsa--gfx950"\n.text')
    gen_k1(a)
    gen_k2(a)
    a('.section .rodata,"a"\n.p2align 6')
    a(kd("part_kernel", 56, 56, 32))
    a(".p2align 6")
    a(kd("main_kernel", 252, 160, 100))
    txt = a.text()
    lines = txt.split("\n")
    for p in check_hazards(lines): print("HAZARD", p)
    b = Asm(); tile_body(b); p_phase(b, False); tile_body(b); p_phase(b, True); flush_rmw(b); flush_rmw2(b); tile_body(b)
    for p in check_hazards(b.text().split("\n"), "loop"): print("HAZARD", p)
    open(sys.argv[1], "w").write(txt)

main()
```

```python
import sys
from asmlib import *

NAME = "gather_scatter__edge_featured_mpnn_gatedgcn__graph"
NP, CH = 250, 3200
RECB = CH * 12
OFFS = 0xA00000
IMG = OFFS + 0x40000
NLOG2E = 0xBFB8AA3B
CAPT = 128
EA0, K0 = 0, 32768
CNT, NB, HIST, ORDQ, ORDA, TSV, MISC = 49152, 49664, 50176, 50432, 50944, 51456, 51584
RING = 52224
NODE = RING + 8 * 4096
ROWB = 768
LDS2 = NODE + 99 * ROWB
K1_CNT, K1_START = 38400, 39424
LDS1 = 40448

OPT = dict(st_flags="", ld_flags="", npf=2, stamp=0, nodma=0, plain=0, prio=0, burst=0, add1=0, rr=0)
for a_ in sys.argv[2:]:
    k_, v_ = a_.split("=", 1)
    OPT[k_] = int(v_) if v_.lstrip("-").isdigit() else v_

STAMP_OFF = 0x1000000
def stamp(a, idx, vreg=160, s=98, real=False):
    if not OPT["stamp"]: return
    a(f"  s_mem{'real' if real else ''}time s[{s}:{s+1}]\n  s_waitcnt lgkmcnt(0)\n  v_writelane_b32 v{vreg}, s{s}, {idx}")
def stamp_out(a, ws, wave, base, vreg=160, tmp=161, wpw=8):
    if not OPT["stamp"]: return
    a(f"""  s_mul_i32 s98, s2, {wpw}
  s_add_u32 s98, s98, s{wave}
  s_lshl_b32 s98, s98, 6
  s_add_u32 s98, s98, {base}
  v_and_b32 v{tmp}, 63, v0
  v_lshlrev_b32 v{tmp}, 2, v{tmp}
  v_add_u32 v{tmp}, s98, v{tmp}
  s_mov_b64 exec, 0xffff
  global_store_dword v{tmp}, v{vreg}, s[{ws}:{ws+1}]""")

def dpp_scan(a, v):
    for m in ("row_shr:1", "row_shr:2", "row_shr:4", "row_shr:8"):
        a(f"  s_nop 1\n  v_add_u32_dpp v{v}, v{v}, v{v} {m} row_mask:0xf bank_mask:0xf")
    a(f"  s_nop 1\n  v_add_u32_dpp v{v}, v{v}, v{v} row_bcast:15 row_mask:0xa bank_mask:0xf")
    a(f"  s_nop 1\n  v_add_u32_dpp v{v}, v{v}, v{v} row_bcast:31 row_mask:0xc bank_mask:0xf")

def gen_k1(a):
    st = OPT["st_flags"]
    a(f"""
.globl part_kernel
.p2align 8
.type part_kernel,@function
part_kernel:
  s_cmp_ge_u32 s2, {NP+5}
  s_cbranch_scc1 K1_END
  s_load_dwordx8 s[4:11], s[0:1], 8
  s_load_dwordx8 s[12:19], s[0:1], 40
  s_load_dwordx2 s[20:21], s[0:1], 88
  v_lshrrev_b32 v33, 6, v0
  v_lshlrev_b32 v1, 4, v0
  v_readfirstlane_b32 s23, v33
  s_cmp_ge_u32 s2, {NP}
  s_cbranch_scc1 K1_PACK
@T0@
  s_mul_i32 s22, s2, {CH*4}
  v_add_u32 v2, s22, v1
  v_lshlrev_b32 v3, 1, v2
  v_mov_b32 v32, 1
  v_mov_b32 v36, 0
  v_mov_b32 v37, 0
  v_mov_b32 v38, 0
  v_mov_b32 v39, 0
  s_waitcnt lgkmcnt(0)
  global_load_dwordx4 v[4:7], v2, s[8:9]
  global_load_dwordx4 v[8:11], v2, s[6:7]
  global_load_dwordx4 v[12:15], v3, s[4:5]
  global_load_dwordx4 v[16:19], v3, s[4:5] offset:16
  s_cmp_lg_u32 s23, 0
  s_cbranch_scc1 K1_A
  ds_write_b128 v1, v[36:39] offset:{K1_CNT}
  s_waitcnt lgkmcnt(0)
K1_A:
  s_barrier
@T2@
  s_waitcnt vmcnt(3)
@T3@
""")
    for k in range(4):
        a(f"  v_lshlrev_b32_sdwa v{20+k}, 2, v{4+k} dst_sel:DWORD dst_unused:UNUSED_PAD src0_sel:DWORD src1_sel:BYTE_0")
    for k in range(4):
        a(f"  ds_add_rtn_u32 v{24+k}, v{20+k}, v32 offset:{K1_CNT}")
    a("  s_waitcnt vmcnt(2)")
    for k in range(4):
        a(f"  v_lshrrev_b32 v{4+k}, 8, v{4+k}")
        a(f"  v_lshl_or_b32 v{8+k}, v{4+k}, 18, v{8+k}")
    a(f"""
  s_waitcnt lgkmcnt(0)
  s_barrier
  s_cmp_lg_u32 s23, 0
  s_cbranch_scc1 K1_B
  ds_read_b128 v[36:39], v1 offset:{K1_CNT}
  s_waitcnt lgkmcnt(0)
  v_add_u32 v41, v36, v37
  v_add_u32 v42, v41, v38
  v_add_u32 v43, v42, v39
  v_mov_b32 v44, v43
""")
    dpp_scan(a, 44)
    a(f"""
  v_sub_u32 v45, v44, v43
  v_add_u32 v47, v45, v36
  v_add_u32 v48, v45, v41
  v_add_u32 v49, v45, v42
  v_mul_u32_u24 v46, 12, v45
  v_mul_u32_u24 v47, 12, v47
  v_mul_u32_u24 v48, 12, v48
  v_mul_u32_u24 v49, 12, v49
  ds_write_b128 v1, v[46:49] offset:{K1_START}
  v_lshl_or_b32 v50, v36, 16, v46
  v_lshl_or_b32 v51, v37, 16, v47
  v_lshl_or_b32 v52, v38, 16, v48
  v_lshl_or_b32 v53, v39, 16, v49
  s_lshl_b32 s24, s2, 2
  s_add_u32 s24, s24, {OFFS}
  v_lshlrev_b32 v54, 12, v0
  v_add_u32 v54, s24, v54
  global_store_dword v54, v50, s[20:21] {st}
  global_store_dword v54, v51, s[20:21] offset:1024 {st}
  global_store_dword v54, v52, s[20:21] offset:2048 {st}
  global_store_dword v54, v53, s[20:21] offset:3072 {st}
  s_waitcnt lgkmcnt(0)
K1_B:
  s_barrier
@T4@
""")
    for k in range(4):
        a(f"  ds_read_b32 v{28+k}, v{20+k} offset:{K1_START}")
    for k in range(4):
        a(f"  s_waitcnt lgkmcnt({3-k})" + (" vmcnt(0)" if k == 0 else ""))
        a(f"  v_mad_u32_u24 v{28+k}, v{24+k}, 12, v{28+k}")
    for k in range(4):
        a(f"  ds_write2_b32 v{28+k}, v{12+2*k}, v{13+2*k} offset0:0 offset1:1")
        a(f"  ds_write_b32 v{28+k}, v{8+k} offset:8")
    a(f"""
  s_mul_i32 s22, s2, {RECB}
  v_add_u32 v2, s22, v1
  v_add_u32 v3, {12800}, v2
  v_add_u32 v4, {25600}, v2
  s_waitcnt lgkmcnt(0)
  s_barrier
  ds_read_b128 v[8:11], v1
  ds_read_b128 v[12:15], v1 offset:12800
  ds_read_b128 v[16:19], v1 offset:25600
  s_waitcnt lgkmcnt(2)
  global_store_dwordx4 v2, v[8:11], s[20:21] {st}
  s_waitcnt lgkmcnt(1)
  global_store_dwordx4 v3, v[12:15], s[20:21] {st}
  s_waitcnt lgkmcnt(0)
  global_store_dwordx4 v4, v[16:19], s[20:21] {st}
@T5@
  s_waitcnt vmcnt(0)
@T6@
@T15@
@OUT1@
  s_endpgm
K1_PACK:
  s_cmp_ge_u32 s23, 4
  s_cbranch_scc1 K1_END
  s_waitcnt lgkmcnt(0)
  v_and_b32 v2, 31, v0
  v_bfe_u32 v3, v0, 5, 1
  v_and_b32 v34, 63, v0
  s_cmp_eq_u32 s2, {NP+4}
  s_cbranch_scc1 K1_PACKC
  s_mov_b32 s24, s12
  s_mov_b32 s25, s13
  s_mov_b32 s26, {NLOG2E:#x}
  s_cmp_eq_u32 s2, {NP}
  s_cbranch_scc1 K1_P1
  s_mov_b32 s26, 1.0
  s_mov_b32 s24, s18
  s_mov_b32 s25, s19
  s_cmp_eq_u32 s2, {NP+1}
  s_cbranch_scc1 K1_P1
  s_mov_b32 s24, s10
  s_mov_b32 s25, s11
  s_cmp_eq_u32 s2, {NP+2}
  s_cbranch_scc1 K1_P1
  s_mov_b32 s24, s16
  s_mov_b32 s25, s17
K1_P1:
  v_lshlrev_b32 v4, 12, v3
  v_lshl_add_u32 v4, v2, 2, v4
  s_lshl_b32 s27, s23, 10
  v_add_u32 v4, s27, v4
""")
    for j in range(8):
        a(f"  global_load_dword v{8+j}, v4, s[24:25] offset:{128*j}")
    a("  s_waitcnt vmcnt(0)")
    for j in range(8):
        a(f"  v_lshlrev_b32 v{16+j}, 16, v{8+j}")
        a(f"  v_and_b32 v{24+j}, 0xffff0000, v{8+j}")
        a(f"  v_mul_f32 v{16+j}, s26, v{16+j}")
        a(f"  v_mul_f32 v{24+j}, s26, v{24+j}")
    for jj in range(4):
        a(f"  v_cvt_pk_bf16_f32 v{36+jj}, v{16+2*jj}, v{17+2*jj}")
        a(f"  v_cvt_pk_bf16_f32 v{40+jj}, v{24+2*jj}, v{25+2*jj}")
    a(f"""
  s_sub_u32 s27, s2, {NP}
  s_lshl_b32 s27, s27, 2
  s_add_u32 s27, s27, s23
  s_lshl_b32 s27, s27, 11
  s_add_u32 s27, s27, {IMG}
  v_lshlrev_b32 v5, 4, v34
  v_add_u32 v5, s27, v5
  global_store_dwordx4 v5, v[36:39], s[20:21] {st}
  global_store_dwordx4 v5, v[40:43], s[20:21] offset:1024 {st}
  s_endpgm
K1_PACKC:
  s_cmp_lg_u32 s23, 0
  s_cbranch_scc1 K1_END
  v_lshlrev_b32 v4, 2, v2
  s_mov_b32 s26, {NLOG2E:#x}
""")
    for j in range(4):
        a(f"  global_load_dword v{8+j}, v4, s[14:15] offset:{128*j}")
    a("  s_waitcnt vmcnt(0)")
    for j in range(4):
        a(f"  v_lshlrev_b32 v{16+j}, 16, v{8+j}")
        a(f"  v_and_b32 v{24+j}, 0xffff0000, v{8+j}")
        a(f"  v_mul_f32 v{16+j}, s26, v{16+j}")
        a(f"  v_mul_f32 v{24+j}, s26, v{24+j}")
    a(f"""
  v_cvt_pk_bf16_f32 v36, v16, v17
  v_cvt_pk_bf16_f32 v37, v18, v19
  v_cvt_pk_bf16_f32 v38, v24, v25
  v_cvt_pk_bf16_f32 v39, v26, v27
  v_cmp_eq_u32 vcc, 0, v3
  v_mov_b32 v40, 0x71800000
  v_mov_b32 v41, 0
  v_cndmask_b32 v36, v40, v36, vcc
  v_cndmask_b32 v37, v41, v37, vcc
  v_cndmask_b32 v38, v40, v38, vcc
  v_cndmask_b32 v39, v41, v39, vcc
  v_lshlrev_b32 v5, 4, v34
  v_add_u32 v5, {IMG+32768}, v5
  global_store_dwordx4 v5, v[36:39], s[20:21] {st}
K1_END:
  s_endpgm
""")

G, HV, AC, CI = 32, 64, 96, 128
WB, WV, BE, ONE, EOP, X = 0, 32, 64, 68, 70, 72
vXA = 1
vI = 6
vEs, vEb, vE, vKb, vK = 14, 15, 16, 17, 18
vNA = 20
vN4, vTSV, vOrd, vLane = 24, 25, 26, 27
vT0, vT1, vT2, vT3 = 28, 29, 30, 31
vOne = 5
sXI, sXR, sOUT, sREC, sOFF, sIMG = 8, 12, 16, 20, 24, 28
sM1 = 32
sM2 = 48
sSeg = 64
sW, sSB, sSW, sFirstB = 72, 73, 74, 75
sT, sT0, sT1, sTn, sTn2, sRun, sGam, sFst, sCont, sContEnd, sG0, sM0, sMaxC, sTmp, sTmp2, sEnd, sCur = range(76, 93)
sSlow = 93
sSave = 94

def mfma16(d, A, B, C):
    return f"  v_mfma_f32_32x32x16_bf16 v[{d}:{d+15}], {A}, {B}, {C}"
def mfma8(d, A, B, C):
    return f"  v_mfma_f32_32x32x8_bf16 v[{d}:{d+15}], {A}, {B}, {C}"

def flush_rmw(a):
    for ct in range(2):
        for g in range(4):
            t = G + (ct*4+g)*2
            a(f"  ds_read2_b32 v[{t}:{t+1}], v{vNA+g} offset0:{64+32*ct} offset1:{128+32*ct}")
    for q in range(8):
        r = AC + q*4
        a(f"  v_add_f32 v{r}, v{r}, v{r+1}")
        a(f"  v_add_f32 v{r+2}, v{r+2}, v{r+3}")

def flush_rmw2(a):
    for q in range(8):
        r = AC + q*4; t = G + q*2
        a(f"  v_add_f32 v{r}, v{r}, v{t}")
        a(f"  v_add_f32 v{r+2}, v{r+2}, v{t+1}")
    for ct in range(2):
        for g in range(4):
            r = AC + (ct*4+g)*4
            a(f"  ds_write2_b32 v{vNA+g}, v{r}, v{r+2} offset0:{64+32*ct} offset1:{128+32*ct}")

def next_tile(a, dst, src):
    a(f"""  s_add_u32 s{dst}, s{src}, 1
  s_cmp_eq_u32 s{dst}, s{sT1}
  s_cselect_b32 s{dst}, s{sT0}, s{dst}""")

def dma(i):
    if OPT["nodma"]: return "  s_nop 0"
    return f"  buffer_load_dwordx4 v[{vI+2*i}:{vI+2*i+1}], s[{sXI}:{sXI+3}], 0 idxen offen lds"

def tile_body_rr(a):
    XR = lambda s: ar(X+4*s, 4)
    wb = lambda s, ct: ar(WB+(s*2+ct)*4, 4)
    wv = lambda s, ct: ar(WV+(s*2+ct)*4, 4)
    G0, G1, H0, H1 = G, G+16, HV, HV+16
    g = lambda d: f"v[{d}:{d+15}]"
    pr = OPT["prio"]; rr = OPT["rr"]
    E0 = mfma8(G0, ar(EOP,2), ar(BE,2), g(CI)); E1 = mfma8(G1, ar(EOP,2), ar(BE+2,2), g(CI+16))
    Gm = lambda ct, s: mfma16(G+16*ct, XR(s), wb(s,ct), g(G+16*ct))
    Hm = lambda ct, s: mfma16(HV+16*ct, XR(s), wv(s,ct), g(HV+16*ct) if s else "0")
    A0 = mfma8(G0, ar(ONE,2), ar(ONE,2), g(G0)); A1 = mfma8(G1, ar(ONE,2), ar(ONE,2), g(G1))
    if pr in (1, 2, 3): a("  s_setprio 1")
    if pr == 4: a("  s_setprio 0")
    a(f"  s_waitcnt vmcnt(0)")
    a(f"  ds_read2_b32 a[{EOP}:{EOP+1}], v{vE} offset0:0 offset1:1")
    for s in range(4):
        a(f"  ds_read_b128 {XR(s)}, v{vXA+s}")
    next_tile(a, sTn2, sTn)
    a(f"  s_lshl_b32 s{sTmp}, s{sTn2}, 7")
    misc = [f"  s_mov_b32 m0, s{sM0}", None, dma(0), f"  s_add_u32 m0, s{sM0}, 1024", None, dma(1), f"  s_add_u32 m0, s{sM0}, 2048",
            f"  v_add_u32 v{vK}, s{sTmp}, v{vKb}", dma(2), f"  s_add_u32 m0, s{sM0}, 3072", f"  v_mad_u32_u24 v{vE}, v{vEs}, s{sTn}, v{vEb}", dma(3)] + \
           [f"  ds_read_b32 v{vI+2*i}, v{vK} offset:{4*i}" for i in range(4)] + [f"  s_mov_b32 s{sTn}, s{sTn2}"]
    T = [f"  v_exp_f32 v{G0+i}, v{G0+i}" for i in range(16)] + [f"  v_exp_f32 v{G1+i}, v{G1+i}" for i in range(16)] \
      + [f"  v_rcp_f32 v{G0+i}, v{G0+i}" for i in range(16)] + [f"  v_rcp_f32 v{G1+i}, v{G1+i}" for i in range(16)]
    ti = 0
    def tr(n):
        nonlocal ti
        for _ in range(n):
            a(T[ti]); ti += 1
    if rr == 1:
        a(f"  s_waitcnt lgkmcnt(4)"); a(E0); a(E1)
        for s in range(4):
            a(f"  s_waitcnt lgkmcnt({3-s})")
            if s < 3:
                a(Hm(0,s)); a(Hm(1,s)); a(Gm(0,s)); a(Gm(1,s))
        ms = [Gm(0,3), Gm(1,3)]
        for m in misc: a(m if m else ms.pop(0))
        a(Hm(0,3)); a(Hm(1,3))
        if pr == 4: a("  s_setprio 1")
        if pr in (1, 2): a("  s_setprio 0")
        tr(18); a(A0); tr(16); a(A1); tr(30)
    elif rr == 2:
        a(f"  s_waitcnt lgkmcnt(4)"); a(E0); a(E1)
        for s in range(4):
            a(f"  s_waitcnt lgkmcnt({3-s})")
            a(Gm(0,s)); a(Gm(1,s))
        ms = [Hm(0,0), Hm(1,0)]
        for m in misc: a(m if m else ms.pop(0))
        if pr == 4: a("  s_setprio 1")
        if pr in (1, 2): a("  s_setprio 0")
        for s in range(1, 4):
            tr(3); a(Hm(0,s)); tr(3); a(Hm(1,s))
        a(A0); tr(16); a(A1); tr(30)
    elif rr == 3:
        a(f"  s_waitcnt lgkmcnt(4)"); a(E0); a(E1)
        for s in range(4):
            a(f"  s_waitcnt lgkmcnt({3-s})")
            a(Gm(0,s)); a(Gm(1,s))
        ms = ["  s_nop 0", "  s_nop 0"]
        for m in misc: a(m if m else ms.pop(0))
        if pr == 4: a("  s_setprio 1")
        if pr in (1, 2): a("  s_setprio 0")
        seq = [Hm(0,0), Hm(1,0), Hm(0,1), Hm(1,1), A0, Hm(0,2), Hm(1,2), Hm(0,3), A1, Hm(1,3)]
        pos = [2, 6, 10, 14, 18, 22, 26, 30, 34, 38]
        for m, p in zip(seq, pos):
            tr(p - ti); a(m)
        tr(64 - ti)

def tile_body(a):
    if OPT["rr"]: return tile_body_rr(a)
    XR = lambda s: ar(X+4*s, 4)
    wb = lambda s, ct: ar(WB+(s*2+ct)*4, 4)
    wv = lambda s, ct: ar(WV+(s*2+ct)*4, 4)
    G0, G1, H0, H1 = G, G+16, HV, HV+16
    g = lambda d: f"v[{d}:{d+15}]"
    if OPT["prio"] in (1, 2, 3): a("  s_setprio 1")
    if OPT["prio"] == 4: a("  s_setprio 0")
    a(f"  s_waitcnt vmcnt(0)")
    a(f"  ds_read2_b32 a[{EOP}:{EOP+1}], v{vE} offset0:0 offset1:1")
    for s in range(4):
        a(f"  ds_read_b128 {XR(s)}, v{vXA+s}")
    next_tile(a, sTn2, sTn)
    a(f"  s_lshl_b32 s{sTmp}, s{sTn2}, 7")
    a(f"  s_waitcnt lgkmcnt(3)")
    a(mfma8(G0, ar(EOP,2), ar(BE,2), g(CI)))
    a(mfma16(G0, XR(0), wb(0,0), g(G0)))
    a(f"  s_waitcnt lgkmcnt(2)")
    a(mfma16(G0, XR(1), wb(1,0), g(G0)))
    a(f"  s_waitcnt lgkmcnt(1)")
    a(mfma16(G0, XR(2), wb(2,0), g(G0)))
    a(f"  s_waitcnt lgkmcnt(0)")
    a(mfma16(G0, XR(3), wb(3,0), g(G0)))
    a(f"  s_mov_b32 m0, s{sM0}")
    a(mfma8(G1, ar(EOP,2), ar(BE+2,2), g(CI+16)))
    a(dma(0))
    a(f"  s_add_u32 m0, s{sM0}, 1024")
    a(mfma16(G1, XR(0), wb(0,1), g(G1)))
    a(dma(1))
    a(f"  s_add_u32 m0, s{sM0}, 2048")
    a(f"  v_add_u32 v{vK}, s{sTmp}, v{vKb}")
    a(dma(2))
    a(f"  s_add_u32 m0, s{sM0}, 3072")
    a(f"  v_mad_u32_u24 v{vE}, v{vEs}, s{sTn}, v{vEb}")
    a(dma(3))
    for i in range(4):
        a(f"  ds_read_b32 v{vI+2*i}, v{vK} offset:{4*i}")
    a(f"  s_mov_b32 s{sTn}, s{sTn2}")
    if OPT["prio"] in (1, 2): a("  s_setprio 0")
    T = [f"  v_exp_f32 v{G0+i}, v{G0+i}" for i in range(16)] + [f"  v_exp_f32 v{G1+i}, v{G1+i}" for i in range(16)] \
      + [f"  v_rcp_f32 v{G0+i}, v{G0+i}" for i in range(16)] + [f"  v_rcp_f32 v{G1+i}, v{G1+i}" for i in range(16)]
    ti = 0
    def tr(n):
        nonlocal ti
        for _ in range(n):
            a(T[ti]); ti += 1
    if OPT["burst"]:
        for s_ in range(1, 4): a(mfma16(G1, XR(s_), wb(s_,1), g(G1)))
        for ct, H in ((0, H0), (1, H1)):
            for s_ in range(4): a(mfma16(H, XR(s_), wv(s_,ct), g(H) if s_ else "0"))
        if OPT["prio"] == 4: a("  s_setprio 1")
        if OPT["add1"]:
            tr(32)
            for i in range(32): a(f"  v_add_f32 v{G0+i}, 1.0, v{G0+i}")
            tr(32)
        else:
            tr(18)
            a(mfma8(G0, ar(ONE,2), ar(ONE,2), g(G0)))
            tr(16)
            a(mfma8(G1, ar(ONE,2), ar(ONE,2), g(G1)))
            tr(30)
        return
    tr(3); a(mfma16(G1, XR(1), wb(1,1), g(G1)))
    tr(3); a(mfma16(G1, XR(2), wb(2,1), g(G1)))
    tr(3); a(mfma16(G1, XR(3), wb(3,1), g(G1)))
    tr(3); a(mfma16(H0, XR(0), wv(0,0), "0"))
    tr(3); a(mfma16(H0, XR(1), wv(1,0), g(H0)))
    tr(1); a(mfma16(H0, XR(2), wv(2,0), g(H0)))
    a("  s_nop 0")
    a(mfma8(G0, ar(ONE,2), ar(ONE,2), g(G0)))
    tr(3); a(mfma16(H0, XR(3), wv(3,0), g(H0)))
    tr(3); a(mfma16(H1, XR(0), wv(0,1), "0"))
    tr(3); a(mfma16(H1, XR(1), wv(1,1), g(H1)))
    tr(3); a(mfma16(H1, XR(2), wv(2,1), g(H1)))
    tr(3); a(mfma16(H1, XR(3), wv(3,1), g(H1)))
    tr(3)
    a(mfma8(G1, ar(ONE,2), ar(ONE,2), g(G1)))
    tr(64 - ti)

def p_phase(a, first):
    def pr(r): return f"v[{r}:{r+1}]"
    if OPT["prio"] == 2: a("  s_setprio 2")
    if OPT["prio"] == 3: a("  s_setprio 0")
    if OPT["plain"]:
        for ct in range(2):
            for k in range(4):
                for g in range(4):
                    e = G + 16*ct + 4*g + k; h = HV + 16*ct + 4*g + k; r = AC + (ct*4+g)*4 + (k&1)
                    if first and k < 2:
                        a(f"  v_mul_f32 v{r}, v{e}, v{h}")
                        a(f"  v_add_f32 v{r+2}, v{e}, v{e+2}")
                    elif first:
                        a(f"  v_fmac_f32 v{r}, v{e}, v{h}")
                    else:
                        a(f"  v_fmac_f32 v{r}, v{e}, v{h}")
                        a(f"  v_add_f32 v{r+2}, v{e}, v{r+2}")
        return
    for ct in range(2):
        for half in range(2):
            for g in range(4):
                e = G + 16*ct + 4*g; h = HV + 16*ct + 4*g; r = AC + (ct*4+g)*4
                if first:
                    if half == 0:
                        a(f"  v_pk_mul_f32 {pr(r)}, {pr(e)}, {pr(h)}")
                        a(f"  v_pk_add_f32 {pr(r+2)}, {pr(e)}, {pr(e+2)}")
                    else:
                        a(f"  v_pk_fma_f32 {pr(r)}, {pr(e+2)}, {pr(h+2)}, {pr(r)}")
                else:
                    a(f"  v_pk_fma_f32 {pr(r)}, {pr(e+2*half)}, {pr(h+2*half)}, {pr(r)}")
                    a(f"  v_pk_add_f32 {pr(r+2)}, {pr(e+2*half)}, {pr(r+2)}")

def gen_k2(a):
    ld = OPT["ld_flags"]
    NPF = OPT["npf"]
    R = lambda k: 32 + 4*k
    A4 = lambda k: 96 + k
    OF = 112
    VA = 120
    a(f"""
.globl main_kernel
.p2align 8
.type main_kernel,@function
main_kernel:
  s_cmp_ge_u32 s2, 256
  s_cbranch_scc1 K2_END
  s_load_dwordx2 s[4:5], s[0:1], 0
  s_load_dwordx2 s[6:7], s[0:1], 72
  s_load_dwordx2 s[96:97], s[0:1], 88
  v_lshrrev_b32 v{vT0}, 6, v0
  v_and_b32 v{vLane}, 63, v0
  v_readfirstlane_b32 s{sW}, v{vT0}
  v_mov_b32 v{vOne}, 1
@S0@
  s_mov_b32 s{sSB}, 0
  s_mov_b32 s{sSW}, 32
  s_mov_b32 s{sFirstB}, 1
""")
    for i in range(8):
        a(f"  s_mov_b32 s{sSeg+i}, {i*RECB}")
    a(f"""
  v_lshrrev_b32 v{vT1}, 4, v0         ; G = tid>>4
  v_lshlrev_b32 v{vT2}, 5, v{vT1}     ; G*32
  s_waitcnt lgkmcnt(0)
  s_mov_b32 s{sXI}, s4
  s_and_b32 s{sXI+1}, s5, 0xffff
  s_or_b32 s{sXI+1}, s{sXI+1}, 0x800000
  s_mov_b32 s{sXI+2}, 25000
  s_mov_b32 s{sXI+3}, 0x20000
  s_mov_b32 s{sXR}, s4
  s_and_b32 s{sXR+1}, s5, 0xffff
  s_mov_b32 s{sXR+2}, 3200000
  s_mov_b32 s{sXR+3}, 0x20000
  s_mov_b32 s{sOUT}, s6
  s_and_b32 s{sOUT+1}, s7, 0xffff
  s_mov_b32 s{sOUT+2}, 3200000
  s_mov_b32 s{sOUT+3}, 0x20000
  s_mov_b32 s{sREC}, s96
  s_and_b32 s{sREC+1}, s97, 0xffff
  s_mov_b32 s{sREC+2}, {NP*RECB}
  s_mov_b32 s{sREC+3}, 0x20000
  s_lshl_b32 s{sTmp}, s2, 10
  s_add_u32 s{sTmp}, s{sTmp}, {OFFS}
  s_add_u32 s{sOFF}, s96, s{sTmp}
  s_addc_u32 s{sOFF+1}, s97, 0
  s_and_b32 s{sOFF+1}, s{sOFF+1}, 0xffff
  s_mov_b32 s{sOFF+2}, {NP*4}
  s_mov_b32 s{sOFF+3}, 0x20000
  s_add_u32 s{sIMG}, s96, {IMG}
  s_addc_u32 s{sIMG+1}, s97, 0
  s_and_b32 s{sIMG+1}, s{sIMG+1}, 0xffff
  s_mov_b32 s{sIMG+2}, {32768+1024}
  s_mov_b32 s{sIMG+3}, 0x20000
  buffer_load_dwordx4 v[{OF}:{OF+3}], v{vT2}, s[{sOFF}:{sOFF+3}], 0 offen
  buffer_load_dwordx4 v[{OF+4}:{OF+7}], v{vT2}, s[{sOFF}:{sOFF+3}], 0 offen offset:16
  v_and_b32 v{vT0}, 31, v{vLane}
  s_lshr_b32 s{sTmp}, s{sW}, 1
  s_lshl_b32 s{sTmp}, s{sTmp}, 13
  s_add_u32 s{sTmp}, s{sTmp}, s2
  v_lshlrev_b32 v{vT2}, 8, v{vT0}
  v_add_u32 v{vT2}, s{sTmp}, v{vT2}
  v_lshrrev_b32 v{vT3}, 5, v{vLane}
  v_lshlrev_b32 v{vT3}, 6, v{vT3}
  v_lshlrev_b32 v{vK}, 4, v{vLane}     ; lane*16
""")
    for s in range(4):
        a(f"  buffer_load_dwordx4 {ar(X+4*s,4)}, v[{vT2}:{vT3}], s[{sXI}:{sXI+3}], 0 idxen offen offset:{16*s}")
    a(f"""  s_and_b32 s{sTmp}, s{sW}, 1
  s_lshl_b32 s{sTmp}, s{sTmp}, 10
  s_add_u32 s{sTmp}, s{sTmp}, {2*8192}
  s_add_u32 s{sTmp2}, s{sTmp}, 4096""")
    for s in range(4):
        so = sTmp if s < 2 else sTmp2
        a(f"  buffer_load_dwordx4 v[{144+4*s}:{147+4*s}], v{vK}, s[{sIMG}:{sIMG+3}], s{so} offen offset:{(s&1)*2048}")
    a(f"  s_mov_b32 s{sT}, 4096\n  s_mov_b32 s{sT0}, 8192\n  s_mov_b32 s{sT1}, 12288\n  s_mov_b32 s{sTn}, 32768")
    for q in range(16):
        so = ["0", f"s{sT}", f"s{sT0}", f"s{sT1}"][q >> 2]
        a(f"  buffer_load_dwordx4 {ar(4*q,4)}, v{vK}, s[{sIMG}:{sIMG+3}], {so} offen offset:{(q&3)*1024}")
    a(f"  buffer_load_dwordx4 {ar(BE,4)}, v{vK}, s[{sIMG}:{sIMG+3}], s{sTn} offen")
    a(f"""
  v_lshlrev_b32 v{vN4}, 2, v{vT0}              ; n*4
  v_lshrrev_b32 v{vT1}, 5, v{vLane}            ; h
  v_lshlrev_b32 v{vOrd}, 4, v{vT1}
  v_add_u32 v{vOrd}, {ORDA}, v{vOrd}           ; ORDA + h*16
  v_cmp_eq_u32 vcc, 0, v{vT1}
  v_mov_b32 v{vT2}, 0x3f80
  v_mov_b32 v{vT3}, 0
  v_cndmask_b32 v{vT2}, v{vT3}, v{vT2}, vcc
  v_accvgpr_write_b32 a{ONE}, v{vT2}
  v_accvgpr_write_b32 a{ONE+1}, v{vT3}
  v_mov_b32 v{vT2}, 128
  v_mov_b32 v{vT3}, 256
  v_cndmask_b32 v{vEs}, v{vT2}, v{vT3}, vcc    ; stride: h? 128 : 256
  v_lshlrev_b32 v{vT2}, 3, v{vT0}              ; m*8 (+EA0)
  v_add_u32 v{vT3}, {K0}, v{vN4}               ; K0 + m*4
  v_cndmask_b32 v{vEb}, v{vT3}, v{vT2}, vcc
  v_lshrrev_b32 v{vT2}, 3, v{vLane}            ; o = l>>3
  v_lshlrev_b32 v{vKb}, 4, v{vT2}
  v_add_u32 v{vKb}, {K0}, v{vKb}               ; K0 + o*16
  v_and_b32 v{vT2}, 7, v{vLane}
  v_bfe_u32 v{vT3}, v{vLane}, 4, 1
  v_lshlrev_b32 v{vT3}, 2, v{vT3}
  v_xor_b32 v{vT2}, v{vT2}, v{vT3}
""")
    for i in range(4):
        a(f"  v_xor_b32 v{vI+2*i+1}, {i}, v{vT2}\n  v_lshlrev_b32 v{vI+2*i+1}, 4, v{vI+2*i+1}")
    a(f"""
  s_lshl_b32 s{sM0}, s{sW}, 12
  s_add_u32 s{sM0}, s{sM0}, {RING}
  v_and_b32 v{vT2}, 3, v{vT0}                  ; r
  v_bfe_u32 v{vT3}, v{vT0}, 3, 1
  v_xor_b32 v{vT3}, v{vT3}, v{vT1}
  v_lshl_or_b32 v{vT3}, v{vT3}, 2, v{vT2}
  v_lshlrev_b32 v{vT2}, 10, v{vT2}
  v_lshrrev_b32 v{vE}, 2, v{vT0}
  v_lshl_add_u32 v{vT2}, v{vE}, 7, v{vT2}
  v_add_u32 v{vT2}, s{sM0}, v{vT2}
""")
    for s in range(4):
        a(f"  v_xor_b32 v{vXA+s}, {s}, v{vT3}\n  v_lshl_add_u32 v{vXA+s}, v{vXA+s}, 4, v{vT2}")
    a(f"""
  v_mov_b32 v128, 0
  v_mov_b32 v129, 0
  v_mov_b32 v130, 0
  v_mov_b32 v131, 0
  v_lshrrev_b32 v{vT2}, 5, v0
  v_mul_u32_u24 v{vT2}, {ROWB}, v{vT2}
  v_lshl_add_u32 v{vT2}, v{vT0}, 4, v{vT2}
  v_add_u32 v{vT2}, {NODE+256}, v{vT2}
  v_add_u32 v{vT3}, {4*16*ROWB}, v{vT2}
""")
    for k in range(7):
        t = vT2 if k < 4 else vT3
        a(f"  ds_write_b128 v{t}, v[128:131] offset:{(k&3)*16*ROWB}")
    a("K2_RESET:")
    a(f"""
  v_mov_b32 v128, 0
  v_mov_b32 v129, 0
  v_mov_b32 v130, 0
  v_mov_b32 v131, 0
  v_mov_b32 v132, 1.0
  v_mov_b32 v133, 1.0
  v_mov_b32 v134, 1.0
  v_mov_b32 v135, 1.0
  v_lshlrev_b32 v{vT2}, 4, v0
""")
    for k in range(6):
        a(f"  ds_write_b128 v{vT2}, v[132:135] offset:{8192*k}")
    a(f"""
  v_cmp_gt_u32 vcc, {(MISC+64-CNT)//16}, v0
  s_and_saveexec_b64 s[{sSave}:{sSave+1}], vcc
  ds_write_b128 v{vT2}, v[128:131] offset:{CNT}
  s_mov_b64 exec, s[{sSave}:{sSave+1}]
  v_and_b32 v{vT0}, 15, v0
  v_add_u32 v{vT1}, 16, v{vT0}
  v_mov_b32 v{vT3}, 0xffff
  v_cmp_gt_u32 vcc, s{sSW}, v{vT0}
  v_add_u32 v{vT2}, s{sSB}, v{vT0}
  s_nop 0
  v_cndmask_b32 v136, v{vT3}, v{vT2}, vcc
  v_cmp_gt_u32 vcc, s{sSW}, v{vT1}
  v_add_u32 v{vT1}, s{sSB}, v{vT1}
  s_nop 0
  v_cndmask_b32 v137, v{vT3}, v{vT1}, vcc
  v_mul_u32_u24 v{vT2}, 12, v{vT2}
  v_lshrrev_b32 v{vT1}, 4, v0
  s_mov_b32 s{sTmp}, {8*RECB}
  v_mad_u32_u24 v138, v{vT1}, s{sTmp}, v{vT2}
  s_cmp_eq_u32 s{sFirstB}, 1
  s_cbranch_scc1 K2_OFW
  v_lshlrev_b32 v{vT2}, 5, v{vT1}
  buffer_load_dwordx4 v[{OF}:{OF+3}], v{vT2}, s[{sOFF}:{sOFF+3}], 0 offen
  buffer_load_dwordx4 v[{OF+4}:{OF+7}], v{vT2}, s[{sOFF}:{sOFF+3}], 0 offen offset:16
  s_waitcnt vmcnt(0)
K2_OFW:
@S2@
  s_waitcnt vmcnt(25)
@S3@
""")
    for i in range(8):
        a(f"  v_add_u32_sdwa v{VA+i}, v{OF+i}, v138 dst_sel:DWORD dst_unused:UNUSED_PAD src0_sel:WORD_0 src1_sel:DWORD")
        a(f"  v_cmp_lt_u32_sdwa s[{sM1+2*i}:{sM1+2*i+1}], v136, v{OF+i} src0_sel:DWORD src1_sel:WORD_1")
        a(f"  v_cmp_lt_u32_sdwa s[{sM2+2*i}:{sM2+2*i+1}], v137, v{OF+i} src0_sel:DWORD src1_sel:WORD_1")
    for i in range(8):
        a(f"  s_mov_b64 exec, s[{sM1+2*i}:{sM1+2*i+1}]")
        a(f"  buffer_load_dwordx3 v[{R(i)}:{R(i)+2}], v{VA+i}, s[{sREC}:{sREC+3}], s{sSeg+i} offen {ld}")
    for i in range(8):
        a(f"  s_mov_b64 exec, s[{sM2+2*i}:{sM2+2*i+1}]")
        a(f"  buffer_load_dwordx3 v[{R(8+i)}:{R(8+i)+2}], v{VA+i}, s[{sREC}:{sREC+3}], s{sSeg+i} offen offset:192 {ld}")
    a("  s_mov_b64 exec, -1")
    a(f"""
  s_lshr_b32 s{sTmp}, s2, 3
  s_mul_i32 s{sTmp}, s{sTmp}, 100096
  v_lshlrev_b32 v{vT2}, 7, v0
  s_add_u32 s{sTmp2}, s{sTmp}, 65536
""")
    for k in range(NPF):
        a(f"  buffer_load_dword a{88+k}, v{vT2}, s[{sXR}:{sXR+3}], s{sTmp if k == 0 else sTmp2} offen")
    a(f"""
  v_max3_u32 v{vT2}, v{OF}, v{OF+1}, v{OF+2}
  v_max3_u32 v{vT3}, v{OF+3}, v{OF+4}, v{OF+5}
  v_max3_u32 v{vT2}, v{OF+6}, v{OF+7}, v{vT2}
  v_max_u32 v{vT2}, v{vT2}, v{vT3}
  v_lshrrev_b32 v19, 16, v{vT2}
  s_cmp_eq_u32 s{sFirstB}, 0
  s_cbranch_scc1 K2_NOA
  s_waitcnt vmcnt({17+16+NPF})
""")
    for s in range(4):
        a(mfma16(128, ar(X+4*s,4), vr(144+4*s,4), "0" if s == 0 else "v[128:143]"))
    a(f"""
  s_lshr_b32 s{sTmp}, s{sW}, 1
  s_mul_i32 s{sTmp}, s{sTmp}, {32*ROWB}
  s_and_b32 s{sTmp2}, s{sW}, 1
  s_lshl_b32 s{sTmp2}, s{sTmp2}, 7
  s_add_u32 s{sTmp}, s{sTmp}, s{sTmp2}
  s_add_u32 s{sTmp}, s{sTmp}, {NODE}
  v_lshrrev_b32 v{vT1}, 5, v{vLane}
  v_mul_u32_u24 v{vT1}, {4*ROWB}, v{vT1}
  v_add3_u32 v{vT1}, v{vT1}, v{vN4}, s{sTmp}
  s_mov_b32 s{sTmp2}, {NLOG2E:#x}
  s_nop 3
""")
    for r in range(16):
        a(f"  v_mul_f32 v{128+r}, s{sTmp2}, v{128+r}")
    for r in range(16):
        a(f"  ds_write_b32 v{vT1}, v{128+r} offset:{(8*(r>>2)+(r&3))*ROWB}")
    a(f"""
K2_NOA:
@S4@
  s_waitcnt lgkmcnt(0)
  s_barrier
  v_mov_b32 v{vT2}, {MISC}
  s_mov_b32 s{sSave}, 0x00010001
  s_mov_b32 s{sSave+1}, 0x00010001
  s_mov_b64 exec, s[{sSave}:{sSave+1}]
  ds_max_u32 v{vT2}, v19
  s_mov_b64 exec, -1
@S5@
  s_waitcnt vmcnt({8+NPF})
@S6@
""")
    for k in range(16):
        if k == 8: a(f"  s_waitcnt vmcnt({NPF})")
        m = (sM1 + 2*k) if k < 8 else (sM2 + 2*(k-8))
        a(f"  s_mov_b64 exec, s[{m}:{m+1}]")
        a(f"  v_lshrrev_b32 v{A4(k)}, 16, v{R(k)+2}")
        a(f"  ds_add_rtn_u32 v{R(k)+3}, v{A4(k)}, v{vOne} offset:{CNT}")
    a("  s_mov_b64 exec, -1")
    a(f"  s_waitcnt lgkmcnt(0)\n  s_barrier")
    a("@S7@")
    a(f"  s_cmp_lg_u32 s{sW}, 0\n  s_cbranch_scc1 K2_NOSORT")
    c0, c1, q0, q1, b0, b1, p0, p1, hv, ex, e0, e1, m0_, m1_, t0_, t1_, u0, u1, l4 = range(128, 147)
    a(f"""
  v_lshlrev_b32 v{l4}, 2, v{vLane}
  ds_read2st64_b32 v[{c0}:{c1}], v{l4} offset0:{CNT//256} offset1:{CNT//256+1}
  s_waitcnt lgkmcnt(0)
  v_add_u32 v{q0}, 3, v{c0}
  v_add_u32 v{q1}, 3, v{c1}
  v_lshrrev_b32 v{q0}, 2, v{q0}
  v_lshrrev_b32 v{q1}, 2, v{q1}
  v_min_u32 v{b0}, 63, v{q0}
  v_min_u32 v{b1}, 63, v{q1}
  v_sub_u32 v{b0}, 63, v{b0}
  v_sub_u32 v{b1}, 63, v{b1}
  v_lshlrev_b32 v{b0}, 2, v{b0}
  v_lshlrev_b32 v{b1}, 2, v{b1}
  ds_add_rtn_u32 v{p0}, v{b0}, v{vOne} offset:{HIST}
  ds_add_rtn_u32 v{p1}, v{b1}, v{vOne} offset:{HIST}
  ds_read_b32 v{hv}, v{l4} offset:{HIST}
  v_lshl_or_b32 v{q0}, v{q0}, 8, v{vLane}
  v_add_u32 v{u1}, 64, v{vLane}
  v_lshl_or_b32 v{q1}, v{q1}, 8, v{u1}
  s_waitcnt lgkmcnt(0)
  v_mov_b32 v{ex}, v{hv}
""")
    dpp_scan(a, ex)
    a(f"""
  v_sub_u32 v{ex}, v{ex}, v{hv}
  ds_bpermute_b32 v{u0}, v{b0}, v{ex}
  ds_bpermute_b32 v{u1}, v{b1}, v{ex}
  s_waitcnt lgkmcnt(0)
  v_add_lshl_u32 v{u0}, v{u0}, v{p0}, 2
  v_add_lshl_u32 v{u1}, v{u1}, v{p1}, 2
  ds_write_b32 v{u0}, v{q0} offset:{ORDQ}
  ds_write_b32 v{u1}, v{q1} offset:{ORDQ}
  ds_read2st64_b32 v[{e0}:{e1}], v{l4} offset0:{ORDQ//256} offset1:{ORDQ//256+1}
  s_waitcnt lgkmcnt(0)
  v_mov_b32 v{m0_}, v{e0}
  v_mov_b32 v{m1_}, v{e1}
""")
    for mode in ("quad_perm:[1,0,3,2]", "quad_perm:[2,3,0,1]", "row_half_mirror"):
        a(f"  s_nop 0\n  v_max_u32_dpp v{m0_}, v{m0_}, v{m0_} {mode} row_mask:0xf bank_mask:0xf")
        a(f"  v_max_u32_dpp v{m1_}, v{m1_}, v{m1_} {mode} row_mask:0xf bank_mask:0xf")
    a(f"""
  v_lshrrev_b32 v{m0_}, 8, v{m0_}
  v_lshrrev_b32 v{m1_}, 8, v{m1_}
  v_mov_b32 v{t0_}, v{m0_}
  v_mov_b32 v{t1_}, v{m1_}
""")
    for mode in ("row_shr:8 row_mask:0xf", "row_bcast:15 row_mask:0xa", "row_bcast:31 row_mask:0xc"):
        a(f"  s_nop 0\n  v_add_u32_dpp v{t0_}, v{t0_}, v{t0_} {mode} bank_mask:0xf")
        a(f"  v_add_u32_dpp v{t1_}, v{t1_}, v{t1_} {mode} bank_mask:0xf")
    a(f"""
  s_nop 0
  v_readlane_b32 s{sTmp}, v{t0_}, 63
  v_sub_u32 v{t0_}, v{t0_}, v{m0_}             ; TS of group (lanes)
  v_sub_u32 v{m1_}, v{t1_}, v{m1_}
  v_add_u32 v{t1_}, s{sTmp}, v{t1_}            ; inclusive
  v_add_u32 v{m1_}, s{sTmp}, v{m1_}            ; TS of groups 8..15
  ; TSV[g] : lanes with (l&7)==0 ; T at lane 63 -> TSV[16]
  v_lshrrev_b32 v{u0}, 1, v{vLane}             ; (l>>3)*4 when l&7==0
  s_mov_b32 s{sSave}, 0x01010101
  s_mov_b32 s{sSave+1}, 0x01010101
  s_mov_b64 exec, s[{sSave}:{sSave+1}]
  ds_write2_b32 v{u0}, v{t0_}, v{m1_} offset0:0 offset1:8
""".replace("offset0:0 offset1:8", "offset0:0 offset1:8"))
    a.lines[-1] = f"  v_add_u32 v{u0}, {TSV}, v{u0}\n  ds_write2_b32 v{u0}, v{t0_}, v{m1_} offset0:0 offset1:8"
    a(f"""
  s_mov_b32 s{sSave}, 0
  s_mov_b32 s{sSave+1}, 0x80000000
  s_mov_b64 exec, s[{sSave}:{sSave+1}]
  v_mov_b32 v{u1}, {TSV+64}
  ds_write_b32 v{u1}, v{t1_}
  s_mov_b64 exec, -1
  v_and_b32 v{u0}, 7, v{vLane}
  v_lshlrev_b32 v{u1}, 4, v{u0}
  v_lshl_add_u32 v{t0_}, v{t0_}, 7, v{u1}
  v_lshl_add_u32 v{m1_}, v{m1_}, 7, v{u1}
  v_and_b32 v{e0}, 0xff, v{e0}
  v_and_b32 v{e1}, 0xff, v{e1}
  v_lshlrev_b32 v{c0}, 2, v{e0}
  v_lshlrev_b32 v{c1}, 2, v{e1}
  ds_write_b32 v{c0}, v{t0_} offset:{NB}
  ds_write_b32 v{c1}, v{m1_} offset:{NB}
  v_min_u32 v{e0}, 98, v{e0}
  v_min_u32 v{e1}, 98, v{e1}
  v_mov_b32 v{c0}, {NODE}
  s_mov_b32 s{sTmp}, {ROWB}
  v_mad_u32_u24 v{e0}, v{e0}, s{sTmp}, v{c0}
  v_mad_u32_u24 v{e1}, v{e1}, s{sTmp}, v{c0}
  v_and_b32 v{c0}, 1, v{vLane}
  v_lshlrev_b32 v{c0}, 4, v{c0}
  v_bfe_u32 v{c1}, v{vLane}, 1, 2
  v_lshl_add_u32 v{c0}, v{c1}, 2, v{c0}
  v_and_b32 v{c1}, 56, v{vLane}
  v_lshl_add_u32 v{c0}, v{c1}, 2, v{c0}
  v_add_u32 v{c0}, {ORDA}, v{c0}
  ds_write2st64_b32 v{c0}, v{e0}, v{e1} offset0:0 offset1:1
K2_NOSORT:
  s_mov_b32 s{sTmp}, -28
""")
    for k in range(16):
        a(f"  v_and_b32 v{vT0}, 3, v{R(k)+3}")
        a(f"  v_lshlrev_b32 v{R(k)+3}, 5, v{R(k)+3}")
        a(f"  v_mad_i32_i24 v{R(k)+3}, v{vT0}, s{sTmp}, v{R(k)+3}")
        a(f"  v_and_b32 v{R(k)+2}, 0x7fff, v{R(k)+2}")
    a(f"""
  v_min_u32 v{vT0}, 16, v{vLane}
  v_lshlrev_b32 v{vT0}, 2, v{vT0}
  v_mov_b32 v{vT1}, {MISC}
  s_waitcnt lgkmcnt(0)
@S8@
  s_barrier
@S9@
  ds_read_b32 v{vTSV}, v{vT0} offset:{TSV}
  ds_read_b32 v{vT2}, v{vT1}
""")
    for k in range(16):
        m = (sM1 + 2*k) if k < 8 else (sM2 + 2*(k-8))
        a(f"  s_mov_b64 exec, s[{m}:{m+1}]")
        a(f"  ds_read_b32 v{A4(k)}, v{A4(k)} offset:{NB}")
    a(f"""
  s_mov_b64 exec, -1
  s_waitcnt lgkmcnt(15)
  s_waitcnt lgkmcnt(0)
  v_readlane_b32 s{sT}, v{vTSV}, 16
  v_readfirstlane_b32 s{sMaxC}, v{vT2}
  s_cmp_le_u32 s{sT}, {CAPT}
  s_cbranch_scc1 K2_FIT
  s_lshr_b32 s{sSW}, s{sSW}, 1
  s_mov_b32 s{sFirstB}, 0
  s_barrier
  s_branch K2_RESET
K2_FIT:
""")
    for k in range(16):
        m = (sM1 + 2*k) if k < 8 else (sM2 + 2*(k-8))
        a(f"  s_mov_b64 exec, s[{m}:{m+1}]")
        a(f"  v_add_u32 v{A4(k)}, v{A4(k)}, v{R(k)+3}")
        a(f"  v_lshlrev_b32 v{R(k)+3}, 1, v{A4(k)}")
        a(f"  ds_write_b32 v{A4(k)}, v{R(k)+2} offset:{K0}")
        a(f"  ds_write_b64 v{R(k)+3}, v[{R(k)}:{R(k)+1}] offset:{EA0}")
    a(f"""
  s_mov_b64 exec, -1
  s_mul_i32 s{sT0}, s{sT}, s{sW}
  s_add_u32 s{sT1}, s{sT0}, s{sT}
  s_lshr_b32 s{sT0}, s{sT0}, 3
  s_lshr_b32 s{sT1}, s{sT1}, 3
  v_cmp_ge_u32 vcc, s{sT0}, v{vTSV}
  s_and_b32 s{sTmp}, vcc_lo, 0xffff
  s_bcnt1_i32_b32 s{sG0}, s{sTmp}
  s_sub_u32 s{sG0}, s{sG0}, 1
  s_add_u32 s{sTmp}, s{sG0}, 1
  v_readlane_b32 s{sTmp2}, v{vTSV}, s{sG0}     ; TS[g0]
  v_readlane_b32 s{sContEnd}, v{vTSV}, s{sTmp} ; TS[g0+1]
  s_mov_b32 s{sCont}, 0
  s_mov_b32 s{sSlow}, 0
  s_mov_b32 s{sGam}, s{sG0}
  s_mov_b32 s{sCur}, s{sT0}
  s_waitcnt lgkmcnt(0)
  s_barrier
@S10@
  s_cmp_ge_u32 s{sT0}, s{sT1}
  s_cbranch_scc1 K2_LOOPDONE
  s_cmp_eq_u32 s{sTmp2}, s{sT0}
  s_cbranch_scc1 K2_GO
  s_mov_b32 s{sCont}, 1
  s_cmp_lt_u32 s{sContEnd}, s{sT1}
  s_cbranch_scc0 K2_ALLCONT
  s_add_u32 s{sGam}, s{sG0}, 1
  s_mov_b32 s{sCur}, s{sContEnd}
  s_branch K2_GO
K2_ALLCONT:
  s_cmp_gt_u32 s{sContEnd}, s{sT1}
  s_cselect_b32 s{sSlow}, 1, 0
  s_mov_b32 s{sContEnd}, s{sT1}
  s_mov_b32 s{sCont}, 2
K2_GO:
  s_lshl_b32 s{sTmp}, s{sCur}, 7
  v_add_u32 v{vK}, s{sTmp}, v{vKb}
""")
    for i in range(4):
        a(f"  ds_read_b32 v{vI+2*i}, v{vK} offset:{4*i}")
    next_tile(a, sTn, sCur)
    a(f"""  s_lshl_b32 s{sTmp}, s{sTn}, 7
  v_add_u32 v{vK}, s{sTmp}, v{vKb}
  v_mad_u32_u24 v{vE}, v{vEs}, s{sCur}, v{vEb}
  s_mov_b32 m0, s{sM0}
  s_waitcnt lgkmcnt(0)""")
    for i in range(4):
        a(dma(i))
        if i < 3: a(f"  s_add_u32 m0, s{sM0}, {1024*(i+1)}\n  s_nop 0")
    for i in range(4):
        a(f"  ds_read_b32 v{vI+2*i}, v{vK} offset:{4*i}")
    a(f"""
K2_RUN:
  s_lshl_b32 s{sTmp}, s{sGam}, 5
  v_add_u32 v{vT0}, s{sTmp}, v{vOrd}
  ds_read_b128 v[{vNA}:{vNA+3}], v{vT0}
  s_add_u32 s{sTmp}, s{sGam}, 1
  v_readlane_b32 s{sEnd}, v{vTSV}, s{sTmp}
  s_mov_b32 s{sFst}, 1
  s_min_u32 s{sEnd}, s{sEnd}, s{sT1}
  s_sub_u32 s{sRun}, s{sEnd}, s{sCur}
  s_waitcnt lgkmcnt(0)
""")
    for g in range(4):
        a(f"  v_add_u32 v{vNA+g}, v{vNA+g}, v{vN4}")
    for ct in range(2):
        for g in range(4):
            for hf in range(2):
                r = CI + 16*ct + 4*g + 2*hf
                a(f"  ds_read2_b32 v[{r}:{r+1}], v{vNA+g} offset0:{32*ct} offset1:{32*ct}")
    a("K2_TILE:")
    tile_body(a)
    a(f"  s_cmp_eq_u32 s{sFst}, 0\n  s_cbranch_scc1 K2_PN")
    p_phase(a, True)
    a(f"  s_mov_b32 s{sFst}, 0\n  s_branch K2_PE\nK2_PN:")
    p_phase(a, False)
    a(f"""K2_PE:
  s_sub_u32 s{sRun}, s{sRun}, 1
  s_cmp_lg_u32 s{sRun}, 0
  s_cbranch_scc1 K2_TILE
  s_cmp_eq_u32 s{sCont}, 2
  s_cbranch_scc1 K2_LOOPDONE
""")
    flush_rmw(a)
    a("  s_waitcnt lgkmcnt(0)")
    flush_rmw2(a)
    a(f"""
  s_add_u32 s{sGam}, s{sGam}, 1
  s_mov_b32 s{sCur}, s{sEnd}
  s_cmp_lt_u32 s{sEnd}, s{sT1}
  s_cbranch_scc1 K2_RUN
  s_cmp_eq_u32 s{sCont}, 0
  s_cbranch_scc1 K2_LOOPDONE
  s_mov_b32 s{sCont}, 2
  s_mov_b32 s{sGam}, s{sG0}
  s_mov_b32 s{sCur}, s{sT0}
  s_branch K2_RUN
K2_LOOPDONE:
@S11@
  s_add_u32 s{sSB}, s{sSB}, s{sSW}
  v_and_b32 v{vT0}, 15, v{vLane}
  s_lshl_b32 s{sTmp}, s{sW}, 12
  s_add_u32 s{sTmp}, s{sTmp}, s2
  v_lshlrev_b32 v{vT2}, 8, v{vT0}
  v_add_u32 v{vT2}, s{sTmp}, v{vT2}            ; idx = (16w + (m&15))*256 + b
  v_lshrrev_b32 v{vT1}, 5, v{vLane}
  v_lshlrev_b32 v{vT3}, 6, v{vT1}
  v_lshlrev_b32 v{vK}, 4, v{vLane}
  s_lshl_b32 s{sTmp}, s{sTmp}, 7
  v_lshlrev_b32 v{vE}, 17, v{vT1}
  v_add3_u32 v{vE}, v{vE}, v{vN4}, s{sTmp}
  s_waitcnt vmcnt(0)
  s_cmp_gt_u32 s{sMaxC}, s{sSB}
  s_cbranch_scc1 K2_NOFL
""")
    for s in range(4):
        a(f"  buffer_load_dwordx4 {ar(X+4*s,4)}, v[{vT2}:{vT3}], s[{sXI}:{sXI+3}], 0 idxen offen offset:{16*s}")
    a(f"  s_mov_b32 s{sTmp}, {3*8192}\n  s_mov_b32 s{sTmp2}, {3*8192+4096}")
    for q in range(8):
        so = sTmp if q < 4 else sTmp2
        a(f"  buffer_load_dwordx4 {ar(4*q,4)}, v{vK}, s[{sIMG}:{sIMG+3}], s{so} offen offset:{(q&3)*1024}")
    for rr in range(8):
        a(f"  s_mov_b32 s{sSeg+rr}, {(8*(rr>>2)+(rr&3))*32768}")
        a(f"  buffer_load_dword v{CI+rr}, v{vE}, s[{sXR}:{sXR+3}], s{sSeg+rr} offen")
    a(f"""
K2_NOFL:
  s_cmp_eq_u32 s{sSlow}, 0
  s_cbranch_scc1 K2_NS
  v_mov_b32 v{vT0}, {MISC+4}
  ds_write_b32 v{vT0}, v{vOne}
K2_NS:
  s_waitcnt lgkmcnt(0)
  s_barrier
  v_mov_b32 v{vT0}, {MISC+4}
  ds_read_b32 v{vT1}, v{vT0}
  s_waitcnt lgkmcnt(0)
  v_readfirstlane_b32 s{sSlow}, v{vT1}
  s_mov_b32 s{sRun}, 1
K2_MERGE:
  s_cmp_eq_u32 s{sCont}, 0
  s_cbranch_scc1 K2_MSKIP
  s_cmp_eq_u32 s{sSlow}, 0
  s_cbranch_scc1 K2_MDO
  s_cmp_lg_u32 s{sRun}, s{sW}
  s_cbranch_scc1 K2_MSKIP
K2_MDO:
""")
    flush_rmw(a)
    a("  s_waitcnt lgkmcnt(0)")
    flush_rmw2(a)
    a(f"""
K2_MSKIP:
  s_waitcnt lgkmcnt(0)
  s_barrier
  s_cmp_eq_u32 s{sSlow}, 0
  s_cbranch_scc1 K2_MEND
  s_add_u32 s{sRun}, s{sRun}, 1
  s_cmp_lt_u32 s{sRun}, 8
  s_cbranch_scc1 K2_MERGE
K2_MEND:
@S12@
  s_mov_b32 s{sFirstB}, 0
  s_cmp_gt_u32 s{sMaxC}, s{sSB}
  s_cbranch_scc1 K2_RESET
  s_mul_i32 s{sTmp}, s{sW}, {16*ROWB}
  s_add_u32 s{sTmp}, s{sTmp}, {NODE}
  v_lshrrev_b32 v{vT1}, 5, v{vLane}
  v_mul_u32_u24 v{vT1}, {4*ROWB}, v{vT1}
  v_add3_u32 v{vT1}, v{vT1}, v{vN4}, s{sTmp}
  v_add_u32 v{vT2}, 128, v{vT1}
""")
    for rr in range(8):
        ro = 3 * (8*(rr>>2) + (rr&3))
        a(f"  ds_read2st64_b32 v[{AC+4*rr}:{AC+4*rr+1}], v{vT1} offset0:{ro+1} offset1:{ro+2}")
        a(f"  ds_read2st64_b32 v[{AC+4*rr+2}:{AC+4*rr+3}], v{vT2} offset0:{ro+1} offset1:{ro+2}")
    a("  s_waitcnt vmcnt(8)")
    for ct in range(2):
        for s in range(4):
            a(mfma16(G+16*ct, ar(X+4*s,4), ar((s*2+ct)*4,4), "0" if s == 0 else f"v[{G+16*ct}:{G+16*ct+15}]"))
    a(f"  s_mov_b32 s{sTmp}, 0x358637bd\n  s_waitcnt lgkmcnt(0)")
    for rr in range(8):
        for ct in range(2):
            d = AC + 4*rr + 2*ct + 1
            a(f"  v_add_f32 v{d}, s{sTmp}, v{d}")
    for rr in range(8):
        for ct in range(2):
            d = AC + 4*rr + 2*ct + 1
            a(f"  v_rcp_f32 v{d}, v{d}")
    a("  s_waitcnt vmcnt(0)")
    for rr in range(8):
        for ct in range(2):
            n = AC + 4*rr + 2*ct
            a(f"  v_fma_f32 v{n}, v{n}, v{n+1}, v{G+16*ct+rr}")
            a(f"  v_max_f32 v{n}, 0, v{n}")
        a(f"  v_lshlrev_b32 v{AC+4*rr+1}, 16, v{CI+rr}")
        a(f"  v_and_b32 v{AC+4*rr+3}, 0xffff0000, v{CI+rr}")
        a(f"  v_add_f32 v{AC+4*rr}, v{AC+4*rr}, v{AC+4*rr+1}")
        a(f"  v_add_f32 v{AC+4*rr+2}, v{AC+4*rr+2}, v{AC+4*rr+3}")
        a(f"  v_cvt_pk_bf16_f32 v{AC+4*rr}, v{AC+4*rr}, v{AC+4*rr+2}")
        a(f"  buffer_store_dword v{AC+4*rr}, v{vE}, s[{sOUT}:{sOUT+3}], s{sSeg+rr} offen")
    a("@S13@\n@S15@\n@OUT2@\nK2_END:\n  s_endpgm")

def kd(name, vgpr, accum, sgpr):
    return f"""
.amdhsa_kernel {name}
  .amdhsa_next_free_vgpr {vgpr}
  .amdhsa_next_free_sgpr {sgpr}
  .amdhsa_accum_offset {accum}
  .amdhsa_group_segment_fixed_size 0
  .amdhsa_kernarg_size 96
  .amdhsa_user_sgpr_count 2
  .amdhsa_user_sgpr_kernarg_segment_ptr 1
  .amdhsa_system_sgpr_workgroup_id_x 1
  .amdhsa_float_denorm_mode_32 3
.end_amdhsa_kernel
"""

def main():
    ref = open(f"cdna_kernels/{NAME}.s.ref").read().split("\n")
    hdr = [l for l in ref if l.startswith(";") and "@launch" not in l and "Override" not in l and "grid=ceil" not in l]
    a = Asm()
    a("\n".join(hdr))
    a(f"; @launch kernel=part_kernel grid=({NP+5},1,1) block=(800,1,1) lds={LDS1}")
    a(f"; @launch kernel=main_kernel grid=(256,1,1) block=(512,1,1) lds={LDS2}")
    a('.amdgcn_target "amdgcn-amd-amdhsa--gfx950"\n.text')
    gen_k1(a)
    gen_k2(a)
    a('.section .rodata,"a"\n.p2align 6')
    a(kd("part_kernel", 60, 60, 100) if OPT["stamp"] else kd("part_kernel", 56, 56, 32))
    a(".p2align 6")
    a(kd("main_kernel", 256, 164, 100) if OPT["stamp"] else kd("main_kernel", 252, 160, 100))
    txt = a.text()
    import re
    def sub(m):
        b = Asm(); k = m.group(1); i = m.group(2)
        if k == "OUT":
            if i == "2": stamp_out(b, 96, sW, STAMP_OFF)
            else: stamp_out(b, 20, 23, STAMP_OFF + 0x100000, vreg=56, tmp=57, wpw=16)
        else:
            i = int(i); vr_ = 160 if k == "S" else 56
            if i == 0:
                stamp(b, 0, vr_); stamp(b, 1, vr_, real=True)
            elif i == 15: stamp(b, 15, vr_, real=True)
            else: stamp(b, i, vr_)
        return b.text() if b.lines else ""
    txt = re.sub(r"@(S|T|OUT)(\d+)@\n", sub, txt)
    lines = txt.split("\n")
    for p in check_hazards(lines): print("HAZARD", p)
    b = Asm(); tile_body(b); p_phase(b, False); tile_body(b); p_phase(b, True); flush_rmw(b); flush_rmw2(b); tile_body(b)
    for p in check_hazards(b.text().split("\n"), "loop"): print("HAZARD", p)
    open(sys.argv[1], "w").write(txt)

main()
```

```python
import sys
from asmlib import *

NAME = "gather_scatter__edge_featured_mpnn_gatedgcn__graph"
NP, CH = 250, 3200
RECB = CH * 12
OFFS = 0xA00000
IMG = OFFS + 0x40000
NLOG2E = 0xBFB8AA3B
CAPT = 128
EA0, K0 = 0, 32768
CNT, NB, HIST, ORDQ, ORDA, TSV, MISC = 49152, 49664, 50176, 50432, 50944, 51456, 51584
RING = 52224
NODE = RING + 8 * 4096
ROWB = 768
LDS2 = NODE + 99 * ROWB
K1_CNT, K1_START = 38400, 39424
LDS1 = 40448

OPT = dict(st_flags="", ld_flags="", npf=2, stamp=0, nodma=0, plain=0, prio=0, burst=0, add1=0, rr=0, dbg=-1)
for a_ in sys.argv[2:]:
    k_, v_ = a_.split("=", 1)
    OPT[k_] = int(v_) if v_.lstrip("-").isdigit() else v_

STAMP_OFF = 0x1000000
def stamp(a, idx, vreg=160, s=98, real=False):
    if not OPT["stamp"]: return
    a(f"  s_mem{'real' if real else ''}time s[{s}:{s+1}]\n  s_waitcnt lgkmcnt(0)\n  v_writelane_b32 v{vreg}, s{s}, {idx}")
def stamp_out(a, ws, wave, base, vreg=160, tmp=161, wpw=8):
    if not OPT["stamp"]: return
    a(f"""  s_mul_i32 s98, s2, {wpw}
  s_add_u32 s98, s98, s{wave}
  s_lshl_b32 s98, s98, 6
  s_add_u32 s98, s98, {base}
  v_and_b32 v{tmp}, 63, v0
  v_lshlrev_b32 v{tmp}, 2, v{tmp}
  v_add_u32 v{tmp}, s98, v{tmp}
  s_mov_b64 exec, 0xffff
  global_store_dword v{tmp}, v{vreg}, s[{ws}:{ws+1}]""")
    if OPT["dbg"] >= 0:
        a(f"""  s_cmp_lg_u32 s2, {OPT["dbg"]}
  s_cbranch_scc1 DBGX{vreg}
  s_cmp_lg_u32 s{wave}, {OPT.get("dbgw", 0)}
  s_cbranch_scc1 DBGX{vreg}
  s_load_dwordx2 s[98:99], s[0:1], 80
  v_and_b32 v{tmp}, 63, v0
  v_lshlrev_b32 v{tmp}, 2, v{tmp}
  s_waitcnt lgkmcnt(0)
  global_store_dword v{tmp}, v{vreg}, s[98:99]
DBGX{vreg}:""")

def dpp_scan(a, v):
    for m in ("row_shr:1", "row_shr:2", "row_shr:4", "row_shr:8"):
        a(f"  s_nop 1\n  v_add_u32_dpp v{v}, v{v}, v{v} {m} row_mask:0xf bank_mask:0xf")
    a(f"  s_nop 1\n  v_add_u32_dpp v{v}, v{v}, v{v} row_bcast:15 row_mask:0xa bank_mask:0xf")
    a(f"  s_nop 1\n  v_add_u32_dpp v{v}, v{v}, v{v} row_bcast:31 row_mask:0xc bank_mask:0xf")

def gen_k1(a):
    st = OPT["st_flags"]
    a(f"""
.globl part_kernel
.p2align 8
.type part_kernel,@function
part_kernel:
  s_cmp_ge_u32 s2, {NP+5}
  s_cbranch_scc1 K1_END
  s_load_dwordx8 s[4:11], s[0:1], 8
  s_load_dwordx8 s[12:19], s[0:1], 40
  s_load_dwordx2 s[20:21], s[0:1], 88
  v_lshrrev_b32 v33, 6, v0
  v_lshlrev_b32 v1, 4, v0
  v_readfirstlane_b32 s23, v33
  s_cmp_ge_u32 s2, {NP}
  s_cbranch_scc1 K1_PACK
@T0@
  s_mul_i32 s22, s2, {CH*4}
  v_add_u32 v2, s22, v1
  v_lshlrev_b32 v3, 1, v2
  v_mov_b32 v32, 1
  v_mov_b32 v36, 0
  v_mov_b32 v37, 0
  v_mov_b32 v38, 0
  v_mov_b32 v39, 0
  s_waitcnt lgkmcnt(0)
  global_load_dwordx4 v[4:7], v2, s[8:9]
  global_load_dwordx4 v[8:11], v2, s[6:7]
  global_load_dwordx4 v[12:15], v3, s[4:5]
  global_load_dwordx4 v[16:19], v3, s[4:5] offset:16
  s_cmp_lg_u32 s23, 0
  s_cbranch_scc1 K1_A
  ds_write_b128 v1, v[36:39] offset:{K1_CNT}
  s_waitcnt lgkmcnt(0)
K1_A:
  s_barrier
@T2@
  s_waitcnt vmcnt(3)
@T3@
""")
    for k in range(4):
        a(f"  v_lshlrev_b32_sdwa v{20+k}, 2, v{4+k} dst_sel:DWORD dst_unused:UNUSED_PAD src0_sel:DWORD src1_sel:BYTE_0")
    for k in range(4):
        a(f"  ds_add_rtn_u32 v{24+k}, v{20+k}, v32 offset:{K1_CNT}")
    a("  s_waitcnt vmcnt(2)")
    for k in range(4):
        a(f"  v_lshrrev_b32 v{4+k}, 8, v{4+k}")
        a(f"  v_lshl_or_b32 v{8+k}, v{4+k}, 18, v{8+k}")
    a(f"""
  s_waitcnt lgkmcnt(0)
  s_barrier
  s_cmp_lg_u32 s23, 0
  s_cbranch_scc1 K1_B
  ds_read_b128 v[36:39], v1 offset:{K1_CNT}
  s_waitcnt lgkmcnt(0)
  v_add_u32 v41, v36, v37
  v_add_u32 v42, v41, v38
  v_add_u32 v43, v42, v39
  v_mov_b32 v44, v43
""")
    dpp_scan(a, 44)
    a(f"""
  v_sub_u32 v45, v44, v43
  v_add_u32 v47, v45, v36
  v_add_u32 v48, v45, v41
  v_add_u32 v49, v45, v42
  v_mul_u32_u24 v46, 12, v45
  v_mul_u32_u24 v47, 12, v47
  v_mul_u32_u24 v48, 12, v48
  v_mul_u32_u24 v49, 12, v49
  ds_write_b128 v1, v[46:49] offset:{K1_START}
  v_lshl_or_b32 v50, v36, 16, v46
  v_lshl_or_b32 v51, v37, 16, v47
  v_lshl_or_b32 v52, v38, 16, v48
  v_lshl_or_b32 v53, v39, 16, v49
  s_lshl_b32 s24, s2, 2
  s_add_u32 s24, s24, {OFFS}
  v_lshlrev_b32 v54, 12, v0
  v_add_u32 v54, s24, v54
  global_store_dword v54, v50, s[20:21] {st}
  global_store_dword v54, v51, s[20:21] offset:1024 {st}
  global_store_dword v54, v52, s[20:21] offset:2048 {st}
  global_store_dword v54, v53, s[20:21] offset:3072 {st}
  s_waitcnt lgkmcnt(0)
K1_B:
  s_barrier
@T4@
""")
    for k in range(4):
        a(f"  ds_read_b32 v{28+k}, v{20+k} offset:{K1_START}")
    for k in range(4):
        a(f"  s_waitcnt lgkmcnt({3-k})" + (" vmcnt(0)" if k == 0 else ""))
        a(f"  v_mad_u32_u24 v{28+k}, v{24+k}, 12, v{28+k}")
    for k in range(4):
        a(f"  ds_write2_b32 v{28+k}, v{12+2*k}, v{13+2*k} offset0:0 offset1:1")
        a(f"  ds_write_b32 v{28+k}, v{8+k} offset:8")
    a(f"""
  s_mul_i32 s22, s2, {RECB}
  v_add_u32 v2, s22, v1
  v_add_u32 v3, {12800}, v2
  v_add_u32 v4, {25600}, v2
  s_waitcnt lgkmcnt(0)
  s_barrier
  ds_read_b128 v[8:11], v1
  ds_read_b128 v[12:15], v1 offset:12800
  ds_read_b128 v[16:19], v1 offset:25600
  s_waitcnt lgkmcnt(2)
  global_store_dwordx4 v2, v[8:11], s[20:21] {st}
  s_waitcnt lgkmcnt(1)
  global_store_dwordx4 v3, v[12:15], s[20:21] {st}
  s_waitcnt lgkmcnt(0)
  global_store_dwordx4 v4, v[16:19], s[20:21] {st}
@T5@
  s_waitcnt vmcnt(0)
@T6@
@T15@
@OUT1@
  s_endpgm
K1_PACK:
  s_cmp_ge_u32 s23, 4
  s_cbranch_scc1 K1_END
  s_waitcnt lgkmcnt(0)
  v_and_b32 v2, 31, v0
  v_bfe_u32 v3, v0, 5, 1
  v_and_b32 v34, 63, v0
  s_cmp_eq_u32 s2, {NP+4}
  s_cbranch_scc1 K1_PACKC
  s_mov_b32 s24, s12
  s_mov_b32 s25, s13
  s_mov_b32 s26, {NLOG2E:#x}
  s_cmp_eq_u32 s2, {NP}
  s_cbranch_scc1 K1_P1
  s_mov_b32 s26, 1.0
  s_mov_b32 s24, s18
  s_mov_b32 s25, s19
  s_cmp_eq_u32 s2, {NP+1}
  s_cbranch_scc1 K1_P1
  s_mov_b32 s24, s10
  s_mov_b32 s25, s11
  s_cmp_eq_u32 s2, {NP+2}
  s_cbranch_scc1 K1_P1
  s_mov_b32 s24, s16
  s_mov_b32 s25, s17
K1_P1:
  v_lshlrev_b32 v4, 12, v3
  v_lshl_add_u32 v4, v2, 2, v4
  s_lshl_b32 s27, s23, 10
  v_add_u32 v4, s27, v4
""")
    for j in range(8):
        a(f"  global_load_dword v{8+j}, v4, s[24:25] offset:{128*j}")
    a("  s_waitcnt vmcnt(0)")
    for j in range(8):
        a(f"  v_lshlrev_b32 v{16+j}, 16, v{8+j}")
        a(f"  v_and_b32 v{24+j}, 0xffff0000, v{8+j}")
        a(f"  v_mul_f32 v{16+j}, s26, v{16+j}")
        a(f"  v_mul_f32 v{24+j}, s26, v{24+j}")
    for jj in range(4):
        a(f"  v_cvt_pk_bf16_f32 v{36+jj}, v{16+2*jj}, v{17+2*jj}")
        a(f"  v_cvt_pk_bf16_f32 v{40+jj}, v{24+2*jj}, v{25+2*jj}")
    a(f"""
  s_sub_u32 s27, s2, {NP}
  s_lshl_b32 s27, s27, 2
  s_add_u32 s27, s27, s23
  s_lshl_b32 s27, s27, 11
  s_add_u32 s27, s27, {IMG}
  v_lshlrev_b32 v5, 4, v34
  v_add_u32 v5, s27, v5
  global_store_dwordx4 v5, v[36:39], s[20:21] {st}
  global_store_dwordx4 v5, v[40:43], s[20:21] offset:1024 {st}
  s_endpgm
K1_PACKC:
  s_cmp_lg_u32 s23, 0
  s_cbranch_scc1 K1_END
  v_lshlrev_b32 v4, 2, v2
  s_mov_b32 s26, {NLOG2E:#x}
""")
    for j in range(4):
        a(f"  global_load_dword v{8+j}, v4, s[14:15] offset:{128*j}")
    a("  s_waitcnt vmcnt(0)")
    for j in range(4):
        a(f"  v_lshlrev_b32 v{16+j}, 16, v{8+j}")
        a(f"  v_and_b32 v{24+j}, 0xffff0000, v{8+j}")
        a(f"  v_mul_f32 v{16+j}, s26, v{16+j}")
        a(f"  v_mul_f32 v{24+j}, s26, v{24+j}")
    a(f"""
  v_cvt_pk_bf16_f32 v36, v16, v17
  v_cvt_pk_bf16_f32 v37, v18, v19
  v_cvt_pk_bf16_f32 v38, v24, v25
  v_cvt_pk_bf16_f32 v39, v26, v27
  v_cmp_eq_u32 vcc, 0, v3
  v_mov_b32 v40, 0x71800000
  v_mov_b32 v41, 0
  v_cndmask_b32 v36, v40, v36, vcc
  v_cndmask_b32 v37, v41, v37, vcc
  v_cndmask_b32 v38, v40, v38, vcc
  v_cndmask_b32 v39, v41, v39, vcc
  v_lshlrev_b32 v5, 4, v34
  v_add_u32 v5, {IMG+32768}, v5
  global_store_dwordx4 v5, v[36:39], s[20:21] {st}
K1_END:
  s_endpgm
""")

G, HV, AC, CI = 32, 64, 96, 128
WB, WV, BE, ONE, EOP, X = 0, 32, 64, 68, 70, 72
vXA = 1
vI = 6
vEs, vEb, vE, vKb, vK = 14, 15, 16, 17, 18
vNA = 20
vN4, vTSV, vOrd, vLane = 24, 25, 26, 27
vT0, vT1, vT2, vT3 = 28, 29, 30, 31
vOne = 5
sXI, sXR, sOUT, sREC, sOFF, sIMG = 8, 12, 16, 20, 24, 28
sM1 = 32
sM2 = 48
sSeg = 64
sW, sSB, sSW, sFirstB = 72, 73, 74, 75
sT, sT0, sT1, sTn, sTn2, sRun, sGam, sFst, sCont, sContEnd, sG0, sM0, sMaxC, sTmp, sTmp2, sEnd, sCur = range(76, 93)
sSlow = 93
sSave = 94

def mfma16(d, A, B, C):
    return f"  v_mfma_f32_32x32x16_bf16 v[{d}:{d+15}], {A}, {B}, {C}"
def mfma8(d, A, B, C):
    return f"  v_mfma_f32_32x32x8_bf16 v[{d}:{d+15}], {A}, {B}, {C}"

def flush_rmw(a):
    for ct in range(2):
        for g in range(4):
            t = G + (ct*4+g)*2
            a(f"  ds_read2_b32 v[{t}:{t+1}], v{vNA+g} offset0:{64+32*ct} offset1:{128+32*ct}")
    for q in range(8):
        r = AC + q*4
        a(f"  v_add_f32 v{r}, v{r}, v{r+1}")
        a(f"  v_add_f32 v{r+2}, v{r+2}, v{r+3}")

def flush_rmw2(a):
    for q in range(8):
        r = AC + q*4; t = G + q*2
        a(f"  v_add_f32 v{r}, v{r}, v{t}")
        a(f"  v_add_f32 v{r+2}, v{r+2}, v{t+1}")
    for ct in range(2):
        for g in range(4):
            r = AC + (ct*4+g)*4
            a(f"  ds_write2_b32 v{vNA+g}, v{r}, v{r+2} offset0:{64+32*ct} offset1:{128+32*ct}")

def next_tile(a, dst, src):
    a(f"""  s_add_u32 s{dst}, s{src}, 1
  s_cmp_eq_u32 s{dst}, s{sT1}
  s_cselect_b32 s{dst}, s{sT0}, s{dst}""")

def dma(i):
    if OPT["nodma"]: return "  s_nop 0"
    return f"  buffer_load_dwordx4 v[{vI+2*i}:{vI+2*i+1}], s[{sXI}:{sXI+3}], 0 idxen offen lds"

def tile_body_rr(a):
    XR = lambda s: ar(X+4*s, 4)
    wb = lambda s, ct: ar(WB+(s*2+ct)*4, 4)
    wv = lambda s, ct: ar(WV+(s*2+ct)*4, 4)
    G0, G1, H0, H1 = G, G+16, HV, HV+16
    g = lambda d: f"v[{d}:{d+15}]"
    pr = OPT["prio"]; rr = OPT["rr"]
    E0 = mfma8(G0, ar(EOP,2), ar(BE,2), g(CI)); E1 = mfma8(G1, ar(EOP,2), ar(BE+2,2), g(CI+16))
    Gm = lambda ct, s: mfma16(G+16*ct, XR(s), wb(s,ct), g(G+16*ct))
    Hm = lambda ct, s: mfma16(HV+16*ct, XR(s), wv(s,ct), g(HV+16*ct) if s else "0")
    A0 = mfma8(G0, ar(ONE,2), ar(ONE,2), g(G0)); A1 = mfma8(G1, ar(ONE,2), ar(ONE,2), g(G1))
    if pr in (1, 2, 3): a("  s_setprio 1")
    if pr == 4: a("  s_setprio 0")
    a(f"  s_waitcnt vmcnt(0)")
    a(f"  ds_read2_b32 a[{EOP}:{EOP+1}], v{vE} offset0:0 offset1:1")
    for s in range(4):
        a(f"  ds_read_b128 {XR(s)}, v{vXA+s}")
    next_tile(a, sTn2, sTn)
    a(f"  s_lshl_b32 s{sTmp}, s{sTn2}, 7")
    misc = [f"  s_mov_b32 m0, s{sM0}", None, dma(0), f"  s_add_u32 m0, s{sM0}, 1024", None, dma(1), f"  s_add_u32 m0, s{sM0}, 2048",
            f"  v_add_u32 v{vK}, s{sTmp}, v{vKb}", dma(2), f"  s_add_u32 m0, s{sM0}, 3072", f"  v_mad_u32_u24 v{vE}, v{vEs}, s{sTn}, v{vEb}", dma(3)] + \
           [f"  ds_read_b32 v{vI+2*i}, v{vK} offset:{4*i}" for i in range(4)] + [f"  s_mov_b32 s{sTn}, s{sTn2}"]
    T = [f"  v_exp_f32 v{G0+i}, v{G0+i}" for i in range(16)] + [f"  v_exp_f32 v{G1+i}, v{G1+i}" for i in range(16)] \
      + [f"  v_rcp_f32 v{G0+i}, v{G0+i}" for i in range(16)] + [f"  v_rcp_f32 v{G1+i}, v{G1+i}" for i in range(16)]
    ti = 0
    def tr(n):
        nonlocal ti
        for _ in range(n):
            a(T[ti]); ti += 1
    if rr == 1:
        a(f"  s_waitcnt lgkmcnt(4)"); a(E0); a(E1)
        for s in range(4):
            a(f"  s_waitcnt lgkmcnt({3-s})")
            if s < 3:
                a(Hm(0,s)); a(Hm(1,s)); a(Gm(0,s)); a(Gm(1,s))
        ms = [Gm(0,3), Gm(1,3)]
        for m in misc: a(m if m else ms.pop(0))
        a(Hm(0,3)); a(Hm(1,3))
        if pr == 4: a("  s_setprio 1")
        if pr in (1, 2): a("  s_setprio 0")
        tr(18); a(A0); tr(16); a(A1); tr(30)
    elif rr == 2:
        a(f"  s_waitcnt lgkmcnt(4)"); a(E0); a(E1)
        for s in range(4):
            a(f"  s_waitcnt lgkmcnt({3-s})")
            a(Gm(0,s)); a(Gm(1,s))
        ms = [Hm(0,0), Hm(1,0)]
        for m in misc: a(m if m else ms.pop(0))
        if pr == 4: a("  s_setprio 1")
        if pr in (1, 2): a("  s_setprio 0")
        for s in range(1, 4):
            tr(3); a(Hm(0,s)); tr(3); a(Hm(1,s))
        a(A0); tr(16); a(A1); tr(30)
    elif rr == 3:
        a(f"  s_waitcnt lgkmcnt(4)"); a(E0); a(E1)
        for s in range(4):
            a(f"  s_waitcnt lgkmcnt({3-s})")
            a(Gm(0,s)); a(Gm(1,s))
        ms = ["  s_nop 0", "  s_nop 0"]
        for m in misc: a(m if m else ms.pop(0))
        if pr == 4: a("  s_setprio 1")
        if pr in (1, 2): a("  s_setprio 0")
        seq = [Hm(0,0), Hm(1,0), Hm(0,1), Hm(1,1), A0, Hm(0,2), Hm(1,2), Hm(0,3), A1, Hm(1,3)]
        pos = [2, 6, 10, 14, 18, 22, 26, 30, 34, 38]
        for m, p in zip(seq, pos):
            tr(p - ti); a(m)
        tr(64 - ti)

def tile_body(a):
    if OPT["rr"]: return tile_body_rr(a)
    XR = lambda s: ar(X+4*s, 4)
    wb = lambda s, ct: ar(WB+(s*2+ct)*4, 4)
    wv = lambda s, ct: ar(WV+(s*2+ct)*4, 4)
    G0, G1, H0, H1 = G, G+16, HV, HV+16
    g = lambda d: f"v[{d}:{d+15}]"
    if OPT["prio"] in (1, 2, 3): a("  s_setprio 1")
    if OPT["prio"] == 4: a("  s_setprio 0")
    a(f"  s_waitcnt vmcnt(0)")
    a(f"  ds_read2_b32 a[{EOP}:{EOP+1}], v{vE} offset0:0 offset1:1")
    for s in range(4):
        a(f"  ds_read_b128 {XR(s)}, v{vXA+s}")
    next_tile(a, sTn2, sTn)
    a(f"  s_lshl_b32 s{sTmp}, s{sTn2}, 7")
    a(f"  s_waitcnt lgkmcnt(3)")
    a(mfma8(G0, ar(EOP,2), ar(BE,2), g(CI)))
    a(mfma16(G0, XR(0), wb(0,0), g(G0)))
    a(f"  s_waitcnt lgkmcnt(2)")
    a(mfma16(G0, XR(1), wb(1,0), g(G0)))
    a(f"  s_waitcnt lgkmcnt(1)")
    a(mfma16(G0, XR(2), wb(2,0), g(G0)))
    a(f"  s_waitcnt lgkmcnt(0)")
    a(mfma16(G0, XR(3), wb(3,0), g(G0)))
    a(f"  s_mov_b32 m0, s{sM0}")
    a(mfma8(G1, ar(EOP,2), ar(BE+2,2), g(CI+16)))
    a(dma(0))
    a(f"  s_add_u32 m0, s{sM0}, 1024")
    a(mfma16(G1, XR(0), wb(0,1), g(G1)))
    a(dma(1))
    a(f"  s_add_u32 m0, s{sM0}, 2048")
    a(f"  v_add_u32 v{vK}, s{sTmp}, v{vKb}")
    a(dma(2))
    a(f"  s_add_u32 m0, s{sM0}, 3072")
    a(f"  v_mad_u32_u24 v{vE}, v{vEs}, s{sTn}, v{vEb}")
    a(dma(3))
    for i in range(4):
        a(f"  ds_read_b32 v{vI+2*i}, v{vK} offset:{4*i}")
    a(f"  s_mov_b32 s{sTn}, s{sTn2}")
    if OPT["prio"] in (1, 2): a("  s_setprio 0")
    T = [f"  v_exp_f32 v{G0+i}, v{G0+i}" for i in range(16)] + [f"  v_exp_f32 v{G1+i}, v{G1+i}" for i in range(16)] \
      + [f"  v_rcp_f32 v{G0+i}, v{G0+i}" for i in range(16)] + [f"  v_rcp_f32 v{G1+i}, v{G1+i}" for i in range(16)]
    ti = 0
    def tr(n):
        nonlocal ti
        for _ in range(n):
            a(T[ti]); ti += 1
    if OPT["burst"]:
        for s_ in range(1, 4): a(mfma16(G1, XR(s_), wb(s_,1), g(G1)))
        for ct, H in ((0, H0), (1, H1)):
            for s_ in range(4): a(mfma16(H, XR(s_), wv(s_,ct), g(H) if s_ else "0"))
        if OPT["prio"] == 4: a("  s_setprio 1")
        if OPT["add1"]:
            tr(32)
            for i in range(32): a(f"  v_add_f32 v{G0+i}, 1.0, v{G0+i}")
            tr(32)
        else:
            tr(18)
            a(mfma8(G0, ar(ONE,2), ar(ONE,2), g(G0)))
            tr(16)
            a(mfma8(G1, ar(ONE,2), ar(ONE,2), g(G1)))
            tr(30)
        return
    tr(3); a(mfma16(G1, XR(1), wb(1,1), g(G1)))
    tr(3); a(mfma16(G1, XR(2), wb(2,1), g(G1)))
    tr(3); a(mfma16(G1, XR(3), wb(3,1), g(G1)))
    tr(3); a(mfma16(H0, XR(0), wv(0,0), "0"))
    tr(3); a(mfma16(H0, XR(1), wv(1,0), g(H0)))
    tr(1); a(mfma16(H0, XR(2), wv(2,0), g(H0)))
    a("  s_nop 0")
    a(mfma8(G0, ar(ONE,2), ar(ONE,2), g(G0)))
    tr(3); a(mfma16(H0, XR(3), wv(3,0), g(H0)))
    tr(3); a(mfma16(H1, XR(0), wv(0,1), "0"))
    tr(3); a(mfma16(H1, XR(1), wv(1,1), g(H1)))
    tr(3); a(mfma16(H1, XR(2), wv(2,1), g(H1)))
    tr(3); a(mfma16(H1, XR(3), wv(3,1), g(H1)))
    tr(3)
    a(mfma8(G1, ar(ONE,2), ar(ONE,2), g(G1)))
    tr(64 - ti)

def p_phase(a, first):
    def pr(r): return f"v[{r}:{r+1}]"
    if OPT["prio"] == 2: a("  s_setprio 2")
    if OPT["prio"] == 3: a("  s_setprio 0")
    if OPT["plain"]:
        for ct in range(2):
            for k in range(4):
                for g in range(4):
                    e = G + 16*ct + 4*g + k; h = HV + 16*ct + 4*g + k; r = AC + (ct*4+g)*4 + (k&1)
                    if first and k < 2:
                        a(f"  v_mul_f32 v{r}, v{e}, v{h}")
                        a(f"  v_add_f32 v{r+2}, v{e}, v{e+2}")
                    elif first:
                        a(f"  v_fmac_f32 v{r}, v{e}, v{h}")
                    else:
                        a(f"  v_fmac_f32 v{r}, v{e}, v{h}")
                        a(f"  v_add_f32 v{r+2}, v{e}, v{r+2}")
        return
    for ct in range(2):
        for half in range(2):
            for g in range(4):
                e = G + 16*ct + 4*g; h = HV + 16*ct + 4*g; r = AC + (ct*4+g)*4
                if first:
                    if half == 0:
                        a(f"  v_pk_mul_f32 {pr(r)}, {pr(e)}, {pr(h)}")
                        a(f"  v_pk_add_f32 {pr(r+2)}, {pr(e)}, {pr(e+2)}")
                    else:
                        a(f"  v_pk_fma_f32 {pr(r)}, {pr(e+2)}, {pr(h+2)}, {pr(r)}")
                else:
                    a(f"  v_pk_fma_f32 {pr(r)}, {pr(e+2*half)}, {pr(h+2*half)}, {pr(r)}")
                    a(f"  v_pk_add_f32 {pr(r+2)}, {pr(e+2*half)}, {pr(r+2)}")

def gen_k2(a):
    ld = OPT["ld_flags"]
    NPF = OPT["npf"]
    R = lambda k: 32 + 4*k
    A4 = lambda k: 96 + k
    OF = 112
    VA = 120
    a(f"""
.globl main_kernel
.p2align 8
.type main_kernel,@function
main_kernel:
  s_cmp_ge_u32 s2, 256
  s_cbranch_scc1 K2_END
  s_load_dwordx2 s[4:5], s[0:1], 0
  s_load_dwordx2 s[6:7], s[0:1], 72
  s_load_dwordx2 s[96:97], s[0:1], 88
  v_lshrrev_b32 v{vT0}, 6, v0
  v_and_b32 v{vLane}, 63, v0
  v_readfirstlane_b32 s{sW}, v{vT0}
  v_mov_b32 v{vOne}, 1
@S0@
  s_mov_b32 s{sSB}, 0
  s_mov_b32 s{sSW}, 32
  s_mov_b32 s{sFirstB}, 1
""")
    for i in range(8):
        a(f"  s_mov_b32 s{sSeg+i}, {i*RECB}")
    a(f"""
  v_lshrrev_b32 v{vT1}, 4, v0         ; G = tid>>4
  v_lshlrev_b32 v{vT2}, 5, v{vT1}     ; G*32
  s_waitcnt lgkmcnt(0)
  s_mov_b32 s{sXI}, s4
  s_and_b32 s{sXI+1}, s5, 0xffff
  s_or_b32 s{sXI+1}, s{sXI+1}, 0x800000
  s_mov_b32 s{sXI+2}, 25000
  s_mov_b32 s{sXI+3}, 0x20000
  s_mov_b32 s{sXR}, s4
  s_and_b32 s{sXR+1}, s5, 0xffff
  s_mov_b32 s{sXR+2}, 3200000
  s_mov_b32 s{sXR+3}, 0x20000
  s_mov_b32 s{sOUT}, s6
  s_and_b32 s{sOUT+1}, s7, 0xffff
  s_mov_b32 s{sOUT+2}, 3200000
  s_mov_b32 s{sOUT+3}, 0x20000
  s_mov_b32 s{sREC}, s96
  s_and_b32 s{sREC+1}, s97, 0xffff
  s_mov_b32 s{sREC+2}, {NP*RECB}
  s_mov_b32 s{sREC+3}, 0x20000
  s_lshl_b32 s{sTmp}, s2, 10
  s_add_u32 s{sTmp}, s{sTmp}, {OFFS}
  s_add_u32 s{sOFF}, s96, s{sTmp}
  s_addc_u32 s{sOFF+1}, s97, 0
  s_and_b32 s{sOFF+1}, s{sOFF+1}, 0xffff
  s_mov_b32 s{sOFF+2}, {NP*4}
  s_mov_b32 s{sOFF+3}, 0x20000
  s_add_u32 s{sIMG}, s96, {IMG}
  s_addc_u32 s{sIMG+1}, s97, 0
  s_and_b32 s{sIMG+1}, s{sIMG+1}, 0xffff
  s_mov_b32 s{sIMG+2}, {32768+1024}
  s_mov_b32 s{sIMG+3}, 0x20000
  buffer_load_dwordx4 v[{OF}:{OF+3}], v{vT2}, s[{sOFF}:{sOFF+3}], 0 offen
  buffer_load_dwordx4 v[{OF+4}:{OF+7}], v{vT2}, s[{sOFF}:{sOFF+3}], 0 offen offset:16
  v_and_b32 v{vT0}, 31, v{vLane}
  s_lshr_b32 s{sTmp}, s{sW}, 1
  s_lshl_b32 s{sTmp}, s{sTmp}, 13
  s_add_u32 s{sTmp}, s{sTmp}, s2
  v_lshlrev_b32 v{vT2}, 8, v{vT0}
  v_add_u32 v{vT2}, s{sTmp}, v{vT2}
  v_lshrrev_b32 v{vT3}, 5, v{vLane}
  v_lshlrev_b32 v{vT3}, 6, v{vT3}
  v_lshlrev_b32 v{vK}, 4, v{vLane}     ; lane*16
""")
    for s in range(4):
        a(f"  buffer_load_dwordx4 {ar(X+4*s,4)}, v[{vT2}:{vT3}], s[{sXI}:{sXI+3}], 0 idxen offen offset:{16*s}")
    a(f"""  s_and_b32 s{sTmp}, s{sW}, 1
  s_lshl_b32 s{sTmp}, s{sTmp}, 10
  s_add_u32 s{sTmp}, s{sTmp}, {2*8192}
  s_add_u32 s{sTmp2}, s{sTmp}, 4096""")
    for s in range(4):
        so = sTmp if s < 2 else sTmp2
        a(f"  buffer_load_dwordx4 v[{144+4*s}:{147+4*s}], v{vK}, s[{sIMG}:{sIMG+3}], s{so} offen offset:{(s&1)*2048}")
    a(f"  s_mov_b32 s{sT}, 4096\n  s_mov_b32 s{sT0}, 8192\n  s_mov_b32 s{sT1}, 12288\n  s_mov_b32 s{sTn}, 32768")
    for q in range(16):
        so = ["0", f"s{sT}", f"s{sT0}", f"s{sT1}"][q >> 2]
        a(f"  buffer_load_dwordx4 {ar(4*q,4)}, v{vK}, s[{sIMG}:{sIMG+3}], {so} offen offset:{(q&3)*1024}")
    a(f"  buffer_load_dwordx4 {ar(BE,4)}, v{vK}, s[{sIMG}:{sIMG+3}], s{sTn} offen")
    a(f"""
  v_lshlrev_b32 v{vN4}, 2, v{vT0}              ; n*4
  v_lshrrev_b32 v{vT1}, 5, v{vLane}            ; h
  v_lshlrev_b32 v{vOrd}, 4, v{vT1}
  v_add_u32 v{vOrd}, {ORDA}, v{vOrd}           ; ORDA + h*16
  v_cmp_eq_u32 vcc, 0, v{vT1}
  v_mov_b32 v{vT2}, 0x3f80
  v_mov_b32 v{vT3}, 0
  v_cndmask_b32 v{vT2}, v{vT3}, v{vT2}, vcc
  v_accvgpr_write_b32 a{ONE}, v{vT2}
  v_accvgpr_write_b32 a{ONE+1}, v{vT3}
  v_mov_b32 v{vT2}, 128
  v_mov_b32 v{vT3}, 256
  v_cndmask_b32 v{vEs}, v{vT2}, v{vT3}, vcc    ; stride: h? 128 : 256
  v_lshlrev_b32 v{vT2}, 3, v{vT0}              ; m*8 (+EA0)
  v_add_u32 v{vT3}, {K0}, v{vN4}               ; K0 + m*4
  v_cndmask_b32 v{vEb}, v{vT3}, v{vT2}, vcc
  v_lshrrev_b32 v{vT2}, 3, v{vLane}            ; o = l>>3
  v_lshlrev_b32 v{vKb}, 4, v{vT2}
  v_add_u32 v{vKb}, {K0}, v{vKb}               ; K0 + o*16
  v_and_b32 v{vT2}, 7, v{vLane}
  v_bfe_u32 v{vT3}, v{vLane}, 4, 1
  v_lshlrev_b32 v{vT3}, 2, v{vT3}
  v_xor_b32 v{vT2}, v{vT2}, v{vT3}
""")
    for i in range(4):
        a(f"  v_xor_b32 v{vI+2*i+1}, {i}, v{vT2}\n  v_lshlrev_b32 v{vI+2*i+1}, 4, v{vI+2*i+1}")
    a(f"""
  s_lshl_b32 s{sM0}, s{sW}, 12
  s_add_u32 s{sM0}, s{sM0}, {RING}
  v_and_b32 v{vT2}, 3, v{vT0}                  ; r
  v_bfe_u32 v{vT3}, v{vT0}, 3, 1
  v_xor_b32 v{vT3}, v{vT3}, v{vT1}
  v_lshl_or_b32 v{vT3}, v{vT3}, 2, v{vT2}
  v_lshlrev_b32 v{vT2}, 10, v{vT2}
  v_lshrrev_b32 v{vE}, 2, v{vT0}
  v_lshl_add_u32 v{vT2}, v{vE}, 7, v{vT2}
  v_add_u32 v{vT2}, s{sM0}, v{vT2}
""")
    for s in range(4):
        a(f"  v_xor_b32 v{vXA+s}, {s}, v{vT3}\n  v_lshl_add_u32 v{vXA+s}, v{vXA+s}, 4, v{vT2}")
    a(f"""
  v_mov_b32 v128, 0
  v_mov_b32 v129, 0
  v_mov_b32 v130, 0
  v_mov_b32 v131, 0
  v_lshrrev_b32 v{vT2}, 5, v0
  v_mul_u32_u24 v{vT2}, {ROWB}, v{vT2}
  v_lshl_add_u32 v{vT2}, v{vT0}, 4, v{vT2}
  v_add_u32 v{vT2}, {NODE+256}, v{vT2}
  v_add_u32 v{vT3}, {4*16*ROWB}, v{vT2}
""")
    for k in range(7):
        t = vT2 if k < 4 else vT3
        a(f"  ds_write_b128 v{t}, v[128:131] offset:{(k&3)*16*ROWB}")
    a("K2_RESET:")
    a(f"""
  v_mov_b32 v128, 0
  v_mov_b32 v129, 0
  v_mov_b32 v130, 0
  v_mov_b32 v131, 0
  v_mov_b32 v132, 1.0
  v_mov_b32 v133, 1.0
  v_mov_b32 v134, 1.0
  v_mov_b32 v135, 1.0
  v_lshlrev_b32 v{vT2}, 4, v0
""")
    for k in range(6):
        a(f"  ds_write_b128 v{vT2}, v[132:135] offset:{8192*k}")
    a(f"""
  v_cmp_gt_u32 vcc, {(MISC+64-CNT)//16}, v0
  s_and_saveexec_b64 s[{sSave}:{sSave+1}], vcc
  ds_write_b128 v{vT2}, v[128:131] offset:{CNT}
  s_mov_b64 exec, s[{sSave}:{sSave+1}]
  v_and_b32 v{vT0}, 15, v0
  v_add_u32 v{vT1}, 16, v{vT0}
  v_mov_b32 v{vT3}, 0xffff
  v_cmp_gt_u32 vcc, s{sSW}, v{vT0}
  v_add_u32 v{vT2}, s{sSB}, v{vT0}
  s_nop 0
  v_cndmask_b32 v136, v{vT3}, v{vT2}, vcc
  v_cmp_gt_u32 vcc, s{sSW}, v{vT1}
  v_add_u32 v{vT1}, s{sSB}, v{vT1}
  s_nop 0
  v_cndmask_b32 v137, v{vT3}, v{vT1}, vcc
  v_mul_u32_u24 v{vT2}, 12, v{vT2}
  v_lshrrev_b32 v{vT1}, 4, v0
  s_mov_b32 s{sTmp}, {8*RECB}
  v_mad_u32_u24 v138, v{vT1}, s{sTmp}, v{vT2}
  s_cmp_eq_u32 s{sFirstB}, 1
  s_cbranch_scc1 K2_OFW
  v_lshlrev_b32 v{vT2}, 5, v{vT1}
  buffer_load_dwordx4 v[{OF}:{OF+3}], v{vT2}, s[{sOFF}:{sOFF+3}], 0 offen
  buffer_load_dwordx4 v[{OF+4}:{OF+7}], v{vT2}, s[{sOFF}:{sOFF+3}], 0 offen offset:16
  s_waitcnt vmcnt(0)
K2_OFW:
@S2@
  s_waitcnt vmcnt(25)
@S3@
""")
    for i in range(8):
        a(f"  v_add_u32_sdwa v{VA+i}, v{OF+i}, v138 dst_sel:DWORD dst_unused:UNUSED_PAD src0_sel:WORD_0 src1_sel:DWORD")
        a(f"  v_cmp_lt_u32_sdwa s[{sM1+2*i}:{sM1+2*i+1}], v136, v{OF+i} src0_sel:DWORD src1_sel:WORD_1")
        a(f"  v_cmp_lt_u32_sdwa s[{sM2+2*i}:{sM2+2*i+1}], v137, v{OF+i} src0_sel:DWORD src1_sel:WORD_1")
    for i in range(8):
        a(f"  s_mov_b64 exec, s[{sM1+2*i}:{sM1+2*i+1}]")
        a(f"  buffer_load_dwordx3 v[{R(i)}:{R(i)+2}], v{VA+i}, s[{sREC}:{sREC+3}], s{sSeg+i} offen {ld}")
    for i in range(8):
        a(f"  s_mov_b64 exec, s[{sM2+2*i}:{sM2+2*i+1}]")
        a(f"  buffer_load_dwordx3 v[{R(8+i)}:{R(8+i)+2}], v{VA+i}, s[{sREC}:{sREC+3}], s{sSeg+i} offen offset:192 {ld}")
    a("  s_mov_b64 exec, -1")
    a(f"""
  s_lshr_b32 s{sTmp}, s2, 3
  s_mul_i32 s{sTmp}, s{sTmp}, 100096
  v_lshlrev_b32 v{vT2}, 7, v0
  s_add_u32 s{sTmp2}, s{sTmp}, 65536
""")
    for k in range(NPF):
        a(f"  buffer_load_dword a{88+k}, v{vT2}, s[{sXR}:{sXR+3}], s{sTmp if k == 0 else sTmp2} offen")
    a(f"""
  v_max3_u32 v{vT2}, v{OF}, v{OF+1}, v{OF+2}
  v_max3_u32 v{vT3}, v{OF+3}, v{OF+4}, v{OF+5}
  v_max3_u32 v{vT2}, v{OF+6}, v{OF+7}, v{vT2}
  v_max_u32 v{vT2}, v{vT2}, v{vT3}
  v_lshrrev_b32 v19, 16, v{vT2}
  s_cmp_eq_u32 s{sFirstB}, 0
  s_cbranch_scc1 K2_NOA
  s_waitcnt vmcnt({17+16+NPF})
""")
    for s in range(4):
        a(mfma16(128, ar(X+4*s,4), vr(144+4*s,4), "0" if s == 0 else "v[128:143]"))
    a(f"""
  s_lshr_b32 s{sTmp}, s{sW}, 1
  s_mul_i32 s{sTmp}, s{sTmp}, {32*ROWB}
  s_and_b32 s{sTmp2}, s{sW}, 1
  s_lshl_b32 s{sTmp2}, s{sTmp2}, 7
  s_add_u32 s{sTmp}, s{sTmp}, s{sTmp2}
  s_add_u32 s{sTmp}, s{sTmp}, {NODE}
  v_lshrrev_b32 v{vT1}, 5, v{vLane}
  v_mul_u32_u24 v{vT1}, {4*ROWB}, v{vT1}
  v_add3_u32 v{vT1}, v{vT1}, v{vN4}, s{sTmp}
  s_mov_b32 s{sTmp2}, {NLOG2E:#x}
  s_nop 3
""")
    for r in range(16):
        a(f"  v_mul_f32 v{128+r}, s{sTmp2}, v{128+r}")
    for r in range(16):
        a(f"  ds_write_b32 v{vT1}, v{128+r} offset:{(8*(r>>2)+(r&3))*ROWB}")
    a(f"""
K2_NOA:
@S4@
  s_waitcnt lgkmcnt(0)
  s_barrier
  v_mov_b32 v{vT2}, {MISC}
  s_mov_b32 s{sSave}, 0x00010001
  s_mov_b32 s{sSave+1}, 0x00010001
  s_mov_b64 exec, s[{sSave}:{sSave+1}]
  ds_max_u32 v{vT2}, v19
  s_mov_b64 exec, -1
@S5@
  s_waitcnt vmcnt({8+NPF})
@S6@
""")
    for k in range(16):
        if k == 8: a(f"  s_waitcnt vmcnt({NPF})")
        m = (sM1 + 2*k) if k < 8 else (sM2 + 2*(k-8))
        a(f"  s_mov_b64 exec, s[{m}:{m+1}]")
        a(f"  v_lshrrev_b32 v{A4(k)}, 16, v{R(k)+2}")
        a(f"  ds_add_rtn_u32 v{R(k)+3}, v{A4(k)}, v{vOne} offset:{CNT}")
    a("  s_mov_b64 exec, -1")
    a(f"  s_waitcnt lgkmcnt(0)\n  s_barrier")
    a("@S7@")
    a(f"  s_cmp_lg_u32 s{sW}, 0\n  s_cbranch_scc1 K2_NOSORT")
    c0, c1, q0, q1, b0, b1, p0, p1, hv, ex, e0, e1, m0_, m1_, t0_, t1_, u0, u1, l4 = range(128, 147)
    a(f"""
  v_lshlrev_b32 v{l4}, 2, v{vLane}
  ds_read2st64_b32 v[{c0}:{c1}], v{l4} offset0:{CNT//256} offset1:{CNT//256+1}
  s_waitcnt lgkmcnt(0)
  v_add_u32 v{q0}, 3, v{c0}
  v_add_u32 v{q1}, 3, v{c1}
  v_lshrrev_b32 v{q0}, 2, v{q0}
  v_lshrrev_b32 v{q1}, 2, v{q1}
  v_min_u32 v{b0}, 63, v{q0}
  v_min_u32 v{b1}, 63, v{q1}
  v_sub_u32 v{b0}, 63, v{b0}
  v_sub_u32 v{b1}, 63, v{b1}
  v_lshlrev_b32 v{b0}, 2, v{b0}
  v_lshlrev_b32 v{b1}, 2, v{b1}
  ds_add_rtn_u32 v{p0}, v{b0}, v{vOne} offset:{HIST}
  ds_add_rtn_u32 v{p1}, v{b1}, v{vOne} offset:{HIST}
  ds_read_b32 v{hv}, v{l4} offset:{HIST}
  v_lshl_or_b32 v{q0}, v{q0}, 8, v{vLane}
  v_add_u32 v{u1}, 64, v{vLane}
  v_lshl_or_b32 v{q1}, v{q1}, 8, v{u1}
  s_waitcnt lgkmcnt(0)
  v_mov_b32 v{ex}, v{hv}
""")
    dpp_scan(a, ex)
    a(f"""
  v_sub_u32 v{ex}, v{ex}, v{hv}
  ds_bpermute_b32 v{u0}, v{b0}, v{ex}
  ds_bpermute_b32 v{u1}, v{b1}, v{ex}
  s_waitcnt lgkmcnt(0)
  v_add_lshl_u32 v{u0}, v{u0}, v{p0}, 2
  v_add_lshl_u32 v{u1}, v{u1}, v{p1}, 2
  ds_write_b32 v{u0}, v{q0} offset:{ORDQ}
  ds_write_b32 v{u1}, v{q1} offset:{ORDQ}
  ds_read2st64_b32 v[{e0}:{e1}], v{l4} offset0:{ORDQ//256} offset1:{ORDQ//256+1}
  s_waitcnt lgkmcnt(0)
  v_mov_b32 v{m0_}, v{e0}
  v_mov_b32 v{m1_}, v{e1}
""")
    for mode in ("quad_perm:[1,0,3,2]", "quad_perm:[2,3,0,1]", "row_half_mirror"):
        a(f"  s_nop 0\n  v_max_u32_dpp v{m0_}, v{m0_}, v{m0_} {mode} row_mask:0xf bank_mask:0xf")
        a(f"  v_max_u32_dpp v{m1_}, v{m1_}, v{m1_} {mode} row_mask:0xf bank_mask:0xf")
    a(f"""
  v_lshrrev_b32 v{m0_}, 8, v{m0_}
  v_lshrrev_b32 v{m1_}, 8, v{m1_}
  v_mov_b32 v{t0_}, v{m0_}
  v_mov_b32 v{t1_}, v{m1_}
""")
    for mode in ("row_shr:8 row_mask:0xf", "row_bcast:15 row_mask:0xa", "row_bcast:31 row_mask:0xc"):
        a(f"  s_nop 0\n  v_add_u32_dpp v{t0_}, v{t0_}, v{t0_} {mode} bank_mask:0xf")
        a(f"  v_add_u32_dpp v{t1_}, v{t1_}, v{t1_} {mode} bank_mask:0xf")
    a(f"""
  s_nop 0
  v_readlane_b32 s{sTmp}, v{t0_}, 63
  v_sub_u32 v{t0_}, v{t0_}, v{m0_}             ; TS of group (lanes)
  v_sub_u32 v{m1_}, v{t1_}, v{m1_}
  v_add_u32 v{t1_}, s{sTmp}, v{t1_}            ; inclusive
  v_add_u32 v{m1_}, s{sTmp}, v{m1_}            ; TS of groups 8..15
  ; TSV[g] : lanes with (l&7)==0 ; T at lane 63 -> TSV[16]
  v_lshrrev_b32 v{u0}, 1, v{vLane}             ; (l>>3)*4 when l&7==0
  s_mov_b32 s{sSave}, 0x01010101
  s_mov_b32 s{sSave+1}, 0x01010101
  s_mov_b64 exec, s[{sSave}:{sSave+1}]
  ds_write2_b32 v{u0}, v{t0_}, v{m1_} offset0:0 offset1:8
""".replace("offset0:0 offset1:8", "offset0:0 offset1:8"))
    a.lines[-1] = f"  v_add_u32 v{u0}, {TSV}, v{u0}\n  ds_write2_b32 v{u0}, v{t0_}, v{m1_} offset0:0 offset1:8"
    a(f"""
  s_mov_b32 s{sSave}, 0
  s_mov_b32 s{sSave+1}, 0x80000000
  s_mov_b64 exec, s[{sSave}:{sSave+1}]
  v_mov_b32 v{u1}, {TSV+64}
  ds_write_b32 v{u1}, v{t1_}
  s_mov_b64 exec, -1
  v_and_b32 v{u0}, 7, v{vLane}
  v_lshlrev_b32 v{u1}, 4, v{u0}
  v_lshl_add_u32 v{t0_}, v{t0_}, 7, v{u1}
  v_lshl_add_u32 v{m1_}, v{m1_}, 7, v{u1}
  v_and_b32 v{e0}, 0xff, v{e0}
  v_and_b32 v{e1}, 0xff, v{e1}
  v_lshlrev_b32 v{c0}, 2, v{e0}
  v_lshlrev_b32 v{c1}, 2, v{e1}
  ds_write_b32 v{c0}, v{t0_} offset:{NB}
  ds_write_b32 v{c1}, v{m1_} offset:{NB}
  v_min_u32 v{e0}, 98, v{e0}
  v_min_u32 v{e1}, 98, v{e1}
  v_mov_b32 v{c0}, {NODE}
  s_mov_b32 s{sTmp}, {ROWB}
  v_mad_u32_u24 v{e0}, v{e0}, s{sTmp}, v{c0}
  v_mad_u32_u24 v{e1}, v{e1}, s{sTmp}, v{c0}
  v_and_b32 v{c0}, 1, v{vLane}
  v_lshlrev_b32 v{c0}, 4, v{c0}
  v_bfe_u32 v{c1}, v{vLane}, 1, 2
  v_lshl_add_u32 v{c0}, v{c1}, 2, v{c0}
  v_and_b32 v{c1}, 56, v{vLane}
  v_lshl_add_u32 v{c0}, v{c1}, 2, v{c0}
  v_add_u32 v{c0}, {ORDA}, v{c0}
  ds_write2st64_b32 v{c0}, v{e0}, v{e1} offset0:0 offset1:1
K2_NOSORT:
  s_mov_b32 s{sTmp}, -28
""")
    for k in range(16):
        a(f"  v_and_b32 v{vT0}, 3, v{R(k)+3}")
        a(f"  v_lshlrev_b32 v{R(k)+3}, 5, v{R(k)+3}")
        a(f"  v_mad_i32_i24 v{R(k)+3}, v{vT0}, s{sTmp}, v{R(k)+3}")
        a(f"  v_and_b32 v{R(k)+2}, 0x7fff, v{R(k)+2}")
    a(f"""
  v_min_u32 v{vT0}, 16, v{vLane}
  v_lshlrev_b32 v{vT0}, 2, v{vT0}
  v_mov_b32 v{vT1}, {MISC}
  s_waitcnt lgkmcnt(0)
@S8@
  s_barrier
@S9@
  ds_read_b32 v{vTSV}, v{vT0} offset:{TSV}
  ds_read_b32 v{vT2}, v{vT1}
""")
    for k in range(16):
        m = (sM1 + 2*k) if k < 8 else (sM2 + 2*(k-8))
        a(f"  s_mov_b64 exec, s[{m}:{m+1}]")
        a(f"  ds_read_b32 v{A4(k)}, v{A4(k)} offset:{NB}")
    a(f"""
  s_mov_b64 exec, -1
  s_waitcnt lgkmcnt(15)
  s_waitcnt lgkmcnt(0)
  v_readlane_b32 s{sT}, v{vTSV}, 16
  v_readfirstlane_b32 s{sMaxC}, v{vT2}
  s_cmp_le_u32 s{sT}, {CAPT}
  s_cbranch_scc1 K2_FIT
  s_lshr_b32 s{sSW}, s{sSW}, 1
  s_mov_b32 s{sFirstB}, 0
  s_barrier
  s_branch K2_RESET
K2_FIT:
""")
    for k in range(16):
        m = (sM1 + 2*k) if k < 8 else (sM2 + 2*(k-8))
        a(f"  s_mov_b64 exec, s[{m}:{m+1}]")
        a(f"  v_add_u32 v{A4(k)}, v{A4(k)}, v{R(k)+3}")
        a(f"  v_lshlrev_b32 v{R(k)+3}, 1, v{A4(k)}")
        a(f"  ds_write_b32 v{A4(k)}, v{R(k)+2} offset:{K0}")
        a(f"  ds_write_b64 v{R(k)+3}, v[{R(k)}:{R(k)+1}] offset:{EA0}")
    a(f"""
  s_mov_b64 exec, -1
  s_mul_i32 s{sT0}, s{sT}, s{sW}
  s_add_u32 s{sT1}, s{sT0}, s{sT}
  s_lshr_b32 s{sT0}, s{sT0}, 3
  s_lshr_b32 s{sT1}, s{sT1}, 3
  v_cmp_ge_u32 vcc, s{sT0}, v{vTSV}
  s_and_b32 s{sTmp}, vcc_lo, 0xffff
  s_bcnt1_i32_b32 s{sG0}, s{sTmp}
  s_sub_u32 s{sG0}, s{sG0}, 1
  s_add_u32 s{sTmp}, s{sG0}, 1
  v_readlane_b32 s{sTmp2}, v{vTSV}, s{sG0}     ; TS[g0]
  v_readlane_b32 s{sContEnd}, v{vTSV}, s{sTmp} ; TS[g0+1]
  s_mov_b32 s{sCont}, 0
  s_mov_b32 s{sSlow}, 0
  s_mov_b32 s{sGam}, s{sG0}
  s_mov_b32 s{sCur}, s{sT0}
  s_waitcnt lgkmcnt(0)
  s_barrier
@S10@
  s_cmp_ge_u32 s{sT0}, s{sT1}
  s_cbranch_scc1 K2_LOOPDONE
  s_cmp_eq_u32 s{sTmp2}, s{sT0}
  s_cbranch_scc1 K2_GO
  s_mov_b32 s{sCont}, 1
  s_cmp_lt_u32 s{sContEnd}, s{sT1}
  s_cbranch_scc0 K2_ALLCONT
  s_add_u32 s{sGam}, s{sG0}, 1
  s_mov_b32 s{sCur}, s{sContEnd}
  s_branch K2_GO
K2_ALLCONT:
  s_cmp_gt_u32 s{sContEnd}, s{sT1}
  s_cselect_b32 s{sSlow}, 1, 0
  s_mov_b32 s{sContEnd}, s{sT1}
  s_mov_b32 s{sCont}, 2
K2_GO:
  s_lshl_b32 s{sTmp}, s{sCur}, 7
  v_add_u32 v{vK}, s{sTmp}, v{vKb}
""")
    for i in range(4):
        a(f"  ds_read_b32 v{vI+2*i}, v{vK} offset:{4*i}")
    next_tile(a, sTn, sCur)
    a(f"""  s_lshl_b32 s{sTmp}, s{sTn}, 7
  v_add_u32 v{vK}, s{sTmp}, v{vKb}
  v_mad_u32_u24 v{vE}, v{vEs}, s{sCur}, v{vEb}
  s_mov_b32 m0, s{sM0}
  s_waitcnt lgkmcnt(0)""")
    for i in range(4):
        a(dma(i))
        if i < 3: a(f"  s_add_u32 m0, s{sM0}, {1024*(i+1)}\n  s_nop 0")
    for i in range(4):
        a(f"  ds_read_b32 v{vI+2*i}, v{vK} offset:{4*i}")
    a(f"""
K2_RUN:
  s_lshl_b32 s{sTmp}, s{sGam}, 5
  v_add_u32 v{vT0}, s{sTmp}, v{vOrd}
  ds_read_b128 v[{vNA}:{vNA+3}], v{vT0}
  s_add_u32 s{sTmp}, s{sGam}, 1
  v_readlane_b32 s{sEnd}, v{vTSV}, s{sTmp}
  s_mov_b32 s{sFst}, 1
  s_min_u32 s{sEnd}, s{sEnd}, s{sT1}
  s_sub_u32 s{sRun}, s{sEnd}, s{sCur}
  s_waitcnt lgkmcnt(0)
""")
    for g in range(4):
        a(f"  v_add_u32 v{vNA+g}, v{vNA+g}, v{vN4}")
    for ct in range(2):
        for g in range(4):
            for hf in range(2):
                r = CI + 16*ct + 4*g + 2*hf
                a(f"  ds_read2_b32 v[{r}:{r+1}], v{vNA+g} offset0:{32*ct} offset1:{32*ct}")
    a("K2_TILE:")
    tile_body(a)
    a(f"  s_cmp_eq_u32 s{sFst}, 0\n  s_cbranch_scc1 K2_PN")
    p_phase(a, True)
    a(f"  s_mov_b32 s{sFst}, 0\n  s_branch K2_PE\nK2_PN:")
    p_phase(a, False)
    a(f"""K2_PE:
  s_sub_u32 s{sRun}, s{sRun}, 1
  s_cmp_lg_u32 s{sRun}, 0
  s_cbranch_scc1 K2_TILE
  s_cmp_eq_u32 s{sCont}, 2
  s_cbranch_scc1 K2_LOOPDONE
""")
    flush_rmw(a)
    a("  s_waitcnt lgkmcnt(0)")
    flush_rmw2(a)
    a(f"""
  s_add_u32 s{sGam}, s{sGam}, 1
  s_mov_b32 s{sCur}, s{sEnd}
  s_cmp_lt_u32 s{sEnd}, s{sT1}
  s_cbranch_scc1 K2_RUN
  s_cmp_eq_u32 s{sCont}, 0
  s_cbranch_scc1 K2_LOOPDONE
  s_mov_b32 s{sCont}, 2
  s_mov_b32 s{sGam}, s{sG0}
  s_mov_b32 s{sCur}, s{sT0}
  s_branch K2_RUN
K2_LOOPDONE:
@S11@
  s_add_u32 s{sSB}, s{sSB}, s{sSW}
  v_and_b32 v{vT0}, 15, v{vLane}
  s_lshl_b32 s{sTmp}, s{sW}, 12
  s_add_u32 s{sTmp}, s{sTmp}, s2
  v_lshlrev_b32 v{vT2}, 8, v{vT0}
  v_add_u32 v{vT2}, s{sTmp}, v{vT2}            ; idx = (16w + (m&15))*256 + b
  v_lshrrev_b32 v{vT1}, 5, v{vLane}
  v_lshlrev_b32 v{vT3}, 6, v{vT1}
  v_lshlrev_b32 v{vK}, 4, v{vLane}
  s_lshl_b32 s{sTmp}, s{sTmp}, 7
  v_lshlrev_b32 v{vE}, 17, v{vT1}
  v_add3_u32 v{vE}, v{vE}, v{vN4}, s{sTmp}
  s_waitcnt vmcnt(0)
  s_cmp_gt_u32 s{sMaxC}, s{sSB}
  s_cbranch_scc1 K2_NOFL
""")
    for s in range(4):
        a(f"  buffer_load_dwordx4 {ar(X+4*s,4)}, v[{vT2}:{vT3}], s[{sXI}:{sXI+3}], 0 idxen offen offset:{16*s}")
    a(f"  s_mov_b32 s{sTmp}, {3*8192}\n  s_mov_b32 s{sTmp2}, {3*8192+4096}")
    for q in range(8):
        so = sTmp if q < 4 else sTmp2
        a(f"  buffer_load_dwordx4 {ar(4*q,4)}, v{vK}, s[{sIMG}:{sIMG+3}], s{so} offen offset:{(q&3)*1024}")
    for rr in range(8):
        a(f"  s_mov_b32 s{sSeg+rr}, {(8*(rr>>2)+(rr&3))*32768}")
        a(f"  buffer_load_dword v{CI+rr}, v{vE}, s[{sXR}:{sXR+3}], s{sSeg+rr} offen")
    a(f"""
K2_NOFL:
  s_cmp_eq_u32 s{sSlow}, 0
  s_cbranch_scc1 K2_NS
  v_mov_b32 v{vT0}, {MISC+4}
  ds_write_b32 v{vT0}, v{vOne}
K2_NS:
  s_waitcnt lgkmcnt(0)
  s_barrier
  v_mov_b32 v{vT0}, {MISC+4}
  ds_read_b32 v{vT1}, v{vT0}
  s_waitcnt lgkmcnt(0)
  v_readfirstlane_b32 s{sSlow}, v{vT1}
  s_mov_b32 s{sRun}, 1
K2_MERGE:
  s_cmp_eq_u32 s{sCont}, 0
  s_cbranch_scc1 K2_MSKIP
  s_cmp_eq_u32 s{sSlow}, 0
  s_cbranch_scc1 K2_MDO
  s_cmp_lg_u32 s{sRun}, s{sW}
  s_cbranch_scc1 K2_MSKIP
K2_MDO:
""")
    flush_rmw(a)
    a("  s_waitcnt lgkmcnt(0)")
    flush_rmw2(a)
    a(f"""
K2_MSKIP:
  s_waitcnt lgkmcnt(0)
  s_barrier
  s_cmp_eq_u32 s{sSlow}, 0
  s_cbranch_scc1 K2_MEND
  s_add_u32 s{sRun}, s{sRun}, 1
  s_cmp_lt_u32 s{sRun}, 8
  s_cbranch_scc1 K2_MERGE
K2_MEND:
@S12@
  s_mov_b32 s{sFirstB}, 0
  s_cmp_gt_u32 s{sMaxC}, s{sSB}
  s_cbranch_scc1 K2_RESET
  s_mul_i32 s{sTmp}, s{sW}, {16*ROWB}
  s_add_u32 s{sTmp}, s{sTmp}, {NODE}
  v_lshrrev_b32 v{vT1}, 5, v{vLane}
  v_mul_u32_u24 v{vT1}, {4*ROWB}, v{vT1}
  v_add3_u32 v{vT1}, v{vT1}, v{vN4}, s{sTmp}
  v_add_u32 v{vT2}, 128, v{vT1}
""")
    for rr in range(8):
        ro = 3 * (8*(rr>>2) + (rr&3))
        a(f"  ds_read2st64_b32 v[{AC+4*rr}:{AC+4*rr+1}], v{vT1} offset0:{ro+1} offset1:{ro+2}")
        a(f"  ds_read2st64_b32 v[{AC+4*rr+2}:{AC+4*rr+3}], v{vT2} offset0:{ro+1} offset1:{ro+2}")
    a("  s_waitcnt vmcnt(8)")
    for ct in range(2):
        for s in range(4):
            a(mfma16(G+16*ct, ar(X+4*s,4), ar((s*2+ct)*4,4), "0" if s == 0 else f"v[{G+16*ct}:{G+16*ct+15}]"))
    a(f"  s_mov_b32 s{sTmp}, 0x358637bd\n  s_waitcnt lgkmcnt(0)")
    for rr in range(8):
        for ct in range(2):
            d = AC + 4*rr + 2*ct + 1
            a(f"  v_add_f32 v{d}, s{sTmp}, v{d}")
    for rr in range(8):
        for ct in range(2):
            d = AC + 4*rr + 2*ct + 1
            a(f"  v_rcp_f32 v{d}, v{d}")
    a("  s_waitcnt vmcnt(0)")
    for rr in range(8):
        for ct in range(2):
            n = AC + 4*rr + 2*ct
            a(f"  v_fma_f32 v{n}, v{n}, v{n+1}, v{G+16*ct+rr}")
            a(f"  v_max_f32 v{n}, 0, v{n}")
        a(f"  v_lshlrev_b32 v{AC+4*rr+1}, 16, v{CI+rr}")
        a(f"  v_and_b32 v{AC+4*rr+3}, 0xffff0000, v{CI+rr}")
        a(f"  v_add_f32 v{AC+4*rr}, v{AC+4*rr}, v{AC+4*rr+1}")
        a(f"  v_add_f32 v{AC+4*rr+2}, v{AC+4*rr+2}, v{AC+4*rr+3}")
        a(f"  v_cvt_pk_bf16_f32 v{AC+4*rr}, v{AC+4*rr}, v{AC+4*rr+2}")
        a(f"  buffer_store_dword v{AC+4*rr}, v{vE}, s[{sOUT}:{sOUT+3}], s{sSeg+rr} offen")
    a("@S13@\n@S15@\n@OUT2@\nK2_END:\n  s_endpgm")

def kd(name, vgpr, accum, sgpr):
    return f"""
.amdhsa_kernel {name}
  .amdhsa_next_free_vgpr {vgpr}
  .amdhsa_next_free_sgpr {sgpr}
  .amdhsa_accum_offset {accum}
  .amdhsa_group_segment_fixed_size 0
  .amdhsa_kernarg_size 96
  .amdhsa_user_sgpr_count 2
  .amdhsa_user_sgpr_kernarg_segment_ptr 1
  .amdhsa_system_sgpr_workgroup_id_x 1
  .amdhsa_float_denorm_mode_32 3
.end_amdhsa_kernel
"""

def main():
    ref = open(f"cdna_kernels/{NAME}.s.ref").read().split("\n")
    hdr = [l for l in ref if l.startswith(";") and "@launch" not in l and "Override" not in l and "grid=ceil" not in l]
    a = Asm()
    a("\n".join(hdr))
    a(f"; @launch kernel=part_kernel grid=({NP+5},1,1) block=(800,1,1) lds={LDS1}")
    a(f"; @launch kernel=main_kernel grid=(256,1,1) block=(512,1,1) lds={LDS2}")
    a('.amdgcn_target "amdgcn-amd-amdhsa--gfx950"\n.text')
    gen_k1(a)
    gen_k2(a)
    a('.section .rodata,"a"\n.p2align 6')
    a(kd("part_kernel", 60, 60, 100) if OPT["stamp"] else kd("part_kernel", 56, 56, 32))
    a(".p2align 6")
    a(kd("main_kernel", 256, 164, 100) if OPT["stamp"] else kd("main_kernel", 252, 160, 100))
    txt = a.text()
    import re
    def sub(m):
        b = Asm(); k = m.group(1); i = m.group(2)
        if k == "OUT":
            if i == "2": stamp_out(b, 96, sW, STAMP_OFF)
            else: stamp_out(b, 20, 23, STAMP_OFF + 0x100000, vreg=56, tmp=57, wpw=16)
        else:
            i = int(i); vr_ = 160 if k == "S" else 56
            if i == 0:
                stamp(b, 0, vr_); stamp(b, 1, vr_, real=True)
            elif i == 15: stamp(b, 15, vr_, real=True)
            else: stamp(b, i, vr_)
        return b.text() if b.lines else ""
    txt = re.sub(r"@(S|T|OUT)(\d+)@\n", sub, txt)
    lines = txt.split("\n")
    for p in check_hazards(lines): print("HAZARD", p)
    b = Asm(); tile_body(b); p_phase(b, False); tile_body(b); p_phase(b, True); flush_rmw(b); flush_rmw2(b); tile_body(b)
    for p in check_hazards(b.text().split("\n"), "loop"): print("HAZARD", p)
    open(sys.argv[1], "w").write(txt)

main()
```

```python
import sys, re
from asmlib import *

NAME = "gather_scatter__edge_featured_mpnn_gatedgcn__graph"
NP, CH = 250, 3200
RECB = CH * 12
OFFS = 0xA00000
NLOG2E = 0xBFB8AA3B
CAPT = 128
EA0, K0 = 0, 32768
CNT, NB, HIST, ORDQ, ORDA, TSV, MISC = 49152, 49664, 50176, 50432, 50944, 51456, 51584
RING = 52224
NODE = RING + 8 * 4096
ROWB = 768
LDS2 = NODE + 99 * ROWB
XO, IMA = 0, 16384
K1_CNT, K1_START = 38400, 39424
LDS1 = 40448
STAMP_OFF = 0x1000000

OPT = dict(st_flags="", ld_flags="", npf=2, stamp=0, prio=2, dbg=-1, dbgw=0, nodma=0)
for a_ in sys.argv[2:]:
    k_, v_ = a_.split("=", 1)
    OPT[k_] = int(v_) if v_.lstrip("-").isdigit() else v_.replace("+", " ")

def stamp(a, idx, vreg, s=98, real=False):
    a(f"  s_mem{'real' if real else ''}time s[{s}:{s+1}]\n  s_waitcnt lgkmcnt(0)\n  v_writelane_b32 v{vreg}, s{s}, {idx}")
def stamp_out(a, ws, wave, base, vreg, tmp, wpw):
    a(f"""  s_mul_i32 s98, s2, {wpw}
  s_add_u32 s98, s98, s{wave}
  s_lshl_b32 s98, s98, 6
  s_add_u32 s98, s98, {base}
  v_mbcnt_lo_u32_b32 v{tmp}, -1, 0
  v_lshlrev_b32 v{tmp}, 2, v{tmp}
  v_add_u32 v{tmp+1}, s98, v{tmp}
  s_mov_b64 exec, 0xffff
  global_store_dword v{tmp+1}, v{vreg}, s[{ws}:{ws+1}]""")
    if OPT["dbg"] >= 0:
        a(f"""  s_cmp_lg_u32 s2, {OPT["dbg"]}
  s_cbranch_scc1 DBGX{vreg}
  s_cmp_lg_u32 s{wave}, {OPT["dbgw"]}
  s_cbranch_scc1 DBGX{vreg}
  s_load_dwordx2 s[98:99], s[0:1], 80
  s_waitcnt lgkmcnt(0)
  global_store_dword v{tmp}, v{vreg}, s[98:99]
DBGX{vreg}:""")

def dpp_scan(a, v):
    for m in ("row_shr:1", "row_shr:2", "row_shr:4", "row_shr:8"):
        a(f"  s_nop 1\n  v_add_u32_dpp v{v}, v{v}, v{v} {m} row_mask:0xf bank_mask:0xf")
    a(f"  s_nop 1\n  v_add_u32_dpp v{v}, v{v}, v{v} row_bcast:15 row_mask:0xa bank_mask:0xf")
    a(f"  s_nop 1\n  v_add_u32_dpp v{v}, v{v}, v{v} row_bcast:31 row_mask:0xc bank_mask:0xf")

def gen_k1(a):
    st = OPT["st_flags"]
    a(f"""
.globl part_kernel
.p2align 8
.type part_kernel,@function
part_kernel:
  s_cmp_ge_u32 s2, {NP}
  s_cbranch_scc1 K1_END
  s_load_dwordx4 s[4:7], s[0:1], 8
  s_load_dwordx2 s[8:9], s[0:1], 24
  s_load_dwordx2 s[20:21], s[0:1], 88
  v_lshrrev_b32 v33, 6, v0
  v_lshlrev_b32 v1, 4, v0
  v_readfirstlane_b32 s23, v33
@T0@
  s_mul_i32 s22, s2, {CH*4}
  v_add_u32 v2, s22, v1
  v_lshlrev_b32 v3, 1, v2
  v_mov_b32 v32, 1
  v_mov_b32 v36, 0
  v_mov_b32 v37, 0
  v_mov_b32 v38, 0
  v_mov_b32 v39, 0
  s_cmp_lg_u32 s23, 0
  s_cbranch_scc1 K1_A
  ds_write_b128 v1, v[36:39] offset:{K1_CNT}
K1_A:
  s_waitcnt lgkmcnt(0)
  global_load_dwordx4 v[4:7], v2, s[8:9]
  global_load_dwordx4 v[8:11], v2, s[6:7]
  global_load_dwordx4 v[12:15], v3, s[4:5]
  global_load_dwordx4 v[16:19], v3, s[4:5] offset:16
  s_barrier
@T2@
  s_waitcnt vmcnt(3)
@T3@
""")
    for k in range(4):
        a(f"  v_lshlrev_b32_sdwa v{20+k}, 2, v{4+k} dst_sel:DWORD dst_unused:UNUSED_PAD src0_sel:DWORD src1_sel:BYTE_0")
    for k in range(4):
        a(f"  ds_add_rtn_u32 v{24+k}, v{20+k}, v32 offset:{K1_CNT}")
    a(f"""
  s_waitcnt lgkmcnt(0)
  s_barrier
  s_cmp_lg_u32 s23, 0
  s_cbranch_scc1 K1_B
  ds_read_b128 v[36:39], v1 offset:{K1_CNT}
  s_waitcnt lgkmcnt(0)
  v_add_u32 v41, v36, v37
  v_add_u32 v42, v41, v38
  v_add_u32 v43, v42, v39
  v_mov_b32 v44, v43
""")
    dpp_scan(a, 44)
    a(f"""
  v_sub_u32 v45, v44, v43
  v_add_u32 v47, v45, v36
  v_add_u32 v48, v45, v41
  v_add_u32 v49, v45, v42
  v_mul_u32_u24 v46, 12, v45
  v_mul_u32_u24 v47, 12, v47
  v_mul_u32_u24 v48, 12, v48
  v_mul_u32_u24 v49, 12, v49
  ds_write_b128 v1, v[46:49] offset:{K1_START}
  v_lshl_or_b32 v50, v36, 16, v46
  v_lshl_or_b32 v51, v37, 16, v47
  v_lshl_or_b32 v52, v38, 16, v48
  v_lshl_or_b32 v53, v39, 16, v49
  s_lshl_b32 s24, s2, 2
  s_add_u32 s24, s24, {OFFS}
  v_lshlrev_b32 v54, 12, v0
  v_add_u32 v54, s24, v54
  global_store_dword v54, v50, s[20:21] {st}
  global_store_dword v54, v51, s[20:21] offset:1024 {st}
  global_store_dword v54, v52, s[20:21] offset:2048 {st}
  global_store_dword v54, v53, s[20:21] offset:3072 {st}
K1_B:
  s_waitcnt vmcnt(2)
""")
    for k in range(4):
        a(f"  v_lshrrev_b32 v{4+k}, 8, v{4+k}")
        a(f"  v_lshl_or_b32 v{8+k}, v{4+k}, 18, v{8+k}")
    a(f"""
  s_mul_i32 s22, s2, {RECB}
  v_add_u32 v2, s22, v1
  v_add_u32 v3, {12800}, v2
  v_add_u32 v4, {25600}, v2
  s_waitcnt lgkmcnt(0)
  s_barrier
@T4@
""")
    for k in range(4):
        a(f"  ds_read_b32 v{28+k}, v{20+k} offset:{K1_START}")
    for k in range(4):
        a(f"  s_waitcnt lgkmcnt({3-k})")
        a(f"  v_mad_u32_u24 v{28+k}, v{24+k}, 12, v{28+k}")
    for k in range(4):
        a(f"  ds_write_b32 v{28+k}, v{8+k} offset:8")
    a("  s_waitcnt vmcnt(0)")
    for k in range(4):
        a(f"  ds_write2_b32 v{28+k}, v{12+2*k}, v{13+2*k} offset0:0 offset1:1")
    a(f"""
  s_waitcnt lgkmcnt(0)
  s_barrier
  ds_read_b128 v[8:11], v1
  ds_read_b128 v[12:15], v1 offset:12800
  ds_read_b128 v[16:19], v1 offset:25600
  s_waitcnt lgkmcnt(2)
  global_store_dwordx4 v2, v[8:11], s[20:21] {st}
  s_waitcnt lgkmcnt(1)
  global_store_dwordx4 v3, v[12:15], s[20:21] {st}
  s_waitcnt lgkmcnt(0)
  global_store_dwordx4 v4, v[16:19], s[20:21] {st}
@T5@
@TW6@
@T15@
@OUT1@
K1_END:
  s_endpgm
""")

vXA = 0
vI = 4
vC = 8
vEs, vEb, vE, vKb, vK = 12, 13, 14, 15, 16
vN4, vTSV, vOrd = 17, 18, 19
vNAc, vNAn = 20, 24
BEV = 28
vT0, vT1, vT2, vT3 = 36, 37, 38, 39
G, HV, AC = 40, 104, 120
NARCH = 152
WB, WV, EOP, ONE, X = 0, 32, 64, 68, 70
NACC = 102
sXR, sOUT, sREC, sOFF, sWM = 8, 12, 16, 20, 24
sM1, sM2, sSeg = 28, 44, 60
sW, sSB, sSW, sFirstB, sT, sT0, sT1, sTn, sTn2, sTau, sN, sF, sGn, sGlast, sCont, sG0, sM0, sMaxC, sTmp, sTmp2, sCur, sSlow, sPsel0, sPsel1, sB = range(68, 93)
sSave = 94
sKA = 4

def mfma16(d, A, B, C):
    return f"  v_mfma_f32_32x32x16_bf16 v[{d}:{d+15}], {A}, {B}, {C}"
def mfma8(d, A, B, C):
    return f"  v_mfma_f32_32x32x8_bf16 v[{d}:{d+15}], {A}, {B}, {C}"
g16 = lambda d: f"v[{d}:{d+15}]"
pr = lambda r: f"v[{r}:{r+1}]"
Gb = lambda k: G + 16*(k % 4)
Xb = lambda t, s: ar(X + 16*(t % 2) + 4*s, 4)
wb = lambda s, ct: ar(WB+(s*2+ct)*4, 4)
wv = lambda s, ct: ar(WV+(s*2+ct)*4, 4)
Eo = ar(EOP, 4); ON = ar(ONE, 2)
BEo = lambda ct: vr(BEV+4*ct, 4)

def flush(a):
    for ct in range(2):
        for g in range(4):
            t = HV + (ct*4+g)*2
            a(f"  ds_read2_b32 v[{t}:{t+1}], v{vNAc+g} offset0:{64+32*ct} offset1:{128+32*ct}")
    for q in range(8):
        r = AC + q*4
        a(f"  v_add_f32 v{r}, v{r}, v{r+1}")
        a(f"  v_add_f32 v{r+2}, v{r+2}, v{r+3}")
    a("  s_waitcnt lgkmcnt(0)")
    for q in range(8):
        r = AC + q*4; t = HV + q*2
        a(f"  v_add_f32 v{r}, v{r}, v{t}")
        a(f"  v_add_f32 v{r+2}, v{r+2}, v{t+1}")
    for ct in range(2):
        for g in range(4):
            r = AC + (ct*4+g)*4
            a(f"  ds_write2_b32 v{vNAc+g}, v{r}, v{r+2} offset0:{64+32*ct} offset1:{128+32*ct}")

def next_tile(dst, src):
    return [f"  s_add_u32 s{dst}, s{src}, 1", f"  s_cmp_eq_u32 s{dst}, s{sT1}", f"  s_cselect_b32 s{dst}, s{sT0}, s{dst}"]

def dma(i):
    if OPT["nodma"]: return "  s_nop 0"
    return f"  buffer_load_dwordx4 v{vI+i}, s[{sXR}:{sXR+3}], 0 offen lds"
def la(i):
    return f"  v_lshl_add_u32 v{vI+i}, v{vI+i}, 7, v{vC+i}"

def ord_read(a):
    a(f"  s_lshl_b32 s{sTmp}, s{sGn}, 5\n  v_add_u32 v{vT0}, s{sTmp}, v{vOrd}\n  ds_read_b128 v[{vNAn}:{vNAn+3}], v{vT0}")
def next_group(a):
    a(f"  s_add_u32 s{sTmp}, s{sGn}, 1\n  s_cmp_lt_u32 s{sGn}, s{sGlast}\n  s_cselect_b32 s{sGn}, s{sTmp}, s{sG0}")
def m_event(a):
    a("  s_waitcnt lgkmcnt(0)")
    for g in range(4): a(f"  v_add_u32 v{vNAn+g}, v{vNAn+g}, v{vN4}")
    for g in range(4): a(f"  ds_read_b32 v{vT0+g}, v{vNAn+g}")
    a("  s_waitcnt lgkmcnt(0)")
    for ct in range(2):
        for i in range(2):
            a(f"  v_perm_b32 v{BEV+4*ct+2+i}, v{vT0+2*i+1}, v{vT0+2*i}, s{sPsel0+ct}")

def p_unit(a, k, first):
    ct = k & 1
    for half in range(2):
        for gq in range(4):
            e = Gb(k) + 4*gq; h = HV + 4*gq; r = AC + (ct*4+gq)*4
            if first:
                if half == 0:
                    a(f"  v_pk_mul_f32 {pr(r)}, {pr(e)}, {pr(h)}")
                    a(f"  v_pk_add_f32 {pr(r+2)}, {pr(e)}, {pr(e+2)}")
                else:
                    a(f"  v_pk_fma_f32 {pr(r)}, {pr(e+2)}, {pr(h+2)}, {pr(r)}")
            else:
                a(f"  v_pk_fma_f32 {pr(r)}, {pr(e+2*half)}, {pr(h+2*half)}, {pr(r)}")
                a(f"  v_pk_add_f32 {pr(r+2)}, {pr(e+2*half)}, {pr(r+2)}")

def t_unit(a, k):
    t, ct = k >> 1, k & 1
    T = [f"  v_exp_f32 v{Gb(k+1)+i}, v{Gb(k+1)+i}" for i in range(16)] + [f"  v_rcp_f32 v{Gb(k)+i}, v{Gb(k)+i}" for i in range(16)]
    Hm = [mfma16(HV, Xb(t, s), wv(s, ct), g16(HV) if s else "0") for s in range(4)]
    d = Gb(k+2)
    Gm = [mfma16(d, Eo, BEo(ct), "0")] + [mfma16(d, Xb(t+1, s), wb(s, ct), g16(d)) for s in range(4)]
    A1 = mfma8(Gb(k+1), ON, ON, g16(Gb(k+1)))
    M = [Hm[0], Gm[0], Hm[1], Gm[1], Hm[2], Gm[2], A1, Hm[3], Gm[3], Gm[4]]
    side = [[] for _ in M]
    nt = next_tile(sTn2, sTn)
    if ct == 0:
        pre = ["  s_waitcnt lgkmcnt(0)", la(0), la(1)]
        side[0] = [f"  s_mov_b32 m0, s{sM0}", la(2), la(3)]
        side[1] = [dma(0), f"  s_add_u32 m0, s{sM0}, 1024"]
        side[2] = [dma(1), f"  s_add_u32 m0, s{sM0}, 2048"]
        side[3] = [dma(2), f"  s_add_u32 m0, s{sM0}, 3072"]
        side[4] = [dma(3), nt[0]]
        side[5] = [nt[1], nt[2]]
        side[7] = [f"  s_lshl_b32 s{sTmp}, s{sTn2}, 7", f"  v_add_u32 v{vK}, s{sTmp}, v{vKb}"]
        side[8] = [f"  ds_read_b128 v[{vI}:{vI+3}], v{vK}", f"  v_mad_u32_u24 v{vE}, v{vEs}, s{sTn}, v{vEb}"]
        side[9] = [f"  s_mov_b32 s{sTn}, s{sTn2}"]
    else:
        pre = []
        side[2] = [f"  ds_read2_b32 a[{EOP}:{EOP+1}], v{vE} offset0:0 offset1:1"]
        side[7] = ["  s_waitcnt vmcnt(0)"]
        side[8] = [f"  ds_read_b128 {Xb(t,0)}, v{vXA}", f"  ds_read_b128 {Xb(t,1)}, v{vXA+1}"]
        side[9] = [f"  ds_read_b128 {Xb(t,2)}, v{vXA+2}", f"  ds_read_b128 {Xb(t,3)}, v{vXA+3}"]
    if OPT["prio"] == 2: a("  s_setprio 0")
    for p_ in pre: a(p_)
    ti = 0
    for i, m in enumerate(M):
        a(m)
        for s_ in side[i]: a(s_)
        n = 3 if i < 9 else 32 - ti
        for _ in range(n):
            a(T[ti]); ti += 1
    if OPT["prio"] == 2: a("  s_setprio 1")

def tile_code(a, par):
    for ct in range(2):
        k = 2*par + ct
        t_unit(a, k)
        a(f"  s_bitcmp1_b32 s{sF}, s{sTau}\n  s_cbranch_scc0 K2_PN{k}")
        p_unit(a, k, True)
        a(f"  s_branch K2_PE{k}\nK2_PN{k}:")
        p_unit(a, k, False)
        a(f"K2_PE{k}:")
    a(f"""  s_add_u32 s{sTau}, s{sTau}, 1
  s_cmp_ge_u32 s{sTau}, s{sN}
  s_cbranch_scc1 K2_LAST
  s_bitcmp1_b32 s{sF}, s{sTau}
  s_cbranch_scc0 K2_NF{par}""")
    flush(a)
    for g in range(4): a(f"  v_mov_b32 v{vNAc+g}, v{vNAn+g}")
    next_group(a)
    ord_read(a)
    a(f"""K2_NF{par}:
  s_add_u32 s{sTmp}, s{sTau}, 1
  s_bitcmp1_b32 s{sF}, s{sTmp}
  s_cbranch_scc0 K2_NM{par}""")
    m_event(a)
    a(f"K2_NM{par}:")

def gen_k2(a):
    ld = OPT["ld_flags"]
    NPF = OPT["npf"]
    R = lambda k: 40 + 4*k
    A4 = lambda k: 104 + k
    OF, VA = 120, 128
    WR = 136
    vTid, vLane, vOne = 4, 5, 6
    vL1, vL2, vBase, vMx = 20, 21, 22, 23
    a(f"""
.globl main_kernel
.p2align 8
.type main_kernel,@function
main_kernel:
  s_cmp_ge_u32 s2, 256
  s_cbranch_scc1 K2_END
  s_load_dwordx8 s[28:35], s[0:1], 64       ; w_v out dbg ws
  s_load_dwordx2 s[4:5], s[0:1], 0          ; x
  s_load_dwordx8 s[36:43], s[0:1], 32       ; w_a w_b w_c w_u
  v_lshrrev_b32 v{vT0}, 6, v0
  v_mov_b32 v{vTid}, v0
  v_readfirstlane_b32 s{sW}, v{vT0}
  v_and_b32 v{vLane}, 63, v0
@S0@
  v_lshrrev_b32 v{vT1}, 4, v0
  v_lshlrev_b32 v{vT2}, 5, v{vT1}           ; G*32
  s_and_b32 s{sB}, s2, 7
  s_lshl_b32 s{sB}, s{sB}, 5
  s_lshr_b32 s{sTmp}, s2, 3
  s_or_b32 s{sB}, s{sB}, s{sTmp}
  s_lshl_b32 s{sTmp}, s{sB}, 10
  s_add_u32 s{sTmp}, s{sTmp}, {OFFS}
  s_mov_b32 s{sOFF+2}, {NP*4}
  s_mov_b32 s{sOFF+3}, 0x20000
  s_mov_b32 s{sSB}, 0
  s_mov_b32 s{sSW}, 32
  s_mov_b32 s{sFirstB}, 1
  v_and_b32 v{vT0}, 31, v{vLane}            ; n / m
  v_lshrrev_b32 v{vT1}, 5, v{vLane}         ; h
  v_lshlrev_b32 v{vN4}, 2, v{vT0}
  v_lshl_add_u32 v{vK}, v{vT1}, 12, v{vN4}
  s_and_b32 s{sTmp2}, s{sW}, 1
  s_lshl_b32 s{sTmp2}, s{sTmp2}, 11
  v_add_u32 v{vK}, s{sTmp2}, v{vK}
  s_waitcnt lgkmcnt(0)
  s_add_u32 s{sOFF}, s34, s{sTmp}
  s_addc_u32 s{sOFF+1}, s35, 0
  s_and_b32 s{sOFF+1}, s{sOFF+1}, 0xffff
  buffer_load_dwordx4 v[{OF}:{OF+3}], v{vT2}, s[{sOFF}:{sOFF+3}], 0 offen
  buffer_load_dwordx4 v[{OF+4}:{OF+7}], v{vT2}, s[{sOFF}:{sOFF+3}], 0 offen offset:16
  s_mov_b32 s96, s34
  s_mov_b32 s97, s35
  s_mov_b32 s{sXR}, s4
  s_and_b32 s{sXR+1}, s5, 0xffff
  s_mov_b32 s{sXR+2}, 3200000
  s_mov_b32 s{sXR+3}, 0x20000
  s_mov_b32 s{sOUT}, s30
  s_and_b32 s{sOUT+1}, s31, 0xffff
  s_mov_b32 s{sOUT+2}, 3200000
  s_mov_b32 s{sOUT+3}, 0x20000
  s_mov_b32 s{sREC}, s34
  s_and_b32 s{sREC+1}, s35, 0xffff
  s_mov_b32 s{sREC+2}, {NP*RECB}
  s_mov_b32 s{sREC+3}, 0x20000
  s_lshr_b32 s{sTmp}, s{sW}, 1
  s_cmp_eq_u32 s{sTmp}, 0
  s_cselect_b32 s{sWM}, s38, s28
  s_cselect_b32 s{sWM+1}, s39, s29
  s_cmp_eq_u32 s{sTmp}, 2
  s_cselect_b32 s{sWM}, s36, s{sWM}
  s_cselect_b32 s{sWM+1}, s37, s{sWM+1}
  s_cmp_eq_u32 s{sTmp}, 3
  s_cselect_b32 s{sWM}, s42, s{sWM}
  s_cselect_b32 s{sWM+1}, s43, s{sWM+1}
""")
    for j in range(16):
        a(f"  global_load_dword v{WR+j}, v{vK}, s[{sWM}:{sWM+1}] offset:{128*j}")
    for j in range(4):
        a(f"  global_load_dword v{BEV+(0,1,4,5)[j]}, v{vN4}, s[40:41] offset:{128*j}")
    a(f"""
  v_lshrrev_b32 v{vT2}, 3, v{vLane}
  v_lshlrev_b32 v{vT2}, 15, v{vT2}          ; (l>>3)*256*128
  v_and_b32 v{vT3}, 7, v{vLane}
  v_lshrrev_b32 v{vE}, 4, v{vLane}
  v_xor_b32 v{vT3}, v{vT3}, v{vE}
  v_lshl_add_u32 v{vE}, v{vT3}, 4, v{vT2}
  v_xor_b32 v{vT3}, 4, v{vT3}
  v_lshl_add_u32 v{vEs}, v{vT3}, 4, v{vT2}
  s_lshl_b32 s{sTmp}, s{sW}, 19             ; 16w rows * 32768
  s_lshl_b32 s{sTmp2}, s{sB}, 7
  s_add_u32 s{sTmp}, s{sTmp}, s{sTmp2}
  s_add_u32 s{sTmp2}, s{sTmp}, {8*32768}
  s_lshl_b32 s{sM0}, s{sW}, 11
  s_add_u32 m0, s{sM0}, {XO}
  s_nop 0
  buffer_load_dwordx4 v{vE}, s[{sXR}:{sXR+3}], s{sTmp} offen lds
  s_add_u32 m0, s{sM0}, {XO+1024}
  s_nop 0
  buffer_load_dwordx4 v{vEs}, s[{sXR}:{sXR+3}], s{sTmp2} offen lds
""")
    for i in range(8):
        a(f"  s_mov_b32 s{sSeg+i}, {i*RECB}")
    a(f"""
  v_mov_b32 v40, 0
  v_mov_b32 v41, 0
  v_mov_b32 v42, 0
  v_mov_b32 v43, 0
  v_lshrrev_b32 v{vT2}, 5, v{vTid}
  v_mul_u32_u24 v{vT2}, {ROWB}, v{vT2}
  v_lshl_add_u32 v{vT2}, v{vT0}, 4, v{vT2}
  v_add_u32 v{vT2}, {NODE+256}, v{vT2}
  v_add_u32 v{vT3}, {4*16*ROWB}, v{vT2}
""")
    for k in range(7):
        t = vT2 if k < 4 else vT3
        a(f"  ds_write_b128 v{t}, v[40:43] offset:{(k&3)*16*ROWB}")
    a(f"""
K2_RESET:
  v_mov_b32 v40, 0
  v_mov_b32 v41, 0
  v_mov_b32 v42, 0
  v_mov_b32 v43, 0
  v_mov_b32 v{vOne}, 1
  v_lshlrev_b32 v{vT2}, 4, v{vTid}
  v_cmp_gt_u32 vcc, {(MISC+64-CNT)//16}, v{vTid}
  s_and_saveexec_b64 s[{sSave}:{sSave+1}], vcc
  ds_write_b128 v{vT2}, v[40:43] offset:{CNT}
  s_mov_b64 exec, s[{sSave}:{sSave+1}]
  v_and_b32 v{vT0}, 15, v{vTid}
  v_add_u32 v{vT1}, 16, v{vT0}
  v_mov_b32 v{vT3}, 0xffff
  v_cmp_gt_u32 vcc, s{sSW}, v{vT0}
  v_add_u32 v{vT2}, s{sSB}, v{vT0}
  s_nop 0
  v_cndmask_b32 v{vL1}, v{vT3}, v{vT2}, vcc
  v_cmp_gt_u32 vcc, s{sSW}, v{vT1}
  v_add_u32 v{vT1}, s{sSB}, v{vT1}
  s_nop 0
  v_cndmask_b32 v{vL2}, v{vT3}, v{vT1}, vcc
  v_mul_u32_u24 v{vT2}, 12, v{vT2}
  v_lshrrev_b32 v{vT1}, 4, v{vTid}
  s_mov_b32 s{sTmp}, {8*RECB}
  v_mad_u32_u24 v{vBase}, v{vT1}, s{sTmp}, v{vT2}
  s_cmp_eq_u32 s{sFirstB}, 1
  s_cbranch_scc1 K2_OFW
  v_lshlrev_b32 v{vT2}, 5, v{vT1}
  buffer_load_dwordx4 v[{OF}:{OF+3}], v{vT2}, s[{sOFF}:{sOFF+3}], 0 offen
  buffer_load_dwordx4 v[{OF+4}:{OF+7}], v{vT2}, s[{sOFF}:{sOFF+3}], 0 offen offset:16
  s_waitcnt vmcnt(0)
K2_OFW:
@S2@
  s_waitcnt vmcnt(22)
@S3@
""")
    for i in range(8):
        a(f"  v_add_u32_sdwa v{VA+i}, v{OF+i}, v{vBase} dst_sel:DWORD dst_unused:UNUSED_PAD src0_sel:WORD_0 src1_sel:DWORD")
        a(f"  v_cmp_lt_u32_sdwa s[{sM1+2*i}:{sM1+2*i+1}], v{vL1}, v{OF+i} src0_sel:DWORD src1_sel:WORD_1")
        a(f"  s_mov_b64 exec, s[{sM1+2*i}:{sM1+2*i+1}]")
        a(f"  buffer_load_dwordx3 v[{R(i)}:{R(i)+2}], v{VA+i}, s[{sREC}:{sREC+3}], s{sSeg+i} offen {ld}")
        a("  s_mov_b64 exec, -1")
    for i in range(8):
        a(f"  v_cmp_lt_u32_sdwa s[{sM2+2*i}:{sM2+2*i+1}], v{vL2}, v{OF+i} src0_sel:DWORD src1_sel:WORD_1")
    for i in range(8):
        a(f"  s_mov_b64 exec, s[{sM2+2*i}:{sM2+2*i+1}]")
        a(f"  buffer_load_dwordx3 v[{R(8+i)}:{R(8+i)+2}], v{VA+i}, s[{sREC}:{sREC+3}], s{sSeg+i} offen offset:192 {ld}")
    a(f"""
  s_mov_b64 exec, -1
  s_lshr_b32 s{sTmp}, s2, 3
  s_mul_i32 s{sTmp}, s{sTmp}, 100096
  v_lshlrev_b32 v{vT2}, 7, v{vTid}
  s_add_u32 s{sTmp2}, s{sTmp}, 65536
""")
    for k in range(NPF):
        a(f"  buffer_load_dword a{X+k}, v{vT2}, s[{sXR}:{sXR+3}], s{sTmp if k == 0 else sTmp2} offen")
    a(f"""
  v_max3_u32 v{vT2}, v{OF}, v{OF+1}, v{OF+2}
  v_max3_u32 v{vT3}, v{OF+3}, v{OF+4}, v{OF+5}
  v_max3_u32 v{vT2}, v{OF+6}, v{OF+7}, v{vT2}
  v_max_u32 v{vT2}, v{vT2}, v{vT3}
  v_lshrrev_b32 v{vMx}, 16, v{vT2}
  s_cmp_eq_u32 s{sFirstB}, 0
  s_cbranch_scc1 K2_NOA
  s_mov_b32 s{sPsel0}, 0x05040100
  s_mov_b32 s{sPsel1}, 0x07060302
  s_mov_b32 s{sCur}, {NLOG2E:#x}
  s_waitcnt vmcnt({4+2+16+NPF})
  s_cmp_lt_u32 s{sW}, 2
  s_cbranch_scc1 K2_PKS
""")
    for s in range(2):
        for ct in range(2):
            for jj in range(4):
                a(f"  v_perm_b32 v{104+8*s+4*ct+jj}, v{WR+8*s+2*jj+1}, v{WR+8*s+2*jj}, s{sPsel0+ct}")
    a("  s_branch K2_PKD\nK2_PKS:")
    for j in range(16):
        a(f"  v_lshlrev_b32 v{120+(j&7)}, 16, v{WR+j}")
        a(f"  v_and_b32 v{WR+j}, 0xffff0000, v{WR+j}")
        a(f"  v_mul_f32 v{120+(j&7)}, s{sCur}, v{120+(j&7)}")
        a(f"  v_mul_f32 v{WR+j}, s{sCur}, v{WR+j}")
        if j & 1:
            s, jj = j >> 3, (j & 7) >> 1
            a(f"  v_cvt_pk_bf16_f32 v{104+8*s+jj}, v{120+(j&7)-1}, v{120+(j&7)}")
            a(f"  v_cvt_pk_bf16_f32 v{104+8*s+4+jj}, v{WR+j-1}, v{WR+j}")
    a(f"""K2_PKD:
  s_lshl_b32 s{sTmp}, s{sW}, 12
  s_add_u32 s{sTmp2}, s{sTmp}, {RING}
  s_add_u32 s{sTmp}, s{sTmp}, {IMA-16384}
  s_cmp_lt_u32 s{sW}, 4
  s_cselect_b32 s{sTmp}, s{sTmp2}, s{sTmp}
  v_lshlrev_b32 v{vK}, 4, v{vLane}
  v_add_u32 v{vT2}, s{sTmp}, v{vK}
""")
    for q in range(4):
        a(f"  ds_write_b128 v{vT2}, v[{104+4*q}:{107+4*q}] offset:{1024*q}")
    a(f"  s_waitcnt vmcnt({2+16+NPF})")
    src = [BEV, BEV+1, BEV+4, BEV+5]
    for j in range(4):
        a(f"  v_lshlrev_b32 v{120+j}, 16, v{src[j]}")
        a(f"  v_and_b32 v{124+j}, 0xffff0000, v{src[j]}")
        a(f"  v_mul_f32 v{120+j}, s{sCur}, v{120+j}")
        a(f"  v_mul_f32 v{124+j}, s{sCur}, v{124+j}")
    a(f"""
  v_cvt_pk_bf16_f32 v{BEV}, v120, v121
  v_cvt_pk_bf16_f32 v{BEV+1}, v122, v123
  v_cvt_pk_bf16_f32 v{BEV+4}, v124, v125
  v_cvt_pk_bf16_f32 v{BEV+5}, v126, v127
  s_mov_b32 s{sSave}, 0
  s_mov_b32 s{sSave+1}, -1
  s_mov_b64 exec, s[{sSave}:{sSave+1}]
  v_mov_b32 v{BEV}, 0x71800000
  v_mov_b32 v{BEV+1}, 0
  v_mov_b32 v{BEV+4}, 0x71800000
  v_mov_b32 v{BEV+5}, 0
  s_mov_b64 exec, -1
  v_and_b32 v{vT0}, 31, v{vLane}
  v_lshrrev_b32 v{vT1}, 5, v{vLane}
  v_lshlrev_b32 v{vOrd}, 4, v{vT1}
  v_add_u32 v{vOrd}, {ORDA}, v{vOrd}
  v_cmp_eq_u32 vcc, 0, v{vT1}
  v_mov_b32 v{vT2}, 0x3f80
  v_mov_b32 v{vT3}, 0
  v_cndmask_b32 v{vT2}, v{vT3}, v{vT2}, vcc
  v_accvgpr_write_b32 a{ONE}, v{vT2}
  v_accvgpr_write_b32 a{ONE+1}, v{vT3}
  v_mov_b32 v{vT2}, 128
  v_mov_b32 v{vT3}, 256
  v_cndmask_b32 v{vEs}, v{vT2}, v{vT3}, vcc
  v_lshlrev_b32 v{vT2}, 3, v{vT0}
  v_add_u32 v{vT3}, {K0}, v{vN4}
  v_cndmask_b32 v{vEb}, v{vT3}, v{vT2}, vcc
  v_lshrrev_b32 v{vT2}, 3, v{vLane}
  v_lshlrev_b32 v{vKb}, 4, v{vT2}
  v_add_u32 v{vKb}, {K0}, v{vKb}
  v_bfe_u32 v{vT2}, v{vT0}, 2, 1
  v_cmp_eq_u32 vcc, v{vT2}, v{vT1}
  v_bfe_u32 v{vT2}, v{vT0}, 3, 1
  v_lshlrev_b32 v{vT2}, 4, v{vT2}
  v_mov_b32 v{vT3}, 0x3f80
  v_lshlrev_b32 v{vT3}, v{vT2}, v{vT3}
  v_cndmask_b32 v{vT3}, 0, v{vT3}, vcc
  v_cmp_gt_u32 vcc, 16, v{vT0}
  s_nop 1
  v_cndmask_b32 v{vT2}, 0, v{vT3}, vcc
  v_cndmask_b32 v{vT3}, v{vT3}, 0, vcc
  v_accvgpr_write_b32 a{EOP+2}, v{vT2}
  v_accvgpr_write_b32 a{EOP+3}, v{vT3}
  v_and_b32 v{vT2}, 7, v{vLane}
  v_bfe_u32 v{vT3}, v{vLane}, 4, 1
  v_lshlrev_b32 v{vT3}, 2, v{vT3}
  v_xor_b32 v{vT2}, v{vT2}, v{vT3}
""")
    for i in range(4):
        a(f"  v_xor_b32 v{vC+i}, {i}, v{vT2}\n  v_lshlrev_b32 v{vC+i}, 4, v{vC+i}")
    a(f"""
  v_bfe_u32 v{vT2}, v{vT0}, 1, 3
  v_lshlrev_b32 v{vT3}, 2, v{vT1}
  v_xor_b32 v{vT2}, v{vT2}, v{vT3}
  s_lshr_b32 s{sTmp}, s{sW}, 1
  s_lshl_b32 s{sTmp}, s{sTmp}, 12
  v_lshlrev_b32 v{vT3}, 7, v{vT0}
  v_add_u32 v{vT3}, s{sTmp}, v{vT3}
""")
    for s in range(4):
        a(f"  v_xor_b32 v{s}, {s}, v{vT2}\n  v_lshl_add_u32 v{s}, v{s}, 4, v{vT3}")
    a(f"""
  s_and_b32 s{sTmp}, s{sW}, 1
  s_lshl_b32 s{sTmp}, s{sTmp}, 13
  s_add_u32 s{sTmp}, s{sTmp}, {IMA}
  v_add_u32 v{vT2}, s{sTmp}, v{vK}
  v_add_u32 v{vE}, {RING}, v{vK}
  s_waitcnt vmcnt({16+NPF}) lgkmcnt(0)
@S4@
  s_barrier
""")
    for s in range(4):
        a(f"  ds_read_b128 {Xb(1,s)}, v{s} offset:{XO}")
    for q in range(8):
        a(f"  ds_read_b128 {ar(4*q,4)}, v{vT2} offset:{1024*q}")
    for q in range(8):
        a(f"  ds_read_b128 {ar(32+4*q,4)}, v{vE} offset:{8192+1024*q}")
    a(f"""
  s_lshr_b32 s{sTmp}, s{sW}, 1
  s_mul_i32 s{sTmp}, s{sTmp}, {32*ROWB}
  s_and_b32 s{sTmp2}, s{sW}, 1
  s_cselect_b32 s{sCur}, 1.0, s{sCur}
  s_lshl_b32 s{sTmp2}, s{sTmp2}, 7
  s_add_u32 s{sTmp}, s{sTmp}, s{sTmp2}
  s_add_u32 s{sTmp}, s{sTmp}, {NODE}
  v_mul_u32_u24 v{vT3}, {4*ROWB}, v{vT1}
  v_add3_u32 v{vT3}, v{vT3}, v{vN4}, s{sTmp}
  s_waitcnt lgkmcnt(8)
""")
    for s in range(4):
        for ct in range(2):
            a(mfma16(104+16*ct, Xb(1,s), ar((s*2+ct)*4,4), g16(104+16*ct) if s else "0"))
    a(f"""
  s_lshl_b32 s{sM0}, s{sW}, 12
  s_add_u32 s{sM0}, s{sM0}, {RING}
  v_and_b32 v{vT2}, 3, v{vT0}
  v_bfe_u32 v{vK}, v{vT0}, 3, 1
  v_xor_b32 v{vK}, v{vK}, v{vT1}
  v_lshl_or_b32 v{vK}, v{vK}, 2, v{vT2}
  v_lshlrev_b32 v{vT2}, 10, v{vT2}
  v_lshrrev_b32 v{vT0}, 2, v{vT0}
  v_lshl_add_u32 v{vT2}, v{vT0}, 7, v{vT2}
  v_add_u32 v{vT2}, s{sM0}, v{vT2}
""")
    for s in range(4):
        a(f"  v_xor_b32 v{vXA+s}, {s}, v{vK}\n  v_lshl_add_u32 v{vXA+s}, v{vXA+s}, 4, v{vT2}")
    for q in range(8):
        a(f"  ds_read_b128 {ar(4*q,4)}, v{vE} offset:{1024*q}")
    for r in range(16):
        a(f"  v_mul_f32 v{104+r}, s{sCur}, v{104+r}")
        a(f"  v_mul_f32 v{120+r}, s{sCur}, v{120+r}")
        a(f"  v_cvt_pk_bf16_f32 v{104+r}, v{104+r}, v{120+r}")
        a(f"  ds_write_b32 v{vT3}, v{104+r} offset:{(8*(r>>2)+(r&3))*ROWB}")
    a(f"""
  s_branch K2_RANK
K2_NOA:
  s_waitcnt lgkmcnt(0)
  s_barrier
K2_RANK:
  v_mov_b32 v{vT2}, {MISC}
  s_mov_b32 s{sSave}, 0x00010001
  s_mov_b32 s{sSave+1}, 0x00010001
  s_mov_b64 exec, s[{sSave}:{sSave+1}]
  ds_max_u32 v{vT2}, v{vMx}
@S5@
  s_waitcnt vmcnt({8+NPF})
@S6@
""")
    def msk(k): return (sM1 + 2*k) if k < 8 else (sM2 + 2*(k-8))
    for k in range(16):
        if k == 8: a(f"  s_waitcnt vmcnt({NPF})")
        a(f"  s_mov_b64 exec, s[{msk(k)}:{msk(k)+1}]")
        if k >= 8: a(f"  s_cbranch_execz K2_RS{k}")
        a(f"  v_lshrrev_b32 v{A4(k)}, 16, v{R(k)+2}")
        a(f"  ds_add_rtn_u32 v{R(k)+3}, v{A4(k)}, v{vOne} offset:{CNT}")
        if k >= 8: a(f"K2_RS{k}:")
    a(f"""  s_mov_b64 exec, -1
  s_waitcnt lgkmcnt(0)
  s_barrier
@S7@
  s_cmp_lg_u32 s{sW}, 0
  s_cbranch_scc1 K2_FILL""")
    c0, c1, q0, q1, b0, b1, p0, p1, hv, ex, e0, e1, m0_, m1_, t0_, t1_, u0, u1, l4 = range(120, 139)
    a(f"""
  v_lshlrev_b32 v{l4}, 2, v{vLane}
  ds_read2st64_b32 v[{c0}:{c1}], v{l4} offset0:{CNT//256} offset1:{CNT//256+1}
  s_waitcnt lgkmcnt(0)
  v_add_u32 v{q0}, 3, v{c0}
  v_add_u32 v{q1}, 3, v{c1}
  v_lshrrev_b32 v{q0}, 2, v{q0}
  v_lshrrev_b32 v{q1}, 2, v{q1}
  v_min_u32 v{b0}, 63, v{q0}
  v_min_u32 v{b1}, 63, v{q1}
  v_sub_u32 v{b0}, 63, v{b0}
  v_sub_u32 v{b1}, 63, v{b1}
  v_lshlrev_b32 v{b0}, 2, v{b0}
  v_lshlrev_b32 v{b1}, 2, v{b1}
  ds_add_rtn_u32 v{p0}, v{b0}, v{vOne} offset:{HIST}
  ds_add_rtn_u32 v{p1}, v{b1}, v{vOne} offset:{HIST}
  ds_read_b32 v{hv}, v{l4} offset:{HIST}
  v_lshl_or_b32 v{q0}, v{q0}, 8, v{vLane}
  v_add_u32 v{u1}, 64, v{vLane}
  v_lshl_or_b32 v{q1}, v{q1}, 8, v{u1}
  s_waitcnt lgkmcnt(0)
  v_mov_b32 v{ex}, v{hv}
""")
    dpp_scan(a, ex)
    a(f"""
  v_sub_u32 v{ex}, v{ex}, v{hv}
  ds_bpermute_b32 v{u0}, v{b0}, v{ex}
  ds_bpermute_b32 v{u1}, v{b1}, v{ex}
  s_waitcnt lgkmcnt(0)
  v_add_lshl_u32 v{u0}, v{u0}, v{p0}, 2
  v_add_lshl_u32 v{u1}, v{u1}, v{p1}, 2
  ds_write_b32 v{u0}, v{q0} offset:{ORDQ}
  ds_write_b32 v{u1}, v{q1} offset:{ORDQ}
  ds_read2st64_b32 v[{e0}:{e1}], v{l4} offset0:{ORDQ//256} offset1:{ORDQ//256+1}
  s_waitcnt lgkmcnt(0)
  v_mov_b32 v{m0_}, v{e0}
  v_mov_b32 v{m1_}, v{e1}
""")
    for mode in ("quad_perm:[1,0,3,2]", "quad_perm:[2,3,0,1]", "row_half_mirror"):
        a(f"  s_nop 0\n  v_max_u32_dpp v{m0_}, v{m0_}, v{m0_} {mode} row_mask:0xf bank_mask:0xf")
        a(f"  v_max_u32_dpp v{m1_}, v{m1_}, v{m1_} {mode} row_mask:0xf bank_mask:0xf")
    a(f"""
  v_lshrrev_b32 v{m0_}, 8, v{m0_}
  v_lshrrev_b32 v{m1_}, 8, v{m1_}
  v_mov_b32 v{t0_}, v{m0_}
  v_mov_b32 v{t1_}, v{m1_}
""")
    for mode in ("row_shr:8 row_mask:0xf", "row_bcast:15 row_mask:0xa", "row_bcast:31 row_mask:0xc"):
        a(f"  s_nop 0\n  v_add_u32_dpp v{t0_}, v{t0_}, v{t0_} {mode} bank_mask:0xf")
        a(f"  v_add_u32_dpp v{t1_}, v{t1_}, v{t1_} {mode} bank_mask:0xf")
    a(f"""
  s_nop 0
  v_readlane_b32 s{sTmp}, v{t0_}, 63
  v_sub_u32 v{t0_}, v{t0_}, v{m0_}
  v_sub_u32 v{m1_}, v{t1_}, v{m1_}
  v_add_u32 v{t1_}, s{sTmp}, v{t1_}
  v_add_u32 v{m1_}, s{sTmp}, v{m1_}
  v_and_b32 v{u0}, 7, v{vLane}
  v_lshlrev_b32 v{u1}, 4, v{u0}
  v_lshl_add_u32 v{p0}, v{t0_}, 7, v{u1}
  v_lshl_add_u32 v{p1}, v{m1_}, 7, v{u1}
  v_and_b32 v{e0}, 0xff, v{e0}
  v_and_b32 v{e1}, 0xff, v{e1}
  v_lshlrev_b32 v{c0}, 2, v{e0}
  v_lshlrev_b32 v{c1}, 2, v{e1}
  ds_write_b32 v{c0}, v{p0} offset:{NB}
  ds_write_b32 v{c1}, v{p1} offset:{NB}
  v_lshrrev_b32 v{u0}, 1, v{vLane}
  v_add_u32 v{u0}, {TSV}, v{u0}
  s_mov_b32 s{sSave}, 0x01010101
  s_mov_b32 s{sSave+1}, 0x01010101
  s_mov_b64 exec, s[{sSave}:{sSave+1}]
  ds_write2_b32 v{u0}, v{t0_}, v{m1_} offset0:0 offset1:8
  s_mov_b32 s{sSave}, 0
  s_mov_b32 s{sSave+1}, 0x80000000
  s_mov_b64 exec, s[{sSave}:{sSave+1}]
  v_mov_b32 v{u1}, {TSV+64}
  ds_write_b32 v{u1}, v{t1_}
  s_mov_b64 exec, -1
  v_min_u32 v{e0}, 98, v{e0}
  v_min_u32 v{e1}, 98, v{e1}
  v_mov_b32 v{c0}, {NODE}
  s_mov_b32 s{sTmp}, {ROWB}
  v_mad_u32_u24 v{e0}, v{e0}, s{sTmp}, v{c0}
  v_mad_u32_u24 v{e1}, v{e1}, s{sTmp}, v{c0}
  v_and_b32 v{c0}, 1, v{vLane}
  v_lshlrev_b32 v{c0}, 4, v{c0}
  v_bfe_u32 v{c1}, v{vLane}, 1, 2
  v_lshl_add_u32 v{c0}, v{c1}, 2, v{c0}
  v_and_b32 v{c1}, 56, v{vLane}
  v_lshl_add_u32 v{c0}, v{c1}, 2, v{c0}
  v_add_u32 v{c0}, {ORDA}, v{c0}
  ds_write2st64_b32 v{c0}, v{e0}, v{e1} offset0:0 offset1:1
  s_branch K2_PRE
K2_FILL:
  v_mov_b32 v120, 1.0
  v_mov_b32 v121, 1.0
  v_mov_b32 v122, 1.0
  v_mov_b32 v123, 1.0
  v_subrev_u32 v{vT2}, 64, v{vTid}
  v_lshlrev_b32 v{vT2}, 4, v{vT2}
""")
    for k in range(6):
        a(f"  ds_write_b128 v{vT2}, v[120:123] offset:{7168*k}")
    a(f"""  v_cmp_gt_u32 vcc, {49152-6*7168}, v{vT2}
  s_and_saveexec_b64 s[{sSave}:{sSave+1}], vcc
  ds_write_b128 v{vT2}, v[120:123] offset:{7168*6}
  s_mov_b64 exec, -1
K2_PRE:
  s_mov_b32 s{sTmp}, -28
""")
    for k in range(16):
        if k >= 8: a(f"  s_cmp_eq_u64 s[{msk(k)}:{msk(k)+1}], 0\n  s_cbranch_scc1 K2_PS{k}")
        a(f"  v_and_b32 v{vT0}, 3, v{R(k)+3}")
        a(f"  v_lshlrev_b32 v{R(k)+3}, 5, v{R(k)+3}")
        a(f"  v_mad_i32_i24 v{R(k)+3}, v{vT0}, s{sTmp}, v{R(k)+3}")
        a(f"  v_and_b32 v{R(k)+2}, 0x7fff, v{R(k)+2}")
        if k >= 8: a(f"K2_PS{k}:")
    a(f"""
  v_min_u32 v{vT0}, 16, v{vLane}
  v_lshlrev_b32 v{vT0}, 2, v{vT0}
  v_mov_b32 v{vT1}, {MISC}
  s_waitcnt lgkmcnt(0)
@S8@
  s_barrier
@S9@
  ds_read_b32 v{vTSV}, v{vT0} offset:{TSV}
  ds_read_b32 v{vT2}, v{vT1}
""")
    for k in range(16):
        a(f"  s_mov_b64 exec, s[{msk(k)}:{msk(k)+1}]")
        if k >= 8: a(f"  s_cbranch_execz K2_NS{k}")
        a(f"  ds_read_b32 v{A4(k)}, v{A4(k)} offset:{NB}")
        if k >= 8: a(f"K2_NS{k}:")
        if k == 7:
            a(f"""  s_mov_b64 exec, -1
  s_waitcnt lgkmcnt(8)
  v_readlane_b32 s{sT}, v{vTSV}, 16
  v_readfirstlane_b32 s{sMaxC}, v{vT2}
  s_cmp_le_u32 s{sT}, {CAPT}
  s_cbranch_scc1 K2_FIT
  s_lshr_b32 s{sSW}, s{sSW}, 1
  s_mov_b32 s{sFirstB}, 0
  s_waitcnt lgkmcnt(0)
  s_barrier
  s_branch K2_RESET
K2_FIT:""")
    a("  s_waitcnt lgkmcnt(0)")
    for k in range(16):
        a(f"  s_mov_b64 exec, s[{msk(k)}:{msk(k)+1}]")
        if k >= 8: a(f"  s_cbranch_execz K2_WS{k}")
        a(f"  v_add_u32 v{A4(k)}, v{A4(k)}, v{R(k)+3}")
        a(f"  v_lshlrev_b32 v{R(k)+3}, 1, v{A4(k)}")
        a(f"  ds_write_b32 v{A4(k)}, v{R(k)+2} offset:{K0}")
        a(f"  ds_write_b64 v{R(k)+3}, v[{R(k)}:{R(k)+1}] offset:{EA0}")
        if k >= 8: a(f"K2_WS{k}:")
    a(f"""
  s_mov_b64 exec, -1
  s_mul_i32 s{sT0}, s{sT}, s{sW}
  s_add_u32 s{sT1}, s{sT0}, s{sT}
  s_lshr_b32 s{sT0}, s{sT0}, 3
  s_lshr_b32 s{sT1}, s{sT1}, 3
  v_cmp_ge_u32 vcc, s{sT0}, v{vTSV}
  s_and_b32 s{sTmp}, vcc_lo, 0xffff
  s_bcnt1_i32_b32 s{sG0}, s{sTmp}
  s_sub_u32 s{sG0}, s{sG0}, 1
  v_cmp_gt_u32 vcc, s{sT1}, v{vTSV}
  s_and_b32 s{sTmp}, vcc_lo, 0xffff
  s_bcnt1_i32_b32 s{sGlast}, s{sTmp}
  s_sub_u32 s{sGlast}, s{sGlast}, 1
  s_add_u32 s{sTmp}, s{sG0}, 1
  v_readlane_b32 s{sTmp2}, v{vTSV}, s{sG0}
  v_readlane_b32 s{sTn}, v{vTSV}, s{sTmp}    ; TS[g0+1]
  s_sub_u32 s{sN}, s{sT1}, s{sT0}
  s_mov_b32 s{sCont}, 0
  s_mov_b32 s{sSlow}, 0
  s_mov_b32 s{sGn}, s{sG0}
  s_mov_b32 s{sCur}, s{sT0}
  s_mov_b32 s{sF}, 1
  s_cmp_eq_u32 s{sN}, 0
  s_cbranch_scc1 K2_FMD
  s_cmp_eq_u32 s{sTmp2}, s{sT0}
  s_cbranch_scc1 K2_FM
  s_mov_b32 s{sCont}, 1
  s_cmp_lt_u32 s{sTn}, s{sT1}
  s_cbranch_scc0 K2_ALLC
  s_add_u32 s{sGn}, s{sG0}, 1
  s_mov_b32 s{sCur}, s{sTn}
  s_sub_u32 s{sTmp}, s{sT1}, s{sCur}
  s_bitset1_b32 s{sF}, s{sTmp}
  s_branch K2_FM
K2_ALLC:
  s_cmp_gt_u32 s{sTn}, s{sT1}
  s_cselect_b32 s{sSlow}, 1, 0
K2_FM:
  s_mov_b32 s{sTau}, s{sGn}
K2_FML:
  s_cmp_ge_u32 s{sTau}, s{sGlast}
  s_cbranch_scc1 K2_FMD
  s_add_u32 s{sTau}, s{sTau}, 1
  s_nop 3
  v_readlane_b32 s{sTmp}, v{vTSV}, s{sTau}
  s_sub_u32 s{sTmp}, s{sTmp}, s{sCur}
  s_bitset1_b32 s{sF}, s{sTmp}
  s_branch K2_FML
K2_FMD:
  s_lshl_b32 s{sTmp}, s{sCur}, 7
  v_add_u32 v{vK}, s{sTmp}, v{vKb}
  v_mad_u32_u24 v{vE}, v{vEs}, s{sCur}, v{vEb}
""")
    for l in next_tile(sTn, sCur): a(l)
    a(f"""
  s_waitcnt lgkmcnt(0)
  s_barrier
@S10@
  s_cmp_eq_u32 s{sN}, 0
  s_cbranch_scc1 K2_LOOPDONE
  ds_read_b128 v[{vI}:{vI+3}], v{vK}
""")
    ord_read(a)
    a(f"""  ds_read2_b32 a[{EOP}:{EOP+1}], v{vE} offset0:0 offset1:1
  s_lshl_b32 s{sTmp}, s{sTn}, 7
  v_add_u32 v{vK}, s{sTmp}, v{vKb}
  s_mov_b32 m0, s{sM0}
  s_waitcnt lgkmcnt(2)""")
    for i in range(4): a(la(i))
    for i in range(4):
        a(dma(i))
        if i < 3: a(f"  s_add_u32 m0, s{sM0}, {1024*(i+1)}\n  s_nop 0")
    a(f"  ds_read_b128 v[{vI}:{vI+3}], v{vK}")
    m_event(a)
    for g in range(4): a(f"  v_mov_b32 v{vNAc+g}, v{vNAn+g}")
    next_group(a)
    ord_read(a)
    for i in range(4): a(la(i))
    a(f"  v_mad_u32_u24 v{vE}, v{vEs}, s{sTn}, v{vEb}")
    for l in next_tile(sTn2, sTn): a(l)
    a(f"""  s_lshl_b32 s{sTmp}, s{sTn2}, 7
  v_add_u32 v{vK}, s{sTmp}, v{vKb}
  s_mov_b32 s{sTn}, s{sTn2}
  s_waitcnt vmcnt(0)""")
    for s in range(4): a(f"  ds_read_b128 {Xb(0,s)}, v{vXA+s}")
    a(mfma16(Gb(0), Eo, BEo(0), "0"))
    a(mfma16(Gb(1), Eo, BEo(1), "0"))
    a(f"  s_mov_b32 m0, s{sM0}\n  s_waitcnt lgkmcnt(0)")
    a(f"  ds_read2_b32 a[{EOP}:{EOP+1}], v{vE} offset0:0 offset1:1")
    for i in range(4):
        a(dma(i))
        if i < 3: a(f"  s_add_u32 m0, s{sM0}, {1024*(i+1)}")
        a(mfma16(Gb(0), Xb(0,i), wb(i,0), g16(Gb(0))))
    a(f"  ds_read_b128 v[{vI}:{vI+3}], v{vK}")
    for i in range(4):
        a(mfma16(Gb(1), Xb(0,i), wb(i,1), g16(Gb(1))))
    a(f"  s_bitcmp1_b32 s{sF}, 1\n  s_cbranch_scc0 K2_FNM")
    m_event(a)
    a("K2_FNM:\n  s_nop 7")
    for i in range(16): a(f"  v_exp_f32 v{Gb(0)+i}, v{Gb(0)+i}")
    a(f"  s_mov_b32 s{sTau}, 0\n  s_waitcnt vmcnt(0)")
    a(mfma8(Gb(0), ON, ON, g16(Gb(0))))
    for s in range(4): a(f"  ds_read_b128 {Xb(1,s)}, v{vXA+s}")
    a("K2_LOOP:")
    tile_code(a, 0)
    tile_code(a, 1)
    a(f"""  s_branch K2_LOOP
K2_LAST:
  s_setprio 0
  s_cmp_lg_u32 s{sCont}, 0
  s_cbranch_scc1 K2_LOOPDONE""")
    flush(a)
    a(f"""
K2_LOOPDONE:
@S11@
  s_add_u32 s{sSB}, s{sSB}, s{sSW}
  v_mbcnt_lo_u32_b32 v{vLane}, -1, 0
  v_mbcnt_hi_u32_b32 v{vLane}, -1, v{vLane}
  s_lshl_b32 s{sTmp}, s{sW}, 6
  v_add_u32 v{vTid}, s{sTmp}, v{vLane}
  s_lshl_b32 s{sTmp}, s{sW}, 12
  s_add_u32 s{sTmp}, s{sTmp}, s{sB}
  s_lshl_b32 s{sTmp}, s{sTmp}, 7
  v_lshrrev_b32 v{vT1}, 5, v{vLane}
  v_lshlrev_b32 v{vE}, 17, v{vT1}
  v_add3_u32 v{vE}, v{vE}, v{vN4}, s{sTmp}
  s_waitcnt vmcnt(0)
  s_cmp_gt_u32 s{sMaxC}, s{sSB}
  s_cbranch_scc1 K2_NOFL
""")
    for rr in range(8):
        a(f"  s_mov_b32 s{sSeg+rr}, {(8*(rr>>2)+(rr&3))*32768}")
        a(f"  buffer_load_dword v{G+rr}, v{vE}, s[{sXR}:{sXR+3}], s{sSeg+rr} offen")
    a(f"""
K2_NOFL:
  s_cmp_eq_u32 s{sSlow}, 0
  s_cbranch_scc1 K2_NSL
  v_mov_b32 v{vT0}, {MISC+4}
  v_mov_b32 v{vT1}, 1
  ds_write_b32 v{vT0}, v{vT1}
K2_NSL:
  s_waitcnt lgkmcnt(0)
  s_barrier
  v_mov_b32 v{vT0}, {MISC+4}
  ds_read_b32 v{vT1}, v{vT0}
  s_waitcnt lgkmcnt(0)
  v_readfirstlane_b32 s{sSlow}, v{vT1}
  s_mov_b32 s{sTau}, 1
K2_MERGE:
  s_cmp_eq_u32 s{sCont}, 0
  s_cbranch_scc1 K2_MSKIP
  s_cmp_eq_u32 s{sSlow}, 0
  s_cbranch_scc1 K2_MDO
  s_cmp_lg_u32 s{sTau}, s{sW}
  s_cbranch_scc1 K2_MSKIP
K2_MDO:
""")
    flush(a)
    a(f"""
K2_MSKIP:
  s_waitcnt lgkmcnt(0)
  s_barrier
  s_cmp_eq_u32 s{sSlow}, 0
  s_cbranch_scc1 K2_MEND
  s_add_u32 s{sTau}, s{sTau}, 1
  s_cmp_lt_u32 s{sTau}, 8
  s_cbranch_scc1 K2_MERGE
K2_MEND:
@S12@
  s_mov_b32 s{sFirstB}, 0
  s_cmp_gt_u32 s{sMaxC}, s{sSB}
  s_cbranch_scc1 K2_RESET
  s_mul_i32 s{sTmp}, s{sW}, {16*ROWB}
  s_add_u32 s{sTmp}, s{sTmp}, {NODE}
  v_lshrrev_b32 v{vT1}, 5, v{vLane}
  v_mul_u32_u24 v{vT1}, {4*ROWB}, v{vT1}
  v_add3_u32 v{vT1}, v{vT1}, v{vN4}, s{sTmp}
  v_add_u32 v{vT2}, 128, v{vT1}
""")
    for rr in range(8):
        ro = 3 * (8*(rr>>2) + (rr&3))
        a(f"  ds_read2st64_b32 v[{AC+4*rr}:{AC+4*rr+1}], v{vT1} offset0:{ro+1} offset1:{ro+2}")
        a(f"  ds_read2st64_b32 v[{AC+4*rr+2}:{AC+4*rr+3}], v{vT2} offset0:{ro+1} offset1:{ro+2}")
        a(f"  ds_read_b32 v{HV+rr}, v{vT2} offset:{ro*256}")
    a(f"  s_mov_b32 s{sTmp}, 0x358637bd")
    for rr in range(8):
        a(f"  s_waitcnt lgkmcnt({min(15, 3*(7-rr))})")
        for ct in range(2):
            d = AC + 4*rr + 2*ct + 1
            a(f"  v_add_f32 v{d}, s{sTmp}, v{d}")
        for ct in range(2):
            d = AC + 4*rr + 2*ct + 1
            a(f"  v_rcp_f32 v{d}, v{d}")
        a(f"  v_lshlrev_b32 v{HV+8+rr}, 16, v{HV+rr}")
        a(f"  v_and_b32 v{HV+rr}, 0xffff0000, v{HV+rr}")
    a("  s_waitcnt vmcnt(0)")
    for rr in range(8):
        n0, n1 = AC + 4*rr, AC + 4*rr + 2
        a(f"  v_fma_f32 v{n0}, v{n0}, v{n0+1}, v{HV+8+rr}")
        a(f"  v_fma_f32 v{n1}, v{n1}, v{n1+1}, v{HV+rr}")
        a(f"  v_lshlrev_b32 v{n0+1}, 16, v{G+rr}")
        a(f"  v_and_b32 v{n1+1}, 0xffff0000, v{G+rr}")
        a(f"  v_max_f32 v{n0}, 0, v{n0}")
        a(f"  v_max_f32 v{n1}, 0, v{n1}")
        a(f"  v_add_f32 v{n0}, v{n0}, v{n0+1}")
        a(f"  v_add_f32 v{n1}, v{n1}, v{n1+1}")
        a(f"  v_cvt_pk_bf16_f32 v{n0}, v{n0}, v{n1}")
        a(f"  buffer_store_dword v{n0}, v{vE}, s[{sOUT}:{sOUT+3}], s{sSeg+rr} offen")
    a("@S13@\n@S15@\n@OUT2@\nK2_END:\n  s_endpgm")

def kd(name, vgpr, accum, sgpr):
    return f"""
.amdhsa_kernel {name}
  .amdhsa_next_free_vgpr {vgpr}
  .amdhsa_next_free_sgpr {sgpr}
  .amdhsa_accum_offset {accum}
  .amdhsa_group_segment_fixed_size 0
  .amdhsa_kernarg_size 96
  .amdhsa_user_sgpr_count 2
  .amdhsa_user_sgpr_kernarg_segment_ptr 1
  .amdhsa_system_sgpr_workgroup_id_x 1
  .amdhsa_float_denorm_mode_32 3
.end_amdhsa_kernel
"""

def main():
    ref = open(f"cdna_kernels/{NAME}.s.ref").read().split("\n")
    hdr = [l for l in ref if l.startswith(";") and "@launch" not in l and "Override" not in l and "grid=ceil" not in l]
    a = Asm()
    a("\n".join(hdr))
    a(f"; @launch kernel=part_kernel grid=({NP},1,1) block=(800,1,1) lds={LDS1}")
    a(f"; @launch kernel=main_kernel grid=(256,1,1) block=(512,1,1) lds={LDS2}")
    a('.amdgcn_target "amdgcn-amd-amdhsa--gfx950"\n.text')
    gen_k1(a)
    gen_k2(a)
    a('.section .rodata,"a"\n.p2align 6')
    st = OPT["stamp"]
    a(kd("part_kernel", 60, 60, 100) if st else kd("part_kernel", 56, 56, 32))
    a(".p2align 6")
    a(kd("main_kernel", NARCH + NACC, NARCH, 100))
    txt = a.text()
    SL = MISC + 64
    def sub(m):
        if not st: return ""
        b = Asm(); k = m.group(1); i = m.group(2)
        if k == "OUT":
            if i == "2":
                b(f"""  s_lshl_b32 s99, s{sW}, 6
  s_add_u32 s99, s99, {SL}
  v_mbcnt_lo_u32_b32 v37, -1, 0
  v_lshlrev_b32 v37, 2, v37
  v_add_u32 v37, s99, v37
  ds_read_b32 v36, v37
  s_waitcnt lgkmcnt(0)""")
                stamp_out(b, 96, sW, STAMP_OFF, 36, 37, 8)
            else: stamp_out(b, 20, 23, STAMP_OFF + 0x100000, 56, 57, 16)
        else:
            i = int(i)
            if k == "TW": b("  s_waitcnt vmcnt(0)")
            def one(idx, real=False):
                if k == "S":
                    d = 150 if idx == 4 else 38
                    b(f"""  s_mem{'real' if real else ''}time s[98:99]
  s_waitcnt lgkmcnt(0)
  v_mov_b32 v{d}, s98
  s_lshl_b32 s99, s{sW}, 6
  s_add_u32 s99, s99, {SL + 4*idx}
  v_mov_b32 v39, s99
  ds_write_b32 v39, v{d}""")
                else: stamp(b, idx, 56, real=real)
            if i == 0: one(0); one(1, True)
            elif i == 15: one(15, True)
            else: one(i)
        return b.text()
    txt = re.sub(r"@(S|TW|T|OUT)(\d+)@\n", sub, txt)
    lines = txt.split("\n")
    for p in check_hazards(lines): print("HAZARD", p)
    b = Asm()
    for rep in range(2):
        for k in range(4):
            t_unit(b, k); p_unit(b, k, rep == 0)
            if k & 1: flush(b); m_event(b)
    for k in range(4):
        t_unit(b, k); p_unit(b, k, False)
    for k in range(2):
        t_unit(b, k); p_unit(b, k, False)
    for p in check_hazards(b.text().split("\n"), "loop"): print("HAZARD", p)
    open(sys.argv[1], "w").write(txt)

if __name__ == "__main__":
    main()
```

```python
import sys, re
from asmlib import *

NAME = "gather_scatter__edge_featured_mpnn_gatedgcn__graph"
NP, CH = 250, 3200
RECB = CH * 12
OFFS = 0xA00000
NLOG2E = 0xBFB8AA3B
CAPT = 128
EA0, K0 = 0, 32768
CNT, NB, HIST, ORDQ, ORDA, TSV, MISC = 49152, 49664, 50176, 50432, 50944, 51456, 51584
RING = 52224
NODE = RING + 8 * 4096
ROWB = 768
LDS2 = NODE + 99 * ROWB
XO, IMA = 0, 16384
K1_CNT, K1_START = 38400, 39424
LDS1 = 40448
STAMP_OFF = 0x1000000

OPT = dict(st_flags="", ld_flags="", npf=2, stamp=0, prio=2, dbg=-1, dbgw=0, nodma=0, cpf=0)
for a_ in sys.argv[2:]:
    k_, v_ = a_.split("=", 1)
    OPT[k_] = int(v_) if v_.lstrip("-").isdigit() else v_.replace("+", " ")

def stamp(a, idx, vreg, s=98, real=False):
    a(f"  s_mem{'real' if real else ''}time s[{s}:{s+1}]\n  s_waitcnt lgkmcnt(0)\n  v_writelane_b32 v{vreg}, s{s}, {idx}")
def stamp_out(a, ws, wave, base, vreg, tmp, wpw):
    a(f"""  s_mul_i32 s98, s2, {wpw}
  s_add_u32 s98, s98, s{wave}
  s_lshl_b32 s98, s98, 6
  s_add_u32 s98, s98, {base}
  v_mbcnt_lo_u32_b32 v{tmp}, -1, 0
  v_lshlrev_b32 v{tmp}, 2, v{tmp}
  v_add_u32 v{tmp+1}, s98, v{tmp}
  s_mov_b64 exec, 0xffff
  global_store_dword v{tmp+1}, v{vreg}, s[{ws}:{ws+1}]""")
    if OPT["dbg"] >= 0:
        a(f"""  s_cmp_lg_u32 s2, {OPT["dbg"]}
  s_cbranch_scc1 DBGX{vreg}
  s_cmp_lg_u32 s{wave}, {OPT["dbgw"]}
  s_cbranch_scc1 DBGX{vreg}
  s_load_dwordx2 s[98:99], s[0:1], 80
  s_waitcnt lgkmcnt(0)
  global_store_dword v{tmp}, v{vreg}, s[98:99]
DBGX{vreg}:""")

def dpp_scan(a, v):
    for m in ("row_shr:1", "row_shr:2", "row_shr:4", "row_shr:8"):
        a(f"  s_nop 1\n  v_add_u32_dpp v{v}, v{v}, v{v} {m} row_mask:0xf bank_mask:0xf")
    a(f"  s_nop 1\n  v_add_u32_dpp v{v}, v{v}, v{v} row_bcast:15 row_mask:0xa bank_mask:0xf")
    a(f"  s_nop 1\n  v_add_u32_dpp v{v}, v{v}, v{v} row_bcast:31 row_mask:0xc bank_mask:0xf")

def gen_k1(a):
    st = OPT["st_flags"]
    a(f"""
.globl part_kernel
.p2align 8
.type part_kernel,@function
part_kernel:
  s_cmp_ge_u32 s2, {NP}
  s_cbranch_scc1 K1_END
  s_load_dwordx4 s[4:7], s[0:1], 8
  s_load_dwordx2 s[8:9], s[0:1], 24
  s_load_dwordx2 s[20:21], s[0:1], 88
  v_lshrrev_b32 v33, 6, v0
  v_lshlrev_b32 v1, 4, v0
  v_readfirstlane_b32 s23, v33
@CPF1@
@T0@
  s_mul_i32 s22, s2, {CH*4}
  v_add_u32 v2, s22, v1
  v_lshlrev_b32 v3, 1, v2
  v_mov_b32 v32, 1
  v_mov_b32 v36, 0
  v_mov_b32 v37, 0
  v_mov_b32 v38, 0
  v_mov_b32 v39, 0
  s_cmp_lg_u32 s23, 0
  s_cbranch_scc1 K1_A
  ds_write_b128 v1, v[36:39] offset:{K1_CNT}
K1_A:
  s_waitcnt lgkmcnt(0)
  global_load_dwordx4 v[4:7], v2, s[8:9]
  global_load_dwordx4 v[8:11], v2, s[6:7]
  global_load_dwordx4 v[12:15], v3, s[4:5]
  global_load_dwordx4 v[16:19], v3, s[4:5] offset:16
  s_barrier
@T2@
  s_waitcnt vmcnt(3)
@T3@
""")
    for k in range(4):
        a(f"  v_lshlrev_b32_sdwa v{20+k}, 2, v{4+k} dst_sel:DWORD dst_unused:UNUSED_PAD src0_sel:DWORD src1_sel:BYTE_0")
    for k in range(4):
        a(f"  ds_add_rtn_u32 v{24+k}, v{20+k}, v32 offset:{K1_CNT}")
    a(f"""
  s_waitcnt lgkmcnt(0)
  s_barrier
  s_cmp_lg_u32 s23, 0
  s_cbranch_scc1 K1_B
  ds_read_b128 v[36:39], v1 offset:{K1_CNT}
  s_waitcnt lgkmcnt(0)
  v_add_u32 v41, v36, v37
  v_add_u32 v42, v41, v38
  v_add_u32 v43, v42, v39
  v_mov_b32 v44, v43
""")
    dpp_scan(a, 44)
    a(f"""
  v_sub_u32 v45, v44, v43
  v_add_u32 v47, v45, v36
  v_add_u32 v48, v45, v41
  v_add_u32 v49, v45, v42
  v_mul_u32_u24 v46, 12, v45
  v_mul_u32_u24 v47, 12, v47
  v_mul_u32_u24 v48, 12, v48
  v_mul_u32_u24 v49, 12, v49
  ds_write_b128 v1, v[46:49] offset:{K1_START}
  v_lshl_or_b32 v50, v36, 16, v46
  v_lshl_or_b32 v51, v37, 16, v47
  v_lshl_or_b32 v52, v38, 16, v48
  v_lshl_or_b32 v53, v39, 16, v49
  s_lshl_b32 s24, s2, 2
  s_add_u32 s24, s24, {OFFS}
  v_lshlrev_b32 v54, 12, v0
  v_add_u32 v54, s24, v54
  global_store_dword v54, v50, s[20:21] {st}
  global_store_dword v54, v51, s[20:21] offset:1024 {st}
  global_store_dword v54, v52, s[20:21] offset:2048 {st}
  global_store_dword v54, v53, s[20:21] offset:3072 {st}
K1_B:
  s_waitcnt vmcnt(2)
""")
    for k in range(4):
        a(f"  v_lshrrev_b32 v{4+k}, 8, v{4+k}")
        a(f"  v_lshl_or_b32 v{8+k}, v{4+k}, 18, v{8+k}")
    a(f"""
  s_mul_i32 s22, s2, {RECB}
  v_add_u32 v2, s22, v1
  v_add_u32 v3, {12800}, v2
  v_add_u32 v4, {25600}, v2
  s_waitcnt lgkmcnt(0)
  s_barrier
@T4@
""")
    for k in range(4):
        a(f"  ds_read_b32 v{28+k}, v{20+k} offset:{K1_START}")
    for k in range(4):
        a(f"  s_waitcnt lgkmcnt({3-k})")
        a(f"  v_mad_u32_u24 v{28+k}, v{24+k}, 12, v{28+k}")
    for k in range(4):
        a(f"  ds_write_b32 v{28+k}, v{8+k} offset:8")
    a("  s_waitcnt vmcnt(0)")
    for k in range(4):
        a(f"  ds_write2_b32 v{28+k}, v{12+2*k}, v{13+2*k} offset0:0 offset1:1")
    a(f"""
  s_waitcnt lgkmcnt(0)
  s_barrier
  ds_read_b128 v[8:11], v1
  ds_read_b128 v[12:15], v1 offset:12800
  ds_read_b128 v[16:19], v1 offset:25600
  s_waitcnt lgkmcnt(2)
  global_store_dwordx4 v2, v[8:11], s[20:21] {st}
  s_waitcnt lgkmcnt(1)
  global_store_dwordx4 v3, v[12:15], s[20:21] {st}
  s_waitcnt lgkmcnt(0)
  global_store_dwordx4 v4, v[16:19], s[20:21] {st}
@T5@
@TW6@
@T15@
@OUT1@
K1_END:
  s_endpgm
""")

vXA = 0
vI = 4
vC = 8
vEs, vEb, vE, vKb, vK = 12, 13, 14, 15, 16
vN4, vTSV, vOrd = 17, 18, 19
vNAc, vNAn = 20, 24
BEV = 28
vT0, vT1, vT2, vT3 = 36, 37, 38, 39
G, HV, AC = 40, 104, 120
NARCH = 152
WB, WV, EOP, ONE, X = 0, 32, 64, 68, 70
NACC = 102
sXR, sOUT, sREC, sOFF, sWM = 8, 12, 16, 20, 24
sM1, sM2, sSeg = 28, 44, 60
sW, sSB, sSW, sFirstB, sT, sT0, sT1, sTn, sTn2, sTau, sN, sF, sGn, sGlast, sCont, sG0, sM0, sMaxC, sTmp, sTmp2, sCur, sSlow, sPsel0, sPsel1, sB = range(68, 93)
sSave = 94
sKA = 4

def mfma16(d, A, B, C):
    return f"  v_mfma_f32_32x32x16_bf16 v[{d}:{d+15}], {A}, {B}, {C}"
def mfma8(d, A, B, C):
    return f"  v_mfma_f32_32x32x8_bf16 v[{d}:{d+15}], {A}, {B}, {C}"
g16 = lambda d: f"v[{d}:{d+15}]"
pr = lambda r: f"v[{r}:{r+1}]"
Gb = lambda k: G + 16*(k % 4)
Xb = lambda t, s: ar(X + 16*(t % 2) + 4*s, 4)
wb = lambda s, ct: ar(WB+(s*2+ct)*4, 4)
wv = lambda s, ct: ar(WV+(s*2+ct)*4, 4)
Eo = ar(EOP, 4); ON = ar(ONE, 2)
BEo = lambda ct: vr(BEV+4*ct, 4)

def flush(a):
    for ct in range(2):
        for g in range(4):
            t = HV + (ct*4+g)*2
            a(f"  ds_read2_b32 v[{t}:{t+1}], v{vNAc+g} offset0:{64+32*ct} offset1:{128+32*ct}")
    for q in range(8):
        r = AC + q*4
        a(f"  v_add_f32 v{r}, v{r}, v{r+1}")
        a(f"  v_add_f32 v{r+2}, v{r+2}, v{r+3}")
    a("  s_waitcnt lgkmcnt(0)")
    for q in range(8):
        r = AC + q*4; t = HV + q*2
        a(f"  v_add_f32 v{r}, v{r}, v{t}")
        a(f"  v_add_f32 v{r+2}, v{r+2}, v{t+1}")
    for ct in range(2):
        for g in range(4):
            r = AC + (ct*4+g)*4
            a(f"  ds_write2_b32 v{vNAc+g}, v{r}, v{r+2} offset0:{64+32*ct} offset1:{128+32*ct}")

def next_tile(dst, src):
    return [f"  s_add_u32 s{dst}, s{src}, 1", f"  s_cmp_eq_u32 s{dst}, s{sT1}", f"  s_cselect_b32 s{dst}, s{sT0}, s{dst}"]

def dma(i):
    if OPT["nodma"]: return "  s_nop 0"
    return f"  buffer_load_dwordx4 v{vI+i}, s[{sXR}:{sXR+3}], 0 offen lds"
def la(i):
    return f"  v_lshl_add_u32 v{vI+i}, v{vI+i}, 7, v{vC+i}"

def ord_read(a):
    a(f"  s_lshl_b32 s{sTmp}, s{sGn}, 5\n  v_add_u32 v{vT0}, s{sTmp}, v{vOrd}\n  ds_read_b128 v[{vNAn}:{vNAn+3}], v{vT0}")
def next_group(a):
    a(f"  s_add_u32 s{sTmp}, s{sGn}, 1\n  s_cmp_lt_u32 s{sGn}, s{sGlast}\n  s_cselect_b32 s{sGn}, s{sTmp}, s{sG0}")
def m_event(a):
    a("  s_waitcnt lgkmcnt(0)")
    for g in range(4): a(f"  v_add_u32 v{vNAn+g}, v{vNAn+g}, v{vN4}")
    for g in range(4): a(f"  ds_read_b32 v{vT0+g}, v{vNAn+g}")
    a("  s_waitcnt lgkmcnt(0)")
    for ct in range(2):
        for i in range(2):
            a(f"  v_perm_b32 v{BEV+4*ct+2+i}, v{vT0+2*i+1}, v{vT0+2*i}, s{sPsel0+ct}")

def p_unit(a, k, first):
    ct = k & 1
    for half in range(2):
        for gq in range(4):
            e = Gb(k) + 4*gq; h = HV + 4*gq; r = AC + (ct*4+gq)*4
            if first:
                if half == 0:
                    a(f"  v_pk_mul_f32 {pr(r)}, {pr(e)}, {pr(h)}")
                    a(f"  v_pk_add_f32 {pr(r+2)}, {pr(e)}, {pr(e+2)}")
                else:
                    a(f"  v_pk_fma_f32 {pr(r)}, {pr(e+2)}, {pr(h+2)}, {pr(r)}")
            else:
                a(f"  v_pk_fma_f32 {pr(r)}, {pr(e+2*half)}, {pr(h+2*half)}, {pr(r)}")
                a(f"  v_pk_add_f32 {pr(r+2)}, {pr(e+2*half)}, {pr(r+2)}")

def t_unit(a, k):
    t, ct = k >> 1, k & 1
    T = [f"  v_exp_f32 v{Gb(k+1)+i}, v{Gb(k+1)+i}" for i in range(16)] + [f"  v_rcp_f32 v{Gb(k)+i}, v{Gb(k)+i}" for i in range(16)]
    Hm = [mfma16(HV, Xb(t, s), wv(s, ct), g16(HV) if s else "0") for s in range(4)]
    d = Gb(k+2)
    Gm = [mfma16(d, Eo, BEo(ct), "0")] + [mfma16(d, Xb(t+1, s), wb(s, ct), g16(d)) for s in range(4)]
    A1 = mfma8(Gb(k+1), ON, ON, g16(Gb(k+1)))
    M = [Hm[0], Gm[0], Hm[1], Gm[1], Hm[2], Gm[2], A1, Hm[3], Gm[3], Gm[4]]
    side = [[] for _ in M]
    nt = next_tile(sTn2, sTn)
    if ct == 0:
        pre = ["  s_waitcnt lgkmcnt(0)", la(0), la(1)]
        side[0] = [f"  s_mov_b32 m0, s{sM0}", la(2), la(3)]
        side[1] = [dma(0), f"  s_add_u32 m0, s{sM0}, 1024"]
        side[2] = [dma(1), f"  s_add_u32 m0, s{sM0}, 2048"]
        side[3] = [dma(2), f"  s_add_u32 m0, s{sM0}, 3072"]
        side[4] = [dma(3), nt[0]]
        side[5] = [nt[1], nt[2]]
        side[7] = [f"  s_lshl_b32 s{sTmp}, s{sTn2}, 7", f"  v_add_u32 v{vK}, s{sTmp}, v{vKb}"]
        side[8] = [f"  ds_read_b128 v[{vI}:{vI+3}], v{vK}", f"  v_mad_u32_u24 v{vE}, v{vEs}, s{sTn}, v{vEb}"]
        side[9] = [f"  s_mov_b32 s{sTn}, s{sTn2}"]
    else:
        pre = []
        side[2] = [f"  ds_read2_b32 a[{EOP}:{EOP+1}], v{vE} offset0:0 offset1:1"]
        side[7] = ["  s_waitcnt vmcnt(0)"]
        side[8] = [f"  ds_read_b128 {Xb(t,0)}, v{vXA}", f"  ds_read_b128 {Xb(t,1)}, v{vXA+1}"]
        side[9] = [f"  ds_read_b128 {Xb(t,2)}, v{vXA+2}", f"  ds_read_b128 {Xb(t,3)}, v{vXA+3}"]
    if OPT["prio"] == 2: a("  s_setprio 0")
    for p_ in pre: a(p_)
    ti = 0
    for i, m in enumerate(M):
        a(m)
        for s_ in side[i]: a(s_)
        n = 3 if i < 9 else 32 - ti
        for _ in range(n):
            a(T[ti]); ti += 1
    if OPT["prio"] == 2: a("  s_setprio 1")

def tile_code(a, par):
    for ct in range(2):
        k = 2*par + ct
        t_unit(a, k)
        a(f"  s_bitcmp1_b32 s{sF}, s{sTau}\n  s_cbranch_scc0 K2_PN{k}")
        p_unit(a, k, True)
        a(f"  s_branch K2_PE{k}\nK2_PN{k}:")
        p_unit(a, k, False)
        a(f"K2_PE{k}:")
    a(f"""  s_add_u32 s{sTau}, s{sTau}, 1
  s_cmp_ge_u32 s{sTau}, s{sN}
  s_cbranch_scc1 K2_LAST
  s_bitcmp1_b32 s{sF}, s{sTau}
  s_cbranch_scc0 K2_NF{par}""")
    flush(a)
    for g in range(4): a(f"  v_mov_b32 v{vNAc+g}, v{vNAn+g}")
    next_group(a)
    ord_read(a)
    a(f"""K2_NF{par}:
  s_add_u32 s{sTmp}, s{sTau}, 1
  s_bitcmp1_b32 s{sF}, s{sTmp}
  s_cbranch_scc0 K2_NM{par}""")
    m_event(a)
    a(f"K2_NM{par}:")

def gen_k2(a):
    ld = OPT["ld_flags"]
    NPF = OPT["npf"]
    R = lambda k: 40 + 4*k
    A4 = lambda k: 104 + k
    OF, VA = 120, 128
    WR = 136
    vTid, vLane, vOne = 4, 5, 6
    vL1, vL2, vBase, vMx = 20, 21, 22, 23
    a(f"""
.globl main_kernel
.p2align 8
.type main_kernel,@function
main_kernel:
  s_cmp_ge_u32 s2, 256
  s_cbranch_scc1 K2_END
  s_load_dwordx8 s[28:35], s[0:1], 64       ; w_v out dbg ws
  s_load_dwordx2 s[4:5], s[0:1], 0          ; x
  s_load_dwordx8 s[36:43], s[0:1], 32       ; w_a w_b w_c w_u
  v_lshrrev_b32 v{vT0}, 6, v0
  v_mov_b32 v{vTid}, v0
  v_readfirstlane_b32 s{sW}, v{vT0}
  v_and_b32 v{vLane}, 63, v0
@CPF2@
@S0@
  v_lshrrev_b32 v{vT1}, 4, v0
  v_lshlrev_b32 v{vT2}, 5, v{vT1}           ; G*32
  s_and_b32 s{sB}, s2, 7
  s_lshl_b32 s{sB}, s{sB}, 5
  s_lshr_b32 s{sTmp}, s2, 3
  s_or_b32 s{sB}, s{sB}, s{sTmp}
  s_lshl_b32 s{sTmp}, s{sB}, 10
  s_add_u32 s{sTmp}, s{sTmp}, {OFFS}
  s_mov_b32 s{sOFF+2}, {NP*4}
  s_mov_b32 s{sOFF+3}, 0x20000
  s_mov_b32 s{sSB}, 0
  s_mov_b32 s{sSW}, 32
  s_mov_b32 s{sFirstB}, 1
  v_and_b32 v{vT0}, 31, v{vLane}            ; n / m
  v_lshrrev_b32 v{vT1}, 5, v{vLane}         ; h
  v_lshlrev_b32 v{vN4}, 2, v{vT0}
  v_lshl_add_u32 v{vK}, v{vT1}, 12, v{vN4}
  s_and_b32 s{sTmp2}, s{sW}, 1
  s_lshl_b32 s{sTmp2}, s{sTmp2}, 11
  v_add_u32 v{vK}, s{sTmp2}, v{vK}
  s_waitcnt lgkmcnt(0)
  s_add_u32 s{sOFF}, s34, s{sTmp}
  s_addc_u32 s{sOFF+1}, s35, 0
  s_and_b32 s{sOFF+1}, s{sOFF+1}, 0xffff
  buffer_load_dwordx4 v[{OF}:{OF+3}], v{vT2}, s[{sOFF}:{sOFF+3}], 0 offen
  buffer_load_dwordx4 v[{OF+4}:{OF+7}], v{vT2}, s[{sOFF}:{sOFF+3}], 0 offen offset:16
  s_mov_b32 s96, s34
  s_mov_b32 s97, s35
  s_mov_b32 s{sXR}, s4
  s_and_b32 s{sXR+1}, s5, 0xffff
  s_mov_b32 s{sXR+2}, 3200000
  s_mov_b32 s{sXR+3}, 0x20000
  s_mov_b32 s{sOUT}, s30
  s_and_b32 s{sOUT+1}, s31, 0xffff
  s_mov_b32 s{sOUT+2}, 3200000
  s_mov_b32 s{sOUT+3}, 0x20000
  s_mov_b32 s{sREC}, s34
  s_and_b32 s{sREC+1}, s35, 0xffff
  s_mov_b32 s{sREC+2}, {NP*RECB}
  s_mov_b32 s{sREC+3}, 0x20000
  s_lshr_b32 s{sTmp}, s{sW}, 1
  s_cmp_eq_u32 s{sTmp}, 0
  s_cselect_b32 s{sWM}, s38, s28
  s_cselect_b32 s{sWM+1}, s39, s29
  s_cmp_eq_u32 s{sTmp}, 2
  s_cselect_b32 s{sWM}, s36, s{sWM}
  s_cselect_b32 s{sWM+1}, s37, s{sWM+1}
  s_cmp_eq_u32 s{sTmp}, 3
  s_cselect_b32 s{sWM}, s42, s{sWM}
  s_cselect_b32 s{sWM+1}, s43, s{sWM+1}
""")
    for j in range(16):
        a(f"  global_load_dword v{WR+j}, v{vK}, s[{sWM}:{sWM+1}] offset:{128*j}")
    for j in range(4):
        a(f"  global_load_dword v{BEV+(0,1,4,5)[j]}, v{vN4}, s[40:41] offset:{128*j}")
    a(f"""
  v_lshrrev_b32 v{vT2}, 3, v{vLane}
  v_lshlrev_b32 v{vT2}, 15, v{vT2}          ; (l>>3)*256*128
  v_and_b32 v{vT3}, 7, v{vLane}
  v_lshrrev_b32 v{vE}, 4, v{vLane}
  v_xor_b32 v{vT3}, v{vT3}, v{vE}
  v_lshl_add_u32 v{vE}, v{vT3}, 4, v{vT2}
  v_xor_b32 v{vT3}, 4, v{vT3}
  v_lshl_add_u32 v{vEs}, v{vT3}, 4, v{vT2}
  s_lshl_b32 s{sTmp}, s{sW}, 19             ; 16w rows * 32768
  s_lshl_b32 s{sTmp2}, s{sB}, 7
  s_add_u32 s{sTmp}, s{sTmp}, s{sTmp2}
  s_add_u32 s{sTmp2}, s{sTmp}, {8*32768}
  s_lshl_b32 s{sM0}, s{sW}, 11
  s_add_u32 m0, s{sM0}, {XO}
  s_nop 0
  buffer_load_dwordx4 v{vE}, s[{sXR}:{sXR+3}], s{sTmp} offen lds
  s_add_u32 m0, s{sM0}, {XO+1024}
  s_nop 0
  buffer_load_dwordx4 v{vEs}, s[{sXR}:{sXR+3}], s{sTmp2} offen lds
""")
    for i in range(8):
        a(f"  s_mov_b32 s{sSeg+i}, {i*RECB}")
    a(f"""
  v_mov_b32 v40, 0
  v_mov_b32 v41, 0
  v_mov_b32 v42, 0
  v_mov_b32 v43, 0
  v_lshrrev_b32 v{vT2}, 5, v{vTid}
  v_mul_u32_u24 v{vT2}, {ROWB}, v{vT2}
  v_lshl_add_u32 v{vT2}, v{vT0}, 4, v{vT2}
  v_add_u32 v{vT2}, {NODE+256}, v{vT2}
  v_add_u32 v{vT3}, {4*16*ROWB}, v{vT2}
""")
    for k in range(7):
        t = vT2 if k < 4 else vT3
        a(f"  ds_write_b128 v{t}, v[40:43] offset:{(k&3)*16*ROWB}")
    a(f"""
K2_RESET:
  v_mov_b32 v40, 0
  v_mov_b32 v41, 0
  v_mov_b32 v42, 0
  v_mov_b32 v43, 0
  v_mov_b32 v{vOne}, 1
  v_lshlrev_b32 v{vT2}, 4, v{vTid}
  v_cmp_gt_u32 vcc, {(MISC+64-CNT)//16}, v{vTid}
  s_and_saveexec_b64 s[{sSave}:{sSave+1}], vcc
  ds_write_b128 v{vT2}, v[40:43] offset:{CNT}
  s_mov_b64 exec, s[{sSave}:{sSave+1}]
  v_and_b32 v{vT0}, 15, v{vTid}
  v_add_u32 v{vT1}, 16, v{vT0}
  v_mov_b32 v{vT3}, 0xffff
  v_cmp_gt_u32 vcc, s{sSW}, v{vT0}
  v_add_u32 v{vT2}, s{sSB}, v{vT0}
  s_nop 0
  v_cndmask_b32 v{vL1}, v{vT3}, v{vT2}, vcc
  v_cmp_gt_u32 vcc, s{sSW}, v{vT1}
  v_add_u32 v{vT1}, s{sSB}, v{vT1}
  s_nop 0
  v_cndmask_b32 v{vL2}, v{vT3}, v{vT1}, vcc
  v_mul_u32_u24 v{vT2}, 12, v{vT2}
  v_lshrrev_b32 v{vT1}, 4, v{vTid}
  s_mov_b32 s{sTmp}, {8*RECB}
  v_mad_u32_u24 v{vBase}, v{vT1}, s{sTmp}, v{vT2}
  s_cmp_eq_u32 s{sFirstB}, 1
  s_cbranch_scc1 K2_OFW
  v_lshlrev_b32 v{vT2}, 5, v{vT1}
  buffer_load_dwordx4 v[{OF}:{OF+3}], v{vT2}, s[{sOFF}:{sOFF+3}], 0 offen
  buffer_load_dwordx4 v[{OF+4}:{OF+7}], v{vT2}, s[{sOFF}:{sOFF+3}], 0 offen offset:16
  s_waitcnt vmcnt(0)
K2_OFW:
@S2@
  s_waitcnt vmcnt(22)
@S3@
""")
    for i in range(8):
        a(f"  v_add_u32_sdwa v{VA+i}, v{OF+i}, v{vBase} dst_sel:DWORD dst_unused:UNUSED_PAD src0_sel:WORD_0 src1_sel:DWORD")
        a(f"  v_cmp_lt_u32_sdwa s[{sM1+2*i}:{sM1+2*i+1}], v{vL1}, v{OF+i} src0_sel:DWORD src1_sel:WORD_1")
        a(f"  s_mov_b64 exec, s[{sM1+2*i}:{sM1+2*i+1}]")
        a(f"  buffer_load_dwordx3 v[{R(i)}:{R(i)+2}], v{VA+i}, s[{sREC}:{sREC+3}], s{sSeg+i} offen {ld}")
        a("  s_mov_b64 exec, -1")
    for i in range(8):
        a(f"  v_cmp_lt_u32_sdwa s[{sM2+2*i}:{sM2+2*i+1}], v{vL2}, v{OF+i} src0_sel:DWORD src1_sel:WORD_1")
    for i in range(8):
        a(f"  s_mov_b64 exec, s[{sM2+2*i}:{sM2+2*i+1}]")
        a(f"  buffer_load_dwordx3 v[{R(8+i)}:{R(8+i)+2}], v{VA+i}, s[{sREC}:{sREC+3}], s{sSeg+i} offen offset:192 {ld}")
    a(f"""
  s_mov_b64 exec, -1
  s_lshr_b32 s{sTmp}, s2, 3
  s_mul_i32 s{sTmp}, s{sTmp}, 100096
  v_lshlrev_b32 v{vT2}, 7, v{vTid}
  s_add_u32 s{sTmp2}, s{sTmp}, 65536
""")
    for k in range(NPF):
        a(f"  buffer_load_dword a{X+k}, v{vT2}, s[{sXR}:{sXR+3}], s{sTmp if k == 0 else sTmp2} offen")
    a(f"""
  v_max3_u32 v{vT2}, v{OF}, v{OF+1}, v{OF+2}
  v_max3_u32 v{vT3}, v{OF+3}, v{OF+4}, v{OF+5}
  v_max3_u32 v{vT2}, v{OF+6}, v{OF+7}, v{vT2}
  v_max_u32 v{vT2}, v{vT2}, v{vT3}
  v_lshrrev_b32 v{vMx}, 16, v{vT2}
  s_cmp_eq_u32 s{sFirstB}, 0
  s_cbranch_scc1 K2_NOA
  s_mov_b32 s{sPsel0}, 0x05040100
  s_mov_b32 s{sPsel1}, 0x07060302
  s_mov_b32 s{sCur}, {NLOG2E:#x}
  s_waitcnt vmcnt({4+2+16+NPF})
  s_cmp_lt_u32 s{sW}, 2
  s_cbranch_scc1 K2_PKS
""")
    for s in range(2):
        for ct in range(2):
            for jj in range(4):
                a(f"  v_perm_b32 v{104+8*s+4*ct+jj}, v{WR+8*s+2*jj+1}, v{WR+8*s+2*jj}, s{sPsel0+ct}")
    a("  s_branch K2_PKD\nK2_PKS:")
    for j in range(16):
        a(f"  v_lshlrev_b32 v{120+(j&7)}, 16, v{WR+j}")
        a(f"  v_and_b32 v{WR+j}, 0xffff0000, v{WR+j}")
        a(f"  v_mul_f32 v{120+(j&7)}, s{sCur}, v{120+(j&7)}")
        a(f"  v_mul_f32 v{WR+j}, s{sCur}, v{WR+j}")
        if j & 1:
            s, jj = j >> 3, (j & 7) >> 1
            a(f"  v_cvt_pk_bf16_f32 v{104+8*s+jj}, v{120+(j&7)-1}, v{120+(j&7)}")
            a(f"  v_cvt_pk_bf16_f32 v{104+8*s+4+jj}, v{WR+j-1}, v{WR+j}")
    a(f"""K2_PKD:
  s_lshl_b32 s{sTmp}, s{sW}, 12
  s_add_u32 s{sTmp2}, s{sTmp}, {RING}
  s_add_u32 s{sTmp}, s{sTmp}, {IMA-16384}
  s_cmp_lt_u32 s{sW}, 4
  s_cselect_b32 s{sTmp}, s{sTmp2}, s{sTmp}
  v_lshlrev_b32 v{vK}, 4, v{vLane}
  v_add_u32 v{vT2}, s{sTmp}, v{vK}
""")
    for q in range(4):
        a(f"  ds_write_b128 v{vT2}, v[{104+4*q}:{107+4*q}] offset:{1024*q}")
    a(f"  s_waitcnt vmcnt({2+16+NPF})")
    src = [BEV, BEV+1, BEV+4, BEV+5]
    for j in range(4):
        a(f"  v_lshlrev_b32 v{120+j}, 16, v{src[j]}")
        a(f"  v_and_b32 v{124+j}, 0xffff0000, v{src[j]}")
        a(f"  v_mul_f32 v{120+j}, s{sCur}, v{120+j}")
        a(f"  v_mul_f32 v{124+j}, s{sCur}, v{124+j}")
    a(f"""
  v_cvt_pk_bf16_f32 v{BEV}, v120, v121
  v_cvt_pk_bf16_f32 v{BEV+1}, v122, v123
  v_cvt_pk_bf16_f32 v{BEV+4}, v124, v125
  v_cvt_pk_bf16_f32 v{BEV+5}, v126, v127
  s_mov_b32 s{sSave}, 0
  s_mov_b32 s{sSave+1}, -1
  s_mov_b64 exec, s[{sSave}:{sSave+1}]
  v_mov_b32 v{BEV}, 0x71800000
  v_mov_b32 v{BEV+1}, 0
  v_mov_b32 v{BEV+4}, 0x71800000
  v_mov_b32 v{BEV+5}, 0
  s_mov_b64 exec, -1
  v_and_b32 v{vT0}, 31, v{vLane}
  v_lshrrev_b32 v{vT1}, 5, v{vLane}
  v_lshlrev_b32 v{vOrd}, 4, v{vT1}
  v_add_u32 v{vOrd}, {ORDA}, v{vOrd}
  v_cmp_eq_u32 vcc, 0, v{vT1}
  v_mov_b32 v{vT2}, 0x3f80
  v_mov_b32 v{vT3}, 0
  v_cndmask_b32 v{vT2}, v{vT3}, v{vT2}, vcc
  v_accvgpr_write_b32 a{ONE}, v{vT2}
  v_accvgpr_write_b32 a{ONE+1}, v{vT3}
  v_mov_b32 v{vT2}, 128
  v_mov_b32 v{vT3}, 256
  v_cndmask_b32 v{vEs}, v{vT2}, v{vT3}, vcc
  v_lshlrev_b32 v{vT2}, 3, v{vT0}
  v_add_u32 v{vT3}, {K0}, v{vN4}
  v_cndmask_b32 v{vEb}, v{vT3}, v{vT2}, vcc
  v_lshrrev_b32 v{vT2}, 3, v{vLane}
  v_lshlrev_b32 v{vKb}, 4, v{vT2}
  v_add_u32 v{vKb}, {K0}, v{vKb}
  v_bfe_u32 v{vT2}, v{vT0}, 2, 1
  v_cmp_eq_u32 vcc, v{vT2}, v{vT1}
  v_bfe_u32 v{vT2}, v{vT0}, 3, 1
  v_lshlrev_b32 v{vT2}, 4, v{vT2}
  v_mov_b32 v{vT3}, 0x3f80
  v_lshlrev_b32 v{vT3}, v{vT2}, v{vT3}
  v_cndmask_b32 v{vT3}, 0, v{vT3}, vcc
  v_cmp_gt_u32 vcc, 16, v{vT0}
  s_nop 1
  v_cndmask_b32 v{vT2}, 0, v{vT3}, vcc
  v_cndmask_b32 v{vT3}, v{vT3}, 0, vcc
  v_accvgpr_write_b32 a{EOP+2}, v{vT2}
  v_accvgpr_write_b32 a{EOP+3}, v{vT3}
  v_and_b32 v{vT2}, 7, v{vLane}
  v_bfe_u32 v{vT3}, v{vLane}, 4, 1
  v_lshlrev_b32 v{vT3}, 2, v{vT3}
  v_xor_b32 v{vT2}, v{vT2}, v{vT3}
""")
    for i in range(4):
        a(f"  v_xor_b32 v{vC+i}, {i}, v{vT2}\n  v_lshlrev_b32 v{vC+i}, 4, v{vC+i}")
    a(f"""
  v_bfe_u32 v{vT2}, v{vT0}, 1, 3
  v_lshlrev_b32 v{vT3}, 2, v{vT1}
  v_xor_b32 v{vT2}, v{vT2}, v{vT3}
  s_lshr_b32 s{sTmp}, s{sW}, 1
  s_lshl_b32 s{sTmp}, s{sTmp}, 12
  v_lshlrev_b32 v{vT3}, 7, v{vT0}
  v_add_u32 v{vT3}, s{sTmp}, v{vT3}
""")
    for s in range(4):
        a(f"  v_xor_b32 v{s}, {s}, v{vT2}\n  v_lshl_add_u32 v{s}, v{s}, 4, v{vT3}")
    a(f"""
  s_and_b32 s{sTmp}, s{sW}, 1
  s_lshl_b32 s{sTmp}, s{sTmp}, 13
  s_add_u32 s{sTmp}, s{sTmp}, {IMA}
  v_add_u32 v{vT2}, s{sTmp}, v{vK}
  v_add_u32 v{vE}, {RING}, v{vK}
  s_waitcnt vmcnt({16+NPF}) lgkmcnt(0)
@S4@
  s_barrier
""")
    for s in range(4):
        a(f"  ds_read_b128 {Xb(1,s)}, v{s} offset:{XO}")
    for q in range(8):
        a(f"  ds_read_b128 {ar(4*q,4)}, v{vT2} offset:{1024*q}")
    for q in range(8):
        a(f"  ds_read_b128 {ar(32+4*q,4)}, v{vE} offset:{8192+1024*q}")
    a(f"""
  s_lshr_b32 s{sTmp}, s{sW}, 1
  s_mul_i32 s{sTmp}, s{sTmp}, {32*ROWB}
  s_and_b32 s{sTmp2}, s{sW}, 1
  s_cselect_b32 s{sCur}, 1.0, s{sCur}
  s_lshl_b32 s{sTmp2}, s{sTmp2}, 7
  s_add_u32 s{sTmp}, s{sTmp}, s{sTmp2}
  s_add_u32 s{sTmp}, s{sTmp}, {NODE}
  v_mul_u32_u24 v{vT3}, {4*ROWB}, v{vT1}
  v_add3_u32 v{vT3}, v{vT3}, v{vN4}, s{sTmp}
  s_waitcnt lgkmcnt(8)
""")
    for s in range(4):
        for ct in range(2):
            a(mfma16(104+16*ct, Xb(1,s), ar((s*2+ct)*4,4), g16(104+16*ct) if s else "0"))
    a(f"""
  s_lshl_b32 s{sM0}, s{sW}, 12
  s_add_u32 s{sM0}, s{sM0}, {RING}
  v_and_b32 v{vT2}, 3, v{vT0}
  v_bfe_u32 v{vK}, v{vT0}, 3, 1
  v_xor_b32 v{vK}, v{vK}, v{vT1}
  v_lshl_or_b32 v{vK}, v{vK}, 2, v{vT2}
  v_lshlrev_b32 v{vT2}, 10, v{vT2}
  v_lshrrev_b32 v{vT0}, 2, v{vT0}
  v_lshl_add_u32 v{vT2}, v{vT0}, 7, v{vT2}
  v_add_u32 v{vT2}, s{sM0}, v{vT2}
""")
    for s in range(4):
        a(f"  v_xor_b32 v{vXA+s}, {s}, v{vK}\n  v_lshl_add_u32 v{vXA+s}, v{vXA+s}, 4, v{vT2}")
    for q in range(8):
        a(f"  ds_read_b128 {ar(4*q,4)}, v{vE} offset:{1024*q}")
    for r in range(16):
        a(f"  v_mul_f32 v{104+r}, s{sCur}, v{104+r}")
        a(f"  v_mul_f32 v{120+r}, s{sCur}, v{120+r}")
        a(f"  v_cvt_pk_bf16_f32 v{104+r}, v{104+r}, v{120+r}")
        a(f"  ds_write_b32 v{vT3}, v{104+r} offset:{(8*(r>>2)+(r&3))*ROWB}")
    a(f"""
  s_branch K2_RANK
K2_NOA:
  s_waitcnt lgkmcnt(0)
  s_barrier
K2_RANK:
  v_mov_b32 v{vT2}, {MISC}
  s_mov_b32 s{sSave}, 0x00010001
  s_mov_b32 s{sSave+1}, 0x00010001
  s_mov_b64 exec, s[{sSave}:{sSave+1}]
  ds_max_u32 v{vT2}, v{vMx}
@S5@
  s_waitcnt vmcnt({8+NPF})
@S6@
""")
    def msk(k): return (sM1 + 2*k) if k < 8 else (sM2 + 2*(k-8))
    for k in range(16):
        if k == 8: a(f"  s_waitcnt vmcnt({NPF})")
        a(f"  s_mov_b64 exec, s[{msk(k)}:{msk(k)+1}]")
        if k >= 8: a(f"  s_cbranch_execz K2_RS{k}")
        a(f"  v_lshrrev_b32 v{A4(k)}, 16, v{R(k)+2}")
        a(f"  ds_add_rtn_u32 v{R(k)+3}, v{A4(k)}, v{vOne} offset:{CNT}")
        if k >= 8: a(f"K2_RS{k}:")
    a(f"""  s_mov_b64 exec, -1
  s_waitcnt lgkmcnt(0)
  s_barrier
@S7@
  s_cmp_lg_u32 s{sW}, 0
  s_cbranch_scc1 K2_FILL""")
    c0, c1, q0, q1, b0, b1, p0, p1, hv, ex, e0, e1, m0_, m1_, t0_, t1_, u0, u1, l4 = range(120, 139)
    a(f"""
  v_lshlrev_b32 v{l4}, 2, v{vLane}
  ds_read2st64_b32 v[{c0}:{c1}], v{l4} offset0:{CNT//256} offset1:{CNT//256+1}
  s_waitcnt lgkmcnt(0)
  v_add_u32 v{q0}, 3, v{c0}
  v_add_u32 v{q1}, 3, v{c1}
  v_lshrrev_b32 v{q0}, 2, v{q0}
  v_lshrrev_b32 v{q1}, 2, v{q1}
  v_min_u32 v{b0}, 63, v{q0}
  v_min_u32 v{b1}, 63, v{q1}
  v_sub_u32 v{b0}, 63, v{b0}
  v_sub_u32 v{b1}, 63, v{b1}
  v_lshlrev_b32 v{b0}, 2, v{b0}
  v_lshlrev_b32 v{b1}, 2, v{b1}
  ds_add_rtn_u32 v{p0}, v{b0}, v{vOne} offset:{HIST}
  ds_add_rtn_u32 v{p1}, v{b1}, v{vOne} offset:{HIST}
  ds_read_b32 v{hv}, v{l4} offset:{HIST}
  v_lshl_or_b32 v{q0}, v{q0}, 8, v{vLane}
  v_add_u32 v{u1}, 64, v{vLane}
  v_lshl_or_b32 v{q1}, v{q1}, 8, v{u1}
  s_waitcnt lgkmcnt(0)
  v_mov_b32 v{ex}, v{hv}
""")
    dpp_scan(a, ex)
    a(f"""
  v_sub_u32 v{ex}, v{ex}, v{hv}
  ds_bpermute_b32 v{u0}, v{b0}, v{ex}
  ds_bpermute_b32 v{u1}, v{b1}, v{ex}
  s_waitcnt lgkmcnt(0)
  v_add_lshl_u32 v{u0}, v{u0}, v{p0}, 2
  v_add_lshl_u32 v{u1}, v{u1}, v{p1}, 2
  ds_write_b32 v{u0}, v{q0} offset:{ORDQ}
  ds_write_b32 v{u1}, v{q1} offset:{ORDQ}
  ds_read2st64_b32 v[{e0}:{e1}], v{l4} offset0:{ORDQ//256} offset1:{ORDQ//256+1}
  s_waitcnt lgkmcnt(0)
  v_mov_b32 v{m0_}, v{e0}
  v_mov_b32 v{m1_}, v{e1}
""")
    for mode in ("quad_perm:[1,0,3,2]", "quad_perm:[2,3,0,1]", "row_half_mirror"):
        a(f"  s_nop 0\n  v_max_u32_dpp v{m0_}, v{m0_}, v{m0_} {mode} row_mask:0xf bank_mask:0xf")
        a(f"  v_max_u32_dpp v{m1_}, v{m1_}, v{m1_} {mode} row_mask:0xf bank_mask:0xf")
    a(f"""
  v_lshrrev_b32 v{m0_}, 8, v{m0_}
  v_lshrrev_b32 v{m1_}, 8, v{m1_}
  v_mov_b32 v{t0_}, v{m0_}
  v_mov_b32 v{t1_}, v{m1_}
""")
    for mode in ("row_shr:8 row_mask:0xf", "row_bcast:15 row_mask:0xa", "row_bcast:31 row_mask:0xc"):
        a(f"  s_nop 0\n  v_add_u32_dpp v{t0_}, v{t0_}, v{t0_} {mode} bank_mask:0xf")
        a(f"  v_add_u32_dpp v{t1_}, v{t1_}, v{t1_} {mode} bank_mask:0xf")
    a(f"""
  s_nop 0
  v_readlane_b32 s{sTmp}, v{t0_}, 63
  v_sub_u32 v{t0_}, v{t0_}, v{m0_}
  v_sub_u32 v{m1_}, v{t1_}, v{m1_}
  v_add_u32 v{t1_}, s{sTmp}, v{t1_}
  v_add_u32 v{m1_}, s{sTmp}, v{m1_}
  v_and_b32 v{u0}, 7, v{vLane}
  v_lshlrev_b32 v{u1}, 4, v{u0}
  v_lshl_add_u32 v{p0}, v{t0_}, 7, v{u1}
  v_lshl_add_u32 v{p1}, v{m1_}, 7, v{u1}
  v_and_b32 v{e0}, 0xff, v{e0}
  v_and_b32 v{e1}, 0xff, v{e1}
  v_lshlrev_b32 v{c0}, 2, v{e0}
  v_lshlrev_b32 v{c1}, 2, v{e1}
  ds_write_b32 v{c0}, v{p0} offset:{NB}
  ds_write_b32 v{c1}, v{p1} offset:{NB}
  v_lshrrev_b32 v{u0}, 1, v{vLane}
  v_add_u32 v{u0}, {TSV}, v{u0}
  s_mov_b32 s{sSave}, 0x01010101
  s_mov_b32 s{sSave+1}, 0x01010101
  s_mov_b64 exec, s[{sSave}:{sSave+1}]
  ds_write2_b32 v{u0}, v{t0_}, v{m1_} offset0:0 offset1:8
  s_mov_b32 s{sSave}, 0
  s_mov_b32 s{sSave+1}, 0x80000000
  s_mov_b64 exec, s[{sSave}:{sSave+1}]
  v_mov_b32 v{u1}, {TSV+64}
  ds_write_b32 v{u1}, v{t1_}
  s_mov_b64 exec, -1
  v_min_u32 v{e0}, 98, v{e0}
  v_min_u32 v{e1}, 98, v{e1}
  v_mov_b32 v{c0}, {NODE}
  s_mov_b32 s{sTmp}, {ROWB}
  v_mad_u32_u24 v{e0}, v{e0}, s{sTmp}, v{c0}
  v_mad_u32_u24 v{e1}, v{e1}, s{sTmp}, v{c0}
  v_and_b32 v{c0}, 1, v{vLane}
  v_lshlrev_b32 v{c0}, 4, v{c0}
  v_bfe_u32 v{c1}, v{vLane}, 1, 2
  v_lshl_add_u32 v{c0}, v{c1}, 2, v{c0}
  v_and_b32 v{c1}, 56, v{vLane}
  v_lshl_add_u32 v{c0}, v{c1}, 2, v{c0}
  v_add_u32 v{c0}, {ORDA}, v{c0}
  ds_write2st64_b32 v{c0}, v{e0}, v{e1} offset0:0 offset1:1
  s_branch K2_PRE
K2_FILL:
  v_mov_b32 v120, 1.0
  v_mov_b32 v121, 1.0
  v_mov_b32 v122, 1.0
  v_mov_b32 v123, 1.0
  v_subrev_u32 v{vT2}, 64, v{vTid}
  v_lshlrev_b32 v{vT2}, 4, v{vT2}
""")
    for k in range(6):
        a(f"  ds_write_b128 v{vT2}, v[120:123] offset:{7168*k}")
    a(f"""  v_cmp_gt_u32 vcc, {49152-6*7168}, v{vT2}
  s_and_saveexec_b64 s[{sSave}:{sSave+1}], vcc
  ds_write_b128 v{vT2}, v[120:123] offset:{7168*6}
  s_mov_b64 exec, -1
K2_PRE:
  s_mov_b32 s{sTmp}, -28
""")
    for k in range(16):
        if k >= 8: a(f"  s_cmp_eq_u64 s[{msk(k)}:{msk(k)+1}], 0\n  s_cbranch_scc1 K2_PS{k}")
        a(f"  v_and_b32 v{vT0}, 3, v{R(k)+3}")
        a(f"  v_lshlrev_b32 v{R(k)+3}, 5, v{R(k)+3}")
        a(f"  v_mad_i32_i24 v{R(k)+3}, v{vT0}, s{sTmp}, v{R(k)+3}")
        a(f"  v_and_b32 v{R(k)+2}, 0x7fff, v{R(k)+2}")
        if k >= 8: a(f"K2_PS{k}:")
    a(f"""
  v_min_u32 v{vT0}, 16, v{vLane}
  v_lshlrev_b32 v{vT0}, 2, v{vT0}
  v_mov_b32 v{vT1}, {MISC}
  s_waitcnt lgkmcnt(0)
@S8@
  s_barrier
@S9@
  ds_read_b32 v{vTSV}, v{vT0} offset:{TSV}
  ds_read_b32 v{vT2}, v{vT1}
""")
    for k in range(16):
        a(f"  s_mov_b64 exec, s[{msk(k)}:{msk(k)+1}]")
        if k >= 8: a(f"  s_cbranch_execz K2_NS{k}")
        a(f"  ds_read_b32 v{A4(k)}, v{A4(k)} offset:{NB}")
        if k >= 8: a(f"K2_NS{k}:")
        if k == 7:
            a(f"""  s_mov_b64 exec, -1
  s_waitcnt lgkmcnt(8)
  v_readlane_b32 s{sT}, v{vTSV}, 16
  v_readfirstlane_b32 s{sMaxC}, v{vT2}
  s_cmp_le_u32 s{sT}, {CAPT}
  s_cbranch_scc1 K2_FIT
  s_lshr_b32 s{sSW}, s{sSW}, 1
  s_mov_b32 s{sFirstB}, 0
  s_waitcnt lgkmcnt(0)
  s_barrier
  s_branch K2_RESET
K2_FIT:""")
    a("  s_waitcnt lgkmcnt(0)")
    for k in range(16):
        a(f"  s_mov_b64 exec, s[{msk(k)}:{msk(k)+1}]")
        if k >= 8: a(f"  s_cbranch_execz K2_WS{k}")
        a(f"  v_add_u32 v{A4(k)}, v{A4(k)}, v{R(k)+3}")
        a(f"  v_lshlrev_b32 v{R(k)+3}, 1, v{A4(k)}")
        a(f"  ds_write_b32 v{A4(k)}, v{R(k)+2} offset:{K0}")
        a(f"  ds_write_b64 v{R(k)+3}, v[{R(k)}:{R(k)+1}] offset:{EA0}")
        if k >= 8: a(f"K2_WS{k}:")
    a(f"""
  s_mov_b64 exec, -1
  s_mul_i32 s{sT0}, s{sT}, s{sW}
  s_add_u32 s{sT1}, s{sT0}, s{sT}
  s_lshr_b32 s{sT0}, s{sT0}, 3
  s_lshr_b32 s{sT1}, s{sT1}, 3
  v_cmp_ge_u32 vcc, s{sT0}, v{vTSV}
  s_and_b32 s{sTmp}, vcc_lo, 0xffff
  s_bcnt1_i32_b32 s{sG0}, s{sTmp}
  s_sub_u32 s{sG0}, s{sG0}, 1
  v_cmp_gt_u32 vcc, s{sT1}, v{vTSV}
  s_and_b32 s{sTmp}, vcc_lo, 0xffff
  s_bcnt1_i32_b32 s{sGlast}, s{sTmp}
  s_sub_u32 s{sGlast}, s{sGlast}, 1
  s_add_u32 s{sTmp}, s{sG0}, 1
  v_readlane_b32 s{sTmp2}, v{vTSV}, s{sG0}
  v_readlane_b32 s{sTn}, v{vTSV}, s{sTmp}    ; TS[g0+1]
  s_sub_u32 s{sN}, s{sT1}, s{sT0}
  s_mov_b32 s{sCont}, 0
  s_mov_b32 s{sSlow}, 0
  s_mov_b32 s{sGn}, s{sG0}
  s_mov_b32 s{sCur}, s{sT0}
  s_mov_b32 s{sF}, 1
  s_cmp_eq_u32 s{sN}, 0
  s_cbranch_scc1 K2_FMD
  s_cmp_eq_u32 s{sTmp2}, s{sT0}
  s_cbranch_scc1 K2_FM
  s_mov_b32 s{sCont}, 1
  s_cmp_lt_u32 s{sTn}, s{sT1}
  s_cbranch_scc0 K2_ALLC
  s_add_u32 s{sGn}, s{sG0}, 1
  s_mov_b32 s{sCur}, s{sTn}
  s_sub_u32 s{sTmp}, s{sT1}, s{sCur}
  s_bitset1_b32 s{sF}, s{sTmp}
  s_branch K2_FM
K2_ALLC:
  s_cmp_gt_u32 s{sTn}, s{sT1}
  s_cselect_b32 s{sSlow}, 1, 0
K2_FM:
  s_mov_b32 s{sTau}, s{sGn}
K2_FML:
  s_cmp_ge_u32 s{sTau}, s{sGlast}
  s_cbranch_scc1 K2_FMD
  s_add_u32 s{sTau}, s{sTau}, 1
  s_nop 3
  v_readlane_b32 s{sTmp}, v{vTSV}, s{sTau}
  s_sub_u32 s{sTmp}, s{sTmp}, s{sCur}
  s_bitset1_b32 s{sF}, s{sTmp}
  s_branch K2_FML
K2_FMD:
  s_lshl_b32 s{sTmp}, s{sCur}, 7
  v_add_u32 v{vK}, s{sTmp}, v{vKb}
  v_mad_u32_u24 v{vE}, v{vEs}, s{sCur}, v{vEb}
""")
    for l in next_tile(sTn, sCur): a(l)
    a(f"""
  s_waitcnt lgkmcnt(0)
  s_barrier
@S10@
  s_cmp_eq_u32 s{sN}, 0
  s_cbranch_scc1 K2_LOOPDONE
  ds_read_b128 v[{vI}:{vI+3}], v{vK}
""")
    ord_read(a)
    a(f"""  ds_read2_b32 a[{EOP}:{EOP+1}], v{vE} offset0:0 offset1:1
  s_lshl_b32 s{sTmp}, s{sTn}, 7
  v_add_u32 v{vK}, s{sTmp}, v{vKb}
  s_mov_b32 m0, s{sM0}
  s_waitcnt lgkmcnt(2)""")
    for i in range(4): a(la(i))
    for i in range(4):
        a(dma(i))
        if i < 3: a(f"  s_add_u32 m0, s{sM0}, {1024*(i+1)}\n  s_nop 0")
    a(f"  ds_read_b128 v[{vI}:{vI+3}], v{vK}")
    m_event(a)
    for g in range(4): a(f"  v_mov_b32 v{vNAc+g}, v{vNAn+g}")
    next_group(a)
    ord_read(a)
    for i in range(4): a(la(i))
    a(f"  v_mad_u32_u24 v{vE}, v{vEs}, s{sTn}, v{vEb}")
    for l in next_tile(sTn2, sTn): a(l)
    a(f"""  s_lshl_b32 s{sTmp}, s{sTn2}, 7
  v_add_u32 v{vK}, s{sTmp}, v{vKb}
  s_mov_b32 s{sTn}, s{sTn2}
  s_waitcnt vmcnt(0)""")
    for s in range(4): a(f"  ds_read_b128 {Xb(0,s)}, v{vXA+s}")
    a(mfma16(Gb(0), Eo, BEo(0), "0"))
    a(mfma16(Gb(1), Eo, BEo(1), "0"))
    a(f"  s_mov_b32 m0, s{sM0}\n  s_waitcnt lgkmcnt(0)")
    a(f"  ds_read2_b32 a[{EOP}:{EOP+1}], v{vE} offset0:0 offset1:1")
    for i in range(4):
        a(dma(i))
        if i < 3: a(f"  s_add_u32 m0, s{sM0}, {1024*(i+1)}")
        a(mfma16(Gb(0), Xb(0,i), wb(i,0), g16(Gb(0))))
    a(f"  ds_read_b128 v[{vI}:{vI+3}], v{vK}")
    for i in range(4):
        a(mfma16(Gb(1), Xb(0,i), wb(i,1), g16(Gb(1))))
    a(f"  s_bitcmp1_b32 s{sF}, 1\n  s_cbranch_scc0 K2_FNM")
    m_event(a)
    a("K2_FNM:\n  s_nop 7")
    for i in range(16): a(f"  v_exp_f32 v{Gb(0)+i}, v{Gb(0)+i}")
    a(f"  s_mov_b32 s{sTau}, 0\n  s_waitcnt vmcnt(0)")
    a(mfma8(Gb(0), ON, ON, g16(Gb(0))))
    for s in range(4): a(f"  ds_read_b128 {Xb(1,s)}, v{vXA+s}")
    a("K2_LOOP:")
    tile_code(a, 0)
    tile_code(a, 1)
    a(f"""  s_branch K2_LOOP
K2_LAST:
  s_setprio 0
  s_cmp_lg_u32 s{sCont}, 0
  s_cbranch_scc1 K2_LOOPDONE""")
    flush(a)
    a(f"""
K2_LOOPDONE:
@S11@
  s_add_u32 s{sSB}, s{sSB}, s{sSW}
  v_mbcnt_lo_u32_b32 v{vLane}, -1, 0
  v_mbcnt_hi_u32_b32 v{vLane}, -1, v{vLane}
  s_lshl_b32 s{sTmp}, s{sW}, 6
  v_add_u32 v{vTid}, s{sTmp}, v{vLane}
  s_lshl_b32 s{sTmp}, s{sW}, 12
  s_add_u32 s{sTmp}, s{sTmp}, s{sB}
  s_lshl_b32 s{sTmp}, s{sTmp}, 7
  v_lshrrev_b32 v{vT1}, 5, v{vLane}
  v_lshlrev_b32 v{vE}, 17, v{vT1}
  v_add3_u32 v{vE}, v{vE}, v{vN4}, s{sTmp}
  s_waitcnt vmcnt(0)
  s_cmp_gt_u32 s{sMaxC}, s{sSB}
  s_cbranch_scc1 K2_NOFL
""")
    for rr in range(8):
        a(f"  s_mov_b32 s{sSeg+rr}, {(8*(rr>>2)+(rr&3))*32768}")
        a(f"  buffer_load_dword v{G+rr}, v{vE}, s[{sXR}:{sXR+3}], s{sSeg+rr} offen")
    a(f"""
K2_NOFL:
  s_cmp_eq_u32 s{sSlow}, 0
  s_cbranch_scc1 K2_NSL
  v_mov_b32 v{vT0}, {MISC+4}
  v_mov_b32 v{vT1}, 1
  ds_write_b32 v{vT0}, v{vT1}
K2_NSL:
  s_waitcnt lgkmcnt(0)
  s_barrier
  v_mov_b32 v{vT0}, {MISC+4}
  ds_read_b32 v{vT1}, v{vT0}
  s_waitcnt lgkmcnt(0)
  v_readfirstlane_b32 s{sSlow}, v{vT1}
  s_mov_b32 s{sTau}, 1
K2_MERGE:
  s_cmp_eq_u32 s{sCont}, 0
  s_cbranch_scc1 K2_MSKIP
  s_cmp_eq_u32 s{sSlow}, 0
  s_cbranch_scc1 K2_MDO
  s_cmp_lg_u32 s{sTau}, s{sW}
  s_cbranch_scc1 K2_MSKIP
K2_MDO:
""")
    flush(a)
    a(f"""
K2_MSKIP:
  s_waitcnt lgkmcnt(0)
  s_barrier
  s_cmp_eq_u32 s{sSlow}, 0
  s_cbranch_scc1 K2_MEND
  s_add_u32 s{sTau}, s{sTau}, 1
  s_cmp_lt_u32 s{sTau}, 8
  s_cbranch_scc1 K2_MERGE
K2_MEND:
@S12@
  s_mov_b32 s{sFirstB}, 0
  s_cmp_gt_u32 s{sMaxC}, s{sSB}
  s_cbranch_scc1 K2_RESET
  s_mul_i32 s{sTmp}, s{sW}, {16*ROWB}
  s_add_u32 s{sTmp}, s{sTmp}, {NODE}
  v_lshrrev_b32 v{vT1}, 5, v{vLane}
  v_mul_u32_u24 v{vT1}, {4*ROWB}, v{vT1}
  v_add3_u32 v{vT1}, v{vT1}, v{vN4}, s{sTmp}
  v_add_u32 v{vT2}, 128, v{vT1}
""")
    for rr in range(8):
        ro = 3 * (8*(rr>>2) + (rr&3))
        a(f"  ds_read2st64_b32 v[{AC+4*rr}:{AC+4*rr+1}], v{vT1} offset0:{ro+1} offset1:{ro+2}")
        a(f"  ds_read2st64_b32 v[{AC+4*rr+2}:{AC+4*rr+3}], v{vT2} offset0:{ro+1} offset1:{ro+2}")
        a(f"  ds_read_b32 v{HV+rr}, v{vT2} offset:{ro*256}")
    a(f"  s_mov_b32 s{sTmp}, 0x358637bd")
    for rr in range(8):
        a(f"  s_waitcnt lgkmcnt({min(15, 3*(7-rr))})")
        for ct in range(2):
            d = AC + 4*rr + 2*ct + 1
            a(f"  v_add_f32 v{d}, s{sTmp}, v{d}")
        for ct in range(2):
            d = AC + 4*rr + 2*ct + 1
            a(f"  v_rcp_f32 v{d}, v{d}")
        a(f"  v_lshlrev_b32 v{HV+8+rr}, 16, v{HV+rr}")
        a(f"  v_and_b32 v{HV+rr}, 0xffff0000, v{HV+rr}")
    a("  s_waitcnt vmcnt(0)")
    for rr in range(8):
        n0, n1 = AC + 4*rr, AC + 4*rr + 2
        a(f"  v_fma_f32 v{n0}, v{n0}, v{n0+1}, v{HV+8+rr}")
        a(f"  v_fma_f32 v{n1}, v{n1}, v{n1+1}, v{HV+rr}")
        a(f"  v_lshlrev_b32 v{n0+1}, 16, v{G+rr}")
        a(f"  v_and_b32 v{n1+1}, 0xffff0000, v{G+rr}")
        a(f"  v_max_f32 v{n0}, 0, v{n0}")
        a(f"  v_max_f32 v{n1}, 0, v{n1}")
        a(f"  v_add_f32 v{n0}, v{n0}, v{n0+1}")
        a(f"  v_add_f32 v{n1}, v{n1}, v{n1+1}")
        a(f"  v_cvt_pk_bf16_f32 v{n0}, v{n0}, v{n1}")
        a(f"  buffer_store_dword v{n0}, v{vE}, s[{sOUT}:{sOUT+3}], s{sSeg+rr} offen")
    a("@S13@\n@S15@\n@OUT2@\nK2_END:\n  s_endpgm")

def kd(name, vgpr, accum, sgpr):
    return f"""
.amdhsa_kernel {name}
  .amdhsa_next_free_vgpr {vgpr}
  .amdhsa_next_free_sgpr {sgpr}
  .amdhsa_accum_offset {accum}
  .amdhsa_group_segment_fixed_size 0
  .amdhsa_kernarg_size 96
  .amdhsa_user_sgpr_count 2
  .amdhsa_user_sgpr_kernarg_segment_ptr 1
  .amdhsa_system_sgpr_workgroup_id_x 1
  .amdhsa_float_denorm_mode_32 3
.end_amdhsa_kernel
"""

def main():
    ref = open(f"cdna_kernels/{NAME}.s.ref").read().split("\n")
    hdr = [l for l in ref if l.startswith(";") and "@launch" not in l and "Override" not in l and "grid=ceil" not in l]
    a = Asm()
    a("\n".join(hdr))
    a(f"; @launch kernel=part_kernel grid=({NP},1,1) block=(800,1,1) lds={LDS1}")
    a(f"; @launch kernel=main_kernel grid=(256,1,1) block=(512,1,1) lds={LDS2}")
    a('.amdgcn_target "amdgcn-amd-amdhsa--gfx950"\n.text')
    gen_k1(a)
    gen_k2(a)
    a('.section .rodata,"a"\n.p2align 6')
    st = OPT["stamp"]
    a(kd("part_kernel", 60, 60, 100) if st else kd("part_kernel", 56, 56, 32))
    a(".p2align 6")
    a(kd("main_kernel", NARCH + NACC, NARCH, 100))
    txt = a.text()
    SL = MISC + 64
    cpf2 = cpf1 = ""
    if OPT["cpf"] & 1:
        cpf2 = f"""  s_getpc_b64 s[98:99]
  v_lshlrev_b32 v39, 6, v0
  s_mov_b64 exec, 0xffffffff
  global_load_dword a0, v39, s[98:99]
  s_mov_b64 exec, -1
"""
        cpf2 = f"""  s_getpc_b64 s[98:99]
CPF2L:
  v_lshlrev_b32 v39, 5, v0
  v_min_u32 v39, K2_END-CPF2L, v39
  global_load_dword a0, v39, s[98:99]
"""
    if OPT["cpf"] & 2:
        cpf1 = f"""  s_getpc_b64 s[26:27]
CPF1L:
  v_lshlrev_b32 v40, 5, v0
  v_min_u32 v40, K2_END-CPF1L, v40
  global_load_dword v55, v40, s[26:27]
"""
    txt = txt.replace("@CPF2@\n", cpf2).replace("@CPF1@\n", cpf1)
    def sub(m):
        if not st: return ""
        b = Asm(); k = m.group(1); i = m.group(2)
        if k == "OUT":
            if i == "2":
                b(f"""  s_lshl_b32 s99, s{sW}, 6
  s_add_u32 s99, s99, {SL}
  v_mbcnt_lo_u32_b32 v37, -1, 0
  v_lshlrev_b32 v37, 2, v37
  v_add_u32 v37, s99, v37
  ds_read_b32 v36, v37
  s_waitcnt lgkmcnt(0)""")
                stamp_out(b, 96, sW, STAMP_OFF, 36, 37, 8)
            else: stamp_out(b, 20, 23, STAMP_OFF + 0x100000, 56, 57, 16)
        else:
            i = int(i)
            if k == "TW": b("  s_waitcnt vmcnt(0)")
            def one(idx, real=False):
                if k == "S":
                    d = 150 if idx == 4 else 38
                    b(f"""  s_mem{'real' if real else ''}time s[98:99]
  s_waitcnt lgkmcnt(0)
  v_mov_b32 v{d}, s98
  s_lshl_b32 s99, s{sW}, 6
  s_add_u32 s99, s99, {SL + 4*idx}
  v_mov_b32 v39, s99
  ds_write_b32 v39, v{d}""")
                else: stamp(b, idx, 56, real=real)
            if i == 0: one(0); one(1, True)
            elif i == 15: one(15, True)
            else: one(i)
        return b.text()
    txt = re.sub(r"@(S|TW|T|OUT)(\d+)@\n", sub, txt)
    lines = txt.split("\n")
    for p in check_hazards(lines): print("HAZARD", p)
    b = Asm()
    for rep in range(2):
        for k in range(4):
            t_unit(b, k); p_unit(b, k, rep == 0)
            if k & 1: flush(b); m_event(b)
    for k in range(4):
        t_unit(b, k); p_unit(b, k, False)
    for k in range(2):
        t_unit(b, k); p_unit(b, k, False)
    for p in check_hazards(b.text().split("\n"), "loop"): print("HAZARD", p)
    open(sys.argv[1], "w").write(txt)

if __name__ == "__main__":
    main()
```

```python
import sys, re
from asmlib import *

NAME = "gather_scatter__edge_featured_mpnn_gatedgcn__graph"
NP, CH = 250, 3200
RECB = CH * 12
OFFS = 0xA00000
IMG = OFFS + 0x40000
NLOG2E = 0xBFB8AA3B
CAPT = 128
EA0, K0 = 0, 32768
CNT, NB, HIST, ORDQ, ORDA, TSV, MISC = 49152, 49664, 50176, 50432, 50944, 51456, 51584
RING = 52224
NODE = RING + 8 * 4096
ROWB = 768
LDS2 = NODE + 99 * ROWB
XO, IMA = RING + 16384, 16384
K1_CNT, K1_START = 38400, 39424
LDS1 = 40448
STAMP_OFF = 0x1000000

OPT = dict(st_flags="", ld_flags="", npf=0, stamp=0, prio=2, dbg=-1, dbgw=0, nodma=0, cpf=0, k1late=2)
for a_ in sys.argv[2:]:
    k_, v_ = a_.split("=", 1)
    OPT[k_] = int(v_) if v_.lstrip("-").isdigit() else v_.replace("+", " ")

def stamp(a, idx, vreg, s=98, real=False):
    a(f"  s_mem{'real' if real else ''}time s[{s}:{s+1}]\n  s_waitcnt lgkmcnt(0)\n  v_writelane_b32 v{vreg}, s{s}, {idx}")
def stamp_out(a, ws, wave, base, vreg, tmp, wpw):
    a(f"""  s_mul_i32 s98, s2, {wpw}
  s_add_u32 s98, s98, s{wave}
  s_lshl_b32 s98, s98, 6
  s_add_u32 s98, s98, {base}
  v_mbcnt_lo_u32_b32 v{tmp}, -1, 0
  v_lshlrev_b32 v{tmp}, 2, v{tmp}
  v_add_u32 v{tmp+1}, s98, v{tmp}
  s_mov_b64 exec, 0xffff
  global_store_dword v{tmp+1}, v{vreg}, s[{ws}:{ws+1}]""")
    if OPT["dbg"] >= 0:
        a(f"""  s_cmp_lg_u32 s2, {OPT["dbg"]}
  s_cbranch_scc1 DBGX{vreg}
  s_cmp_lg_u32 s{wave}, {OPT["dbgw"]}
  s_cbranch_scc1 DBGX{vreg}
  s_load_dwordx2 s[98:99], s[0:1], 80
  s_waitcnt lgkmcnt(0)
  global_store_dword v{tmp}, v{vreg}, s[98:99]
DBGX{vreg}:""")

def dpp_scan(a, v):
    for m in ("row_shr:1", "row_shr:2", "row_shr:4", "row_shr:8"):
        a(f"  s_nop 1\n  v_add_u32_dpp v{v}, v{v}, v{v} {m} row_mask:0xf bank_mask:0xf")
    a(f"  s_nop 1\n  v_add_u32_dpp v{v}, v{v}, v{v} row_bcast:15 row_mask:0xa bank_mask:0xf")
    a(f"  s_nop 1\n  v_add_u32_dpp v{v}, v{v}, v{v} row_bcast:31 row_mask:0xc bank_mask:0xf")

def gen_k1(a):
    st = OPT["st_flags"]
    a(f"""
.globl part_kernel
.p2align 8
.type part_kernel,@function
part_kernel:
  s_cmp_ge_u32 s2, {NP}
  s_cbranch_scc1 K1_PACK
  s_load_dwordx2 s[8:9], s[0:1], 24
  s_load_dwordx4 s[4:7], s[0:1], 8
  s_load_dwordx2 s[20:21], s[0:1], 88
  v_lshrrev_b32 v33, 6, v0
  v_lshlrev_b32 v1, 4, v0
  v_readfirstlane_b32 s23, v33
@CPF1@
@T0@
  s_mul_i32 s22, s2, {CH*4}
  v_add_u32 v2, s22, v1
  v_lshlrev_b32 v3, 1, v2
  v_mov_b32 v32, 1
  v_mov_b32 v36, 0
  v_mov_b32 v37, 0
  v_mov_b32 v38, 0
  v_mov_b32 v39, 0
  s_cmp_lg_u32 s23, 0
  s_cbranch_scc1 K1_A
  ds_write_b128 v1, v[36:39] offset:{K1_CNT}
K1_A:
  s_waitcnt lgkmcnt(0)
  global_load_dwordx4 v[4:7], v2, s[8:9]
""")
    late = """  global_load_dwordx4 v[8:11], v2, s[6:7]
  global_load_dwordx4 v[12:15], v3, s[4:5]
  global_load_dwordx4 v[16:19], v3, s[4:5] offset:16"""
    if OPT["k1late"] == 0: a(late)
    a("  s_barrier\n@T2@")
    if OPT["k1late"] == 1: a(late)
    a(f"  s_waitcnt vmcnt({0 if OPT['k1late'] == 2 else 3})\n@T3@")
    if OPT["k1late"] == 2: a(late)
    for k in range(4):
        a(f"  v_lshlrev_b32_sdwa v{20+k}, 2, v{4+k} dst_sel:DWORD dst_unused:UNUSED_PAD src0_sel:DWORD src1_sel:BYTE_0")
    for k in range(4):
        a(f"  ds_add_rtn_u32 v{24+k}, v{20+k}, v32 offset:{K1_CNT}")
    a(f"""
  s_waitcnt lgkmcnt(0)
  s_barrier
  s_cmp_lg_u32 s23, 0
  s_cbranch_scc1 K1_B
  ds_read_b128 v[36:39], v1 offset:{K1_CNT}
  s_waitcnt lgkmcnt(0)
  v_add_u32 v41, v36, v37
  v_add_u32 v42, v41, v38
  v_add_u32 v43, v42, v39
  v_mov_b32 v44, v43
""")
    dpp_scan(a, 44)
    a(f"""
  v_sub_u32 v45, v44, v43
  v_add_u32 v47, v45, v36
  v_add_u32 v48, v45, v41
  v_add_u32 v49, v45, v42
  v_mul_u32_u24 v46, 12, v45
  v_mul_u32_u24 v47, 12, v47
  v_mul_u32_u24 v48, 12, v48
  v_mul_u32_u24 v49, 12, v49
  ds_write_b128 v1, v[46:49] offset:{K1_START}
  v_lshl_or_b32 v50, v36, 16, v46
  v_lshl_or_b32 v51, v37, 16, v47
  v_lshl_or_b32 v52, v38, 16, v48
  v_lshl_or_b32 v53, v39, 16, v49
  s_lshl_b32 s24, s2, 2
  s_add_u32 s24, s24, {OFFS}
  v_lshlrev_b32 v54, 12, v0
  v_add_u32 v54, s24, v54
  global_store_dword v54, v50, s[20:21] {st}
  global_store_dword v54, v51, s[20:21] offset:1024 {st}
  global_store_dword v54, v52, s[20:21] offset:2048 {st}
  global_store_dword v54, v53, s[20:21] offset:3072 {st}
K1_B:
  s_mul_i32 s22, s2, {RECB}
  v_add_u32 v2, s22, v1
  v_add_u32 v3, {12800}, v2
  v_add_u32 v34, {25600}, v2
""")
    for k in range(4):
        a(f"  v_lshrrev_b32 v{4+k}, 8, v{4+k}")
    a(f"""
  s_waitcnt lgkmcnt(0)
  s_barrier
@T4@
""")
    for k in range(4):
        a(f"  ds_read_b32 v{28+k}, v{20+k} offset:{K1_START}")
    a("  s_waitcnt vmcnt(2)")
    for k in range(4):
        a(f"  v_lshl_or_b32 v{8+k}, v{4+k}, 18, v{8+k}")
    for k in range(4):
        a(f"  s_waitcnt lgkmcnt({3-k})")
        a(f"  v_mad_u32_u24 v{28+k}, v{24+k}, 12, v{28+k}")
    for k in range(4):
        a(f"  ds_write_b32 v{28+k}, v{8+k} offset:8")
    a("  s_waitcnt vmcnt(0)")
    for k in range(4):
        a(f"  ds_write2_b32 v{28+k}, v{12+2*k}, v{13+2*k} offset0:0 offset1:1")
    a(f"""
  s_waitcnt lgkmcnt(0)
  s_barrier
  ds_read_b128 v[8:11], v1
  ds_read_b128 v[12:15], v1 offset:12800
  ds_read_b128 v[16:19], v1 offset:25600
  s_waitcnt lgkmcnt(2)
  global_store_dwordx4 v2, v[8:11], s[20:21] {st}
  s_waitcnt lgkmcnt(1)
  global_store_dwordx4 v3, v[12:15], s[20:21] {st}
  s_waitcnt lgkmcnt(0)
  global_store_dwordx4 v34, v[16:19], s[20:21] {st}
@T5@
@TW6@
@T15@
@OUT1@
  s_endpgm
K1_PACK:
  s_cmp_ge_u32 s2, {NP+5}
  s_cbranch_scc1 K1_END
  s_load_dwordx2 s[10:11], s[0:1], 32
  s_load_dwordx8 s[12:19], s[0:1], 40
  s_load_dwordx2 s[20:21], s[0:1], 88
  v_lshrrev_b32 v33, 6, v0
  s_nop 0
  v_readfirstlane_b32 s23, v33
  s_cmp_ge_u32 s23, 4
  s_cbranch_scc1 K1_END
  s_waitcnt lgkmcnt(0)
  v_and_b32 v2, 31, v0
  v_bfe_u32 v3, v0, 5, 1
  v_and_b32 v34, 63, v0
  s_cmp_eq_u32 s2, {NP+4}
  s_cbranch_scc1 K1_PACKC
  s_mov_b32 s24, s12
  s_mov_b32 s25, s13
  s_mov_b32 s26, {NLOG2E:#x}
  s_cmp_eq_u32 s2, {NP}
  s_cbranch_scc1 K1_P1
  s_mov_b32 s26, 1.0
  s_mov_b32 s24, s18
  s_mov_b32 s25, s19
  s_cmp_eq_u32 s2, {NP+1}
  s_cbranch_scc1 K1_P1
  s_mov_b32 s24, s10
  s_mov_b32 s25, s11
  s_cmp_eq_u32 s2, {NP+2}
  s_cbranch_scc1 K1_P1
  s_mov_b32 s24, s16
  s_mov_b32 s25, s17
K1_P1:
  v_lshlrev_b32 v4, 12, v3
  v_lshl_add_u32 v4, v2, 2, v4
  s_lshl_b32 s27, s23, 10
  v_add_u32 v4, s27, v4
""")
    for j in range(8):
        a(f"  global_load_dword v{8+j}, v4, s[24:25] offset:{128*j}")
    a("  s_waitcnt vmcnt(0)")
    for j in range(8):
        a(f"  v_lshlrev_b32 v{16+j}, 16, v{8+j}")
        a(f"  v_and_b32 v{24+j}, 0xffff0000, v{8+j}")
        a(f"  v_mul_f32 v{16+j}, s26, v{16+j}")
        a(f"  v_mul_f32 v{24+j}, s26, v{24+j}")
    for jj in range(4):
        a(f"  v_cvt_pk_bf16_f32 v{36+jj}, v{16+2*jj}, v{17+2*jj}")
        a(f"  v_cvt_pk_bf16_f32 v{40+jj}, v{24+2*jj}, v{25+2*jj}")
    a(f"""
  s_sub_u32 s27, s2, {NP}
  s_lshl_b32 s27, s27, 2
  s_add_u32 s27, s27, s23
  s_lshl_b32 s27, s27, 11
  s_add_u32 s27, s27, {IMG}
  v_lshlrev_b32 v5, 4, v34
  v_add_u32 v5, s27, v5
  global_store_dwordx4 v5, v[36:39], s[20:21] {st}
  global_store_dwordx4 v5, v[40:43], s[20:21] offset:1024 {st}
  s_endpgm
K1_PACKC:
  s_cmp_lg_u32 s23, 0
  s_cbranch_scc1 K1_END
  v_lshlrev_b32 v4, 2, v2
  s_mov_b32 s26, {NLOG2E:#x}
""")
    for j in range(4):
        a(f"  global_load_dword v{8+j}, v4, s[14:15] offset:{128*j}")
    a("  s_waitcnt vmcnt(0)")
    for j in range(4):
        a(f"  v_lshlrev_b32 v{16+j}, 16, v{8+j}")
        a(f"  v_and_b32 v{24+j}, 0xffff0000, v{8+j}")
        a(f"  v_mul_f32 v{16+j}, s26, v{16+j}")
        a(f"  v_mul_f32 v{24+j}, s26, v{24+j}")
    a(f"""
  v_cvt_pk_bf16_f32 v36, v16, v17
  v_cvt_pk_bf16_f32 v37, v18, v19
  v_cvt_pk_bf16_f32 v38, v24, v25
  v_cvt_pk_bf16_f32 v39, v26, v27
  v_cmp_eq_u32 vcc, 0, v3
  v_mov_b32 v40, 0x71800000
  v_mov_b32 v41, 0
  v_cndmask_b32 v36, v40, v36, vcc
  v_cndmask_b32 v37, v41, v37, vcc
  v_cndmask_b32 v38, v40, v38, vcc
  v_cndmask_b32 v39, v41, v39, vcc
  v_lshlrev_b32 v5, 4, v34
  v_add_u32 v5, {IMG+32768}, v5
  global_store_dwordx4 v5, v[36:39], s[20:21] {st}
K1_END:
  s_endpgm
""")

vXA = 0
vI = 4
vC = 8
vEs, vEb, vE, vKb, vK = 12, 13, 14, 15, 16
vN4, vTSV, vOrd = 17, 18, 19
vNAc, vNAn = 20, 24
BEV = 28
vT0, vT1, vT2, vT3 = 36, 37, 38, 39
G, HV, AC = 40, 104, 120
NARCH = 152
WB, WV, EOP, ONE, X = 0, 32, 64, 68, 70
NACC = 102
sXR, sOUT, sREC, sOFF, sWM = 8, 12, 16, 20, 24
sM1, sM2, sSeg = 28, 44, 60
sW, sSB, sSW, sFirstB, sT, sT0, sT1, sTn, sTn2, sTau, sN, sF, sGn, sGlast, sCont, sG0, sM0, sMaxC, sTmp, sTmp2, sCur, sSlow, sPsel0, sPsel1, sB = range(68, 93)
sSave = 94
sKA = 4

def mfma16(d, A, B, C):
    return f"  v_mfma_f32_32x32x16_bf16 v[{d}:{d+15}], {A}, {B}, {C}"
def mfma8(d, A, B, C):
    return f"  v_mfma_f32_32x32x8_bf16 v[{d}:{d+15}], {A}, {B}, {C}"
g16 = lambda d: f"v[{d}:{d+15}]"
pr = lambda r: f"v[{r}:{r+1}]"
Gb = lambda k: G + 16*(k % 4)
Xb = lambda t, s: ar(X + 16*(t % 2) + 4*s, 4)
wb = lambda s, ct: ar(WB+(s*2+ct)*4, 4)
wv = lambda s, ct: ar(WV+(s*2+ct)*4, 4)
Eo = ar(EOP, 4); ON = ar(ONE, 2)
BEo = lambda ct: vr(BEV+4*ct, 4)

def flush_st(a):
    for q in range(8):
        r = AC + q*4
        a(f"  v_add_f32 v{r}, v{r}, v{r+1}")
        a(f"  v_add_f32 v{r+2}, v{r+2}, v{r+3}")
    for ct in range(2):
        for g in range(4):
            r = AC + (ct*4+g)*4
            a(f"  ds_write2_b32 v{vNAc+g}, v{r}, v{r+2} offset0:{64+32*ct} offset1:{128+32*ct}")
def flush_own(a, tag):
    a(f"  s_cmp_eq_u32 s{sFirstB}, 0\n  s_cbranch_scc1 K2_FR{tag}")
    flush_st(a)
    a(f"  s_branch K2_FE{tag}\nK2_FR{tag}:")
    flush(a)
    a(f"K2_FE{tag}:")
def m_event1(a):
    a("  s_waitcnt lgkmcnt(0)")
    for g in range(4): a(f"  v_add_u32 v{vNAn+g}, v{vNAn+g}, v{vN4}")
    for g in range(4): a(f"  ds_read_b32 v{vT0+g}, v{vNAn+g}")
def m_event2(a):
    for ct in range(2):
        for i in range(2):
            a(f"  v_perm_b32 v{BEV+4*ct+2+i}, v{vT0+2*i+1}, v{vT0+2*i}, s{sPsel0+ct}")

def flush(a):
    for ct in range(2):
        for g in range(4):
            t = HV + (ct*4+g)*2
            a(f"  ds_read2_b32 v[{t}:{t+1}], v{vNAc+g} offset0:{64+32*ct} offset1:{128+32*ct}")
    for q in range(8):
        r = AC + q*4
        a(f"  v_add_f32 v{r}, v{r}, v{r+1}")
        a(f"  v_add_f32 v{r+2}, v{r+2}, v{r+3}")
    a("  s_waitcnt lgkmcnt(0)")
    for q in range(8):
        r = AC + q*4; t = HV + q*2
        a(f"  v_add_f32 v{r}, v{r}, v{t}")
        a(f"  v_add_f32 v{r+2}, v{r+2}, v{t+1}")
    for ct in range(2):
        for g in range(4):
            r = AC + (ct*4+g)*4
            a(f"  ds_write2_b32 v{vNAc+g}, v{r}, v{r+2} offset0:{64+32*ct} offset1:{128+32*ct}")

def next_tile(dst, src):
    return [f"  s_add_u32 s{dst}, s{src}, 1", f"  s_cmp_eq_u32 s{dst}, s{sT1}", f"  s_cselect_b32 s{dst}, s{sT0}, s{dst}"]

def dma(i):
    if OPT["nodma"]: return "  s_nop 0"
    return f"  buffer_load_dwordx4 v{vI+i}, s[{sXR}:{sXR+3}], 0 offen lds"
def la(i):
    return f"  v_lshl_add_u32 v{vI+i}, v{vI+i}, 7, v{vC+i}"

def ord_read(a):
    a(f"  s_lshl_b32 s{sTmp}, s{sGn}, 5\n  v_add_u32 v{vT0}, s{sTmp}, v{vOrd}\n  ds_read_b128 v[{vNAn}:{vNAn+3}], v{vT0}")
def next_group(a):
    a(f"  s_add_u32 s{sTmp}, s{sGn}, 1\n  s_cmp_lt_u32 s{sGn}, s{sGlast}\n  s_cselect_b32 s{sGn}, s{sTmp}, s{sG0}")
def m_event(a):
    a("  s_waitcnt lgkmcnt(0)")
    for g in range(4): a(f"  v_add_u32 v{vNAn+g}, v{vNAn+g}, v{vN4}")
    for g in range(4): a(f"  ds_read_b32 v{vT0+g}, v{vNAn+g}")
    a("  s_waitcnt lgkmcnt(0)")
    for ct in range(2):
        for i in range(2):
            a(f"  v_perm_b32 v{BEV+4*ct+2+i}, v{vT0+2*i+1}, v{vT0+2*i}, s{sPsel0+ct}")

def p_unit(a, k, first):
    ct = k & 1
    for half in range(2):
        for gq in range(4):
            e = Gb(k) + 4*gq; h = HV + 4*gq; r = AC + (ct*4+gq)*4
            if first:
                if half == 0:
                    a(f"  v_pk_mul_f32 {pr(r)}, {pr(e)}, {pr(h)}")
                    a(f"  v_pk_add_f32 {pr(r+2)}, {pr(e)}, {pr(e+2)}")
                else:
                    a(f"  v_pk_fma_f32 {pr(r)}, {pr(e+2)}, {pr(h+2)}, {pr(r)}")
            else:
                a(f"  v_pk_fma_f32 {pr(r)}, {pr(e+2*half)}, {pr(h+2*half)}, {pr(r)}")
                a(f"  v_pk_add_f32 {pr(r+2)}, {pr(e+2*half)}, {pr(r+2)}")

def t_unit(a, k):
    t, ct = k >> 1, k & 1
    T = [f"  v_exp_f32 v{Gb(k+1)+i}, v{Gb(k+1)+i}" for i in range(16)] + [f"  v_rcp_f32 v{Gb(k)+i}, v{Gb(k)+i}" for i in range(16)]
    Hm = [mfma16(HV, Xb(t, s), wv(s, ct), g16(HV) if s else "0") for s in range(4)]
    d = Gb(k+2)
    Gm = [mfma16(d, Eo, BEo(ct), "0")] + [mfma16(d, Xb(t+1, s), wb(s, ct), g16(d)) for s in range(4)]
    A1 = mfma8(Gb(k+1), ON, ON, g16(Gb(k+1)))
    M = [Hm[0], Gm[0], Hm[1], Gm[1], Hm[2], Gm[2], A1, Hm[3], Gm[3], Gm[4]]
    side = [[] for _ in M]
    nt = next_tile(sTn2, sTn)
    if ct == 0:
        pre = ["  s_waitcnt lgkmcnt(0)", la(0), la(1)]
        side[0] = [f"  s_mov_b32 m0, s{sM0}", la(2), la(3)]
        side[1] = [dma(0), f"  s_add_u32 m0, s{sM0}, 1024"]
        side[2] = [dma(1), f"  s_add_u32 m0, s{sM0}, 2048"]
        side[3] = [dma(2), f"  s_add_u32 m0, s{sM0}, 3072"]
        side[4] = [dma(3), nt[0]]
        side[5] = [nt[1], nt[2]]
        side[7] = [f"  s_lshl_b32 s{sTmp}, s{sTn2}, 7", f"  v_add_u32 v{vK}, s{sTmp}, v{vKb}"]
        side[8] = [f"  ds_read_b128 v[{vI}:{vI+3}], v{vK}", f"  v_mad_u32_u24 v{vE}, v{vEs}, s{sTn}, v{vEb}"]
        side[9] = [f"  s_mov_b32 s{sTn}, s{sTn2}"]
    else:
        pre = []
        side[2] = [f"  ds_read2_b32 a[{EOP}:{EOP+1}], v{vE} offset0:0 offset1:1"]
        side[7] = ["  s_waitcnt vmcnt(0)"]
        side[8] = [f"  ds_read_b128 {Xb(t,0)}, v{vXA}", f"  ds_read_b128 {Xb(t,1)}, v{vXA+1}"]
        side[9] = [f"  ds_read_b128 {Xb(t,2)}, v{vXA+2}", f"  ds_read_b128 {Xb(t,3)}, v{vXA+3}"]
    if OPT["prio"] == 2: a("  s_setprio 0")
    for p_ in pre: a(p_)
    ti = 0
    for i, m in enumerate(M):
        a(m)
        for s_ in side[i]: a(s_)
        n = 3 if i < 9 else 32 - ti
        for _ in range(n):
            a(T[ti]); ti += 1
    if OPT["prio"] == 2: a("  s_setprio 1")

def tile_code(a, par):
    for ct in range(2):
        k = 2*par + ct
        t_unit(a, k)
        a(f"  s_bitcmp1_b32 s{sF}, s{sTau}\n  s_cbranch_scc0 K2_PN{k}")
        p_unit(a, k, True)
        a(f"  s_branch K2_PE{k}\nK2_PN{k}:")
        p_unit(a, k, False)
        a(f"K2_PE{k}:")
    a(f"""  s_add_u32 s{sTau}, s{sTau}, 1
  s_cmp_ge_u32 s{sTau}, s{sN}
  s_cbranch_scc1 K2_LAST
  s_bitcmp1_b32 s{sF}, s{sTau}
  s_cbranch_scc0 K2_NF{par}""")
    flush_own(a, par)
    for g in range(4): a(f"  v_mov_b32 v{vNAc+g}, v{vNAn+g}")
    next_group(a)
    ord_read(a)
    a(f"""K2_NF{par}:
  s_add_u32 s{sTmp}, s{sTau}, 1
  s_bitcmp1_b32 s{sF}, s{sTmp}
  s_cbranch_scc0 K2_NM{par}""")
    m_event(a)
    a(f"K2_NM{par}:")

def gen_k2(a):
    ld = OPT["ld_flags"]
    R = lambda k: 40 + 4*k
    A4 = lambda k: 104 + k
    OF, VA = 120, 128
    WR = 136
    vTid, vLane, vOne = 4, 5, 6
    vL1, vL2, vBase, vMx = 20, 21, 22, 23
    def msk(k): return (sM1 + 2*k) if k < 8 else (sM2 + 2*(k-8))
    a(f"""
.globl main_kernel
.p2align 8
.type main_kernel,@function
main_kernel:
  s_cmp_ge_u32 s2, 256
  s_cbranch_scc1 K2_END
  s_load_dwordx8 s[28:35], s[0:1], 64       ; w_v out dbg ws
  s_load_dwordx2 s[4:5], s[0:1], 0          ; x
  v_lshrrev_b32 v{vT0}, 6, v0
  v_mov_b32 v{vTid}, v0
  v_readfirstlane_b32 s{sW}, v{vT0}
  v_and_b32 v{vLane}, 63, v0
@CPF2@
@S0@
  v_lshrrev_b32 v{vT1}, 4, v0
  v_lshlrev_b32 v{vTSV}, 5, v{vT1}            ; G*32
  s_and_b32 s{sB}, s2, 7
  s_lshl_b32 s{sB}, s{sB}, 5
  s_lshr_b32 s{sTmp}, s2, 3
  s_or_b32 s{sB}, s{sB}, s{sTmp}
  s_lshl_b32 s{sTmp}, s{sB}, 10
  s_add_u32 s{sTmp}, s{sTmp}, {OFFS}
  s_mov_b32 s{sOFF+2}, {NP*4}
  s_mov_b32 s{sOFF+3}, 0x20000
  s_mov_b32 s{sSB}, 0
  s_mov_b32 s{sSW}, 32
  s_mov_b32 s{sFirstB}, 1
  v_and_b32 v{vT0}, 31, v{vLane}
  v_lshlrev_b32 v{vN4}, 2, v{vT0}
  v_mov_b32 v40, 0
  v_mov_b32 v41, 0
  v_mov_b32 v42, 0
  v_mov_b32 v43, 0
  v_lshrrev_b32 v{vT2}, 5, v{vTid}
  v_mul_u32_u24 v{vT2}, {ROWB}, v{vT2}
  v_lshl_add_u32 v{vT2}, v{vT0}, 4, v{vT2}
  v_add_u32 v{vT2}, {NODE+256}, v{vT2}
  v_add_u32 v{vT3}, {4*16*ROWB}, v{vT2}
""")
    for k in range(7):
        t = vT2 if k < 4 else vT3
        a(f"  ds_write_b128 v{t}, v[40:43] offset:{(k&3)*16*ROWB}")
    a(f"""
  v_lshlrev_b32 v{vT2}, 4, v{vTid}
  ds_write_b128 v{vT2}, v[40:43] offset:{EA0}
  ds_write_b128 v{vT2}, v[40:43] offset:{EA0+8192}
  s_waitcnt lgkmcnt(0)
  s_add_u32 s{sOFF}, s34, s{sTmp}
  s_addc_u32 s{sOFF+1}, s35, 0
  s_and_b32 s{sOFF+1}, s{sOFF+1}, 0xffff
  s_mov_b32 s96, s34
  s_mov_b32 s97, s35
  s_mov_b32 s{sXR}, s4
  s_and_b32 s{sXR+1}, s5, 0xffff
  s_mov_b32 s{sXR+2}, 3200000
  s_mov_b32 s{sXR+3}, 0x20000
  s_mov_b32 s{sOUT}, s30
  s_and_b32 s{sOUT+1}, s31, 0xffff
  s_mov_b32 s{sOUT+2}, 3200000
  s_mov_b32 s{sOUT+3}, 0x20000
  s_mov_b32 s{sREC}, s34
  s_and_b32 s{sREC+1}, s35, 0xffff
  s_mov_b32 s{sREC+2}, {NP*RECB}
  s_mov_b32 s{sREC+3}, 0x20000
  s_add_u32 s{sWM}, s34, {IMG}
  s_addc_u32 s{sWM+1}, s35, 0
  s_and_b32 s{sWM+1}, s{sWM+1}, 0xffff
  s_mov_b32 s{sWM+2}, {32768+1024}
  s_mov_b32 s{sWM+3}, 0x20000
  v_lshlrev_b32 v{vK}, 4, v{vLane}
  s_lshl_b32 s{sTmp}, s{sW}, 12
  s_add_u32 s{sTmp2}, s{sTmp}, {RING}
  s_add_u32 s{sN}, s{sTmp}, {IMA-16384}
  s_cmp_lt_u32 s{sW}, 4
  s_cselect_b32 m0, s{sTmp2}, s{sN}
  s_mov_b32 s{sN}, 32768
  buffer_load_dwordx4 v{vK}, s[{sWM}:{sWM+3}], s{sTmp} offen lds
  buffer_load_dwordx4 v{vK}, s[{sWM}:{sWM+3}], s{sTmp} offen offset:1024 lds
  buffer_load_dwordx4 v{vK}, s[{sWM}:{sWM+3}], s{sTmp} offen offset:2048 lds
  buffer_load_dwordx4 v{vK}, s[{sWM}:{sWM+3}], s{sTmp} offen offset:3072 lds
  buffer_load_dwordx2 v[{BEV}:{BEV+1}], v{vK}, s[{sWM}:{sWM+3}], s{sN} offen
  buffer_load_dwordx2 v[{BEV+4}:{BEV+5}], v{vK}, s[{sWM}:{sWM+3}], s{sN} offen offset:8
  v_lshrrev_b32 v{vT2}, 3, v{vLane}
  v_lshlrev_b32 v{vT2}, 15, v{vT2}
  v_and_b32 v{vT3}, 7, v{vLane}
  v_lshrrev_b32 v{vE}, 4, v{vLane}
  v_xor_b32 v{vT3}, v{vT3}, v{vE}
  v_lshl_add_u32 v{vE}, v{vT3}, 4, v{vT2}
  v_xor_b32 v{vT3}, 4, v{vT3}
  v_lshl_add_u32 v{vK}, v{vT3}, 4, v{vT2}
  s_lshl_b32 s{sTmp}, s{sW}, 19
  s_lshl_b32 s{sTmp2}, s{sB}, 7
  s_add_u32 s{sTmp}, s{sTmp}, s{sTmp2}
  s_add_u32 s{sTmp2}, s{sTmp}, {8*32768}
  s_lshl_b32 s{sN}, s{sW}, 11
  s_add_u32 m0, s{sN}, {XO}
  s_nop 0
  buffer_load_dwordx4 v{vE}, s[{sXR}:{sXR+3}], s{sTmp} offen lds
  s_add_u32 m0, s{sN}, {XO+1024}
  s_nop 0
  buffer_load_dwordx4 v{vK}, s[{sXR}:{sXR+3}], s{sTmp2} offen lds
@OFFS_B@
  s_mov_b32 s{sPsel0}, 0x05040100
  s_mov_b32 s{sPsel1}, 0x07060302
""")
    for i in range(8):
        a(f"  s_mov_b32 s{sSeg+i}, {i*RECB}")
    a(f"""
  v_lshrrev_b32 v{vT1}, 5, v{vLane}
  v_lshlrev_b32 v{vOrd}, 4, v{vT1}
  v_add_u32 v{vOrd}, {ORDA}, v{vOrd}
  v_cmp_eq_u32 vcc, 0, v{vT1}
  v_mov_b32 v{vT2}, 0x3f80
  v_mov_b32 v{vT3}, 0
  v_cndmask_b32 v{vT2}, v{vT3}, v{vT2}, vcc
  v_accvgpr_write_b32 a{ONE}, v{vT2}
  v_accvgpr_write_b32 a{ONE+1}, v{vT3}
  v_mov_b32 v{vT2}, 128
  v_mov_b32 v{vT3}, 256
  v_cndmask_b32 v{vEs}, v{vT2}, v{vT3}, vcc
  v_lshlrev_b32 v{vT2}, 3, v{vT0}
  v_add_u32 v{vT3}, {K0}, v{vN4}
  v_cndmask_b32 v{vEb}, v{vT3}, v{vT2}, vcc
  v_lshrrev_b32 v{vT2}, 3, v{vLane}
  v_lshlrev_b32 v{vKb}, 4, v{vT2}
  v_add_u32 v{vKb}, {K0}, v{vKb}
  v_bfe_u32 v{vT2}, v{vT0}, 2, 1
  v_cmp_eq_u32 vcc, v{vT2}, v{vT1}
  v_bfe_u32 v{vT2}, v{vT0}, 3, 1
  v_lshlrev_b32 v{vT2}, 4, v{vT2}
  v_mov_b32 v{vT3}, 0x3f80
  v_lshlrev_b32 v{vT3}, v{vT2}, v{vT3}
  v_cndmask_b32 v{vT3}, 0, v{vT3}, vcc
  v_cmp_gt_u32 vcc, 16, v{vT0}
  s_nop 1
  v_cndmask_b32 v{vT2}, 0, v{vT3}, vcc
  v_cndmask_b32 v{vT3}, v{vT3}, 0, vcc
  v_accvgpr_write_b32 a{EOP+2}, v{vT2}
  v_accvgpr_write_b32 a{EOP+3}, v{vT3}
  v_and_b32 v{vT2}, 7, v{vLane}
  v_bfe_u32 v{vT3}, v{vLane}, 4, 1
  v_lshlrev_b32 v{vT3}, 2, v{vT3}
  v_xor_b32 v{vT2}, v{vT2}, v{vT3}
""")
    for i in range(4):
        a(f"  v_xor_b32 v{vC+i}, {i}, v{vT2}\n  v_lshlrev_b32 v{vC+i}, 4, v{vC+i}")
    a(f"""
  v_bfe_u32 v{vT2}, v{vT0}, 1, 3
  v_lshlrev_b32 v{vT3}, 2, v{vT1}
  v_xor_b32 v{vT2}, v{vT2}, v{vT3}
  v_lshlrev_b32 v{vT3}, 7, v{vT0}
  v_add_u32 v{vT3}, {XO}, v{vT3}
""")
    for s_ in range(4):
        a(f"  v_xor_b32 v{24+s_}, {s_}, v{vT2}\n  v_lshl_add_u32 v{24+s_}, v{24+s_}, 4, v{vT3}")
    a(f"""
  s_lshl_b32 s{sM0}, s{sW}, 12
  s_add_u32 s{sM0}, s{sM0}, {RING}
  v_mul_u32_u24 v7, {4*ROWB}, v{vT1}
  v_add_u32 v7, v7, v{vN4}
  v_and_b32 v{vT2}, 3, v{vT0}
  v_bfe_u32 v{vK}, v{vT0}, 3, 1
  v_xor_b32 v{vK}, v{vK}, v{vT1}
  v_lshl_or_b32 v{vK}, v{vK}, 2, v{vT2}
  v_lshlrev_b32 v{vT2}, 10, v{vT2}
  v_lshrrev_b32 v{vT0}, 2, v{vT0}
  v_lshl_add_u32 v{vT2}, v{vT0}, 7, v{vT2}
  v_add_u32 v{vT2}, s{sM0}, v{vT2}
""")
    for s_ in range(4):
        a(f"  v_xor_b32 v{vXA+s_}, {s_}, v{vK}\n  v_lshl_add_u32 v{vXA+s_}, v{vXA+s_}, 4, v{vT2}")
    a(f"""
K2_RESET:
  v_mov_b32 v40, 0
  v_mov_b32 v41, 0
  v_mov_b32 v42, 0
  v_mov_b32 v43, 0
  v_mov_b32 v44, 1.0
  v_mov_b32 v45, 1.0
  v_mov_b32 v46, 1.0
  v_mov_b32 v47, 1.0
  v_mov_b32 v{vOne}, 1
  v_lshlrev_b32 v{vT2}, 4, v{vTid}
  ds_write_b128 v{vT2}, v[44:47] offset:{K0}
  ds_write_b128 v{vT2}, v[44:47] offset:{K0+8192}
  v_cmp_gt_u32 vcc, {(MISC+64-CNT)//16}, v{vTid}
  s_and_saveexec_b64 s[{sSave}:{sSave+1}], vcc
  ds_write_b128 v{vT2}, v[40:43] offset:{CNT}
  s_mov_b64 exec, s[{sSave}:{sSave+1}]
  v_and_b32 v{vT0}, 15, v{vTid}
  v_add_u32 v{vT1}, 16, v{vT0}
  v_mov_b32 v{vT3}, 0xffff
  v_cmp_gt_u32 vcc, s{sSW}, v{vT0}
  v_add_u32 v{vT2}, s{sSB}, v{vT0}
  s_nop 0
  v_cndmask_b32 v{vL1}, v{vT3}, v{vT2}, vcc
  v_cmp_gt_u32 vcc, s{sSW}, v{vT1}
  v_add_u32 v{vT1}, s{sSB}, v{vT1}
  s_nop 0
  v_cndmask_b32 v{vL2}, v{vT3}, v{vT1}, vcc
  v_mul_u32_u24 v{vT2}, 12, v{vT2}
  v_lshrrev_b32 v{vT1}, 4, v{vTid}
  s_mov_b32 s{sTmp}, {8*RECB}
  v_mad_u32_u24 v{vBase}, v{vT1}, s{sTmp}, v{vT2}
  s_cmp_eq_u32 s{sFirstB}, 1
  s_cbranch_scc1 K2_OFW
  v_lshlrev_b32 v{vT2}, 5, v{vT1}
  buffer_load_dwordx4 v[{OF}:{OF+3}], v{vT2}, s[{sOFF}:{sOFF+3}], 0 offen
  buffer_load_dwordx4 v[{OF+4}:{OF+7}], v{vT2}, s[{sOFF}:{sOFF+3}], 0 offen offset:16
  s_waitcnt vmcnt(0)
K2_OFW:
  s_waitcnt vmcnt(@OFFW@)
@S3@
""")
    for i in range(8):
        a(f"  v_add_u32_sdwa v{VA+i}, v{OF+i}, v{vBase} dst_sel:DWORD dst_unused:UNUSED_PAD src0_sel:WORD_0 src1_sel:DWORD")
        a(f"  v_cmp_lt_u32_sdwa s[{sM1+2*i}:{sM1+2*i+1}], v{vL1}, v{OF+i} src0_sel:DWORD src1_sel:WORD_1")
        a(f"  s_mov_b64 exec, s[{sM1+2*i}:{sM1+2*i+1}]")
        a(f"  buffer_load_dwordx3 v[{R(i)}:{R(i)+2}], v{VA+i}, s[{sREC}:{sREC+3}], s{sSeg+i} offen {ld}")
        a("  s_mov_b64 exec, -1")
    for i in range(8):
        a(f"  v_cmp_lt_u32_sdwa s[{sM2+2*i}:{sM2+2*i+1}], v{vL2}, v{OF+i} src0_sel:DWORD src1_sel:WORD_1")
    for i in range(8):
        a(f"  s_mov_b64 exec, s[{sM2+2*i}:{sM2+2*i+1}]")
        a(f"  s_cbranch_execz K2_LS{i}")
        a(f"  buffer_load_dwordx3 v[{R(8+i)}:{R(8+i)+2}], v{VA+i}, s[{sREC}:{sREC+3}], s{sSeg+i} offen offset:192 {ld}")
        a(f"K2_LS{i}:")
    a(f"""
  s_mov_b64 exec, -1
  v_max3_u32 v{vT2}, v{OF}, v{OF+1}, v{OF+2}
  v_max3_u32 v{vT3}, v{OF+3}, v{OF+4}, v{OF+5}
  v_max3_u32 v{vT2}, v{OF+6}, v{OF+7}, v{vT2}
  v_max_u32 v{vT2}, v{vT2}, v{vT3}
  v_lshrrev_b32 v{vMx}, 16, v{vT2}
  v_mov_b32 v{vT2}, {MISC}
  s_mov_b32 s{sSave}, 0x00010001
  s_mov_b32 s{sSave+1}, 0x00010001
  v_lshlrev_b32 v{vK}, 4, v{vLane}
  v_add_u32 v{vE}, {RING}, v{vK}
@IMGW@
  s_waitcnt lgkmcnt(0)
@S5@
  s_barrier
  s_mov_b64 exec, s[{sSave}:{sSave+1}]
  ds_max_u32 v{vT2}, v{vMx}
  s_mov_b64 exec, -1
  s_cmp_eq_u32 s{sFirstB}, 0
  s_cbranch_scc1 K2_RANK
  s_lshr_b32 s{sTmp}, s{sW}, 1
  s_lshl_b32 s{sTmp2}, s{sTmp}, 12
  s_mul_i32 s{sTmp}, s{sTmp}, {32*ROWB}
""")
    for s_ in range(4):
        a(f"  v_add_u32 v{vT0+s_}, s{sTmp2}, v{24+s_}")
    for s_ in range(4):
        a(f"  ds_read_b128 {Xb(1,s_)}, v{vT0+s_}")
    a(f"""
  s_mov_b32 s{sCur}, {NLOG2E:#x}
  s_and_b32 s{sTmp2}, s{sW}, 1
  s_cselect_b32 s{sCur}, 1.0, s{sCur}
  s_lshl_b32 s{sN}, s{sTmp2}, 13
  s_add_u32 s{sN}, s{sN}, {IMA}
  v_add_u32 v{vT0}, s{sN}, v{vK}
  s_lshl_b32 s{sTmp2}, s{sTmp2}, 7
  s_add_u32 s{sTmp}, s{sTmp}, s{sTmp2}
  s_add_u32 s{sTmp}, s{sTmp}, {NODE}
  v_add_u32 v{vT1}, s{sTmp}, v7
""")
    for q in range(8):
        a(f"  ds_read_b128 {ar(4*q,4)}, v{vT0} offset:{1024*q}")
    for s_ in range(4):
        for ct in range(2):
            a(f"  s_waitcnt lgkmcnt({7-2*s_-ct})")
            a(mfma16(120+16*ct, Xb(1,s_), ar((s_*2+ct)*4,4), g16(120+16*ct) if s_ else "0"))
    for q in range(8):
        a(f"  ds_read_b128 {ar(32+4*q,4)}, v{vE} offset:{8192+1024*q}")
    a("  s_nop 3")
    for r in range(16):
        a(f"  v_mul_f32 v{120+r}, s{sCur}, v{120+r}")
        a(f"  v_mul_f32 v{136+r}, s{sCur}, v{136+r}")
        a(f"  v_cvt_pk_bf16_f32 v{120+r}, v{120+r}, v{136+r}")
        a(f"  ds_write_b32 v{vT1}, v{120+r} offset:{(8*(r>>2)+(r&3))*ROWB}")
        if r == 2: a(f"  s_cmp_ge_u32 s{sW}, 6\n  s_cbranch_scc1 K2_JOBE")
    a("K2_JOBE:")
    for q in range(8):
        a(f"  ds_read_b128 {ar(4*q,4)}, v{vE} offset:{1024*q}")
    a(f"""
K2_RANK:
  s_waitcnt vmcnt(0)
@S6@
@XPF@
""")
    for k in range(16):
        a(f"  s_mov_b64 exec, s[{msk(k)}:{msk(k)+1}]")
        if k >= 8: a(f"  s_cbranch_execz K2_RS{k}")
        a(f"  v_lshrrev_b32 v{A4(k)}, 16, v{R(k)+2}")
        a(f"  ds_add_rtn_u32 v{R(k)+3}, v{A4(k)}, v{vOne} offset:{CNT}")
        if k >= 8: a(f"K2_RS{k}:")
    a(f"""  s_mov_b64 exec, -1
  s_waitcnt lgkmcnt(0)
  s_barrier
@S7@
  s_cmp_lg_u32 s{sW}, 0
  s_cbranch_scc1 K2_PRE""")
    c0, c1, q0, q1, b0, b1, p0, p1, hv, ex, e0, e1, m0_, m1_, t0_, t1_ = range(120, 136)
    u0, u1, l4 = vT0, vT1, vT2
    a(f"""
  v_lshlrev_b32 v{l4}, 2, v{vLane}
  ds_read2st64_b32 v[{c0}:{c1}], v{l4} offset0:{CNT//256} offset1:{CNT//256+1}
  s_waitcnt lgkmcnt(0)
  v_add_u32 v{q0}, 3, v{c0}
  v_add_u32 v{q1}, 3, v{c1}
  v_lshrrev_b32 v{q0}, 2, v{q0}
  v_lshrrev_b32 v{q1}, 2, v{q1}
  v_min_u32 v{b0}, 63, v{q0}
  v_min_u32 v{b1}, 63, v{q1}
  v_sub_u32 v{b0}, 63, v{b0}
  v_sub_u32 v{b1}, 63, v{b1}
  v_lshlrev_b32 v{b0}, 2, v{b0}
  v_lshlrev_b32 v{b1}, 2, v{b1}
  ds_add_rtn_u32 v{p0}, v{b0}, v{vOne} offset:{HIST}
  ds_add_rtn_u32 v{p1}, v{b1}, v{vOne} offset:{HIST}
  ds_read_b32 v{hv}, v{l4} offset:{HIST}
  v_lshl_or_b32 v{q0}, v{q0}, 8, v{vLane}
  v_add_u32 v{u1}, 64, v{vLane}
  v_lshl_or_b32 v{q1}, v{q1}, 8, v{u1}
  s_waitcnt lgkmcnt(0)
  v_mov_b32 v{ex}, v{hv}
""")
    dpp_scan(a, ex)
    a(f"""
  v_sub_u32 v{ex}, v{ex}, v{hv}
  ds_bpermute_b32 v{u0}, v{b0}, v{ex}
  ds_bpermute_b32 v{u1}, v{b1}, v{ex}
  s_waitcnt lgkmcnt(0)
  v_add_lshl_u32 v{u0}, v{u0}, v{p0}, 2
  v_add_lshl_u32 v{u1}, v{u1}, v{p1}, 2
  ds_write_b32 v{u0}, v{q0} offset:{ORDQ}
  ds_write_b32 v{u1}, v{q1} offset:{ORDQ}
  ds_read2st64_b32 v[{e0}:{e1}], v{l4} offset0:{ORDQ//256} offset1:{ORDQ//256+1}
  s_waitcnt lgkmcnt(0)
  v_mov_b32 v{m0_}, v{e0}
  v_mov_b32 v{m1_}, v{e1}
""")
    for mode in ("quad_perm:[1,0,3,2]", "quad_perm:[2,3,0,1]", "row_half_mirror"):
        a(f"  s_nop 0\n  v_max_u32_dpp v{m0_}, v{m0_}, v{m0_} {mode} row_mask:0xf bank_mask:0xf")
        a(f"  v_max_u32_dpp v{m1_}, v{m1_}, v{m1_} {mode} row_mask:0xf bank_mask:0xf")
    a(f"""
  v_lshrrev_b32 v{m0_}, 8, v{m0_}
  v_lshrrev_b32 v{m1_}, 8, v{m1_}
  v_mov_b32 v{t0_}, v{m0_}
  v_mov_b32 v{t1_}, v{m1_}
""")
    for mode in ("row_shr:8 row_mask:0xf", "row_bcast:15 row_mask:0xa", "row_bcast:31 row_mask:0xc"):
        a(f"  s_nop 0\n  v_add_u32_dpp v{t0_}, v{t0_}, v{t0_} {mode} bank_mask:0xf")
        a(f"  v_add_u32_dpp v{t1_}, v{t1_}, v{t1_} {mode} bank_mask:0xf")
    a(f"""
  s_nop 0
  v_readlane_b32 s{sTmp}, v{t0_}, 63
  v_sub_u32 v{t0_}, v{t0_}, v{m0_}
  v_sub_u32 v{m1_}, v{t1_}, v{m1_}
  v_add_u32 v{t1_}, s{sTmp}, v{t1_}
  v_add_u32 v{m1_}, s{sTmp}, v{m1_}
  v_and_b32 v{u0}, 7, v{vLane}
  v_lshlrev_b32 v{u1}, 4, v{u0}
  v_lshl_add_u32 v{p0}, v{t0_}, 7, v{u1}
  v_lshl_add_u32 v{p1}, v{m1_}, 7, v{u1}
  v_and_b32 v{e0}, 0xff, v{e0}
  v_and_b32 v{e1}, 0xff, v{e1}
  v_lshlrev_b32 v{c0}, 2, v{e0}
  v_lshlrev_b32 v{c1}, 2, v{e1}
  ds_write_b32 v{c0}, v{p0} offset:{NB}
  ds_write_b32 v{c1}, v{p1} offset:{NB}
  v_lshrrev_b32 v{u0}, 1, v{vLane}
  v_add_u32 v{u0}, {TSV}, v{u0}
  s_mov_b32 s{sSave}, 0x01010101
  s_mov_b32 s{sSave+1}, 0x01010101
  s_mov_b64 exec, s[{sSave}:{sSave+1}]
  ds_write2_b32 v{u0}, v{t0_}, v{m1_} offset0:0 offset1:8
  s_mov_b32 s{sSave}, 0
  s_mov_b32 s{sSave+1}, 0x80000000
  s_mov_b64 exec, s[{sSave}:{sSave+1}]
  v_mov_b32 v{u1}, {TSV+64}
  ds_write_b32 v{u1}, v{t1_}
  s_mov_b64 exec, -1
  v_min_u32 v{e0}, 98, v{e0}
  v_min_u32 v{e1}, 98, v{e1}
  v_mov_b32 v{c0}, {NODE}
  s_mov_b32 s{sTmp}, {ROWB}
  v_mad_u32_u24 v{e0}, v{e0}, s{sTmp}, v{c0}
  v_mad_u32_u24 v{e1}, v{e1}, s{sTmp}, v{c0}
  v_and_b32 v{c0}, 1, v{vLane}
  v_lshlrev_b32 v{c0}, 4, v{c0}
  v_bfe_u32 v{c1}, v{vLane}, 1, 2
  v_lshl_add_u32 v{c0}, v{c1}, 2, v{c0}
  v_and_b32 v{c1}, 56, v{vLane}
  v_lshl_add_u32 v{c0}, v{c1}, 2, v{c0}
  v_add_u32 v{c0}, {ORDA}, v{c0}
  ds_write2st64_b32 v{c0}, v{e0}, v{e1} offset0:0 offset1:1
K2_PRE:
  s_mov_b32 s{sTmp}, -28
""")
    for k in range(16):
        if k >= 8: a(f"  s_cmp_eq_u64 s[{msk(k)}:{msk(k)+1}], 0\n  s_cbranch_scc1 K2_PS{k}")
        a(f"  v_and_b32 v{vT0}, 3, v{R(k)+3}")
        a(f"  v_lshlrev_b32 v{R(k)+3}, 5, v{R(k)+3}")
        a(f"  v_mad_i32_i24 v{R(k)+3}, v{vT0}, s{sTmp}, v{R(k)+3}")
        a(f"  v_and_b32 v{R(k)+2}, 0x7fff, v{R(k)+2}")
        if k >= 8: a(f"K2_PS{k}:")
    a(f"""
  v_min_u32 v{vT0}, 16, v{vLane}
  v_lshlrev_b32 v{vT0}, 2, v{vT0}
  v_mov_b32 v{vT1}, {MISC}
  s_waitcnt lgkmcnt(0)
@S8@
  s_barrier
@S9@
  ds_read_b32 v{vTSV}, v{vT0} offset:{TSV}
  ds_read_b32 v{vT2}, v{vT1}
""")
    for k in range(16):
        a(f"  s_mov_b64 exec, s[{msk(k)}:{msk(k)+1}]")
        if k >= 8: a(f"  s_cbranch_execz K2_NS{k}")
        a(f"  ds_read_b32 v{A4(k)}, v{A4(k)} offset:{NB}")
        if k >= 8: a(f"K2_NS{k}:")
        if k == 7:
            a(f"""  s_mov_b64 exec, -1
  s_waitcnt lgkmcnt(8)
  v_readlane_b32 s{sT}, v{vTSV}, 16
  v_readfirstlane_b32 s{sMaxC}, v{vT2}
  s_cmp_le_u32 s{sT}, {CAPT}
  s_cbranch_scc1 K2_FIT
  s_lshr_b32 s{sSW}, s{sSW}, 1
  s_mov_b32 s{sFirstB}, 0
  s_waitcnt lgkmcnt(0) vmcnt(0)
  s_barrier
  s_branch K2_RESET
K2_FIT:""")
    a("  s_waitcnt lgkmcnt(0)")
    for k in range(16):
        a(f"  s_mov_b64 exec, s[{msk(k)}:{msk(k)+1}]")
        if k >= 8: a(f"  s_cbranch_execz K2_WS{k}")
        a(f"  v_add_u32 v{A4(k)}, v{A4(k)}, v{R(k)+3}")
        a(f"  ds_write_b32 v{A4(k)}, v{R(k)+2} offset:{K0}")
        a(f"  v_lshlrev_b32 v{R(k)+3}, 1, v{A4(k)}")
        if k >= 8: a(f"K2_WS{k}:")
    a(f"""
  s_mov_b64 exec, -1
  s_mul_i32 s{sT0}, s{sT}, s{sW}
  s_add_u32 s{sT1}, s{sT0}, s{sT}
  s_lshr_b32 s{sT0}, s{sT0}, 3
  s_lshr_b32 s{sT1}, s{sT1}, 3
  v_cmp_ge_u32 vcc, s{sT0}, v{vTSV}
  s_and_b32 s{sTmp}, vcc_lo, 0xffff
  s_bcnt1_i32_b32 s{sG0}, s{sTmp}
  s_sub_u32 s{sG0}, s{sG0}, 1
  v_cmp_gt_u32 vcc, s{sT1}, v{vTSV}
  s_and_b32 s{sTmp}, vcc_lo, 0xffff
  s_bcnt1_i32_b32 s{sGlast}, s{sTmp}
  s_sub_u32 s{sGlast}, s{sGlast}, 1
  s_add_u32 s{sTmp}, s{sG0}, 1
  v_readlane_b32 s{sTmp2}, v{vTSV}, s{sG0}
  v_readlane_b32 s{sTn}, v{vTSV}, s{sTmp}    ; TS[g0+1]
  s_sub_u32 s{sN}, s{sT1}, s{sT0}
  s_mov_b32 s{sCont}, 0
  s_mov_b32 s{sSlow}, 0
  s_mov_b32 s{sGn}, s{sG0}
  s_mov_b32 s{sCur}, s{sT0}
  s_mov_b32 s{sF}, 1
  s_cmp_eq_u32 s{sN}, 0
  s_cbranch_scc1 K2_FMD
  s_cmp_eq_u32 s{sTmp2}, s{sT0}
  s_cbranch_scc1 K2_FM
  s_mov_b32 s{sCont}, 1
  s_cmp_lt_u32 s{sTn}, s{sT1}
  s_cbranch_scc0 K2_ALLC
  s_add_u32 s{sGn}, s{sG0}, 1
  s_mov_b32 s{sCur}, s{sTn}
  s_sub_u32 s{sTmp}, s{sT1}, s{sCur}
  s_bitset1_b32 s{sF}, s{sTmp}
  s_branch K2_FM
K2_ALLC:
  s_cmp_gt_u32 s{sTn}, s{sT1}
  s_cselect_b32 s{sSlow}, 1, 0
K2_FM:
  s_mov_b32 s{sTau}, s{sGn}
K2_FML:
  s_cmp_ge_u32 s{sTau}, s{sGlast}
  s_cbranch_scc1 K2_FMD
  s_add_u32 s{sTau}, s{sTau}, 1
  s_nop 3
  v_readlane_b32 s{sTmp}, v{vTSV}, s{sTau}
  s_sub_u32 s{sTmp}, s{sTmp}, s{sCur}
  s_bitset1_b32 s{sF}, s{sTmp}
  s_branch K2_FML
K2_FMD:
  s_lshl_b32 s{sTmp}, s{sCur}, 7
  v_add_u32 v{vK}, s{sTmp}, v{vKb}
  v_mad_u32_u24 v{vE}, v{vEs}, s{sCur}, v{vEb}
""")
    for l in next_tile(sTn, sCur): a(l)
    a(f"""
  s_waitcnt lgkmcnt(0)
  s_barrier
@S4@
  ds_read_b128 v[{vI}:{vI+3}], v{vK}
""")
    ord_read(a)
    a(f"""  s_lshl_b32 s{sTmp}, s{sTn}, 7
  v_add_u32 v{vK}, s{sTmp}, v{vKb}
  s_mov_b32 m0, s{sM0}
  s_waitcnt lgkmcnt(1)""")
    for i in range(4): a(la(i))
    for i in range(4):
        a(dma(i))
        if i < 3: a(f"  s_add_u32 m0, s{sM0}, {1024*(i+1)}\n  s_nop 0")
    a(f"  ds_read_b128 v[{vI}:{vI+3}], v{vK}")
    def ea_writes(ks):
        for k in ks:
            a(f"  s_mov_b64 exec, s[{msk(k)}:{msk(k)+1}]")
            if k >= 8: a(f"  s_cbranch_execz K2_ES{k}")
            a(f"  ds_write_b64 v{R(k)+3}, v[{R(k)}:{R(k)+1}] offset:{EA0}")
            if k >= 8: a(f"K2_ES{k}:")
        a("  s_mov_b64 exec, -1")
    ea_writes(list(range(8, 16)) + [0, 1, 2, 3])
    m_event(a)
    for g in range(4): a(f"  v_mov_b32 v{vNAc+g}, v{vNAn+g}")
    next_group(a)
    ord_read(a)
    for i in range(4): a(la(i))
    a("  s_waitcnt vmcnt(0)")
    for s_ in range(4): a(f"  ds_read_b128 {Xb(0,s_)}, v{vXA+s_}")
    ea_writes([4, 5, 6, 7])
    for l in next_tile(sTn2, sTn): a(l)
    a(f"""  s_lshl_b32 s{sTmp}, s{sTn2}, 7
  v_add_u32 v{vK}, s{sTmp}, v{vKb}
  s_mov_b32 m0, s{sM0}
  s_waitcnt lgkmcnt(4)""")
    for i in range(4):
        a(dma(i))
        if i < 3: a(f"  s_add_u32 m0, s{sM0}, {1024*(i+1)}\n  s_nop 0")
    a(f"""  ds_read_b128 v[{vI}:{vI+3}], v{vK}
  s_waitcnt lgkmcnt(0)
  s_barrier
@S10@
  s_cmp_eq_u32 s{sN}, 0
  s_cbranch_scc1 K2_LOOPDONE
  ds_read2_b32 a[{EOP}:{EOP+1}], v{vE} offset0:0 offset1:1
  v_mad_u32_u24 v{vE}, v{vEs}, s{sTn}, v{vEb}
  s_mov_b32 s{sTn}, s{sTn2}""")
    for i in range(4):
        a(mfma16(Gb(0), Xb(0,i), wb(i,0), g16(Gb(0)) if i else "0"))
    a("  s_waitcnt lgkmcnt(0)")
    a(mfma16(Gb(0), Eo, BEo(0), g16(Gb(0))))
    a(mfma16(Gb(1), Eo, BEo(1), "0"))
    a(mfma16(Gb(1), Xb(0,0), wb(0,1), g16(Gb(1))))
    a(f"  ds_read2_b32 a[{EOP}:{EOP+1}], v{vE} offset0:0 offset1:1")
    for i in range(1, 4):
        a(mfma16(Gb(1), Xb(0,i), wb(i,1), g16(Gb(1))))
    a(f"  s_bitcmp1_b32 s{sF}, 1\n  s_cbranch_scc0 K2_FNM")
    m_event(a)
    a("K2_FNM:\n  s_nop 5")
    for i in range(16): a(f"  v_exp_f32 v{Gb(0)+i}, v{Gb(0)+i}")
    a(f"  s_mov_b32 s{sTau}, 0\n  s_waitcnt vmcnt(0)")
    a(mfma8(Gb(0), ON, ON, g16(Gb(0))))
    for s_ in range(4): a(f"  ds_read_b128 {Xb(1,s_)}, v{vXA+s_}")
    a("K2_LOOP:")
    tile_code(a, 0)
    tile_code(a, 1)
    a(f"""  s_branch K2_LOOP
K2_LAST:
  s_setprio 0
  s_cmp_lg_u32 s{sCont}, 0
  s_cbranch_scc1 K2_LOOPDONE""")
    flush_own(a, "L")
    a(f"""
K2_LOOPDONE:
@S11@
  s_add_u32 s{sSB}, s{sSB}, s{sSW}
  v_mbcnt_lo_u32_b32 v{vLane}, -1, 0
  v_mbcnt_hi_u32_b32 v{vLane}, -1, v{vLane}
  s_lshl_b32 s{sTmp}, s{sW}, 6
  v_add_u32 v{vTid}, s{sTmp}, v{vLane}
  s_lshl_b32 s{sTmp}, s{sW}, 12
  s_add_u32 s{sTmp}, s{sTmp}, s{sB}
  s_lshl_b32 s{sTmp}, s{sTmp}, 7
  v_lshrrev_b32 v{vT1}, 5, v{vLane}
  v_lshlrev_b32 v{vE}, 17, v{vT1}
  v_add3_u32 v{vE}, v{vE}, v{vN4}, s{sTmp}
  s_waitcnt vmcnt(0)
  s_cmp_gt_u32 s{sMaxC}, s{sSB}
  s_cbranch_scc1 K2_NOFL
""")
    for rr in range(8):
        a(f"  s_mov_b32 s{sSeg+rr}, {(8*(rr>>2)+(rr&3))*32768}")
        a(f"  buffer_load_dword v{G+rr}, v{vE}, s[{sXR}:{sXR+3}], s{sSeg+rr} offen")
    a(f"""
K2_NOFL:
  s_cmp_eq_u32 s{sSlow}, 0
  s_cbranch_scc1 K2_NSL
  v_mov_b32 v{vT0}, {MISC+4}
  v_mov_b32 v{vT1}, 1
  ds_write_b32 v{vT0}, v{vT1}
K2_NSL:
  s_waitcnt lgkmcnt(0)
  s_barrier
  v_mov_b32 v{vT0}, {MISC+4}
  ds_read_b32 v{vT1}, v{vT0}
  s_waitcnt lgkmcnt(0)
  v_readfirstlane_b32 s{sSlow}, v{vT1}
  s_mov_b32 s{sTau}, 1
K2_MERGE:
  s_cmp_eq_u32 s{sCont}, 0
  s_cbranch_scc1 K2_MSKIP
  s_cmp_eq_u32 s{sSlow}, 0
  s_cbranch_scc1 K2_MDO
  s_cmp_lg_u32 s{sTau}, s{sW}
  s_cbranch_scc1 K2_MSKIP
K2_MDO:
""")
    flush(a)
    a(f"""
K2_MSKIP:
  s_waitcnt lgkmcnt(0)
  s_barrier
  s_cmp_eq_u32 s{sSlow}, 0
  s_cbranch_scc1 K2_MEND
  s_add_u32 s{sTau}, s{sTau}, 1
  s_cmp_lt_u32 s{sTau}, 8
  s_cbranch_scc1 K2_MERGE
K2_MEND:
@S12@
  s_mov_b32 s{sFirstB}, 0
  s_cmp_gt_u32 s{sMaxC}, s{sSB}
  s_cbranch_scc1 K2_RESET
  s_mul_i32 s{sTmp}, s{sW}, {16*ROWB}
  s_add_u32 s{sTmp}, s{sTmp}, {NODE}
  v_lshrrev_b32 v{vT1}, 5, v{vLane}
  v_mul_u32_u24 v{vT1}, {4*ROWB}, v{vT1}
  v_add3_u32 v{vT1}, v{vT1}, v{vN4}, s{sTmp}
  v_add_u32 v{vT2}, 128, v{vT1}
""")
    for rr in range(8):
        ro = 3 * (8*(rr>>2) + (rr&3))
        a(f"  ds_read2st64_b32 v[{AC+4*rr}:{AC+4*rr+1}], v{vT1} offset0:{ro+1} offset1:{ro+2}")
        a(f"  ds_read2st64_b32 v[{AC+4*rr+2}:{AC+4*rr+3}], v{vT2} offset0:{ro+1} offset1:{ro+2}")
        a(f"  ds_read_b32 v{HV+rr}, v{vT2} offset:{ro*256}")
    a(f"  s_mov_b32 s{sTmp}, 0x358637bd")
    for rr in range(8):
        a(f"  s_waitcnt lgkmcnt({min(15, 3*(7-rr))})")
        for ct in range(2):
            d = AC + 4*rr + 2*ct + 1
            a(f"  v_add_f32 v{d}, s{sTmp}, v{d}")
        for ct in range(2):
            d = AC + 4*rr + 2*ct + 1
            a(f"  v_rcp_f32 v{d}, v{d}")
        a(f"  v_lshlrev_b32 v{HV+8+rr}, 16, v{HV+rr}")
        a(f"  v_and_b32 v{HV+rr}, 0xffff0000, v{HV+rr}")
    a("  s_waitcnt vmcnt(0)")
    for rr in range(8):
        n0, n1 = AC + 4*rr, AC + 4*rr + 2
        a(f"  v_fma_f32 v{n0}, v{n0}, v{n0+1}, v{HV+8+rr}")
        a(f"  v_fma_f32 v{n1}, v{n1}, v{n1+1}, v{HV+rr}")
        a(f"  v_lshlrev_b32 v{n0+1}, 16, v{G+rr}")
        a(f"  v_and_b32 v{n1+1}, 0xffff0000, v{G+rr}")
        a(f"  v_max_f32 v{n0}, 0, v{n0}")
        a(f"  v_max_f32 v{n1}, 0, v{n1}")
        a(f"  v_add_f32 v{n0}, v{n0}, v{n0+1}")
        a(f"  v_add_f32 v{n1}, v{n1}, v{n1+1}")
        a(f"  v_cvt_pk_bf16_f32 v{n0}, v{n0}, v{n1}")
        a(f"  buffer_store_dword v{n0}, v{vE}, s[{sOUT}:{sOUT+3}], s{sSeg+rr} offen")
    a("@S13@\n@S15@\n@OUT2@\nK2_END:\n  s_endpgm")

def kd(name, vgpr, accum, sgpr):
    return f"""
.amdhsa_kernel {name}
  .amdhsa_next_free_vgpr {vgpr}
  .amdhsa_next_free_sgpr {sgpr}
  .amdhsa_accum_offset {accum}
  .amdhsa_group_segment_fixed_size 0
  .amdhsa_kernarg_size 96
  .amdhsa_user_sgpr_count 2
  .amdhsa_user_sgpr_kernarg_segment_ptr 1
  .amdhsa_system_sgpr_workgroup_id_x 1
  .amdhsa_float_denorm_mode_32 3
.end_amdhsa_kernel
"""

def main():
    ref = open(f"cdna_kernels/{NAME}.s.ref").read().split("\n")
    hdr = [l for l in ref if l.startswith(";") and "@launch" not in l and "Override" not in l and "grid=ceil" not in l]
    a = Asm()
    a("\n".join(hdr))
    a(f"; @launch kernel=part_kernel grid=({NP+5},1,1) block=(800,1,1) lds={LDS1}")
    a(f"; @launch kernel=main_kernel grid=(256,1,1) block=(512,1,1) lds={LDS2}")
    a('.amdgcn_target "amdgcn-amd-amdhsa--gfx950"\n.text')
    gen_k1(a)
    gen_k2(a)
    a('.section .rodata,"a"\n.p2align 6')
    st = OPT["stamp"]
    a(kd("part_kernel", 60, 60, 100) if st else kd("part_kernel", 56, 56, 32))
    a(".p2align 6")
    a(kd("main_kernel", NARCH + NACC, NARCH, 100))
    txt = a.text()
    SL = MISC + 64
    cpf2 = cpf1 = ""
    if OPT["cpf"] & 1:
        cpf2 = f"""  s_getpc_b64 s[98:99]
  v_lshlrev_b32 v39, 6, v0
  s_mov_b64 exec, 0xffffffff
  global_load_dword a0, v39, s[98:99]
  s_mov_b64 exec, -1
"""
        cpf2 = f"""  s_getpc_b64 s[98:99]
CPF2L:
  v_lshlrev_b32 v39, 5, v0
  v_min_u32 v39, K2_END-CPF2L, v39
  global_load_dword a0, v39, s[98:99]
"""
    if OPT["cpf"] & 2:
        cpf1 = f"""  s_getpc_b64 s[26:27]
CPF1L:
  v_lshlrev_b32 v40, 5, v0
  v_min_u32 v40, K2_END-CPF1L, v40
  global_load_dword v55, v40, s[26:27]
"""
    offl = f"""  buffer_load_dwordx4 v[120:123], v{vTSV}, s[{sOFF}:{sOFF+3}], 0 offen
  buffer_load_dwordx4 v[124:127], v{vTSV}, s[{sOFF}:{sOFF+3}], 0 offen offset:16
"""
    txt = txt.replace("@OFFS_A@\n", "").replace("@OFFS_B@\n", offl).replace("@OFFW@", "0").replace("@IMGW@\n", "")
    xpf = ""
    if OPT["npf"]:
        xpf = f"""  s_lshr_b32 s{sTmp}, s2, 3
  s_mul_i32 s{sTmp}, s{sTmp}, 100096
  v_lshlrev_b32 v{vT2}, 7, v4
  s_add_u32 s{sTmp2}, s{sTmp}, 65536
  buffer_load_dword a{X}, v{vT2}, s[{sXR}:{sXR+3}], s{sTmp} offen
  s_cmp_ge_u32 s{sW}, 5
  s_cbranch_scc1 K2_XPE
  buffer_load_dword a{X+1}, v{vT2}, s[{sXR}:{sXR+3}], s{sTmp2} offen
K2_XPE:
"""
    txt = txt.replace("@XPF@\n", xpf)
    txt = txt.replace("@CPF2@\n", cpf2).replace("@CPF1@\n", cpf1)
    def sub(m):
        if not st: return ""
        b = Asm(); k = m.group(1); i = m.group(2)
        if k == "OUT":
            if i == "2":
                b(f"""  s_lshl_b32 s99, s{sW}, 6
  s_add_u32 s99, s99, {SL}
  v_mbcnt_lo_u32_b32 v37, -1, 0
  v_lshlrev_b32 v37, 2, v37
  v_add_u32 v37, s99, v37
  ds_read_b32 v36, v37
  s_waitcnt lgkmcnt(0)""")
                stamp_out(b, 96, sW, STAMP_OFF, 36, 37, 8)
            else: stamp_out(b, 20, 23, STAMP_OFF + 0x100000, 56, 57, 16)
        else:
            i = int(i)
            if k == "TW": b("  s_waitcnt vmcnt(0)")
            def one(idx, real=False):
                if k == "S":
                    d = 37 if idx == 5 else 38
                    b(f"""  s_mem{'real' if real else ''}time s[98:99]
  s_waitcnt lgkmcnt(0)
  v_mov_b32 v{d}, s98
  s_lshl_b32 s99, s{sW}, 6
  s_add_u32 s99, s99, {SL + 4*idx}
  v_mov_b32 v39, s99
  ds_write_b32 v39, v{d}""")
                else: stamp(b, idx, 56, real=real)
            if i == 0: one(0); one(1, True)
            elif i == 15: one(15, True)
            elif i == 10 and k == 'S': one(10); one(14, True)
            elif i == 11 and k == 'S': one(11); one(2, True)
            elif i == 2 and k == 'S': pass
            else: one(i)
        return b.text()
    txt = re.sub(r"@(S|TW|T|OUT)(\d+)@\n", sub, txt)
    lines = txt.split("\n")
    for p in check_hazards(lines): print("HAZARD", p)
    b = Asm()
    for rep in range(2):
        for k in range(4):
            t_unit(b, k); p_unit(b, k, rep == 0)
            if k & 1: flush(b); m_event(b)
    for k in range(4):
        t_unit(b, k); p_unit(b, k, False)
    for k in range(2):
        t_unit(b, k); p_unit(b, k, False)
    for p in check_hazards(b.text().split("\n"), "loop"): print("HAZARD", p)
    open(sys.argv[1], "w").write(txt)

if __name__ == "__main__":
    main()
```

```python
import sys, re
from asmlib import *

NAME = "gather_scatter__edge_featured_mpnn_gatedgcn__graph"
KN = NAME + "_kernel"
NP, CH = 250, 3200
RECB = CH * 12
OFFS = 0xA00000
IMG = OFFS + 0x40000
NLOG2E = 0xBFB8AA3B
CAPT = 128
EA0, K0 = 0, 32768
CNT, NB, HIST, ORDQ, ORDA, TSV, MISC = 49152, 49664, 50176, 50432, 50944, 51456, 51584
RING = 52224
NODE = RING + 8 * 4096
ROWB = 768
LDS2 = NODE + 99 * ROWB
XO, IMA = RING + 16384, 16384
K1_CNT, K1_START = 38400, 39424
LDS1 = 40448
STAMP_OFF = 0x1000000

OPT = dict(st_flags="sc1", ld_flags="sc1", spin=400000, sleep=1, npf=0, stamp=0, prio=2, dbg=-1, dbgw=0, nodma=0, cpf=0, k1late=2)
for a_ in sys.argv[2:]:
    k_, v_ = a_.split("=", 1)
    OPT[k_] = int(v_) if v_.lstrip("-").isdigit() else v_.replace("+", " ")

def stamp(a, idx, vreg, s=98, real=False):
    a(f"  s_mem{'real' if real else ''}time s[{s}:{s+1}]\n  s_waitcnt lgkmcnt(0)\n  v_writelane_b32 v{vreg}, s{s}, {idx}")
def stamp_out(a, ws, wave, base, vreg, tmp, wpw):
    a(f"""  s_mul_i32 s98, s2, {wpw}
  s_add_u32 s98, s98, s{wave}
  s_lshl_b32 s98, s98, 6
  s_add_u32 s98, s98, {base}
  v_mbcnt_lo_u32_b32 v{tmp}, -1, 0
  v_lshlrev_b32 v{tmp}, 2, v{tmp}
  v_add_u32 v{tmp+1}, s98, v{tmp}
  s_mov_b64 exec, 0xffff
  global_store_dword v{tmp+1}, v{vreg}, s[{ws}:{ws+1}]""")
    if OPT["dbg"] >= 0:
        a(f"""  s_cmp_lg_u32 s2, {OPT["dbg"]}
  s_cbranch_scc1 DBGX{vreg}
  s_cmp_lg_u32 s{wave}, {OPT["dbgw"]}
  s_cbranch_scc1 DBGX{vreg}
  s_load_dwordx2 s[98:99], s[0:1], 80
  s_waitcnt lgkmcnt(0)
  global_store_dword v{tmp}, v{vreg}, s[98:99]
DBGX{vreg}:""")

def dpp_scan(a, v):
    for m in ("row_shr:1", "row_shr:2", "row_shr:4", "row_shr:8"):
        a(f"  s_nop 1\n  v_add_u32_dpp v{v}, v{v}, v{v} {m} row_mask:0xf bank_mask:0xf")
    a(f"  s_nop 1\n  v_add_u32_dpp v{v}, v{v}, v{v} row_bcast:15 row_mask:0xa bank_mask:0xf")
    a(f"  s_nop 1\n  v_add_u32_dpp v{v}, v{v}, v{v} row_bcast:31 row_mask:0xc bank_mask:0xf")

def gen_k1(a):
    st = OPT["st_flags"]
    a(f"""
.globl part_kernel
.p2align 8
.type part_kernel,@function
part_kernel:
  s_cmp_ge_u32 s2, {NP}
  s_cbranch_scc1 K1_PACK
  s_load_dwordx2 s[8:9], s[0:1], 24
  s_load_dwordx4 s[4:7], s[0:1], 8
  s_load_dwordx2 s[20:21], s[0:1], 88
  v_lshrrev_b32 v33, 6, v0
  v_lshlrev_b32 v1, 4, v0
  v_readfirstlane_b32 s23, v33
@CPF1@
@T0@
  s_mul_i32 s22, s2, {CH*4}
  v_add_u32 v2, s22, v1
  v_lshlrev_b32 v3, 1, v2
  v_mov_b32 v32, 1
  v_mov_b32 v36, 0
  v_mov_b32 v37, 0
  v_mov_b32 v38, 0
  v_mov_b32 v39, 0
  s_cmp_lg_u32 s23, 0
  s_cbranch_scc1 K1_A
  ds_write_b128 v1, v[36:39] offset:{K1_CNT}
K1_A:
  s_waitcnt lgkmcnt(0)
  global_load_dwordx4 v[4:7], v2, s[8:9]
""")
    late = """  global_load_dwordx4 v[8:11], v2, s[6:7]
  global_load_dwordx4 v[12:15], v3, s[4:5]
  global_load_dwordx4 v[16:19], v3, s[4:5] offset:16"""
    if OPT["k1late"] == 0: a(late)
    a("  s_barrier\n@T2@")
    if OPT["k1late"] == 1: a(late)
    a(f"  s_waitcnt vmcnt({0 if OPT['k1late'] == 2 else 3})\n@T3@")
    if OPT["k1late"] == 2: a(late)
    for k in range(4):
        a(f"  v_lshlrev_b32_sdwa v{20+k}, 2, v{4+k} dst_sel:DWORD dst_unused:UNUSED_PAD src0_sel:DWORD src1_sel:BYTE_0")
    for k in range(4):
        a(f"  ds_add_rtn_u32 v{24+k}, v{20+k}, v32 offset:{K1_CNT}")
    a(f"""
  s_waitcnt lgkmcnt(0)
  s_barrier
  s_cmp_lg_u32 s23, 0
  s_cbranch_scc1 K1_B
  ds_read_b128 v[36:39], v1 offset:{K1_CNT}
  s_waitcnt lgkmcnt(0)
  v_add_u32 v41, v36, v37
  v_add_u32 v42, v41, v38
  v_add_u32 v43, v42, v39
  v_mov_b32 v44, v43
""")
    dpp_scan(a, 44)
    a(f"""
  v_sub_u32 v45, v44, v43
  v_add_u32 v47, v45, v36
  v_add_u32 v48, v45, v41
  v_add_u32 v49, v45, v42
  v_mul_u32_u24 v46, 12, v45
  v_mul_u32_u24 v47, 12, v47
  v_mul_u32_u24 v48, 12, v48
  v_mul_u32_u24 v49, 12, v49
  ds_write_b128 v1, v[46:49] offset:{K1_START}
  v_lshl_or_b32 v50, v36, 16, v46
  v_lshl_or_b32 v51, v37, 16, v47
  v_lshl_or_b32 v52, v38, 16, v48
  v_lshl_or_b32 v53, v39, 16, v49
  s_lshl_b32 s24, s2, 2
  s_add_u32 s24, s24, {OFFS}
  v_lshlrev_b32 v54, 12, v0
  v_add_u32 v54, s24, v54
  global_store_dword v54, v50, s[20:21] {st}
  global_store_dword v54, v51, s[20:21] offset:1024 {st}
  global_store_dword v54, v52, s[20:21] offset:2048 {st}
  global_store_dword v54, v53, s[20:21] offset:3072 {st}
K1_B:
  s_mul_i32 s22, s2, {RECB}
  v_add_u32 v2, s22, v1
  v_add_u32 v3, {12800}, v2
  v_add_u32 v34, {25600}, v2
""")
    for k in range(4):
        a(f"  v_lshrrev_b32 v{4+k}, 8, v{4+k}")
    a(f"""
  s_waitcnt lgkmcnt(0)
  s_barrier
@T4@
""")
    for k in range(4):
        a(f"  ds_read_b32 v{28+k}, v{20+k} offset:{K1_START}")
    a("  s_waitcnt vmcnt(2)")
    for k in range(4):
        a(f"  v_lshl_or_b32 v{8+k}, v{4+k}, 18, v{8+k}")
    for k in range(4):
        a(f"  s_waitcnt lgkmcnt({3-k})")
        a(f"  v_mad_u32_u24 v{28+k}, v{24+k}, 12, v{28+k}")
    for k in range(4):
        a(f"  ds_write_b32 v{28+k}, v{8+k} offset:8")
    a("  s_waitcnt vmcnt(0)")
    for k in range(4):
        a(f"  ds_write2_b32 v{28+k}, v{12+2*k}, v{13+2*k} offset0:0 offset1:1")
    a(f"""
  s_waitcnt lgkmcnt(0)
  s_barrier
  ds_read_b128 v[8:11], v1
  ds_read_b128 v[12:15], v1 offset:12800
  ds_read_b128 v[16:19], v1 offset:25600
  s_waitcnt lgkmcnt(2)
  global_store_dwordx4 v2, v[8:11], s[20:21] {st}
  s_waitcnt lgkmcnt(1)
  global_store_dwordx4 v3, v[12:15], s[20:21] {st}
  s_waitcnt lgkmcnt(0)
  global_store_dwordx4 v34, v[16:19], s[20:21] {st}
@T5@
@TW6@
@T15@
@OUT1@
  s_endpgm
K1_PACK:
  s_cmp_ge_u32 s2, {NP+5}
  s_cbranch_scc1 K1_END
  s_load_dwordx2 s[10:11], s[0:1], 32
  s_load_dwordx8 s[12:19], s[0:1], 40
  s_load_dwordx2 s[20:21], s[0:1], 88
  v_lshrrev_b32 v33, 6, v0
  s_nop 0
  v_readfirstlane_b32 s23, v33
  s_cmp_ge_u32 s23, 4
  s_cbranch_scc1 K1_END
  s_waitcnt lgkmcnt(0)
  v_and_b32 v2, 31, v0
  v_bfe_u32 v3, v0, 5, 1
  v_and_b32 v34, 63, v0
  s_cmp_eq_u32 s2, {NP+4}
  s_cbranch_scc1 K1_PACKC
  s_mov_b32 s24, s12
  s_mov_b32 s25, s13
  s_mov_b32 s26, {NLOG2E:#x}
  s_cmp_eq_u32 s2, {NP}
  s_cbranch_scc1 K1_P1
  s_mov_b32 s26, 1.0
  s_mov_b32 s24, s18
  s_mov_b32 s25, s19
  s_cmp_eq_u32 s2, {NP+1}
  s_cbranch_scc1 K1_P1
  s_mov_b32 s24, s10
  s_mov_b32 s25, s11
  s_cmp_eq_u32 s2, {NP+2}
  s_cbranch_scc1 K1_P1
  s_mov_b32 s24, s16
  s_mov_b32 s25, s17
K1_P1:
  v_lshlrev_b32 v4, 12, v3
  v_lshl_add_u32 v4, v2, 2, v4
  s_lshl_b32 s27, s23, 10
  v_add_u32 v4, s27, v4
""")
    for j in range(8):
        a(f"  global_load_dword v{8+j}, v4, s[24:25] offset:{128*j}")
    a("  s_waitcnt vmcnt(0)")
    for j in range(8):
        a(f"  v_lshlrev_b32 v{16+j}, 16, v{8+j}")
        a(f"  v_and_b32 v{24+j}, 0xffff0000, v{8+j}")
        a(f"  v_mul_f32 v{16+j}, s26, v{16+j}")
        a(f"  v_mul_f32 v{24+j}, s26, v{24+j}")
    for jj in range(4):
        a(f"  v_cvt_pk_bf16_f32 v{36+jj}, v{16+2*jj}, v{17+2*jj}")
        a(f"  v_cvt_pk_bf16_f32 v{40+jj}, v{24+2*jj}, v{25+2*jj}")
    a(f"""
  s_sub_u32 s27, s2, {NP}
  s_lshl_b32 s27, s27, 2
  s_add_u32 s27, s27, s23
  s_lshl_b32 s27, s27, 11
  s_add_u32 s27, s27, {IMG}
  v_lshlrev_b32 v5, 4, v34
  v_add_u32 v5, s27, v5
  global_store_dwordx4 v5, v[36:39], s[20:21] {st}
  global_store_dwordx4 v5, v[40:43], s[20:21] offset:1024 {st}
  s_endpgm
K1_PACKC:
  s_cmp_lg_u32 s23, 0
  s_cbranch_scc1 K1_END
  v_lshlrev_b32 v4, 2, v2
  s_mov_b32 s26, {NLOG2E:#x}
""")
    for j in range(4):
        a(f"  global_load_dword v{8+j}, v4, s[14:15] offset:{128*j}")
    a("  s_waitcnt vmcnt(0)")
    for j in range(4):
        a(f"  v_lshlrev_b32 v{16+j}, 16, v{8+j}")
        a(f"  v_and_b32 v{24+j}, 0xffff0000, v{8+j}")
        a(f"  v_mul_f32 v{16+j}, s26, v{16+j}")
        a(f"  v_mul_f32 v{24+j}, s26, v{24+j}")
    a(f"""
  v_cvt_pk_bf16_f32 v36, v16, v17
  v_cvt_pk_bf16_f32 v37, v18, v19
  v_cvt_pk_bf16_f32 v38, v24, v25
  v_cvt_pk_bf16_f32 v39, v26, v27
  v_cmp_eq_u32 vcc, 0, v3
  v_mov_b32 v40, 0x71800000
  v_mov_b32 v41, 0
  v_cndmask_b32 v36, v40, v36, vcc
  v_cndmask_b32 v37, v41, v37, vcc
  v_cndmask_b32 v38, v40, v38, vcc
  v_cndmask_b32 v39, v41, v39, vcc
  v_lshlrev_b32 v5, 4, v34
  v_add_u32 v5, {IMG+32768}, v5
  global_store_dwordx4 v5, v[36:39], s[20:21] {st}
K1_END:
  s_endpgm
""")

vXA = 0
vI = 4
vC = 8
vEs, vEb, vE, vKb, vK = 12, 13, 14, 15, 16
vN4, vTSV, vOrd = 17, 18, 19
vNAc, vNAn = 20, 24
BEV = 28
vT0, vT1, vT2, vT3 = 36, 37, 38, 39
G, HV, AC = 40, 104, 120
NARCH = 152
WB, WV, EOP, ONE, X = 0, 32, 64, 68, 70
NACC = 102
sXR, sOUT, sREC, sOFF, sWM = 8, 12, 16, 20, 24
sM1, sM2, sSeg = 28, 44, 60
sW, sSB, sSW, sFirstB, sT, sT0, sT1, sTn, sTn2, sTau, sN, sF, sGn, sGlast, sCont, sG0, sM0, sMaxC, sTmp, sTmp2, sCur, sSlow, sPsel0, sPsel1, sB = range(68, 93)
sSave = 94
sKA = 4

def mfma16(d, A, B, C):
    return f"  v_mfma_f32_32x32x16_bf16 v[{d}:{d+15}], {A}, {B}, {C}"
def mfma8(d, A, B, C):
    return f"  v_mfma_f32_32x32x8_bf16 v[{d}:{d+15}], {A}, {B}, {C}"
g16 = lambda d: f"v[{d}:{d+15}]"
pr = lambda r: f"v[{r}:{r+1}]"
Gb = lambda k: G + 16*(k % 4)
Xb = lambda t, s: ar(X + 16*(t % 2) + 4*s, 4)
wb = lambda s, ct: ar(WB+(s*2+ct)*4, 4)
wv = lambda s, ct: ar(WV+(s*2+ct)*4, 4)
Eo = ar(EOP, 4); ON = ar(ONE, 2)
BEo = lambda ct: vr(BEV+4*ct, 4)

def flush_st(a):
    for q in range(8):
        r = AC + q*4
        a(f"  v_add_f32 v{r}, v{r}, v{r+1}")
        a(f"  v_add_f32 v{r+2}, v{r+2}, v{r+3}")
    for ct in range(2):
        for g in range(4):
            r = AC + (ct*4+g)*4
            a(f"  ds_write2_b32 v{vNAc+g}, v{r}, v{r+2} offset0:{64+32*ct} offset1:{128+32*ct}")
def flush_own(a, tag):
    a(f"  s_cmp_eq_u32 s{sFirstB}, 0\n  s_cbranch_scc1 K2_FR{tag}")
    flush_st(a)
    a(f"  s_branch K2_FE{tag}\nK2_FR{tag}:")
    flush(a)
    a(f"K2_FE{tag}:")
def m_event1(a):
    a("  s_waitcnt lgkmcnt(0)")
    for g in range(4): a(f"  v_add_u32 v{vNAn+g}, v{vNAn+g}, v{vN4}")
    for g in range(4): a(f"  ds_read_b32 v{vT0+g}, v{vNAn+g}")
def m_event2(a):
    for ct in range(2):
        for i in range(2):
            a(f"  v_perm_b32 v{BEV+4*ct+2+i}, v{vT0+2*i+1}, v{vT0+2*i}, s{sPsel0+ct}")

def flush(a):
    for ct in range(2):
        for g in range(4):
            t = HV + (ct*4+g)*2
            a(f"  ds_read2_b32 v[{t}:{t+1}], v{vNAc+g} offset0:{64+32*ct} offset1:{128+32*ct}")
    for q in range(8):
        r = AC + q*4
        a(f"  v_add_f32 v{r}, v{r}, v{r+1}")
        a(f"  v_add_f32 v{r+2}, v{r+2}, v{r+3}")
    a("  s_waitcnt lgkmcnt(0)")
    for q in range(8):
        r = AC + q*4; t = HV + q*2
        a(f"  v_add_f32 v{r}, v{r}, v{t}")
        a(f"  v_add_f32 v{r+2}, v{r+2}, v{t+1}")
    for ct in range(2):
        for g in range(4):
            r = AC + (ct*4+g)*4
            a(f"  ds_write2_b32 v{vNAc+g}, v{r}, v{r+2} offset0:{64+32*ct} offset1:{128+32*ct}")

def next_tile(dst, src):
    return [f"  s_add_u32 s{dst}, s{src}, 1", f"  s_cmp_eq_u32 s{dst}, s{sT1}", f"  s_cselect_b32 s{dst}, s{sT0}, s{dst}"]

def dma(i):
    if OPT["nodma"]: return "  s_nop 0"
    return f"  buffer_load_dwordx4 v{vI+i}, s[{sXR}:{sXR+3}], 0 offen lds"
def la(i):
    return f"  v_lshl_add_u32 v{vI+i}, v{vI+i}, 7, v{vC+i}"

def ord_read(a):
    a(f"  s_lshl_b32 s{sTmp}, s{sGn}, 5\n  v_add_u32 v{vT0}, s{sTmp}, v{vOrd}\n  ds_read_b128 v[{vNAn}:{vNAn+3}], v{vT0}")
def next_group(a):
    a(f"  s_add_u32 s{sTmp}, s{sGn}, 1\n  s_cmp_lt_u32 s{sGn}, s{sGlast}\n  s_cselect_b32 s{sGn}, s{sTmp}, s{sG0}")
def m_event(a):
    a("  s_waitcnt lgkmcnt(0)")
    for g in range(4): a(f"  v_add_u32 v{vNAn+g}, v{vNAn+g}, v{vN4}")
    for g in range(4): a(f"  ds_read_b32 v{vT0+g}, v{vNAn+g}")
    a("  s_waitcnt lgkmcnt(0)")
    for ct in range(2):
        for i in range(2):
            a(f"  v_perm_b32 v{BEV+4*ct+2+i}, v{vT0+2*i+1}, v{vT0+2*i}, s{sPsel0+ct}")

def p_unit(a, k, first):
    ct = k & 1
    for half in range(2):
        for gq in range(4):
            e = Gb(k) + 4*gq; h = HV + 4*gq; r = AC + (ct*4+gq)*4
            if first:
                if half == 0:
                    a(f"  v_pk_mul_f32 {pr(r)}, {pr(e)}, {pr(h)}")
                    a(f"  v_pk_add_f32 {pr(r+2)}, {pr(e)}, {pr(e+2)}")
                else:
                    a(f"  v_pk_fma_f32 {pr(r)}, {pr(e+2)}, {pr(h+2)}, {pr(r)}")
            else:
                a(f"  v_pk_fma_f32 {pr(r)}, {pr(e+2*half)}, {pr(h+2*half)}, {pr(r)}")
                a(f"  v_pk_add_f32 {pr(r+2)}, {pr(e+2*half)}, {pr(r+2)}")

def t_unit(a, k):
    t, ct = k >> 1, k & 1
    T = [f"  v_exp_f32 v{Gb(k+1)+i}, v{Gb(k+1)+i}" for i in range(16)] + [f"  v_rcp_f32 v{Gb(k)+i}, v{Gb(k)+i}" for i in range(16)]
    Hm = [mfma16(HV, Xb(t, s), wv(s, ct), g16(HV) if s else "0") for s in range(4)]
    d = Gb(k+2)
    Gm = [mfma16(d, Eo, BEo(ct), "0")] + [mfma16(d, Xb(t+1, s), wb(s, ct), g16(d)) for s in range(4)]
    A1 = mfma8(Gb(k+1), ON, ON, g16(Gb(k+1)))
    M = [Hm[0], Gm[0], Hm[1], Gm[1], Hm[2], Gm[2], A1, Hm[3], Gm[3], Gm[4]]
    side = [[] for _ in M]
    nt = next_tile(sTn2, sTn)
    if ct == 0:
        pre = ["  s_waitcnt lgkmcnt(0)", la(0), la(1)]
        side[0] = [f"  s_mov_b32 m0, s{sM0}", la(2), la(3)]
        side[1] = [dma(0), f"  s_add_u32 m0, s{sM0}, 1024"]
        side[2] = [dma(1), f"  s_add_u32 m0, s{sM0}, 2048"]
        side[3] = [dma(2), f"  s_add_u32 m0, s{sM0}, 3072"]
        side[4] = [dma(3), nt[0]]
        side[5] = [nt[1], nt[2]]
        side[7] = [f"  s_lshl_b32 s{sTmp}, s{sTn2}, 7", f"  v_add_u32 v{vK}, s{sTmp}, v{vKb}"]
        side[8] = [f"  ds_read_b128 v[{vI}:{vI+3}], v{vK}", f"  v_mad_u32_u24 v{vE}, v{vEs}, s{sTn}, v{vEb}"]
        side[9] = [f"  s_mov_b32 s{sTn}, s{sTn2}"]
    else:
        pre = []
        side[2] = [f"  ds_read2_b32 a[{EOP}:{EOP+1}], v{vE} offset0:0 offset1:1"]
        side[7] = ["  s_waitcnt vmcnt(0)"]
        side[8] = [f"  ds_read_b128 {Xb(t,0)}, v{vXA}", f"  ds_read_b128 {Xb(t,1)}, v{vXA+1}"]
        side[9] = [f"  ds_read_b128 {Xb(t,2)}, v{vXA+2}", f"  ds_read_b128 {Xb(t,3)}, v{vXA+3}"]
    if OPT["prio"] == 2: a("  s_setprio 0")
    for p_ in pre: a(p_)
    ti = 0
    for i, m in enumerate(M):
        a(m)
        for s_ in side[i]: a(s_)
        n = 3 if i < 9 else 32 - ti
        for _ in range(n):
            a(T[ti]); ti += 1
    if OPT["prio"] == 2: a("  s_setprio 1")

def tile_code(a, par):
    for ct in range(2):
        k = 2*par + ct
        t_unit(a, k)
        a(f"  s_bitcmp1_b32 s{sF}, s{sTau}\n  s_cbranch_scc0 K2_PN{k}")
        p_unit(a, k, True)
        a(f"  s_branch K2_PE{k}\nK2_PN{k}:")
        p_unit(a, k, False)
        a(f"K2_PE{k}:")
    a(f"""  s_add_u32 s{sTau}, s{sTau}, 1
  s_cmp_ge_u32 s{sTau}, s{sN}
  s_cbranch_scc1 K2_LAST
  s_bitcmp1_b32 s{sF}, s{sTau}
  s_cbranch_scc0 K2_NF{par}""")
    flush_own(a, par)
    for g in range(4): a(f"  v_mov_b32 v{vNAc+g}, v{vNAn+g}")
    next_group(a)
    ord_read(a)
    a(f"""K2_NF{par}:
  s_add_u32 s{sTmp}, s{sTau}, 1
  s_bitcmp1_b32 s{sF}, s{sTmp}
  s_cbranch_scc0 K2_NM{par}""")
    m_event(a)
    a(f"K2_NM{par}:")

def gen_k2(a):
    ld = OPT["ld_flags"]; st = OPT["st_flags"]
    R = lambda k: 40 + 4*k
    A4 = lambda k: 104 + k
    OF, VA = 120, 128
    WR = 136
    vTid, vLane, vOne = 4, 5, 6
    vL1, vL2, vBase, vMx = 20, 21, 22, 23
    D, S_, EAr, Bk, Rk = 40, 48, 56, 72, 80
    IMN = NODE + 256
    def msk(k): return (sM1 + 2*k) if k < 8 else (sM2 + 2*(k-8))
    a(f"""
.globl {KN}
.p2align 8
.type {KN},@function
{KN}:
  s_cmp_ge_u32 s2, 256
  s_cbranch_scc1 K2_END
  s_load_dwordx16 s[28:43], s[0:1], 0
  s_load_dwordx8 s[44:51], s[0:1], 64       ; wv out dbg ws
  v_lshrrev_b32 v{vT0}, 6, v0
  v_mov_b32 v{vTid}, v0
  v_readfirstlane_b32 s{sW}, v{vT0}
  v_and_b32 v{vLane}, 63, v0
@CPF2@
@S0@
  v_lshlrev_b32 v88, 4, v0                  ; tid*16
  s_mul_i32 s{sTmp}, s2, {CH*4}
  v_add_u32 v89, s{sTmp}, v88
  v_add_u32 v90, 8192, v89
  v_lshlrev_b32 v91, 1, v89
  v_lshlrev_b32 v92, 1, v90
  v_mov_b32 v{vOne}, 1
  v_mov_b32 v96, 0
  v_mov_b32 v97, 0
  v_mov_b32 v98, 0
  v_mov_b32 v99, 0
  v_cmp_gt_u32 vcc, 288, v0
  s_mov_b64 s[52:53], vcc
  s_cmp_lg_u32 s{sW}, 0
  s_cbranch_scc1 F_A
  ds_write_b128 v88, v[96:99] offset:{K1_CNT}
F_A:
  s_and_b32 s{sB}, s2, 7
  s_lshl_b32 s{sB}, s{sB}, 5
  s_lshr_b32 s{sTmp}, s2, 3
  s_or_b32 s{sB}, s{sB}, s{sTmp}
  s_waitcnt lgkmcnt(0)
  s_cmp_ge_u32 s2, {NP}
  s_cbranch_scc1 F_NOD
  global_load_dwordx4 v[{D}:{D+3}], v89, s[34:35]
  s_mov_b64 exec, s[52:53]
  global_load_dwordx4 v[{D+4}:{D+7}], v90, s[34:35]
  s_mov_b64 exec, -1
F_NOD:
  s_lshl_b32 s{sTmp}, s{sB}, 10
  s_add_u32 s{sTmp}, s{sTmp}, {OFFS}
  s_add_u32 s{sOFF}, s50, s{sTmp}
  s_addc_u32 s{sOFF+1}, s51, 0
  s_and_b32 s{sOFF+1}, s{sOFF+1}, 0xffff
  s_mov_b32 s{sOFF+2}, {NP*4}
  s_mov_b32 s{sOFF+3}, 0x20000
  s_mov_b32 s{sSB}, 0
  s_mov_b32 s{sSW}, 32
  s_mov_b32 s{sFirstB}, 1
  s_mov_b32 s96, s50
  s_mov_b32 s97, s51
  s_mov_b32 s6, s48
  s_mov_b32 s7, s49
  s_mov_b32 s{sXR}, s28
  s_and_b32 s{sXR+1}, s29, 0xffff
  s_mov_b32 s{sXR+2}, 3200000
  s_mov_b32 s{sXR+3}, 0x20000
  s_mov_b32 s{sOUT}, s46
  s_and_b32 s{sOUT+1}, s47, 0xffff
  s_mov_b32 s{sOUT+2}, 3200000
  s_mov_b32 s{sOUT+3}, 0x20000
  s_mov_b32 s{sREC}, s50
  s_and_b32 s{sREC+1}, s51, 0xffff
  s_mov_b32 s{sREC+2}, {NP*RECB}
  s_mov_b32 s{sREC+3}, 0x20000
  s_lshr_b32 s{sTmp}, s{sW}, 1
  s_cmp_eq_u32 s{sTmp}, 0
  s_cselect_b32 s{sWM}, s38, s44
  s_cselect_b32 s{sWM+1}, s39, s45
  s_cmp_eq_u32 s{sTmp}, 2
  s_cselect_b32 s{sWM}, s36, s{sWM}
  s_cselect_b32 s{sWM+1}, s37, s{sWM+1}
  s_cmp_eq_u32 s{sTmp}, 3
  s_cselect_b32 s{sWM}, s42, s{sWM}
  s_cselect_b32 s{sWM+1}, s43, s{sWM+1}
  s_mov_b32 s{sPsel0}, 0x05040100
  s_mov_b32 s{sPsel1}, 0x07060302
  v_and_b32 v{vT0}, 31, v{vLane}
  v_lshlrev_b32 v{vN4}, 2, v{vT0}
""")
    for i in range(8):
        a(f"  s_mov_b32 s{sSeg+i}, {i*RECB}")
    a(f"""
  v_lshrrev_b32 v{vT1}, 5, v{vLane}
  v_lshlrev_b32 v{vOrd}, 4, v{vT1}
  v_add_u32 v{vOrd}, {ORDA}, v{vOrd}
  v_cmp_eq_u32 vcc, 0, v{vT1}
  v_mov_b32 v{vT2}, 0x3f80
  v_mov_b32 v{vT3}, 0
  v_cndmask_b32 v{vT2}, v{vT3}, v{vT2}, vcc
  v_accvgpr_write_b32 a{ONE}, v{vT2}
  v_accvgpr_write_b32 a{ONE+1}, v{vT3}
  v_mov_b32 v{vT2}, 128
  v_mov_b32 v{vT3}, 256
  v_cndmask_b32 v{vEs}, v{vT2}, v{vT3}, vcc
  v_lshlrev_b32 v{vT2}, 3, v{vT0}
  v_add_u32 v{vT3}, {K0}, v{vN4}
  v_cndmask_b32 v{vEb}, v{vT3}, v{vT2}, vcc
  v_lshrrev_b32 v{vT2}, 3, v{vLane}
  v_lshlrev_b32 v{vKb}, 4, v{vT2}
  v_add_u32 v{vKb}, {K0}, v{vKb}
  v_bfe_u32 v{vT2}, v{vT0}, 2, 1
  v_cmp_eq_u32 vcc, v{vT2}, v{vT1}
  v_bfe_u32 v{vT2}, v{vT0}, 3, 1
  v_lshlrev_b32 v{vT2}, 4, v{vT2}
  v_mov_b32 v{vT3}, 0x3f80
  v_lshlrev_b32 v{vT3}, v{vT2}, v{vT3}
  v_cndmask_b32 v{vT3}, 0, v{vT3}, vcc
  v_cmp_gt_u32 vcc, 16, v{vT0}
  s_nop 1
  v_cndmask_b32 v{vT2}, 0, v{vT3}, vcc
  v_cndmask_b32 v{vT3}, v{vT3}, 0, vcc
  v_accvgpr_write_b32 a{EOP+2}, v{vT2}
  v_accvgpr_write_b32 a{EOP+3}, v{vT3}
  v_and_b32 v{vT2}, 7, v{vLane}
  v_bfe_u32 v{vT3}, v{vLane}, 4, 1
  v_lshlrev_b32 v{vT3}, 2, v{vT3}
  v_xor_b32 v{vT2}, v{vT2}, v{vT3}
""")
    for i in range(4):
        a(f"  v_xor_b32 v{vC+i}, {i}, v{vT2}\n  v_lshlrev_b32 v{vC+i}, 4, v{vC+i}")
    a(f"""
  v_bfe_u32 v{vT2}, v{vT0}, 1, 3
  v_lshlrev_b32 v{vT3}, 2, v{vT1}
  v_xor_b32 v{vT2}, v{vT2}, v{vT3}
  v_lshlrev_b32 v{vT3}, 7, v{vT0}
  v_add_u32 v{vT3}, {XO}, v{vT3}
""")
    for s_ in range(4):
        a(f"  v_xor_b32 v{24+s_}, {s_}, v{vT2}\n  v_lshl_add_u32 v{24+s_}, v{24+s_}, 4, v{vT3}")
    a(f"""
  s_lshl_b32 s{sM0}, s{sW}, 12
  s_add_u32 s{sM0}, s{sM0}, {RING}
  v_mul_u32_u24 v7, {4*ROWB}, v{vT1}
  v_add_u32 v7, v7, v{vN4}
  v_and_b32 v{vT2}, 3, v{vT0}
  v_bfe_u32 v{vK}, v{vT0}, 3, 1
  v_xor_b32 v{vK}, v{vK}, v{vT1}
  v_lshl_or_b32 v{vK}, v{vK}, 2, v{vT2}
  v_lshlrev_b32 v{vT2}, 10, v{vT2}
  v_lshrrev_b32 v{vT0}, 2, v{vT0}
  v_lshl_add_u32 v{vT2}, v{vT0}, 7, v{vT2}
  v_add_u32 v{vT2}, s{sM0}, v{vT2}
""")
    for s_ in range(4):
        a(f"  v_xor_b32 v{vXA+s_}, {s_}, v{vK}\n  v_lshl_add_u32 v{vXA+s_}, v{vXA+s_}, 4, v{vT2}")
    a(f"""

  v_lshrrev_b32 v{vT1}, 5, v{vLane}
  v_lshl_add_u32 v{vTSV}, v{vT1}, 12, v{vN4}
  s_and_b32 s{sTmp2}, s{sW}, 1
  s_lshl_b32 s{sTmp2}, s{sTmp2}, 11
  v_add_u32 v{vTSV}, s{sTmp2}, v{vTSV}
  v_lshrrev_b32 v{vT2}, 3, v{vLane}
  v_lshlrev_b32 v{vT2}, 15, v{vT2}
  v_and_b32 v{vT3}, 7, v{vLane}
  v_lshrrev_b32 v{vE}, 4, v{vLane}
  v_xor_b32 v{vT3}, v{vT3}, v{vE}
  v_lshl_add_u32 v{vE}, v{vT3}, 4, v{vT2}
  v_xor_b32 v{vT3}, 4, v{vT3}
  v_lshl_add_u32 v{vK}, v{vT3}, 4, v{vT2}
  s_lshl_b32 s{sTmp}, s{sW}, 19
  s_lshl_b32 s{sTmp2}, s{sB}, 7
  s_add_u32 s{sTn}, s{sTmp}, s{sTmp2}
  s_add_u32 s{sTn2}, s{sTn}, {8*32768}
  s_lshl_b32 s{sN}, s{sW}, 11
  s_add_u32 m0, s{sN}, {XO}
  s_cmp_ge_u32 s2, {NP}
  s_cbranch_scc1 F_NOD2
  s_barrier
@S2@
  s_waitcnt vmcnt(0)
@S3@
  global_load_dwordx4 v[{S_}:{S_+3}], v89, s[32:33]
  global_load_dwordx4 v[{EAr}:{EAr+3}], v91, s[30:31]
  global_load_dwordx4 v[{EAr+4}:{EAr+7}], v91, s[30:31] offset:16
  s_mov_b64 exec, s[52:53]
  global_load_dwordx4 v[{S_+4}:{S_+7}], v90, s[32:33]
  global_load_dwordx4 v[{EAr+8}:{EAr+11}], v92, s[30:31]
  global_load_dwordx4 v[{EAr+12}:{EAr+15}], v92, s[30:31] offset:16
  s_mov_b64 exec, -1
""")
    for k in range(8):
        if k == 4: a(f"  s_mov_b64 exec, s[52:53]")
        a(f"  v_lshlrev_b32_sdwa v{Bk+k}, 2, v{D+k} dst_sel:DWORD dst_unused:UNUSED_PAD src0_sel:DWORD src1_sel:BYTE_0")
        a(f"  ds_add_rtn_u32 v{Rk+k}, v{Bk+k}, v{vOne} offset:{K1_CNT}")
    a("  s_mov_b64 exec, -1\nF_NOD2:")
    for j in range(16):
        a(f"  global_load_dword v{WR+j}, v{vTSV}, s[{sWM}:{sWM+1}] offset:{128*j}")
    for j in range(4):
        a(f"  global_load_dword v{BEV+(0,1,4,5)[j]}, v{vN4}, s[40:41] offset:{128*j}")
    a(f"""
  buffer_load_dwordx4 v{vE}, s[{sXR}:{sXR+3}], s{sTn} offen lds
  s_add_u32 m0, s{sN}, {XO+1024}
  s_nop 0
  buffer_load_dwordx4 v{vK}, s[{sXR}:{sXR+3}], s{sTn2} offen lds
  s_cmp_ge_u32 s2, {NP}
  s_cbranch_scc1 F_PACK
  s_waitcnt lgkmcnt(0)
  s_barrier
  s_cmp_lg_u32 s{sW}, 0
  s_cbranch_scc1 F_B
  ds_read_b128 v[96:99], v88 offset:{K1_CNT}
  s_waitcnt lgkmcnt(0)
  v_add_u32 v101, v96, v97
  v_add_u32 v102, v101, v98
  v_add_u32 v103, v102, v99
  v_mov_b32 v104, v103
""")
    dpp_scan(a, 104)
    a(f"""
  v_sub_u32 v105, v104, v103
  v_add_u32 v107, v105, v96
  v_add_u32 v108, v105, v101
  v_add_u32 v109, v105, v102
  v_mul_u32_u24 v106, 12, v105
  v_mul_u32_u24 v107, 12, v107
  v_mul_u32_u24 v108, 12, v108
  v_mul_u32_u24 v109, 12, v109
  ds_write_b128 v88, v[106:109] offset:{K1_START}
  v_lshl_or_b32 v110, v96, 16, v106
  v_lshl_or_b32 v111, v97, 16, v107
  v_lshl_or_b32 v112, v98, 16, v108
  v_lshl_or_b32 v113, v99, 16, v109
  s_lshl_b32 s{sTmp}, s2, 2
  s_add_u32 s{sTmp}, s{sTmp}, {OFFS}
  v_lshlrev_b32 v114, 12, v{vTid}
  v_add_u32 v114, s{sTmp}, v114
  global_store_dword v114, v110, s[96:97] {st}
  global_store_dword v114, v111, s[96:97] offset:1024 {st}
  global_store_dword v114, v112, s[96:97] offset:2048 {st}
  global_store_dword v114, v113, s[96:97] offset:3072 {st}
F_B:
""")
    for k in range(8):
        a(f"  v_lshrrev_b32 v{D+k}, 8, v{D+k}")
    a(f"""
  s_mul_i32 s{sTmp}, s2, {RECB}
  v_add_u32 v89, s{sTmp}, v88
  s_waitcnt lgkmcnt(0)
  s_barrier
@S4@
""")
    for k in range(8):
        if k == 4: a(f"  s_mov_b64 exec, s[52:53]")
        a(f"  ds_read_b32 v{Bk+k}, v{Bk+k} offset:{K1_START}")
    a("  s_mov_b64 exec, -1\n  s_waitcnt vmcnt(22) lgkmcnt(0)")
    for k in range(8):
        if k == 4: a(f"  s_mov_b64 exec, s[52:53]")
        a(f"  v_lshl_or_b32 v{S_+k}, v{D+k}, 18, v{S_+k}")
        a(f"  v_mad_u32_u24 v{Bk+k}, v{Rk+k}, 12, v{Bk+k}")
        a(f"  ds_write_b32 v{Bk+k}, v{S_+k} offset:8")
        a(f"  ds_write2_b32 v{Bk+k}, v{EAr+2*k}, v{EAr+2*k+1} offset0:0 offset1:1")
    a(f"""
  s_mov_b64 exec, -1
  v_cmp_gt_u32 vcc, 352, v{vTid}
  s_mov_b64 s[52:53], vcc
  v_add_u32 v90, 16384, v89
  v_add_u32 v91, 32768, v89
  s_waitcnt lgkmcnt(0)
  s_barrier
@S5@
  ds_read_b128 v[40:43], v88
  ds_read_b128 v[44:47], v88 offset:8192
  ds_read_b128 v[48:51], v88 offset:16384
  ds_read_b128 v[52:55], v88 offset:24576
  ds_read_b128 v[56:59], v88 offset:32768
  v_add_u32 v92, 8192, v89
  v_add_u32 v93, 8192, v90
  s_waitcnt lgkmcnt(4)
  global_store_dwordx4 v89, v[40:43], s[96:97] {st}
  s_waitcnt lgkmcnt(3)
  global_store_dwordx4 v92, v[44:47], s[96:97] {st}
  s_waitcnt lgkmcnt(2)
  global_store_dwordx4 v90, v[48:51], s[96:97] {st}
  s_waitcnt lgkmcnt(1)
  global_store_dwordx4 v93, v[52:55], s[96:97] {st}
  s_waitcnt lgkmcnt(0)
  s_mov_b64 exec, s[52:53]
  global_store_dwordx4 v91, v[56:59], s[96:97] {st}
  s_mov_b64 exec, -1
F_PACK:
  v_lshlrev_b32 v{vK}, 4, v{vLane}
  v_add_u32 v{vE}, {RING}, v{vK}
  v_lshrrev_b32 v{vT1}, 5, v{vLane}
  v_mul_u32_u24 v{vT1}, 768, v{vT1}
  v_lshl_add_u32 v{vK}, v{vN4}, 2, v{vT1}
  v_add_u32 v{vK}, {IMN}, v{vK}
  s_mov_b32 s{sCur}, {NLOG2E:#x}
  s_cmp_ge_u32 s2, {NP}
  s_cbranch_scc1 F_W0
  s_waitcnt vmcnt(5)
  s_branch F_W1
F_W0:
  s_waitcnt vmcnt(0)
F_W1:
  s_cmp_lt_u32 s{sW}, 2
  s_cbranch_scc1 K2_PKS
""")
    for s_ in range(2):
        for ct in range(2):
            for jj in range(4):
                a(f"  v_perm_b32 v{104+8*s_+4*ct+jj}, v{WR+8*s_+2*jj+1}, v{WR+8*s_+2*jj}, s{sPsel0+ct}")
    a("  s_branch K2_PKD\nK2_PKS:")
    for j in range(16):
        a(f"  v_lshlrev_b32 v{120+(j&7)}, 16, v{WR+j}")
        a(f"  v_and_b32 v{WR+j}, 0xffff0000, v{WR+j}")
        a(f"  v_mul_f32 v{120+(j&7)}, s{sCur}, v{120+(j&7)}")
        a(f"  v_mul_f32 v{WR+j}, s{sCur}, v{WR+j}")
        if j & 1:
            s_, jj = j >> 3, (j & 7) >> 1
            a(f"  v_cvt_pk_bf16_f32 v{104+8*s_+jj}, v{120+(j&7)-1}, v{120+(j&7)}")
            a(f"  v_cvt_pk_bf16_f32 v{104+8*s_+4+jj}, v{WR+j-1}, v{WR+j}")
    a(f"""K2_PKD:
  s_cmp_lt_u32 s{sW}, 4
  s_cbranch_scc0 F_I1
  s_lshl_b32 s{sTmp}, s{sW}, 12
  v_add_u32 v{vT2}, s{sTmp}, v{vE}""")
    for q in range(4):
        a(f"  ds_write_b128 v{vT2}, v[{104+4*q}:{107+4*q}] offset:{1024*q}")
    a(f"""  s_branch F_I2
F_I1:
  s_sub_u32 s{sTmp}, s{sW}, 4
  s_mul_i32 s{sTmp}, s{sTmp}, {4*1536}
  v_add_u32 v{vT2}, s{sTmp}, v{vK}""")
    for q in range(4):
        a(f"  ds_write_b128 v{vT2}, v[{104+4*q}:{107+4*q}] offset:{1536*q}")
    a("F_I2:")
    src = [BEV, BEV+1, BEV+4, BEV+5]
    for j in range(4):
        a(f"  v_lshlrev_b32 v{120+j}, 16, v{src[j]}")
        a(f"  v_and_b32 v{124+j}, 0xffff0000, v{src[j]}")
        a(f"  v_mul_f32 v{120+j}, s{sCur}, v{120+j}")
        a(f"  v_mul_f32 v{124+j}, s{sCur}, v{124+j}")
    a(f"""
  v_cvt_pk_bf16_f32 v{BEV}, v120, v121
  v_cvt_pk_bf16_f32 v{BEV+1}, v122, v123
  v_cvt_pk_bf16_f32 v{BEV+4}, v124, v125
  v_cvt_pk_bf16_f32 v{BEV+5}, v126, v127
  s_mov_b32 s{sSave}, 0
  s_mov_b32 s{sSave+1}, -1
  s_mov_b64 exec, s[{sSave}:{sSave+1}]
  v_mov_b32 v{BEV}, 0x71800000
  v_mov_b32 v{BEV+1}, 0
  v_mov_b32 v{BEV+4}, 0x71800000
  v_mov_b32 v{BEV+5}, 0
  s_mov_b64 exec, -1
  s_waitcnt vmcnt(0) lgkmcnt(0)
  s_barrier
@S6@
  s_cmp_lg_u32 s{sW}, 0
  s_cbranch_scc1 F_NP
  s_cmp_ge_u32 s2, {NP}
  s_cbranch_scc1 F_NP
  v_mov_b32 v{vT2}, 0
  s_mov_b64 exec, 1
  global_atomic_add v{vT2}, v{vOne}, s[6:7] sc1
  s_mov_b64 exec, -1
F_NP:
  s_lshr_b32 s{sTmp}, s{sW}, 1
  s_lshl_b32 s{sTmp2}, s{sTmp}, 12
  s_mul_i32 s{sTmp}, s{sTmp}, {32*ROWB}
""")
    for s_ in range(4):
        a(f"  v_add_u32 v{vT0+s_}, s{sTmp2}, v{24+s_}")
    for s_ in range(4):
        a(f"  ds_read_b128 {Xb(1,s_)}, v{vT0+s_}")
    a(f"""
  s_and_b32 s{sTmp2}, s{sW}, 1
  s_cselect_b32 s{sCur}, 1.0, s{sCur}
  s_mul_i32 s{sN}, s{sTmp2}, {8*1536}
  v_add_u32 v{vT0}, s{sN}, v{vK}
  s_lshl_b32 s{sTmp2}, s{sTmp2}, 7
  s_add_u32 s{sTmp}, s{sTmp}, s{sTmp2}
  s_add_u32 s{sTmp}, s{sTmp}, {NODE}
  v_add_u32 v{vT1}, s{sTmp}, v7
""")
    for q in range(8):
        a(f"  ds_read_b128 {ar(4*q,4)}, v{vT0} offset:{1536*q}")
    for s_ in range(4):
        for ct in range(2):
            a(f"  s_waitcnt lgkmcnt({7-2*s_-ct})")
            a(mfma16(120+16*ct, Xb(1,s_), ar((s_*2+ct)*4,4), g16(120+16*ct) if s_ else "0"))
    for q in range(8):
        a(f"  ds_read_b128 {ar(32+4*q,4)}, v{vE} offset:{8192+1024*q}")
    a("  s_nop 3")
    for r in range(16):
        a(f"  v_mul_f32 v{120+r}, s{sCur}, v{120+r}")
        a(f"  v_mul_f32 v{136+r}, s{sCur}, v{136+r}")
        a(f"  v_cvt_pk_bf16_f32 v{120+r}, v{120+r}, v{136+r}")
        a(f"  ds_write_b32 v{vT1}, v{120+r} offset:{(8*(r>>2)+(r&3))*ROWB}")
        if r == 2: a(f"  s_cmp_ge_u32 s{sW}, 6\n  s_cbranch_scc1 K2_JOBE")
    a("K2_JOBE:")
    for q in range(8):
        a(f"  ds_read_b128 {ar(4*q,4)}, v{vE} offset:{1024*q}")
    a(f"""
  v_mov_b32 v40, 0
  v_mov_b32 v41, 0
  v_mov_b32 v42, 0
  v_mov_b32 v43, 0
  v_lshlrev_b32 v{vT2}, 4, v{vTid}
  ds_write_b128 v{vT2}, v[40:43] offset:{EA0}
  ds_write_b128 v{vT2}, v[40:43] offset:{EA0+8192}
  ds_write_b128 v{vT2}, v[40:43] offset:{EA0+16384}
  ds_write_b128 v{vT2}, v[40:43] offset:{EA0+24576}
K2_RESET:
  v_mov_b32 v40, 0
  v_mov_b32 v41, 0
  v_mov_b32 v42, 0
  v_mov_b32 v43, 0
  v_mov_b32 v44, 1.0
  v_mov_b32 v45, 1.0
  v_mov_b32 v46, 1.0
  v_mov_b32 v47, 1.0
  v_mov_b32 v{vOne}, 1
  v_lshlrev_b32 v{vT2}, 4, v{vTid}
  ds_write_b128 v{vT2}, v[44:47] offset:{K0}
  ds_write_b128 v{vT2}, v[44:47] offset:{K0+8192}
  v_cmp_gt_u32 vcc, {(MISC+64-CNT)//16}, v{vTid}
  s_and_saveexec_b64 s[{sSave}:{sSave+1}], vcc
  ds_write_b128 v{vT2}, v[40:43] offset:{CNT}
  s_mov_b64 exec, s[{sSave}:{sSave+1}]
  v_and_b32 v{vT0}, 15, v{vTid}
  v_add_u32 v{vT1}, 16, v{vT0}
  v_mov_b32 v{vT3}, 0xffff
  v_cmp_gt_u32 vcc, s{sSW}, v{vT0}
  v_add_u32 v{vT2}, s{sSB}, v{vT0}
  s_nop 0
  v_cndmask_b32 v{vL1}, v{vT3}, v{vT2}, vcc
  v_cmp_gt_u32 vcc, s{sSW}, v{vT1}
  v_add_u32 v{vT1}, s{sSB}, v{vT1}
  s_nop 0
  v_cndmask_b32 v{vL2}, v{vT3}, v{vT1}, vcc
  v_mul_u32_u24 v{vT2}, 12, v{vT2}
  v_lshrrev_b32 v{vT1}, 4, v{vTid}
  s_mov_b32 s{sTmp}, {8*RECB}
  v_mad_u32_u24 v{vBase}, v{vT1}, s{sTmp}, v{vT2}
  v_lshlrev_b32 v{vTSV}, 5, v{vT1}
  s_cmp_eq_u32 s{sFirstB}, 0
  s_cbranch_scc1 K2_OFL
  v_and_b32 v{vT0}, 31, v{vLane}
  v_lshrrev_b32 v{vT2}, 5, v{vTid}
  v_mul_u32_u24 v{vT2}, {ROWB}, v{vT2}
  v_lshl_add_u32 v{vT2}, v{vT0}, 4, v{vT2}
  v_add_u32 v{vT2}, {NODE+256}, v{vT2}
  v_add_u32 v{vT3}, {4*16*ROWB}, v{vT2}
  s_waitcnt lgkmcnt(0)
@S7@
  s_cmp_lg_u32 s{sW}, 0
  s_cbranch_scc1 F_PD
  v_mov_b32 v{vT0}, 0
  s_mov_b32 s{sTmp}, {OPT["spin"]}
F_POLL:
  global_load_dword v{vT1}, v{vT0}, s[6:7] sc1
  s_waitcnt vmcnt(0)
  v_readfirstlane_b32 s{sTmp2}, v{vT1}
  s_cmp_ge_u32 s{sTmp2}, {NP}
  s_cbranch_scc1 F_PD
  s_sleep {OPT["sleep"]}
  s_sub_u32 s{sTmp}, s{sTmp}, 1
  s_cmp_lg_u32 s{sTmp}, 0
  s_cbranch_scc1 F_POLL
  v_mov_b32 v{vT0}, {MISC+8}
  ds_write_b32 v{vT0}, v{vOne}
  s_waitcnt lgkmcnt(0)
F_PD:
  s_barrier
@S8@
K2_OFL:
  buffer_load_dwordx4 v[{OF}:{OF+3}], v{vTSV}, s[{sOFF}:{sOFF+3}], 0 offen {ld}
  buffer_load_dwordx4 v[{OF+4}:{OF+7}], v{vTSV}, s[{sOFF}:{sOFF+3}], 0 offen offset:16 {ld}
  s_cmp_eq_u32 s{sFirstB}, 0
  s_cbranch_scc1 K2_OFW
""")
    for k in range(7):
        t = vT2 if k < 4 else vT3
        a(f"  ds_write_b128 v{t}, v[40:43] offset:{(k&3)*16*ROWB}")
    a(f"""
  v_mov_b32 v{vT0}, {MISC+8}
  ds_read_b32 v{vT1}, v{vT0}
  s_waitcnt lgkmcnt(0)
  v_readfirstlane_b32 s{sTmp}, v{vT1}
  s_cmp_lg_u32 s{sTmp}, 0
  s_cbranch_scc1 K2_END
K2_OFW:
  s_waitcnt vmcnt(0)
@S9@
""")
    for i in range(8):
        a(f"  v_add_u32_sdwa v{VA+i}, v{OF+i}, v{vBase} dst_sel:DWORD dst_unused:UNUSED_PAD src0_sel:WORD_0 src1_sel:DWORD")
        a(f"  v_cmp_lt_u32_sdwa s[{sM1+2*i}:{sM1+2*i+1}], v{vL1}, v{OF+i} src0_sel:DWORD src1_sel:WORD_1")
        a(f"  s_mov_b64 exec, s[{sM1+2*i}:{sM1+2*i+1}]")
        a(f"  buffer_load_dwordx3 v[{R(i)}:{R(i)+2}], v{VA+i}, s[{sREC}:{sREC+3}], s{sSeg+i} offen {ld}")
        a("  s_mov_b64 exec, -1")
    for i in range(8):
        a(f"  v_cmp_lt_u32_sdwa s[{sM2+2*i}:{sM2+2*i+1}], v{vL2}, v{OF+i} src0_sel:DWORD src1_sel:WORD_1")
    for i in range(8):
        a(f"  s_mov_b64 exec, s[{sM2+2*i}:{sM2+2*i+1}]")
        a(f"  s_cbranch_execz K2_LS{i}")
        a(f"  buffer_load_dwordx3 v[{R(8+i)}:{R(8+i)+2}], v{VA+i}, s[{sREC}:{sREC+3}], s{sSeg+i} offen offset:192 {ld}")
        a(f"K2_LS{i}:")
    a(f"""
  s_mov_b64 exec, -1
  v_max3_u32 v{vT2}, v{OF}, v{OF+1}, v{OF+2}
  v_max3_u32 v{vT3}, v{OF+3}, v{OF+4}, v{OF+5}
  v_max3_u32 v{vT2}, v{OF+6}, v{OF+7}, v{vT2}
  v_max_u32 v{vT2}, v{vT2}, v{vT3}
  v_lshrrev_b32 v{vMx}, 16, v{vT2}
  v_mov_b32 v{vT2}, {MISC}
  s_mov_b32 s{sSave}, 0x00010001
  s_mov_b32 s{sSave+1}, 0x00010001
  s_cmp_eq_u32 s{sFirstB}, 1
  s_cbranch_scc1 K2_NB1
  s_waitcnt lgkmcnt(0)
  s_barrier
K2_NB1:
  s_mov_b64 exec, s[{sSave}:{sSave+1}]
  ds_max_u32 v{vT2}, v{vMx}
  s_waitcnt vmcnt(0)
@S12@
""")
    for k in range(16):
        a(f"  s_mov_b64 exec, s[{msk(k)}:{msk(k)+1}]")
        if k >= 8: a(f"  s_cbranch_execz K2_RS{k}")
        a(f"  v_lshrrev_b32 v{A4(k)}, 16, v{R(k)+2}")
        a(f"  ds_add_rtn_u32 v{R(k)+3}, v{A4(k)}, v{vOne} offset:{CNT}")
        if k >= 8: a(f"K2_RS{k}:")
    a(f"""  s_mov_b64 exec, -1
  s_waitcnt lgkmcnt(0)
  s_barrier
  s_cmp_lg_u32 s{sW}, 0
  s_cbranch_scc1 K2_PRE""")
    c0, c1, q0, q1, b0, b1, p0, p1, hv, ex, e0, e1, m0_, m1_, t0_, t1_ = range(120, 136)
    u0, u1, l4 = vT0, vT1, vT2
    a(f"""
  v_lshlrev_b32 v{l4}, 2, v{vLane}
  ds_read2st64_b32 v[{c0}:{c1}], v{l4} offset0:{CNT//256} offset1:{CNT//256+1}
  s_waitcnt lgkmcnt(0)
  v_add_u32 v{q0}, 3, v{c0}
  v_add_u32 v{q1}, 3, v{c1}
  v_lshrrev_b32 v{q0}, 2, v{q0}
  v_lshrrev_b32 v{q1}, 2, v{q1}
  v_min_u32 v{b0}, 63, v{q0}
  v_min_u32 v{b1}, 63, v{q1}
  v_sub_u32 v{b0}, 63, v{b0}
  v_sub_u32 v{b1}, 63, v{b1}
  v_lshlrev_b32 v{b0}, 2, v{b0}
  v_lshlrev_b32 v{b1}, 2, v{b1}
  ds_add_rtn_u32 v{p0}, v{b0}, v{vOne} offset:{HIST}
  ds_add_rtn_u32 v{p1}, v{b1}, v{vOne} offset:{HIST}
  ds_read_b32 v{hv}, v{l4} offset:{HIST}
  v_lshl_or_b32 v{q0}, v{q0}, 8, v{vLane}
  v_add_u32 v{u1}, 64, v{vLane}
  v_lshl_or_b32 v{q1}, v{q1}, 8, v{u1}
  s_waitcnt lgkmcnt(0)
  v_mov_b32 v{ex}, v{hv}
""")
    dpp_scan(a, ex)
    a(f"""
  v_sub_u32 v{ex}, v{ex}, v{hv}
  ds_bpermute_b32 v{u0}, v{b0}, v{ex}
  ds_bpermute_b32 v{u1}, v{b1}, v{ex}
  s_waitcnt lgkmcnt(0)
  v_add_lshl_u32 v{u0}, v{u0}, v{p0}, 2
  v_add_lshl_u32 v{u1}, v{u1}, v{p1}, 2
  ds_write_b32 v{u0}, v{q0} offset:{ORDQ}
  ds_write_b32 v{u1}, v{q1} offset:{ORDQ}
  ds_read2st64_b32 v[{e0}:{e1}], v{l4} offset0:{ORDQ//256} offset1:{ORDQ//256+1}
  s_waitcnt lgkmcnt(0)
  v_mov_b32 v{m0_}, v{e0}
  v_mov_b32 v{m1_}, v{e1}
""")
    for mode in ("quad_perm:[1,0,3,2]", "quad_perm:[2,3,0,1]", "row_half_mirror"):
        a(f"  s_nop 0\n  v_max_u32_dpp v{m0_}, v{m0_}, v{m0_} {mode} row_mask:0xf bank_mask:0xf")
        a(f"  v_max_u32_dpp v{m1_}, v{m1_}, v{m1_} {mode} row_mask:0xf bank_mask:0xf")
    a(f"""
  v_lshrrev_b32 v{m0_}, 8, v{m0_}
  v_lshrrev_b32 v{m1_}, 8, v{m1_}
  v_mov_b32 v{t0_}, v{m0_}
  v_mov_b32 v{t1_}, v{m1_}
""")
    for mode in ("row_shr:8 row_mask:0xf", "row_bcast:15 row_mask:0xa", "row_bcast:31 row_mask:0xc"):
        a(f"  s_nop 0\n  v_add_u32_dpp v{t0_}, v{t0_}, v{t0_} {mode} bank_mask:0xf")
        a(f"  v_add_u32_dpp v{t1_}, v{t1_}, v{t1_} {mode} bank_mask:0xf")
    a(f"""
  s_nop 0
  v_readlane_b32 s{sTmp}, v{t0_}, 63
  v_sub_u32 v{t0_}, v{t0_}, v{m0_}
  v_sub_u32 v{m1_}, v{t1_}, v{m1_}
  v_add_u32 v{t1_}, s{sTmp}, v{t1_}
  v_add_u32 v{m1_}, s{sTmp}, v{m1_}
  v_and_b32 v{u0}, 7, v{vLane}
  v_lshlrev_b32 v{u1}, 4, v{u0}
  v_lshl_add_u32 v{p0}, v{t0_}, 7, v{u1}
  v_lshl_add_u32 v{p1}, v{m1_}, 7, v{u1}
  v_and_b32 v{e0}, 0xff, v{e0}
  v_and_b32 v{e1}, 0xff, v{e1}
  v_lshlrev_b32 v{c0}, 2, v{e0}
  v_lshlrev_b32 v{c1}, 2, v{e1}
  ds_write_b32 v{c0}, v{p0} offset:{NB}
  ds_write_b32 v{c1}, v{p1} offset:{NB}
  v_lshrrev_b32 v{u0}, 1, v{vLane}
  v_add_u32 v{u0}, {TSV}, v{u0}
  s_mov_b32 s{sSave}, 0x01010101
  s_mov_b32 s{sSave+1}, 0x01010101
  s_mov_b64 exec, s[{sSave}:{sSave+1}]
  ds_write2_b32 v{u0}, v{t0_}, v{m1_} offset0:0 offset1:8
  s_mov_b32 s{sSave}, 0
  s_mov_b32 s{sSave+1}, 0x80000000
  s_mov_b64 exec, s[{sSave}:{sSave+1}]
  v_mov_b32 v{u1}, {TSV+64}
  ds_write_b32 v{u1}, v{t1_}
  s_mov_b64 exec, -1
  v_min_u32 v{e0}, 98, v{e0}
  v_min_u32 v{e1}, 98, v{e1}
  v_mov_b32 v{c0}, {NODE}
  s_mov_b32 s{sTmp}, {ROWB}
  v_mad_u32_u24 v{e0}, v{e0}, s{sTmp}, v{c0}
  v_mad_u32_u24 v{e1}, v{e1}, s{sTmp}, v{c0}
  v_and_b32 v{c0}, 1, v{vLane}
  v_lshlrev_b32 v{c0}, 4, v{c0}
  v_bfe_u32 v{c1}, v{vLane}, 1, 2
  v_lshl_add_u32 v{c0}, v{c1}, 2, v{c0}
  v_and_b32 v{c1}, 56, v{vLane}
  v_lshl_add_u32 v{c0}, v{c1}, 2, v{c0}
  v_add_u32 v{c0}, {ORDA}, v{c0}
  ds_write2st64_b32 v{c0}, v{e0}, v{e1} offset0:0 offset1:1
K2_PRE:
  s_mov_b32 s{sTmp}, -28
""")
    for k in range(16):
        if k >= 8: a(f"  s_cmp_eq_u64 s[{msk(k)}:{msk(k)+1}], 0\n  s_cbranch_scc1 K2_PS{k}")
        a(f"  v_and_b32 v{vT0}, 3, v{R(k)+3}")
        a(f"  v_lshlrev_b32 v{R(k)+3}, 5, v{R(k)+3}")
        a(f"  v_mad_i32_i24 v{R(k)+3}, v{vT0}, s{sTmp}, v{R(k)+3}")
        a(f"  v_and_b32 v{R(k)+2}, 0x7fff, v{R(k)+2}")
        if k >= 8: a(f"K2_PS{k}:")
    a(f"""
  v_min_u32 v{vT0}, 16, v{vLane}
  v_lshlrev_b32 v{vT0}, 2, v{vT0}
  v_mov_b32 v{vT1}, {MISC}
  s_waitcnt lgkmcnt(0)
  s_barrier
  ds_read_b32 v{vTSV}, v{vT0} offset:{TSV}
  ds_read_b32 v{vT2}, v{vT1}
""")
    for k in range(16):
        a(f"  s_mov_b64 exec, s[{msk(k)}:{msk(k)+1}]")
        if k >= 8: a(f"  s_cbranch_execz K2_NS{k}")
        a(f"  ds_read_b32 v{A4(k)}, v{A4(k)} offset:{NB}")
        if k >= 8: a(f"K2_NS{k}:")
        if k == 7:
            a(f"""  s_mov_b64 exec, -1
  s_waitcnt lgkmcnt(8)
  v_readlane_b32 s{sT}, v{vTSV}, 16
  v_readfirstlane_b32 s{sMaxC}, v{vT2}
  s_cmp_le_u32 s{sT}, {CAPT}
  s_cbranch_scc1 K2_FIT
  s_cmp_le_u32 s{sSW}, 1
  s_cbranch_scc1 K2_END
  s_lshr_b32 s{sSW}, s{sSW}, 1
  s_mov_b32 s{sFirstB}, 0
  s_waitcnt lgkmcnt(0) vmcnt(0)
  s_barrier
  s_branch K2_RESET
K2_FIT:""")
    a("  s_waitcnt lgkmcnt(0)")
    for k in range(16):
        a(f"  s_mov_b64 exec, s[{msk(k)}:{msk(k)+1}]")
        if k >= 8: a(f"  s_cbranch_execz K2_WS{k}")
        a(f"  v_add_u32 v{A4(k)}, v{A4(k)}, v{R(k)+3}")
        a(f"  ds_write_b32 v{A4(k)}, v{R(k)+2} offset:{K0}")
        a(f"  v_lshlrev_b32 v{R(k)+3}, 1, v{A4(k)}")
        if k >= 8: a(f"K2_WS{k}:")
    a(f"""
  s_mov_b64 exec, -1
  s_mul_i32 s{sT0}, s{sT}, s{sW}
  s_add_u32 s{sT1}, s{sT0}, s{sT}
  s_lshr_b32 s{sT0}, s{sT0}, 3
  s_lshr_b32 s{sT1}, s{sT1}, 3
  v_cmp_ge_u32 vcc, s{sT0}, v{vTSV}
  s_and_b32 s{sTmp}, vcc_lo, 0xffff
  s_bcnt1_i32_b32 s{sG0}, s{sTmp}
  s_sub_u32 s{sG0}, s{sG0}, 1
  v_cmp_gt_u32 vcc, s{sT1}, v{vTSV}
  s_and_b32 s{sTmp}, vcc_lo, 0xffff
  s_bcnt1_i32_b32 s{sGlast}, s{sTmp}
  s_sub_u32 s{sGlast}, s{sGlast}, 1
  s_add_u32 s{sTmp}, s{sG0}, 1
  v_readlane_b32 s{sTmp2}, v{vTSV}, s{sG0}
  v_readlane_b32 s{sTn}, v{vTSV}, s{sTmp}    ; TS[g0+1]
  s_sub_u32 s{sN}, s{sT1}, s{sT0}
  s_mov_b32 s{sCont}, 0
  s_mov_b32 s{sSlow}, 0
  s_mov_b32 s{sGn}, s{sG0}
  s_mov_b32 s{sCur}, s{sT0}
  s_mov_b32 s{sF}, 1
  s_cmp_eq_u32 s{sN}, 0
  s_cbranch_scc1 K2_FMD
  s_cmp_eq_u32 s{sTmp2}, s{sT0}
  s_cbranch_scc1 K2_FM
  s_mov_b32 s{sCont}, 1
  s_cmp_lt_u32 s{sTn}, s{sT1}
  s_cbranch_scc0 K2_ALLC
  s_add_u32 s{sGn}, s{sG0}, 1
  s_mov_b32 s{sCur}, s{sTn}
  s_sub_u32 s{sTmp}, s{sT1}, s{sCur}
  s_bitset1_b32 s{sF}, s{sTmp}
  s_branch K2_FM
K2_ALLC:
  s_cmp_gt_u32 s{sTn}, s{sT1}
  s_cselect_b32 s{sSlow}, 1, 0
K2_FM:
  s_mov_b32 s{sTau}, s{sGn}
K2_FML:
  s_cmp_ge_u32 s{sTau}, s{sGlast}
  s_cbranch_scc1 K2_FMD
  s_add_u32 s{sTau}, s{sTau}, 1
  s_nop 3
  v_readlane_b32 s{sTmp}, v{vTSV}, s{sTau}
  s_sub_u32 s{sTmp}, s{sTmp}, s{sCur}
  s_bitset1_b32 s{sF}, s{sTmp}
  s_branch K2_FML
K2_FMD:
  s_lshl_b32 s{sTmp}, s{sCur}, 7
  v_add_u32 v{vK}, s{sTmp}, v{vKb}
  v_mad_u32_u24 v{vE}, v{vEs}, s{sCur}, v{vEb}
""")
    for l in next_tile(sTn, sCur): a(l)
    a(f"""
  s_waitcnt lgkmcnt(0)
  s_barrier
  ds_read_b128 v[{vI}:{vI+3}], v{vK}
""")
    ord_read(a)
    a(f"""  s_lshl_b32 s{sTmp}, s{sTn}, 7
  v_add_u32 v{vK}, s{sTmp}, v{vKb}
  s_mov_b32 m0, s{sM0}
  s_waitcnt lgkmcnt(1)""")
    for i in range(4): a(la(i))
    for i in range(4):
        a(dma(i))
        if i < 3: a(f"  s_add_u32 m0, s{sM0}, {1024*(i+1)}\n  s_nop 0")
    a(f"  ds_read_b128 v[{vI}:{vI+3}], v{vK}")
    def ea_writes(ks):
        for k in ks:
            a(f"  s_mov_b64 exec, s[{msk(k)}:{msk(k)+1}]")
            if k >= 8: a(f"  s_cbranch_execz K2_ES{k}")
            a(f"  ds_write_b64 v{R(k)+3}, v[{R(k)}:{R(k)+1}] offset:{EA0}")
            if k >= 8: a(f"K2_ES{k}:")
        a("  s_mov_b64 exec, -1")
    ea_writes(list(range(8, 16)) + [0, 1, 2, 3])
    m_event(a)
    for g in range(4): a(f"  v_mov_b32 v{vNAc+g}, v{vNAn+g}")
    next_group(a)
    ord_read(a)
    for i in range(4): a(la(i))
    a("  s_waitcnt vmcnt(0)")
    for s_ in range(4): a(f"  ds_read_b128 {Xb(0,s_)}, v{vXA+s_}")
    ea_writes([4, 5, 6, 7])
    for l in next_tile(sTn2, sTn): a(l)
    a(f"""  s_lshl_b32 s{sTmp}, s{sTn2}, 7
  v_add_u32 v{vK}, s{sTmp}, v{vKb}
  s_mov_b32 m0, s{sM0}
  s_waitcnt lgkmcnt(4)""")
    for i in range(4):
        a(dma(i))
        if i < 3: a(f"  s_add_u32 m0, s{sM0}, {1024*(i+1)}\n  s_nop 0")
    a(f"""  ds_read_b128 v[{vI}:{vI+3}], v{vK}
  s_waitcnt lgkmcnt(0)
  s_barrier
@S10@
  s_cmp_eq_u32 s{sN}, 0
  s_cbranch_scc1 K2_LOOPDONE
  ds_read2_b32 a[{EOP}:{EOP+1}], v{vE} offset0:0 offset1:1
  v_mad_u32_u24 v{vE}, v{vEs}, s{sTn}, v{vEb}
  s_mov_b32 s{sTn}, s{sTn2}""")
    for i in range(4):
        a(mfma16(Gb(0), Xb(0,i), wb(i,0), g16(Gb(0)) if i else "0"))
    a("  s_waitcnt lgkmcnt(0)")
    a(mfma16(Gb(0), Eo, BEo(0), g16(Gb(0))))
    a(mfma16(Gb(1), Eo, BEo(1), "0"))
    a(mfma16(Gb(1), Xb(0,0), wb(0,1), g16(Gb(1))))
    a(f"  ds_read2_b32 a[{EOP}:{EOP+1}], v{vE} offset0:0 offset1:1")
    for i in range(1, 4):
        a(mfma16(Gb(1), Xb(0,i), wb(i,1), g16(Gb(1))))
    a(f"  s_bitcmp1_b32 s{sF}, 1\n  s_cbranch_scc0 K2_FNM")
    m_event(a)
    a("K2_FNM:\n  s_nop 5")
    for i in range(16): a(f"  v_exp_f32 v{Gb(0)+i}, v{Gb(0)+i}")
    a(f"  s_mov_b32 s{sTau}, 0\n  s_waitcnt vmcnt(0)")
    a(mfma8(Gb(0), ON, ON, g16(Gb(0))))
    for s_ in range(4): a(f"  ds_read_b128 {Xb(1,s_)}, v{vXA+s_}")
    a("K2_LOOP:")
    tile_code(a, 0)
    tile_code(a, 1)
    a(f"""  s_branch K2_LOOP
K2_LAST:
  s_setprio 0
  s_cmp_lg_u32 s{sCont}, 0
  s_cbranch_scc1 K2_LOOPDONE""")
    flush_own(a, "L")
    a(f"""
K2_LOOPDONE:
@S11@
  s_add_u32 s{sSB}, s{sSB}, s{sSW}
  v_mbcnt_lo_u32_b32 v{vLane}, -1, 0
  v_mbcnt_hi_u32_b32 v{vLane}, -1, v{vLane}
  s_lshl_b32 s{sTmp}, s{sW}, 6
  v_add_u32 v{vTid}, s{sTmp}, v{vLane}
  s_lshl_b32 s{sTmp}, s{sW}, 12
  s_add_u32 s{sTmp}, s{sTmp}, s{sB}
  s_lshl_b32 s{sTmp}, s{sTmp}, 7
  v_lshrrev_b32 v{vT1}, 5, v{vLane}
  v_lshlrev_b32 v{vE}, 17, v{vT1}
  v_add3_u32 v{vE}, v{vE}, v{vN4}, s{sTmp}
  s_waitcnt vmcnt(0)
  s_cmp_gt_u32 s{sMaxC}, s{sSB}
  s_cbranch_scc1 K2_NOFL
""")
    for rr in range(8):
        a(f"  s_mov_b32 s{sSeg+rr}, {(8*(rr>>2)+(rr&3))*32768}")
        a(f"  buffer_load_dword v{G+rr}, v{vE}, s[{sXR}:{sXR+3}], s{sSeg+rr} offen")
    a(f"""
K2_NOFL:
  s_cmp_eq_u32 s{sSlow}, 0
  s_cbranch_scc1 K2_NSL
  v_mov_b32 v{vT0}, {MISC+4}
  v_mov_b32 v{vT1}, 1
  ds_write_b32 v{vT0}, v{vT1}
K2_NSL:
  s_waitcnt lgkmcnt(0)
  s_barrier
  v_mov_b32 v{vT0}, {MISC+4}
  ds_read_b32 v{vT1}, v{vT0}
  s_waitcnt lgkmcnt(0)
  v_readfirstlane_b32 s{sSlow}, v{vT1}
  s_mov_b32 s{sTau}, 1
K2_MERGE:
  s_cmp_eq_u32 s{sCont}, 0
  s_cbranch_scc1 K2_MSKIP
  s_cmp_eq_u32 s{sSlow}, 0
  s_cbranch_scc1 K2_MDO
  s_cmp_lg_u32 s{sTau}, s{sW}
  s_cbranch_scc1 K2_MSKIP
K2_MDO:
""")
    flush(a)
    a(f"""
K2_MSKIP:
  s_waitcnt lgkmcnt(0)
  s_barrier
  s_cmp_eq_u32 s{sSlow}, 0
  s_cbranch_scc1 K2_MEND
  s_add_u32 s{sTau}, s{sTau}, 1
  s_cmp_lt_u32 s{sTau}, 8
  s_cbranch_scc1 K2_MERGE
K2_MEND:
  s_mov_b32 s{sFirstB}, 0
  s_cmp_gt_u32 s{sMaxC}, s{sSB}
  s_cbranch_scc1 K2_RESET
  s_mul_i32 s{sTmp}, s{sW}, {16*ROWB}
  s_add_u32 s{sTmp}, s{sTmp}, {NODE}
  v_lshrrev_b32 v{vT1}, 5, v{vLane}
  v_mul_u32_u24 v{vT1}, {4*ROWB}, v{vT1}
  v_add3_u32 v{vT1}, v{vT1}, v{vN4}, s{sTmp}
  v_add_u32 v{vT2}, 128, v{vT1}
""")
    for rr in range(8):
        ro = 3 * (8*(rr>>2) + (rr&3))
        a(f"  ds_read2st64_b32 v[{AC+4*rr}:{AC+4*rr+1}], v{vT1} offset0:{ro+1} offset1:{ro+2}")
        a(f"  ds_read2st64_b32 v[{AC+4*rr+2}:{AC+4*rr+3}], v{vT2} offset0:{ro+1} offset1:{ro+2}")
        a(f"  ds_read_b32 v{HV+rr}, v{vT2} offset:{ro*256}")
    a(f"  s_mov_b32 s{sTmp}, 0x358637bd")
    for rr in range(8):
        a(f"  s_waitcnt lgkmcnt({min(15, 3*(7-rr))})")
        for ct in range(2):
            d = AC + 4*rr + 2*ct + 1
            a(f"  v_add_f32 v{d}, s{sTmp}, v{d}")
        for ct in range(2):
            d = AC + 4*rr + 2*ct + 1
            a(f"  v_rcp_f32 v{d}, v{d}")
        a(f"  v_lshlrev_b32 v{HV+8+rr}, 16, v{HV+rr}")
        a(f"  v_and_b32 v{HV+rr}, 0xffff0000, v{HV+rr}")
    a("  s_waitcnt vmcnt(0)")
    for rr in range(8):
        n0, n1 = AC + 4*rr, AC + 4*rr + 2
        a(f"  v_fma_f32 v{n0}, v{n0}, v{n0+1}, v{HV+8+rr}")
        a(f"  v_fma_f32 v{n1}, v{n1}, v{n1+1}, v{HV+rr}")
        a(f"  v_lshlrev_b32 v{n0+1}, 16, v{G+rr}")
        a(f"  v_and_b32 v{n1+1}, 0xffff0000, v{G+rr}")
        a(f"  v_max_f32 v{n0}, 0, v{n0}")
        a(f"  v_max_f32 v{n1}, 0, v{n1}")
        a(f"  v_add_f32 v{n0}, v{n0}, v{n0+1}")
        a(f"  v_add_f32 v{n1}, v{n1}, v{n1+1}")
        a(f"  v_cvt_pk_bf16_f32 v{n0}, v{n0}, v{n1}")
        a(f"  buffer_store_dword v{n0}, v{vE}, s[{sOUT}:{sOUT+3}], s{sSeg+rr} offen")
    a("@S13@\n@S15@\n@OUT2@\nK2_END:\n  s_endpgm")

def kd(name, vgpr, accum, sgpr):
    return f"""
.amdhsa_kernel {name}
  .amdhsa_next_free_vgpr {vgpr}
  .amdhsa_next_free_sgpr {sgpr}
  .amdhsa_accum_offset {accum}
  .amdhsa_group_segment_fixed_size 0
  .amdhsa_kernarg_size 96
  .amdhsa_user_sgpr_count 2
  .amdhsa_user_sgpr_kernarg_segment_ptr 1
  .amdhsa_system_sgpr_workgroup_id_x 1
  .amdhsa_float_denorm_mode_32 3
.end_amdhsa_kernel
"""

def main():
    ref = open(f"cdna_kernels/{NAME}.s.ref").read().split("\n")
    hdr = [l for l in ref if l.startswith(";") and "@launch" not in l and "Override" not in l and "grid=ceil" not in l]
    a = Asm()
    a("\n".join(hdr))
    a(f"; @launch grid=(256,1,1) block=(512,1,1) lds={LDS2}")
    a('.amdgcn_target "amdgcn-amd-amdhsa--gfx950"\n.text')
    gen_k2(a)
    a('.section .rodata,"a"\n.p2align 6')
    st = OPT["stamp"]
    a(kd(KN, NARCH + NACC, NARCH, 100))
    txt = a.text()
    SL = MISC + 64
    cpf2 = cpf1 = ""
    if OPT["cpf"] & 1:
        cpf2 = f"""  s_getpc_b64 s[98:99]
  v_lshlrev_b32 v39, 6, v0
  s_mov_b64 exec, 0xffffffff
  global_load_dword a0, v39, s[98:99]
  s_mov_b64 exec, -1
"""
        cpf2 = f"""  s_getpc_b64 s[98:99]
CPF2L:
  v_lshlrev_b32 v39, 5, v0
  v_min_u32 v39, K2_END-CPF2L, v39
  global_load_dword a0, v39, s[98:99]
"""
    if OPT["cpf"] & 2:
        cpf1 = f"""  s_getpc_b64 s[26:27]
CPF1L:
  v_lshlrev_b32 v40, 5, v0
  v_min_u32 v40, K2_END-CPF1L, v40
  global_load_dword v55, v40, s[26:27]
"""
    offl = f"""  buffer_load_dwordx4 v[120:123], v{vTSV}, s[{sOFF}:{sOFF+3}], 0 offen
  buffer_load_dwordx4 v[124:127], v{vTSV}, s[{sOFF}:{sOFF+3}], 0 offen offset:16
"""
    txt = txt.replace("@OFFS_A@\n", "").replace("@OFFS_B@\n", offl).replace("@OFFW@", "0").replace("@IMGW@\n", "")
    xpf = ""
    if OPT["npf"]:
        xpf = f"""  s_lshr_b32 s{sTmp}, s2, 3
  s_mul_i32 s{sTmp}, s{sTmp}, 100096
  v_lshlrev_b32 v{vT2}, 7, v4
  s_add_u32 s{sTmp2}, s{sTmp}, 65536
  buffer_load_dword a{X}, v{vT2}, s[{sXR}:{sXR+3}], s{sTmp} offen
  s_cmp_ge_u32 s{sW}, 5
  s_cbranch_scc1 K2_XPE
  buffer_load_dword a{X+1}, v{vT2}, s[{sXR}:{sXR+3}], s{sTmp2} offen
K2_XPE:
"""
    txt = txt.replace("@XPF@\n", xpf)
    txt = txt.replace("@CPF2@\n", cpf2).replace("@CPF1@\n", cpf1)
    def sub(m):
        if not st: return ""
        b = Asm(); k = m.group(1); i = m.group(2)
        if k == "OUT":
            if i == "2":
                b(f"""  s_lshl_b32 s99, s{sW}, 6
  s_add_u32 s99, s99, {SL}
  v_mbcnt_lo_u32_b32 v37, -1, 0
  v_lshlrev_b32 v37, 2, v37
  v_add_u32 v37, s99, v37
  ds_read_b32 v36, v37
  s_waitcnt lgkmcnt(0)""")
                stamp_out(b, 96, sW, STAMP_OFF, 36, 37, 8)
            else: stamp_out(b, 20, 23, STAMP_OFF + 0x100000, 56, 57, 16)
        else:
            i = int(i)
            if k == "TW": b("  s_waitcnt vmcnt(0)")
            def one(idx, real=False):
                if k == "S":
                    d = {7: 36, 8: 36}.get(idx, 38); ad = {7: 37, 8: 37}.get(idx, 39)
                    b(f"""  s_mem{'real' if real else ''}time s[98:99]
  s_waitcnt lgkmcnt(0)
  v_mov_b32 v{d}, s98
  s_lshl_b32 s99, s{sW}, 6
  s_add_u32 s99, s99, {SL + 4*idx}
  v_mov_b32 v{ad}, s99
  ds_write_b32 v{ad}, v{d}""")
                else: stamp(b, idx, 56, real=real)
            if i == 0: one(0); one(1, True)
            elif i == 15: one(15, True)
            elif i == 10 and k == 'S': one(10); one(14, True)
            elif i == 11 and k == 'S': one(11)
            else: one(i)
        return b.text()
    txt = re.sub(r"@(S|TW|T|OUT)(\d+)@\n", sub, txt)
    lines = txt.split("\n")
    for p in check_hazards(lines): print("HAZARD", p)
    b = Asm()
    for rep in range(2):
        for k in range(4):
            t_unit(b, k); p_unit(b, k, rep == 0)
            if k & 1: flush(b); m_event(b)
    for k in range(4):
        t_unit(b, k); p_unit(b, k, False)
    for k in range(2):
        t_unit(b, k); p_unit(b, k, False)
    for p in check_hazards(b.text().split("\n"), "loop"): print("HAZARD", p)
    open(sys.argv[1], "w").write(txt)

if __name__ == "__main__":
    main()
```

```python
import sys, re
from asmlib import *

NAME = "gather_scatter__edge_featured_mpnn_gatedgcn__graph"
NP, CH = 250, 3200
RECB = CH * 12
OFFS = 0xA00000
IMG = OFFS + 0x40000
NLOG2E = 0xBFB8AA3B
CAPT = 128
EA0, K0 = 0, 32768
CNT, NB, HIST, ORDQ, ORDA, TSV, MISC = 49152, 49664, 50176, 50432, 50944, 51456, 51584
RING = 52224
NODE = RING + 8 * 4096
ROWB = 768
LDS2 = NODE + 99 * ROWB
XO, IMA = RING + 16384, 16384
K1_CNT, K1_START = 38400, 39424
LDS1 = 40448
STAMP_OFF = 0x1000000

OPT = dict(st_flags="", ld_flags="", npf=0, stamp=0, prio=2, dbg=-1, dbgw=0, nodma=0, cpf=3, k1late=2)
for a_ in sys.argv[2:]:
    k_, v_ = a_.split("=", 1)
    OPT[k_] = int(v_) if v_.lstrip("-").isdigit() else v_.replace("+", " ")

def stamp(a, idx, vreg, s=98, real=False):
    a(f"  s_mem{'real' if real else ''}time s[{s}:{s+1}]\n  s_waitcnt lgkmcnt(0)\n  v_writelane_b32 v{vreg}, s{s}, {idx}")
def stamp_out(a, ws, wave, base, vreg, tmp, wpw):
    a(f"""  s_mul_i32 s98, s2, {wpw}
  s_add_u32 s98, s98, s{wave}
  s_lshl_b32 s98, s98, 6
  s_add_u32 s98, s98, {base}
  v_mbcnt_lo_u32_b32 v{tmp}, -1, 0
  v_lshlrev_b32 v{tmp}, 2, v{tmp}
  v_add_u32 v{tmp+1}, s98, v{tmp}
  s_mov_b64 exec, 0xffff
  global_store_dword v{tmp+1}, v{vreg}, s[{ws}:{ws+1}]""")
    if OPT["dbg"] >= 0:
        a(f"""  s_cmp_lg_u32 s2, {OPT["dbg"]}
  s_cbranch_scc1 DBGX{vreg}
  s_cmp_lg_u32 s{wave}, {OPT["dbgw"]}
  s_cbranch_scc1 DBGX{vreg}
  s_load_dwordx2 s[98:99], s[0:1], 80
  s_waitcnt lgkmcnt(0)
  global_store_dword v{tmp}, v{vreg}, s[98:99]
DBGX{vreg}:""")

def dpp_scan(a, v):
    for m in ("row_shr:1", "row_shr:2", "row_shr:4", "row_shr:8"):
        a(f"  s_nop 1\n  v_add_u32_dpp v{v}, v{v}, v{v} {m} row_mask:0xf bank_mask:0xf")
    a(f"  s_nop 1\n  v_add_u32_dpp v{v}, v{v}, v{v} row_bcast:15 row_mask:0xa bank_mask:0xf")
    a(f"  s_nop 1\n  v_add_u32_dpp v{v}, v{v}, v{v} row_bcast:31 row_mask:0xc bank_mask:0xf")

def gen_k1(a):
    st = OPT["st_flags"]
    a(f"""
.globl part_kernel
.p2align 8
.type part_kernel,@function
part_kernel:
  s_cmp_ge_u32 s2, {NP}
  s_cbranch_scc1 K1_PACK
  s_load_dwordx2 s[8:9], s[0:1], 24
  s_load_dwordx4 s[4:7], s[0:1], 8
  s_load_dwordx2 s[20:21], s[0:1], 88
  v_lshrrev_b32 v33, 6, v0
  v_lshlrev_b32 v1, 4, v0
  v_readfirstlane_b32 s23, v33
@CPF1@
@T0@
  s_mul_i32 s22, s2, {CH*4}
  v_add_u32 v2, s22, v1
  v_lshlrev_b32 v3, 1, v2
  v_mov_b32 v32, 1
  v_mov_b32 v36, 0
  v_mov_b32 v37, 0
  v_mov_b32 v38, 0
  v_mov_b32 v39, 0
  s_cmp_lg_u32 s23, 0
  s_cbranch_scc1 K1_A
  ds_write_b128 v1, v[36:39] offset:{K1_CNT}
K1_A:
  s_waitcnt lgkmcnt(0)
  global_load_dwordx4 v[4:7], v2, s[8:9]
""")
    late = """  global_load_dwordx4 v[8:11], v2, s[6:7]
  global_load_dwordx4 v[12:15], v3, s[4:5]
  global_load_dwordx4 v[16:19], v3, s[4:5] offset:16"""
    if OPT["k1late"] == 0: a(late)
    a("  s_barrier\n@T2@")
    if OPT["k1late"] == 1: a(late)
    a(f"  s_waitcnt vmcnt({0 if OPT['k1late'] == 2 else 3})\n@T3@")
    if OPT["k1late"] == 2: a(late)
    for k in range(4):
        a(f"  v_lshlrev_b32_sdwa v{20+k}, 2, v{4+k} dst_sel:DWORD dst_unused:UNUSED_PAD src0_sel:DWORD src1_sel:BYTE_0")
    for k in range(4):
        a(f"  ds_add_rtn_u32 v{24+k}, v{20+k}, v32 offset:{K1_CNT}")
    a(f"""
  s_waitcnt lgkmcnt(0)
  s_barrier
  s_cmp_lg_u32 s23, 0
  s_cbranch_scc1 K1_B
  ds_read_b128 v[36:39], v1 offset:{K1_CNT}
  s_waitcnt lgkmcnt(0)
  v_add_u32 v41, v36, v37
  v_add_u32 v42, v41, v38
  v_add_u32 v43, v42, v39
  v_mov_b32 v44, v43
""")
    dpp_scan(a, 44)
    a(f"""
  v_sub_u32 v45, v44, v43
  v_add_u32 v47, v45, v36
  v_add_u32 v48, v45, v41
  v_add_u32 v49, v45, v42
  v_mul_u32_u24 v46, 12, v45
  v_mul_u32_u24 v47, 12, v47
  v_mul_u32_u24 v48, 12, v48
  v_mul_u32_u24 v49, 12, v49
  ds_write_b128 v1, v[46:49] offset:{K1_START}
  v_lshl_or_b32 v50, v36, 16, v46
  v_lshl_or_b32 v51, v37, 16, v47
  v_lshl_or_b32 v52, v38, 16, v48
  v_lshl_or_b32 v53, v39, 16, v49
  s_lshl_b32 s24, s2, 10
  s_add_u32 s24, s24, {OFFS}
  v_add_u32 v54, s24, v1
  global_store_dwordx4 v54, v[50:53], s[20:21] {st}
K1_B:
  s_mul_i32 s22, s2, {RECB}
  v_add_u32 v2, s22, v1
  v_add_u32 v3, {12800}, v2
  v_add_u32 v34, {25600}, v2
""")
    for k in range(4):
        a(f"  v_lshrrev_b32 v{4+k}, 8, v{4+k}")
    a(f"""
  s_waitcnt lgkmcnt(0)
  s_barrier
@T4@
""")
    for k in range(4):
        a(f"  ds_read_b32 v{28+k}, v{20+k} offset:{K1_START}")
    a("  s_waitcnt vmcnt(2)")
    for k in range(4):
        a(f"  v_lshl_or_b32 v{8+k}, v{4+k}, 18, v{8+k}")
    for k in range(4):
        a(f"  s_waitcnt lgkmcnt({3-k})")
        a(f"  v_mad_u32_u24 v{28+k}, v{24+k}, 12, v{28+k}")
    for k in range(4):
        a(f"  ds_write_b32 v{28+k}, v{8+k} offset:8")
    a("  s_waitcnt vmcnt(0)")
    for k in range(4):
        a(f"  ds_write2_b32 v{28+k}, v{12+2*k}, v{13+2*k} offset0:0 offset1:1")
    a(f"""
  s_waitcnt lgkmcnt(0)
  s_barrier
  ds_read_b128 v[8:11], v1
  ds_read_b128 v[12:15], v1 offset:12800
  ds_read_b128 v[16:19], v1 offset:25600
  s_waitcnt lgkmcnt(2)
  global_store_dwordx4 v2, v[8:11], s[20:21] {st}
  s_waitcnt lgkmcnt(1)
  global_store_dwordx4 v3, v[12:15], s[20:21] {st}
  s_waitcnt lgkmcnt(0)
  global_store_dwordx4 v34, v[16:19], s[20:21] {st}
@T5@
@TW6@
@T15@
@OUT1@
  s_endpgm
K1_PACK:
  s_cmp_ge_u32 s2, {NP+5}
  s_cbranch_scc1 K1_END
  s_load_dwordx2 s[10:11], s[0:1], 32
  s_load_dwordx8 s[12:19], s[0:1], 40
  s_load_dwordx2 s[20:21], s[0:1], 88
  v_lshrrev_b32 v33, 6, v0
  s_nop 0
  v_readfirstlane_b32 s23, v33
  s_cmp_ge_u32 s23, 4
  s_cbranch_scc1 K1_END
  s_waitcnt lgkmcnt(0)
  v_and_b32 v2, 31, v0
  v_bfe_u32 v3, v0, 5, 1
  v_and_b32 v34, 63, v0
  s_cmp_eq_u32 s2, {NP+4}
  s_cbranch_scc1 K1_PACKC
  s_mov_b32 s24, s12
  s_mov_b32 s25, s13
  s_mov_b32 s26, {NLOG2E:#x}
  s_cmp_eq_u32 s2, {NP}
  s_cbranch_scc1 K1_P1
  s_mov_b32 s26, 1.0
  s_mov_b32 s24, s18
  s_mov_b32 s25, s19
  s_cmp_eq_u32 s2, {NP+1}
  s_cbranch_scc1 K1_P1
  s_mov_b32 s24, s10
  s_mov_b32 s25, s11
  s_cmp_eq_u32 s2, {NP+2}
  s_cbranch_scc1 K1_P1
  s_mov_b32 s24, s16
  s_mov_b32 s25, s17
K1_P1:
  v_lshlrev_b32 v4, 12, v3
  v_lshl_add_u32 v4, v2, 2, v4
  s_lshl_b32 s27, s23, 10
  v_add_u32 v4, s27, v4
""")
    for j in range(8):
        a(f"  global_load_dword v{8+j}, v4, s[24:25] offset:{128*j}")
    a("  s_waitcnt vmcnt(0)")
    for j in range(8):
        a(f"  v_lshlrev_b32 v{16+j}, 16, v{8+j}")
        a(f"  v_and_b32 v{24+j}, 0xffff0000, v{8+j}")
        a(f"  v_mul_f32 v{16+j}, s26, v{16+j}")
        a(f"  v_mul_f32 v{24+j}, s26, v{24+j}")
    for jj in range(4):
        a(f"  v_cvt_pk_bf16_f32 v{36+jj}, v{16+2*jj}, v{17+2*jj}")
        a(f"  v_cvt_pk_bf16_f32 v{40+jj}, v{24+2*jj}, v{25+2*jj}")
    a(f"""
  s_sub_u32 s27, s2, {NP}
  s_lshl_b32 s27, s27, 2
  s_add_u32 s27, s27, s23
  s_lshl_b32 s27, s27, 11
  s_add_u32 s27, s27, {IMG}
  v_lshlrev_b32 v5, 4, v34
  v_add_u32 v5, s27, v5
  global_store_dwordx4 v5, v[36:39], s[20:21] {st}
  global_store_dwordx4 v5, v[40:43], s[20:21] offset:1024 {st}
  s_endpgm
K1_PACKC:
  s_cmp_lg_u32 s23, 0
  s_cbranch_scc1 K1_END
  v_lshlrev_b32 v4, 2, v2
  s_mov_b32 s26, {NLOG2E:#x}
""")
    for j in range(4):
        a(f"  global_load_dword v{8+j}, v4, s[14:15] offset:{128*j}")
    a("  s_waitcnt vmcnt(0)")
    for j in range(4):
        a(f"  v_lshlrev_b32 v{16+j}, 16, v{8+j}")
        a(f"  v_and_b32 v{24+j}, 0xffff0000, v{8+j}")
        a(f"  v_mul_f32 v{16+j}, s26, v{16+j}")
        a(f"  v_mul_f32 v{24+j}, s26, v{24+j}")
    a(f"""
  v_cvt_pk_bf16_f32 v36, v16, v17
  v_cvt_pk_bf16_f32 v37, v18, v19
  v_cvt_pk_bf16_f32 v38, v24, v25
  v_cvt_pk_bf16_f32 v39, v26, v27
  v_cmp_eq_u32 vcc, 0, v3
  v_mov_b32 v40, 0x71800000
  v_mov_b32 v41, 0
  v_cndmask_b32 v36, v40, v36, vcc
  v_cndmask_b32 v37, v41, v37, vcc
  v_cndmask_b32 v38, v40, v38, vcc
  v_cndmask_b32 v39, v41, v39, vcc
  v_lshlrev_b32 v5, 4, v34
  v_add_u32 v5, {IMG+32768}, v5
  global_store_dwordx4 v5, v[36:39], s[20:21] {st}
K1_END:
  s_endpgm
""")

vXA = 0
vI = 4
vC = 8
vEs, vEb, vE, vKb, vK = 12, 13, 14, 15, 16
vN4, vTSV, vOrd = 17, 18, 19
vNAc, vNAn = 20, 24
BEV = 28
vT0, vT1, vT2, vT3 = 36, 37, 38, 39
G, HV, AC = 40, 104, 120
NARCH = 152
WB, WV, EOP, ONE, X = 0, 32, 64, 68, 70
NACC = 102
sXR, sOUT, sREC, sOFF, sWM = 8, 12, 16, 20, 24
sM1, sM2, sSeg = 28, 44, 60
sW, sSB, sSW, sFirstB, sT, sT0, sT1, sTn, sTn2, sTau, sN, sF, sGn, sGlast, sCont, sG0, sM0, sMaxC, sTmp, sTmp2, sCur, sSlow, sPsel0, sPsel1, sB = range(68, 93)
sSave = 94
sKA = 4

def mfma16(d, A, B, C):
    return f"  v_mfma_f32_32x32x16_bf16 v[{d}:{d+15}], {A}, {B}, {C}"
def mfma8(d, A, B, C):
    return f"  v_mfma_f32_32x32x8_bf16 v[{d}:{d+15}], {A}, {B}, {C}"
g16 = lambda d: f"v[{d}:{d+15}]"
pr = lambda r: f"v[{r}:{r+1}]"
Gb = lambda k: G + 16*(k % 4)
Xb = lambda t, s: ar(X + 16*(t % 2) + 4*s, 4)
wb = lambda s, ct: ar(WB+(s*2+ct)*4, 4)
wv = lambda s, ct: ar(WV+(s*2+ct)*4, 4)
Eo = ar(EOP, 4); ON = ar(ONE, 2)
BEo = lambda ct: vr(BEV+4*ct, 4)

def flush_st(a):
    for q in range(8):
        r = AC + q*4
        a(f"  v_add_f32 v{r}, v{r}, v{r+1}")
        a(f"  v_add_f32 v{r+2}, v{r+2}, v{r+3}")
    for ct in range(2):
        for g in range(4):
            r = AC + (ct*4+g)*4
            a(f"  ds_write2_b32 v{vNAc+g}, v{r}, v{r+2} offset0:{64+32*ct} offset1:{128+32*ct}")
def flush_own(a, tag):
    a(f"  s_cmp_eq_u32 s{sFirstB}, 0\n  s_cbranch_scc1 K2_FR{tag}")
    flush_st(a)
    a(f"  s_branch K2_FE{tag}\nK2_FR{tag}:")
    flush(a)
    a(f"K2_FE{tag}:")
def m_event1(a):
    a("  s_waitcnt lgkmcnt(0)")
    for g in range(4): a(f"  v_add_u32 v{vNAn+g}, v{vNAn+g}, v{vN4}")
    for g in range(4): a(f"  ds_read_b32 v{vT0+g}, v{vNAn+g}")
def m_event2(a):
    for ct in range(2):
        for i in range(2):
            a(f"  v_perm_b32 v{BEV+4*ct+2+i}, v{vT0+2*i+1}, v{vT0+2*i}, s{sPsel0+ct}")

def flush(a):
    for ct in range(2):
        for g in range(4):
            t = HV + (ct*4+g)*2
            a(f"  ds_read2_b32 v[{t}:{t+1}], v{vNAc+g} offset0:{64+32*ct} offset1:{128+32*ct}")
    for q in range(8):
        r = AC + q*4
        a(f"  v_add_f32 v{r}, v{r}, v{r+1}")
        a(f"  v_add_f32 v{r+2}, v{r+2}, v{r+3}")
    a("  s_waitcnt lgkmcnt(0)")
    for q in range(8):
        r = AC + q*4; t = HV + q*2
        a(f"  v_add_f32 v{r}, v{r}, v{t}")
        a(f"  v_add_f32 v{r+2}, v{r+2}, v{t+1}")
    for ct in range(2):
        for g in range(4):
            r = AC + (ct*4+g)*4
            a(f"  ds_write2_b32 v{vNAc+g}, v{r}, v{r+2} offset0:{64+32*ct} offset1:{128+32*ct}")

def next_tile(dst, src):
    return [f"  s_add_u32 s{dst}, s{src}, 1", f"  s_cmp_eq_u32 s{dst}, s{sT1}", f"  s_cselect_b32 s{dst}, s{sT0}, s{dst}"]

def dma(i):
    if OPT["nodma"]: return "  s_nop 0"
    return f"  buffer_load_dwordx4 v{vI+i}, s[{sXR}:{sXR+3}], 0 offen lds"
def la(i):
    return f"  v_lshl_add_u32 v{vI+i}, v{vI+i}, 7, v{vC+i}"

def ord_read(a):
    a(f"  s_lshl_b32 s{sTmp}, s{sGn}, 5\n  v_add_u32 v{vT0}, s{sTmp}, v{vOrd}\n  ds_read_b128 v[{vNAn}:{vNAn+3}], v{vT0}")
def next_group(a):
    a(f"  s_add_u32 s{sTmp}, s{sGn}, 1\n  s_cmp_lt_u32 s{sGn}, s{sGlast}\n  s_cselect_b32 s{sGn}, s{sTmp}, s{sG0}")
def m_event(a):
    a("  s_waitcnt lgkmcnt(0)")
    for g in range(4): a(f"  v_add_u32 v{vNAn+g}, v{vNAn+g}, v{vN4}")
    for g in range(4): a(f"  ds_read_b32 v{vT0+g}, v{vNAn+g}")
    a("  s_waitcnt lgkmcnt(0)")
    for ct in range(2):
        for i in range(2):
            a(f"  v_perm_b32 v{BEV+4*ct+2+i}, v{vT0+2*i+1}, v{vT0+2*i}, s{sPsel0+ct}")

def p_unit(a, k, first):
    ct = k & 1
    for half in range(2):
        for gq in range(4):
            e = Gb(k) + 4*gq; h = HV + 4*gq; r = AC + (ct*4+gq)*4
            if first:
                if half == 0:
                    a(f"  v_pk_mul_f32 {pr(r)}, {pr(e)}, {pr(h)}")
                    a(f"  v_pk_add_f32 {pr(r+2)}, {pr(e)}, {pr(e+2)}")
                else:
                    a(f"  v_pk_fma_f32 {pr(r)}, {pr(e+2)}, {pr(h+2)}, {pr(r)}")
            else:
                a(f"  v_pk_fma_f32 {pr(r)}, {pr(e+2*half)}, {pr(h+2*half)}, {pr(r)}")
                a(f"  v_pk_add_f32 {pr(r+2)}, {pr(e+2*half)}, {pr(r+2)}")

def t_unit(a, k):
    t, ct = k >> 1, k & 1
    T = [f"  v_exp_f32 v{Gb(k+1)+i}, v{Gb(k+1)+i}" for i in range(16)] + [f"  v_rcp_f32 v{Gb(k)+i}, v{Gb(k)+i}" for i in range(16)]
    Hm = [mfma16(HV, Xb(t, s), wv(s, ct), g16(HV) if s else "0") for s in range(4)]
    d = Gb(k+2)
    Gm = [mfma16(d, Eo, BEo(ct), "0")] + [mfma16(d, Xb(t+1, s), wb(s, ct), g16(d)) for s in range(4)]
    A1 = mfma8(Gb(k+1), ON, ON, g16(Gb(k+1)))
    M = [Hm[0], Gm[0], Hm[1], Gm[1], Hm[2], Gm[2], A1, Hm[3], Gm[3], Gm[4]]
    side = [[] for _ in M]
    nt = next_tile(sTn2, sTn)
    if ct == 0:
        pre = ["  s_waitcnt lgkmcnt(0)", la(0), la(1)]
        side[0] = [f"  s_mov_b32 m0, s{sM0}", la(2), la(3)]
        side[1] = [dma(0), f"  s_add_u32 m0, s{sM0}, 1024"]
        side[2] = [dma(1), f"  s_add_u32 m0, s{sM0}, 2048"]
        side[3] = [dma(2), f"  s_add_u32 m0, s{sM0}, 3072"]
        side[4] = [dma(3), nt[0]]
        side[5] = [nt[1], nt[2]]
        side[7] = [f"  s_lshl_b32 s{sTmp}, s{sTn2}, 7", f"  v_add_u32 v{vK}, s{sTmp}, v{vKb}"]
        side[8] = [f"  ds_read_b128 v[{vI}:{vI+3}], v{vK}", f"  v_mad_u32_u24 v{vE}, v{vEs}, s{sTn}, v{vEb}"]
        side[9] = [f"  s_mov_b32 s{sTn}, s{sTn2}"]
    else:
        pre = []
        side[2] = [f"  ds_read2_b32 a[{EOP}:{EOP+1}], v{vE} offset0:0 offset1:1"]
        side[7] = ["  s_waitcnt vmcnt(0)"]
        side[8] = [f"  ds_read_b128 {Xb(t,0)}, v{vXA}", f"  ds_read_b128 {Xb(t,1)}, v{vXA+1}"]
        side[9] = [f"  ds_read_b128 {Xb(t,2)}, v{vXA+2}", f"  ds_read_b128 {Xb(t,3)}, v{vXA+3}"]
    if OPT["prio"] == 2: a("  s_setprio 0")
    for p_ in pre: a(p_)
    ti = 0
    for i, m in enumerate(M):
        a(m)
        for s_ in side[i]: a(s_)
        n = 3 if i < 9 else 32 - ti
        for _ in range(n):
            a(T[ti]); ti += 1
    if OPT["prio"] == 2: a("  s_setprio 1")

def tile_code(a, par):
    for ct in range(2):
        k = 2*par + ct
        t_unit(a, k)
        a(f"  s_bitcmp1_b32 s{sF}, s{sTau}\n  s_cbranch_scc0 K2_PN{k}")
        p_unit(a, k, True)
        a(f"  s_branch K2_PE{k}\nK2_PN{k}:")
        p_unit(a, k, False)
        a(f"K2_PE{k}:")
    a(f"""  s_add_u32 s{sTau}, s{sTau}, 1
  s_cmp_ge_u32 s{sTau}, s{sN}
  s_cbranch_scc1 K2_LAST
  s_bitcmp1_b32 s{sF}, s{sTau}
  s_cbranch_scc0 K2_NF{par}""")
    flush_own(a, par)
    for g in range(4): a(f"  v_mov_b32 v{vNAc+g}, v{vNAn+g}")
    next_group(a)
    ord_read(a)
    a(f"""K2_NF{par}:
  s_add_u32 s{sTmp}, s{sTau}, 1
  s_bitcmp1_b32 s{sF}, s{sTmp}
  s_cbranch_scc0 K2_NM{par}""")
    m_event(a)
    a(f"K2_NM{par}:")

def gen_k2(a):
    ld = OPT["ld_flags"]
    R = lambda k: 40 + 4*k
    A4 = lambda k: 104 + k
    OF, VA = 120, 128
    WR = 136
    vTid, vLane, vOne = 4, 5, 6
    vL1, vL2, vBase, vMx = 20, 21, 22, 23
    def msk(k): return (sM1 + 2*k) if k < 8 else (sM2 + 2*(k-8))
    a(f"""
.globl main_kernel
.p2align 8
.type main_kernel,@function
main_kernel:
  s_cmp_ge_u32 s2, 256
  s_cbranch_scc1 K2_END
  s_load_dwordx8 s[28:35], s[0:1], 64       ; w_v out dbg ws
  s_load_dwordx2 s[4:5], s[0:1], 0          ; x
  v_lshrrev_b32 v{vT0}, 6, v0
  v_mov_b32 v{vTid}, v0
  v_readfirstlane_b32 s{sW}, v{vT0}
  v_and_b32 v{vLane}, 63, v0
@CPF2@
@S0@
  v_lshrrev_b32 v{vT1}, 4, v0
  v_and_b32 v{vT2}, 7, v0
  v_lshl_add_u32 v{vTSV}, v{vT1}, 3, v{vT2}
  v_lshlrev_b32 v{vTSV}, 10, v{vTSV}          ; (8G + (l&7))*1024
  s_and_b32 s{sB}, s2, 7
  s_lshl_b32 s{sB}, s{sB}, 5
  s_lshr_b32 s{sTmp}, s2, 3
  s_or_b32 s{sB}, s{sB}, s{sTmp}
  s_lshl_b32 s{sTmp}, s{sB}, 2
  s_add_u32 s{sTmp}, s{sTmp}, {OFFS}
  s_mov_b32 s{sOFF+2}, {(NP-1)*1024+4}
  s_mov_b32 s{sOFF+3}, 0x20000
  s_mov_b32 s{sSB}, 0
  s_mov_b32 s{sSW}, 32
  s_mov_b32 s{sFirstB}, 1
  v_and_b32 v{vT0}, 31, v{vLane}
  v_lshlrev_b32 v{vN4}, 2, v{vT0}
  v_mov_b32 v40, 0
  v_mov_b32 v41, 0
  v_mov_b32 v42, 0
  v_mov_b32 v43, 0
  v_lshrrev_b32 v{vT2}, 5, v{vTid}
  v_mul_u32_u24 v{vT2}, {ROWB}, v{vT2}
  v_lshl_add_u32 v{vT2}, v{vT0}, 4, v{vT2}
  v_add_u32 v{vT2}, {NODE+256}, v{vT2}
  v_add_u32 v{vT3}, {4*16*ROWB}, v{vT2}
""")
    for k in range(7):
        t = vT2 if k < 4 else vT3
        a(f"  ds_write_b128 v{t}, v[40:43] offset:{(k&3)*16*ROWB}")
    a(f"""
  v_lshlrev_b32 v{vT2}, 4, v{vTid}
  ds_write_b128 v{vT2}, v[40:43] offset:{EA0}
  ds_write_b128 v{vT2}, v[40:43] offset:{EA0+8192}
  s_waitcnt lgkmcnt(0)
  s_add_u32 s{sOFF}, s34, s{sTmp}
  s_addc_u32 s{sOFF+1}, s35, 0
  s_and_b32 s{sOFF+1}, s{sOFF+1}, 0xffff
  s_mov_b32 s96, s34
  s_mov_b32 s97, s35
  s_mov_b32 s{sXR}, s4
  s_and_b32 s{sXR+1}, s5, 0xffff
  s_mov_b32 s{sXR+2}, 3200000
  s_mov_b32 s{sXR+3}, 0x20000
  s_mov_b32 s{sOUT}, s30
  s_and_b32 s{sOUT+1}, s31, 0xffff
  s_mov_b32 s{sOUT+2}, 3200000
  s_mov_b32 s{sOUT+3}, 0x20000
  s_mov_b32 s{sREC}, s34
  s_and_b32 s{sREC+1}, s35, 0xffff
  s_mov_b32 s{sREC+2}, {NP*RECB}
  s_mov_b32 s{sREC+3}, 0x20000
  s_add_u32 s{sWM}, s34, {IMG}
  s_addc_u32 s{sWM+1}, s35, 0
  s_and_b32 s{sWM+1}, s{sWM+1}, 0xffff
  s_mov_b32 s{sWM+2}, {32768+1024}
  s_mov_b32 s{sWM+3}, 0x20000
  v_lshlrev_b32 v{vK}, 4, v{vLane}
  s_lshl_b32 s{sTmp}, s{sW}, 12
  s_add_u32 s{sTmp2}, s{sTmp}, {RING}
  s_add_u32 s{sN}, s{sTmp}, {IMA-16384}
  s_cmp_lt_u32 s{sW}, 4
  s_cselect_b32 m0, s{sTmp2}, s{sN}
  s_mov_b32 s{sN}, 32768
  buffer_load_dwordx4 v{vK}, s[{sWM}:{sWM+3}], s{sTmp} offen lds
  buffer_load_dwordx4 v{vK}, s[{sWM}:{sWM+3}], s{sTmp} offen offset:1024 lds
  buffer_load_dwordx4 v{vK}, s[{sWM}:{sWM+3}], s{sTmp} offen offset:2048 lds
  buffer_load_dwordx4 v{vK}, s[{sWM}:{sWM+3}], s{sTmp} offen offset:3072 lds
  buffer_load_dwordx2 v[{BEV}:{BEV+1}], v{vK}, s[{sWM}:{sWM+3}], s{sN} offen
  buffer_load_dwordx2 v[{BEV+4}:{BEV+5}], v{vK}, s[{sWM}:{sWM+3}], s{sN} offen offset:8
  v_lshrrev_b32 v{vT2}, 3, v{vLane}
  v_lshlrev_b32 v{vT2}, 15, v{vT2}
  v_and_b32 v{vT3}, 7, v{vLane}
  v_lshrrev_b32 v{vE}, 4, v{vLane}
  v_xor_b32 v{vT3}, v{vT3}, v{vE}
  v_lshl_add_u32 v{vE}, v{vT3}, 4, v{vT2}
  v_xor_b32 v{vT3}, 4, v{vT3}
  v_lshl_add_u32 v{vK}, v{vT3}, 4, v{vT2}
  s_lshl_b32 s{sTmp}, s{sW}, 19
  s_lshl_b32 s{sTmp2}, s{sB}, 7
  s_add_u32 s{sTmp}, s{sTmp}, s{sTmp2}
  s_add_u32 s{sTmp2}, s{sTmp}, {8*32768}
  s_lshl_b32 s{sN}, s{sW}, 11
  s_add_u32 m0, s{sN}, {XO}
  s_nop 0
  buffer_load_dwordx4 v{vE}, s[{sXR}:{sXR+3}], s{sTmp} offen lds
  s_add_u32 m0, s{sN}, {XO+1024}
  s_nop 0
  buffer_load_dwordx4 v{vK}, s[{sXR}:{sXR+3}], s{sTmp2} offen lds
@OFFS_B@
  s_mov_b32 s{sPsel0}, 0x05040100
  s_mov_b32 s{sPsel1}, 0x07060302
""")
    for i in range(8):
        a(f"  s_mov_b32 s{sSeg+i}, {i*RECB}")
    a(f"""
  v_lshrrev_b32 v{vT1}, 5, v{vLane}
  v_lshlrev_b32 v{vOrd}, 4, v{vT1}
  v_add_u32 v{vOrd}, {ORDA}, v{vOrd}
  v_cmp_eq_u32 vcc, 0, v{vT1}
  v_mov_b32 v{vT2}, 0x3f80
  v_mov_b32 v{vT3}, 0
  v_cndmask_b32 v{vT2}, v{vT3}, v{vT2}, vcc
  v_accvgpr_write_b32 a{ONE}, v{vT2}
  v_accvgpr_write_b32 a{ONE+1}, v{vT3}
  v_mov_b32 v{vT2}, 128
  v_mov_b32 v{vT3}, 256
  v_cndmask_b32 v{vEs}, v{vT2}, v{vT3}, vcc
  v_lshlrev_b32 v{vT2}, 3, v{vT0}
  v_add_u32 v{vT3}, {K0}, v{vN4}
  v_cndmask_b32 v{vEb}, v{vT3}, v{vT2}, vcc
  v_lshrrev_b32 v{vT2}, 3, v{vLane}
  v_lshlrev_b32 v{vKb}, 4, v{vT2}
  v_add_u32 v{vKb}, {K0}, v{vKb}
  v_bfe_u32 v{vT2}, v{vT0}, 2, 1
  v_cmp_eq_u32 vcc, v{vT2}, v{vT1}
  v_bfe_u32 v{vT2}, v{vT0}, 3, 1
  v_lshlrev_b32 v{vT2}, 4, v{vT2}
  v_mov_b32 v{vT3}, 0x3f80
  v_lshlrev_b32 v{vT3}, v{vT2}, v{vT3}
  v_cndmask_b32 v{vT3}, 0, v{vT3}, vcc
  v_cmp_gt_u32 vcc, 16, v{vT0}
  s_nop 1
  v_cndmask_b32 v{vT2}, 0, v{vT3}, vcc
  v_cndmask_b32 v{vT3}, v{vT3}, 0, vcc
  v_accvgpr_write_b32 a{EOP+2}, v{vT2}
  v_accvgpr_write_b32 a{EOP+3}, v{vT3}
  v_and_b32 v{vT2}, 7, v{vLane}
  v_bfe_u32 v{vT3}, v{vLane}, 4, 1
  v_lshlrev_b32 v{vT3}, 2, v{vT3}
  v_xor_b32 v{vT2}, v{vT2}, v{vT3}
""")
    for i in range(4):
        a(f"  v_xor_b32 v{vC+i}, {i}, v{vT2}\n  v_lshlrev_b32 v{vC+i}, 4, v{vC+i}")
    a(f"""
  v_bfe_u32 v{vT2}, v{vT0}, 1, 3
  v_lshlrev_b32 v{vT3}, 2, v{vT1}
  v_xor_b32 v{vT2}, v{vT2}, v{vT3}
  v_lshlrev_b32 v{vT3}, 7, v{vT0}
  v_add_u32 v{vT3}, {XO}, v{vT3}
""")
    for s_ in range(4):
        a(f"  v_xor_b32 v{24+s_}, {s_}, v{vT2}\n  v_lshl_add_u32 v{24+s_}, v{24+s_}, 4, v{vT3}")
    a(f"""
  s_lshl_b32 s{sM0}, s{sW}, 12
  s_add_u32 s{sM0}, s{sM0}, {RING}
  v_mul_u32_u24 v7, {4*ROWB}, v{vT1}
  v_add_u32 v7, v7, v{vN4}
  v_and_b32 v{vT2}, 3, v{vT0}
  v_bfe_u32 v{vK}, v{vT0}, 3, 1
  v_xor_b32 v{vK}, v{vK}, v{vT1}
  v_lshl_or_b32 v{vK}, v{vK}, 2, v{vT2}
  v_lshlrev_b32 v{vT2}, 10, v{vT2}
  v_lshrrev_b32 v{vT0}, 2, v{vT0}
  v_lshl_add_u32 v{vT2}, v{vT0}, 7, v{vT2}
  v_add_u32 v{vT2}, s{sM0}, v{vT2}
""")
    for s_ in range(4):
        a(f"  v_xor_b32 v{vXA+s_}, {s_}, v{vK}\n  v_lshl_add_u32 v{vXA+s_}, v{vXA+s_}, 4, v{vT2}")
    a(f"""
K2_RESET:
  v_mov_b32 v40, 0
  v_mov_b32 v41, 0
  v_mov_b32 v42, 0
  v_mov_b32 v43, 0
  v_mov_b32 v44, 1.0
  v_mov_b32 v45, 1.0
  v_mov_b32 v46, 1.0
  v_mov_b32 v47, 1.0
  v_mov_b32 v{vOne}, 1
  v_lshlrev_b32 v{vT2}, 4, v{vTid}
  ds_write_b128 v{vT2}, v[44:47] offset:{K0}
  ds_write_b128 v{vT2}, v[44:47] offset:{K0+8192}
  v_cmp_gt_u32 vcc, {(MISC+64-CNT)//16}, v{vTid}
  s_and_saveexec_b64 s[{sSave}:{sSave+1}], vcc
  ds_write_b128 v{vT2}, v[40:43] offset:{CNT}
  s_mov_b64 exec, s[{sSave}:{sSave+1}]
  v_and_b32 v{vT0}, 15, v{vTid}
  v_add_u32 v{vT1}, 16, v{vT0}
  v_mov_b32 v{vT3}, 0xffff
  v_cmp_gt_u32 vcc, s{sSW}, v{vT0}
  v_add_u32 v{vT2}, s{sSB}, v{vT0}
  s_nop 0
  v_cndmask_b32 v{vL1}, v{vT3}, v{vT2}, vcc
  v_cmp_gt_u32 vcc, s{sSW}, v{vT1}
  v_add_u32 v{vT1}, s{sSB}, v{vT1}
  s_nop 0
  v_cndmask_b32 v{vL2}, v{vT3}, v{vT1}, vcc
  v_mul_u32_u24 v{vT2}, 12, v{vT2}
  v_lshrrev_b32 v{vT1}, 4, v{vTid}
  s_mov_b32 s{sTmp}, {8*RECB}
  v_mad_u32_u24 v{vBase}, v{vT1}, s{sTmp}, v{vT2}
  s_cmp_eq_u32 s{sFirstB}, 1
  s_cbranch_scc1 K2_OFW
  v_and_b32 v{vT2}, 7, v{vTid}
  v_lshl_add_u32 v{vT2}, v{vT1}, 3, v{vT2}
  v_lshlrev_b32 v{vT2}, 10, v{vT2}
  buffer_load_dword v{vMx}, v{vT2}, s[{sOFF}:{sOFF+3}], 0 offen
  s_waitcnt vmcnt(0)
K2_OFW:
  s_waitcnt vmcnt(@OFFW@)
@S3@
""")
    for i in range(8):
        a(f"  v_mov_b32_dpp v{OF+i}, v{vMx} row_newbcast:{i} row_mask:0xf bank_mask:0xf")
    for i in range(8):
        a(f"  v_add_u32_sdwa v{VA+i}, v{OF+i}, v{vBase} dst_sel:DWORD dst_unused:UNUSED_PAD src0_sel:WORD_0 src1_sel:DWORD")
        a(f"  v_cmp_lt_u32_sdwa s[{sM1+2*i}:{sM1+2*i+1}], v{vL1}, v{OF+i} src0_sel:DWORD src1_sel:WORD_1")
        a(f"  s_mov_b64 exec, s[{sM1+2*i}:{sM1+2*i+1}]")
        a(f"  buffer_load_dwordx3 v[{R(i)}:{R(i)+2}], v{VA+i}, s[{sREC}:{sREC+3}], s{sSeg+i} offen {ld}")
        a("  s_mov_b64 exec, -1")
    for i in range(8):
        a(f"  v_cmp_lt_u32_sdwa s[{sM2+2*i}:{sM2+2*i+1}], v{vL2}, v{OF+i} src0_sel:DWORD src1_sel:WORD_1")
    for i in range(8):
        a(f"  s_mov_b64 exec, s[{sM2+2*i}:{sM2+2*i+1}]")
        a(f"  s_cbranch_execz K2_LS{i}")
        a(f"  buffer_load_dwordx3 v[{R(8+i)}:{R(8+i)+2}], v{VA+i}, s[{sREC}:{sREC+3}], s{sSeg+i} offen offset:192 {ld}")
        a(f"K2_LS{i}:")
    a(f"""
  s_mov_b64 exec, -1
  v_max3_u32 v{vT2}, v{OF}, v{OF+1}, v{OF+2}
  v_max3_u32 v{vT3}, v{OF+3}, v{OF+4}, v{OF+5}
  v_max3_u32 v{vT2}, v{OF+6}, v{OF+7}, v{vT2}
  v_max_u32 v{vT2}, v{vT2}, v{vT3}
  v_lshrrev_b32 v{vMx}, 16, v{vT2}
  v_mov_b32 v{vT2}, {MISC}
  s_mov_b32 s{sSave}, 0x00010001
  s_mov_b32 s{sSave+1}, 0x00010001
  v_lshlrev_b32 v{vK}, 4, v{vLane}
  v_add_u32 v{vE}, {RING}, v{vK}
@IMGW@
  s_waitcnt lgkmcnt(0)
@S5@
  s_barrier
  s_mov_b64 exec, s[{sSave}:{sSave+1}]
  ds_max_u32 v{vT2}, v{vMx}
  s_mov_b64 exec, -1
  s_cmp_eq_u32 s{sFirstB}, 0
  s_cbranch_scc1 K2_RANK
  s_lshr_b32 s{sTmp}, s{sW}, 1
  s_lshl_b32 s{sTmp2}, s{sTmp}, 12
  s_mul_i32 s{sTmp}, s{sTmp}, {32*ROWB}
""")
    for s_ in range(4):
        a(f"  v_add_u32 v{vT0+s_}, s{sTmp2}, v{24+s_}")
    for s_ in range(4):
        a(f"  ds_read_b128 {Xb(1,s_)}, v{vT0+s_}")
    a(f"""
  s_mov_b32 s{sCur}, {NLOG2E:#x}
  s_and_b32 s{sTmp2}, s{sW}, 1
  s_cselect_b32 s{sCur}, 1.0, s{sCur}
  s_lshl_b32 s{sN}, s{sTmp2}, 13
  s_add_u32 s{sN}, s{sN}, {IMA}
  v_add_u32 v{vT0}, s{sN}, v{vK}
  s_lshl_b32 s{sTmp2}, s{sTmp2}, 7
  s_add_u32 s{sTmp}, s{sTmp}, s{sTmp2}
  s_add_u32 s{sTmp}, s{sTmp}, {NODE}
  v_add_u32 v{vT1}, s{sTmp}, v7
""")
    for q in range(8):
        a(f"  ds_read_b128 {ar(4*q,4)}, v{vT0} offset:{1024*q}")
    for s_ in range(4):
        for ct in range(2):
            a(f"  s_waitcnt lgkmcnt({7-2*s_-ct})")
            a(mfma16(120+16*ct, Xb(1,s_), ar((s_*2+ct)*4,4), g16(120+16*ct) if s_ else "0"))
    for q in range(8):
        a(f"  ds_read_b128 {ar(32+4*q,4)}, v{vE} offset:{8192+1024*q}")
    a("  s_nop 3")
    for r in range(16):
        a(f"  v_mul_f32 v{120+r}, s{sCur}, v{120+r}")
        a(f"  v_mul_f32 v{136+r}, s{sCur}, v{136+r}")
        a(f"  v_cvt_pk_bf16_f32 v{120+r}, v{120+r}, v{136+r}")
        a(f"  ds_write_b32 v{vT1}, v{120+r} offset:{(8*(r>>2)+(r&3))*ROWB}")
        if r == 2: a(f"  s_cmp_ge_u32 s{sW}, 6\n  s_cbranch_scc1 K2_JOBE")
    a("K2_JOBE:")
    for q in range(8):
        a(f"  ds_read_b128 {ar(4*q,4)}, v{vE} offset:{1024*q}")
    a(f"""
K2_RANK:
  s_waitcnt vmcnt(0)
@S6@
@XPF@
""")
    for k in range(16):
        a(f"  s_mov_b64 exec, s[{msk(k)}:{msk(k)+1}]")
        if k >= 8: a(f"  s_cbranch_execz K2_RS{k}")
        a(f"  v_lshrrev_b32 v{A4(k)}, 16, v{R(k)+2}")
        a(f"  ds_add_rtn_u32 v{R(k)+3}, v{A4(k)}, v{vOne} offset:{CNT}")
        if k >= 8: a(f"K2_RS{k}:")
    a(f"""  s_mov_b64 exec, -1
  s_waitcnt lgkmcnt(0)
  s_barrier
@S7@
  s_cmp_lg_u32 s{sW}, 0
  s_cbranch_scc1 K2_PRE""")
    c0, c1, q0, q1, b0, b1, p0, p1, hv, ex, e0, e1, m0_, m1_, t0_, t1_ = range(120, 136)
    u0, u1, l4 = vT0, vT1, vT2
    a(f"""
  v_lshlrev_b32 v{l4}, 2, v{vLane}
  ds_read2st64_b32 v[{c0}:{c1}], v{l4} offset0:{CNT//256} offset1:{CNT//256+1}
  s_waitcnt lgkmcnt(0)
  v_add_u32 v{q0}, 3, v{c0}
  v_add_u32 v{q1}, 3, v{c1}
  v_lshrrev_b32 v{q0}, 2, v{q0}
  v_lshrrev_b32 v{q1}, 2, v{q1}
  v_min_u32 v{b0}, 63, v{q0}
  v_min_u32 v{b1}, 63, v{q1}
  v_sub_u32 v{b0}, 63, v{b0}
  v_sub_u32 v{b1}, 63, v{b1}
  v_lshlrev_b32 v{b0}, 2, v{b0}
  v_lshlrev_b32 v{b1}, 2, v{b1}
  ds_add_rtn_u32 v{p0}, v{b0}, v{vOne} offset:{HIST}
  ds_add_rtn_u32 v{p1}, v{b1}, v{vOne} offset:{HIST}
  ds_read_b32 v{hv}, v{l4} offset:{HIST}
  v_lshl_or_b32 v{q0}, v{q0}, 8, v{vLane}
  v_add_u32 v{u1}, 64, v{vLane}
  v_lshl_or_b32 v{q1}, v{q1}, 8, v{u1}
  s_waitcnt lgkmcnt(0)
  v_mov_b32 v{ex}, v{hv}
""")
    dpp_scan(a, ex)
    a(f"""
  v_sub_u32 v{ex}, v{ex}, v{hv}
  ds_bpermute_b32 v{u0}, v{b0}, v{ex}
  ds_bpermute_b32 v{u1}, v{b1}, v{ex}
  s_waitcnt lgkmcnt(0)
  v_add_lshl_u32 v{u0}, v{u0}, v{p0}, 2
  v_add_lshl_u32 v{u1}, v{u1}, v{p1}, 2
  ds_write_b32 v{u0}, v{q0} offset:{ORDQ}
  ds_write_b32 v{u1}, v{q1} offset:{ORDQ}
  ds_read2st64_b32 v[{e0}:{e1}], v{l4} offset0:{ORDQ//256} offset1:{ORDQ//256+1}
  s_waitcnt lgkmcnt(0)
  v_mov_b32 v{m0_}, v{e0}
  v_mov_b32 v{m1_}, v{e1}
""")
    for mode in ("quad_perm:[1,0,3,2]", "quad_perm:[2,3,0,1]", "row_half_mirror"):
        a(f"  s_nop 0\n  v_max_u32_dpp v{m0_}, v{m0_}, v{m0_} {mode} row_mask:0xf bank_mask:0xf")
        a(f"  v_max_u32_dpp v{m1_}, v{m1_}, v{m1_} {mode} row_mask:0xf bank_mask:0xf")
    a(f"""
  v_lshrrev_b32 v{m0_}, 8, v{m0_}
  v_lshrrev_b32 v{m1_}, 8, v{m1_}
  v_mov_b32 v{t0_}, v{m0_}
  v_mov_b32 v{t1_}, v{m1_}
""")
    for mode in ("row_shr:8 row_mask:0xf", "row_bcast:15 row_mask:0xa", "row_bcast:31 row_mask:0xc"):
        a(f"  s_nop 0\n  v_add_u32_dpp v{t0_}, v{t0_}, v{t0_} {mode} bank_mask:0xf")
        a(f"  v_add_u32_dpp v{t1_}, v{t1_}, v{t1_} {mode} bank_mask:0xf")
    a(f"""
  s_nop 0
  v_readlane_b32 s{sTmp}, v{t0_}, 63
  v_sub_u32 v{t0_}, v{t0_}, v{m0_}
  v_sub_u32 v{m1_}, v{t1_}, v{m1_}
  v_add_u32 v{t1_}, s{sTmp}, v{t1_}
  v_add_u32 v{m1_}, s{sTmp}, v{m1_}
  v_and_b32 v{u0}, 7, v{vLane}
  v_lshlrev_b32 v{u1}, 4, v{u0}
  v_lshl_add_u32 v{p0}, v{t0_}, 7, v{u1}
  v_lshl_add_u32 v{p1}, v{m1_}, 7, v{u1}
  v_and_b32 v{e0}, 0xff, v{e0}
  v_and_b32 v{e1}, 0xff, v{e1}
  v_lshlrev_b32 v{c0}, 2, v{e0}
  v_lshlrev_b32 v{c1}, 2, v{e1}
  ds_write_b32 v{c0}, v{p0} offset:{NB}
  ds_write_b32 v{c1}, v{p1} offset:{NB}
  v_lshrrev_b32 v{u0}, 1, v{vLane}
  v_add_u32 v{u0}, {TSV}, v{u0}
  s_mov_b32 s{sSave}, 0x01010101
  s_mov_b32 s{sSave+1}, 0x01010101
  s_mov_b64 exec, s[{sSave}:{sSave+1}]
  ds_write2_b32 v{u0}, v{t0_}, v{m1_} offset0:0 offset1:8
  s_mov_b32 s{sSave}, 0
  s_mov_b32 s{sSave+1}, 0x80000000
  s_mov_b64 exec, s[{sSave}:{sSave+1}]
  v_mov_b32 v{u1}, {TSV+64}
  ds_write_b32 v{u1}, v{t1_}
  s_mov_b64 exec, -1
  v_min_u32 v{e0}, 98, v{e0}
  v_min_u32 v{e1}, 98, v{e1}
  v_mov_b32 v{c0}, {NODE}
  s_mov_b32 s{sTmp}, {ROWB}
  v_mad_u32_u24 v{e0}, v{e0}, s{sTmp}, v{c0}
  v_mad_u32_u24 v{e1}, v{e1}, s{sTmp}, v{c0}
  v_and_b32 v{c0}, 1, v{vLane}
  v_lshlrev_b32 v{c0}, 4, v{c0}
  v_bfe_u32 v{c1}, v{vLane}, 1, 2
  v_lshl_add_u32 v{c0}, v{c1}, 2, v{c0}
  v_and_b32 v{c1}, 56, v{vLane}
  v_lshl_add_u32 v{c0}, v{c1}, 2, v{c0}
  v_add_u32 v{c0}, {ORDA}, v{c0}
  ds_write2st64_b32 v{c0}, v{e0}, v{e1} offset0:0 offset1:1
K2_PRE:
  s_mov_b32 s{sTmp}, -28
""")
    for k in range(16):
        if k >= 8: a(f"  s_cmp_eq_u64 s[{msk(k)}:{msk(k)+1}], 0\n  s_cbranch_scc1 K2_PS{k}")
        a(f"  v_and_b32 v{vT0}, 3, v{R(k)+3}")
        a(f"  v_lshlrev_b32 v{R(k)+3}, 5, v{R(k)+3}")
        a(f"  v_mad_i32_i24 v{R(k)+3}, v{vT0}, s{sTmp}, v{R(k)+3}")
        a(f"  v_and_b32 v{R(k)+2}, 0x7fff, v{R(k)+2}")
        if k >= 8: a(f"K2_PS{k}:")
    a(f"""
  v_min_u32 v{vT0}, 16, v{vLane}
  v_lshlrev_b32 v{vT0}, 2, v{vT0}
  v_mov_b32 v{vT1}, {MISC}
  s_waitcnt lgkmcnt(0)
@S8@
  s_barrier
@S9@
  ds_read_b32 v{vTSV}, v{vT0} offset:{TSV}
  ds_read_b32 v{vT2}, v{vT1}
""")
    for k in range(16):
        a(f"  s_mov_b64 exec, s[{msk(k)}:{msk(k)+1}]")
        if k >= 8: a(f"  s_cbranch_execz K2_NS{k}")
        a(f"  ds_read_b32 v{A4(k)}, v{A4(k)} offset:{NB}")
        if k >= 8: a(f"K2_NS{k}:")
        if k == 7:
            a(f"""  s_mov_b64 exec, -1
  s_waitcnt lgkmcnt(8)
  v_readlane_b32 s{sT}, v{vTSV}, 16
  v_readfirstlane_b32 s{sMaxC}, v{vT2}
  s_cmp_le_u32 s{sT}, {CAPT}
  s_cbranch_scc1 K2_FIT
  s_lshr_b32 s{sSW}, s{sSW}, 1
  s_mov_b32 s{sFirstB}, 0
  s_waitcnt lgkmcnt(0) vmcnt(0)
  s_barrier
  s_branch K2_RESET
K2_FIT:""")
    a("  s_waitcnt lgkmcnt(0)")
    for k in range(16):
        a(f"  s_mov_b64 exec, s[{msk(k)}:{msk(k)+1}]")
        if k >= 8: a(f"  s_cbranch_execz K2_WS{k}")
        a(f"  v_add_u32 v{A4(k)}, v{A4(k)}, v{R(k)+3}")
        a(f"  ds_write_b32 v{A4(k)}, v{R(k)+2} offset:{K0}")
        a(f"  v_lshlrev_b32 v{R(k)+3}, 1, v{A4(k)}")
        if k >= 8: a(f"K2_WS{k}:")
    a(f"""
  s_mov_b64 exec, -1
  s_mul_i32 s{sT0}, s{sT}, s{sW}
  s_add_u32 s{sT1}, s{sT0}, s{sT}
  s_lshr_b32 s{sT0}, s{sT0}, 3
  s_lshr_b32 s{sT1}, s{sT1}, 3
  v_cmp_ge_u32 vcc, s{sT0}, v{vTSV}
  s_and_b32 s{sTmp}, vcc_lo, 0xffff
  s_bcnt1_i32_b32 s{sG0}, s{sTmp}
  s_sub_u32 s{sG0}, s{sG0}, 1
  v_cmp_gt_u32 vcc, s{sT1}, v{vTSV}
  s_and_b32 s{sTmp}, vcc_lo, 0xffff
  s_bcnt1_i32_b32 s{sGlast}, s{sTmp}
  s_sub_u32 s{sGlast}, s{sGlast}, 1
  s_add_u32 s{sTmp}, s{sG0}, 1
  v_readlane_b32 s{sTmp2}, v{vTSV}, s{sG0}
  v_readlane_b32 s{sTn}, v{vTSV}, s{sTmp}    ; TS[g0+1]
  s_sub_u32 s{sN}, s{sT1}, s{sT0}
  s_mov_b32 s{sCont}, 0
  s_mov_b32 s{sSlow}, 0
  s_mov_b32 s{sGn}, s{sG0}
  s_mov_b32 s{sCur}, s{sT0}
  s_mov_b32 s{sF}, 1
  s_cmp_eq_u32 s{sN}, 0
  s_cbranch_scc1 K2_FMD
  s_cmp_eq_u32 s{sTmp2}, s{sT0}
  s_cbranch_scc1 K2_FM
  s_mov_b32 s{sCont}, 1
  s_cmp_lt_u32 s{sTn}, s{sT1}
  s_cbranch_scc0 K2_ALLC
  s_add_u32 s{sGn}, s{sG0}, 1
  s_mov_b32 s{sCur}, s{sTn}
  s_sub_u32 s{sTmp}, s{sT1}, s{sCur}
  s_bitset1_b32 s{sF}, s{sTmp}
  s_branch K2_FM
K2_ALLC:
  s_cmp_gt_u32 s{sTn}, s{sT1}
  s_cselect_b32 s{sSlow}, 1, 0
K2_FM:
  s_mov_b32 s{sTau}, s{sGn}
K2_FML:
  s_cmp_ge_u32 s{sTau}, s{sGlast}
  s_cbranch_scc1 K2_FMD
  s_add_u32 s{sTau}, s{sTau}, 1
  s_nop 3
  v_readlane_b32 s{sTmp}, v{vTSV}, s{sTau}
  s_sub_u32 s{sTmp}, s{sTmp}, s{sCur}
  s_bitset1_b32 s{sF}, s{sTmp}
  s_branch K2_FML
K2_FMD:
  s_lshl_b32 s{sTmp}, s{sCur}, 7
  v_add_u32 v{vK}, s{sTmp}, v{vKb}
  v_mad_u32_u24 v{vE}, v{vEs}, s{sCur}, v{vEb}
""")
    for l in next_tile(sTn, sCur): a(l)
    a(f"""
  s_waitcnt lgkmcnt(0)
  s_barrier
@S4@
  ds_read_b128 v[{vI}:{vI+3}], v{vK}
""")
    ord_read(a)
    a(f"""  s_lshl_b32 s{sTmp}, s{sTn}, 7
  v_add_u32 v{vK}, s{sTmp}, v{vKb}
  s_mov_b32 m0, s{sM0}
  s_waitcnt lgkmcnt(1)""")
    for i in range(4): a(la(i))
    for i in range(4):
        a(dma(i))
        if i < 3: a(f"  s_add_u32 m0, s{sM0}, {1024*(i+1)}\n  s_nop 0")
    a(f"  ds_read_b128 v[{vI}:{vI+3}], v{vK}")
    def ea_writes(ks):
        for k in ks:
            a(f"  s_mov_b64 exec, s[{msk(k)}:{msk(k)+1}]")
            if k >= 8: a(f"  s_cbranch_execz K2_ES{k}")
            a(f"  ds_write_b64 v{R(k)+3}, v[{R(k)}:{R(k)+1}] offset:{EA0}")
            if k >= 8: a(f"K2_ES{k}:")
        a("  s_mov_b64 exec, -1")
    ea_writes(list(range(8, 16)) + [0, 1, 2, 3])
    m_event(a)
    for g in range(4): a(f"  v_mov_b32 v{vNAc+g}, v{vNAn+g}")
    next_group(a)
    ord_read(a)
    for i in range(4): a(la(i))
    a("  s_waitcnt vmcnt(0)")
    for s_ in range(4): a(f"  ds_read_b128 {Xb(0,s_)}, v{vXA+s_}")
    ea_writes([4, 5, 6, 7])
    for l in next_tile(sTn2, sTn): a(l)
    a(f"""  s_lshl_b32 s{sTmp}, s{sTn2}, 7
  v_add_u32 v{vK}, s{sTmp}, v{vKb}
  s_mov_b32 m0, s{sM0}
  s_waitcnt lgkmcnt(4)""")
    for i in range(4):
        a(dma(i))
        if i < 3: a(f"  s_add_u32 m0, s{sM0}, {1024*(i+1)}\n  s_nop 0")
    a(f"""  ds_read_b128 v[{vI}:{vI+3}], v{vK}
  s_waitcnt lgkmcnt(0)
  s_barrier
@S10@
  s_cmp_eq_u32 s{sN}, 0
  s_cbranch_scc1 K2_LOOPDONE
  ds_read2_b32 a[{EOP}:{EOP+1}], v{vE} offset0:0 offset1:1
  v_mad_u32_u24 v{vE}, v{vEs}, s{sTn}, v{vEb}
  s_mov_b32 s{sTn}, s{sTn2}""")
    for i in range(4):
        a(mfma16(Gb(0), Xb(0,i), wb(i,0), g16(Gb(0)) if i else "0"))
    a("  s_waitcnt lgkmcnt(0)")
    a(mfma16(Gb(0), Eo, BEo(0), g16(Gb(0))))
    a(mfma16(Gb(1), Eo, BEo(1), "0"))
    a(mfma16(Gb(1), Xb(0,0), wb(0,1), g16(Gb(1))))
    a(f"  ds_read2_b32 a[{EOP}:{EOP+1}], v{vE} offset0:0 offset1:1")
    for i in range(1, 4):
        a(mfma16(Gb(1), Xb(0,i), wb(i,1), g16(Gb(1))))
    a(f"  s_bitcmp1_b32 s{sF}, 1\n  s_cbranch_scc0 K2_FNM")
    m_event(a)
    a("K2_FNM:\n  s_nop 5")
    for i in range(16): a(f"  v_exp_f32 v{Gb(0)+i}, v{Gb(0)+i}")
    a(f"  s_mov_b32 s{sTau}, 0\n  s_waitcnt vmcnt(0)")
    a(mfma8(Gb(0), ON, ON, g16(Gb(0))))
    for s_ in range(4): a(f"  ds_read_b128 {Xb(1,s_)}, v{vXA+s_}")
    a("K2_LOOP:")
    tile_code(a, 0)
    tile_code(a, 1)
    a(f"""  s_branch K2_LOOP
K2_LAST:
  s_setprio 0
  s_cmp_lg_u32 s{sCont}, 0
  s_cbranch_scc1 K2_LOOPDONE""")
    flush_own(a, "L")
    a(f"""
K2_LOOPDONE:
@S11@
  s_add_u32 s{sSB}, s{sSB}, s{sSW}
  v_mbcnt_lo_u32_b32 v{vLane}, -1, 0
  v_mbcnt_hi_u32_b32 v{vLane}, -1, v{vLane}
  s_lshl_b32 s{sTmp}, s{sW}, 6
  v_add_u32 v{vTid}, s{sTmp}, v{vLane}
  s_lshl_b32 s{sTmp}, s{sW}, 12
  s_add_u32 s{sTmp}, s{sTmp}, s{sB}
  s_lshl_b32 s{sTmp}, s{sTmp}, 7
  v_lshrrev_b32 v{vT1}, 5, v{vLane}
  v_lshlrev_b32 v{vE}, 17, v{vT1}
  v_add3_u32 v{vE}, v{vE}, v{vN4}, s{sTmp}
  s_waitcnt vmcnt(0)
  s_cmp_gt_u32 s{sMaxC}, s{sSB}
  s_cbranch_scc1 K2_NOFL
""")
    for rr in range(8):
        a(f"  s_mov_b32 s{sSeg+rr}, {(8*(rr>>2)+(rr&3))*32768}")
        a(f"  buffer_load_dword v{G+rr}, v{vE}, s[{sXR}:{sXR+3}], s{sSeg+rr} offen")
    a(f"""
K2_NOFL:
  s_cmp_eq_u32 s{sSlow}, 0
  s_cbranch_scc1 K2_NSL
  v_mov_b32 v{vT0}, {MISC+4}
  v_mov_b32 v{vT1}, 1
  ds_write_b32 v{vT0}, v{vT1}
K2_NSL:
  s_waitcnt lgkmcnt(0)
  s_barrier
  v_mov_b32 v{vT0}, {MISC+4}
  ds_read_b32 v{vT1}, v{vT0}
  s_waitcnt lgkmcnt(0)
  v_readfirstlane_b32 s{sSlow}, v{vT1}
  s_mov_b32 s{sTau}, 1
K2_MERGE:
  s_cmp_eq_u32 s{sCont}, 0
  s_cbranch_scc1 K2_MSKIP
  s_cmp_eq_u32 s{sSlow}, 0
  s_cbranch_scc1 K2_MDO
  s_cmp_lg_u32 s{sTau}, s{sW}
  s_cbranch_scc1 K2_MSKIP
K2_MDO:
""")
    flush(a)
    a(f"""
K2_MSKIP:
  s_waitcnt lgkmcnt(0)
  s_barrier
  s_cmp_eq_u32 s{sSlow}, 0
  s_cbranch_scc1 K2_MEND
  s_add_u32 s{sTau}, s{sTau}, 1
  s_cmp_lt_u32 s{sTau}, 8
  s_cbranch_scc1 K2_MERGE
K2_MEND:
@S12@
  s_mov_b32 s{sFirstB}, 0
  s_cmp_gt_u32 s{sMaxC}, s{sSB}
  s_cbranch_scc1 K2_RESET
  s_mul_i32 s{sTmp}, s{sW}, {16*ROWB}
  s_add_u32 s{sTmp}, s{sTmp}, {NODE}
  v_lshrrev_b32 v{vT1}, 5, v{vLane}
  v_mul_u32_u24 v{vT1}, {4*ROWB}, v{vT1}
  v_add3_u32 v{vT1}, v{vT1}, v{vN4}, s{sTmp}
  v_add_u32 v{vT2}, 128, v{vT1}
""")
    for rr in range(8):
        ro = 3 * (8*(rr>>2) + (rr&3))
        a(f"  ds_read2st64_b32 v[{AC+4*rr}:{AC+4*rr+1}], v{vT1} offset0:{ro+1} offset1:{ro+2}")
        a(f"  ds_read2st64_b32 v[{AC+4*rr+2}:{AC+4*rr+3}], v{vT2} offset0:{ro+1} offset1:{ro+2}")
        a(f"  ds_read_b32 v{HV+rr}, v{vT2} offset:{ro*256}")
    a(f"  s_mov_b32 s{sTmp}, 0x358637bd")
    for rr in range(8):
        a(f"  s_waitcnt lgkmcnt({min(15, 3*(7-rr))})")
        for ct in range(2):
            d = AC + 4*rr + 2*ct + 1
            a(f"  v_add_f32 v{d}, s{sTmp}, v{d}")
        for ct in range(2):
            d = AC + 4*rr + 2*ct + 1
            a(f"  v_rcp_f32 v{d}, v{d}")
        a(f"  v_lshlrev_b32 v{HV+8+rr}, 16, v{HV+rr}")
        a(f"  v_and_b32 v{HV+rr}, 0xffff0000, v{HV+rr}")
    a("  s_waitcnt vmcnt(0)")
    for rr in range(8):
        n0, n1 = AC + 4*rr, AC + 4*rr + 2
        a(f"  v_fma_f32 v{n0}, v{n0}, v{n0+1}, v{HV+8+rr}")
        a(f"  v_fma_f32 v{n1}, v{n1}, v{n1+1}, v{HV+rr}")
        a(f"  v_lshlrev_b32 v{n0+1}, 16, v{G+rr}")
        a(f"  v_and_b32 v{n1+1}, 0xffff0000, v{G+rr}")
        a(f"  v_max_f32 v{n0}, 0, v{n0}")
        a(f"  v_max_f32 v{n1}, 0, v{n1}")
        a(f"  v_add_f32 v{n0}, v{n0}, v{n0+1}")
        a(f"  v_add_f32 v{n1}, v{n1}, v{n1+1}")
        a(f"  v_cvt_pk_bf16_f32 v{n0}, v{n0}, v{n1}")
        a(f"  buffer_store_dword v{n0}, v{vE}, s[{sOUT}:{sOUT+3}], s{sSeg+rr} offen")
    a("@S13@\n@S15@\n@OUT2@\nK2_END:\n  s_endpgm")

def kd(name, vgpr, accum, sgpr):
    return f"""
.amdhsa_kernel {name}
  .amdhsa_next_free_vgpr {vgpr}
  .amdhsa_next_free_sgpr {sgpr}
  .amdhsa_accum_offset {accum}
  .amdhsa_group_segment_fixed_size 0
  .amdhsa_kernarg_size 96
  .amdhsa_user_sgpr_count 2
  .amdhsa_user_sgpr_kernarg_segment_ptr 1
  .amdhsa_system_sgpr_workgroup_id_x 1
  .amdhsa_float_denorm_mode_32 3
.end_amdhsa_kernel
"""

def main():
    ref = open(f"cdna_kernels/{NAME}.s.ref").read().split("\n")
    hdr = [l for l in ref if l.startswith(";") and "@launch" not in l and "Override" not in l and "grid=ceil" not in l]
    a = Asm()
    a("\n".join(hdr))
    a(f"; @launch kernel=part_kernel grid=({NP+5},1,1) block=(800,1,1) lds={LDS1}")
    a(f"; @launch kernel=main_kernel grid=(256,1,1) block=(512,1,1) lds={LDS2}")
    a('.amdgcn_target "amdgcn-amd-amdhsa--gfx950"\n.text')
    gen_k1(a)
    gen_k2(a)
    a('.section .rodata,"a"\n.p2align 6')
    st = OPT["stamp"]
    a(kd("part_kernel", 60, 60, 100) if st else kd("part_kernel", 56, 56, 32))
    a(".p2align 6")
    a(kd("main_kernel", NARCH + NACC, NARCH, 100))
    txt = a.text()
    SL = MISC + 64
    cpf2 = cpf1 = ""
    if OPT["cpf"] & 1:
        cpf2 = f"""  s_getpc_b64 s[98:99]
  v_lshlrev_b32 v39, 6, v0
  s_mov_b64 exec, 0xffffffff
  global_load_dword a0, v39, s[98:99]
  s_mov_b64 exec, -1
"""
        cpf2 = f"""  s_getpc_b64 s[98:99]
CPF2L:
  v_lshlrev_b32 v39, 5, v0
  v_min_u32 v39, K2_END-CPF2L, v39
  global_load_dword a0, v39, s[98:99]
"""
    if OPT["cpf"] & 2:
        cpf1 = f"""  s_getpc_b64 s[26:27]
CPF1L:
  v_lshlrev_b32 v40, 5, v0
  v_min_u32 v40, K2_END-CPF1L, v40
  global_load_dword v55, v40, s[26:27]
"""
    offl = f"""  buffer_load_dword v23, v{vTSV}, s[{sOFF}:{sOFF+3}], 0 offen
"""
    txt = txt.replace("@OFFS_A@\n", "").replace("@OFFS_B@\n", offl).replace("@OFFW@", "0").replace("@IMGW@\n", "")
    xpf = ""
    if OPT["npf"]:
        xpf = f"""  s_lshr_b32 s{sTmp}, s2, 3
  s_mul_i32 s{sTmp}, s{sTmp}, 100096
  v_lshlrev_b32 v{vT2}, 7, v4
  s_add_u32 s{sTmp2}, s{sTmp}, 65536
  buffer_load_dword a{X}, v{vT2}, s[{sXR}:{sXR+3}], s{sTmp} offen
  s_cmp_ge_u32 s{sW}, 5
  s_cbranch_scc1 K2_XPE
  buffer_load_dword a{X+1}, v{vT2}, s[{sXR}:{sXR+3}], s{sTmp2} offen
K2_XPE:
"""
    txt = txt.replace("@XPF@\n", xpf)
    txt = txt.replace("@CPF2@\n", cpf2).replace("@CPF1@\n", cpf1)
    def sub(m):
        if not st: return ""
        b = Asm(); k = m.group(1); i = m.group(2)
        if k == "OUT":
            if i == "2":
                b(f"""  s_lshl_b32 s99, s{sW}, 6
  s_add_u32 s99, s99, {SL}
  v_mbcnt_lo_u32_b32 v37, -1, 0
  v_lshlrev_b32 v37, 2, v37
  v_add_u32 v37, s99, v37
  ds_read_b32 v36, v37
  s_waitcnt lgkmcnt(0)""")
                stamp_out(b, 96, sW, STAMP_OFF, 36, 37, 8)
            else: stamp_out(b, 20, 23, STAMP_OFF + 0x100000, 56, 57, 16)
        else:
            i = int(i)
            if k == "TW": b("  s_waitcnt vmcnt(0)")
            def one(idx, real=False):
                if k == "S":
                    d = 37 if idx == 5 else 38
                    b(f"""  s_mem{'real' if real else ''}time s[98:99]
  s_waitcnt lgkmcnt(0)
  v_mov_b32 v{d}, s98
  s_lshl_b32 s99, s{sW}, 6
  s_add_u32 s99, s99, {SL + 4*idx}
  v_mov_b32 v39, s99
  ds_write_b32 v39, v{d}""")
                else: stamp(b, idx, 56, real=real)
            if i == 0: one(0); one(1, True)
            elif i == 15: one(15, True)
            elif i == 10 and k == 'S': one(10); one(14, True)
            elif i == 11 and k == 'S': one(11); one(2, True)
            elif i == 2 and k == 'S': pass
            else: one(i)
        return b.text()
    txt = re.sub(r"@(S|TW|T|OUT)(\d+)@\n", sub, txt)
    lines = txt.split("\n")
    for p in check_hazards(lines): print("HAZARD", p)
    b = Asm()
    for rep in range(2):
        for k in range(4):
            t_unit(b, k); p_unit(b, k, rep == 0)
            if k & 1: flush(b); m_event(b)
    for k in range(4):
        t_unit(b, k); p_unit(b, k, False)
    for k in range(2):
        t_unit(b, k); p_unit(b, k, False)
    for p in check_hazards(b.text().split("\n"), "loop"): print("HAZARD", p)
    open(sys.argv[1], "w").write(txt)

if __name__ == "__main__":
    main()
```

```python
import sys, re
from asmlib import *

NAME = "gather_scatter__edge_featured_mpnn_gatedgcn__graph"
NP, CH = 250, 3200
RECB = CH * 12
OFFS = 0xA00000
IMG = OFFS + 0x40000
NLOG2E = 0xBFB8AA3B
CAPT = 128
EA0, K0 = 0, 32768
CNT, NB, HIST, ORDQ, ORDA, TSV, MISC = 49152, 49664, 50176, 50432, 50944, 51456, 51584
RING = 52224
NODE = RING + 8 * 4096
ROWB = 768
LDS2 = NODE + 99 * ROWB
XO, IMA = RING + 16384, 16384
K1_CNT, K1_START = 38400, 39424
LDS1 = 40448
STAMP_OFF = 0x1000000

OPT = dict(st_flags="", ld_flags="", npf=0, stamp=0, prio=2, dbg=-1, dbgw=0, nodma=0, cpf=3, k1late=2)
for a_ in sys.argv[2:]:
    k_, v_ = a_.split("=", 1)
    OPT[k_] = int(v_) if v_.lstrip("-").isdigit() else v_.replace("+", " ")

def stamp(a, idx, vreg, s=98, real=False):
    a(f"  s_mem{'real' if real else ''}time s[{s}:{s+1}]\n  s_waitcnt lgkmcnt(0)\n  v_writelane_b32 v{vreg}, s{s}, {idx}")
def stamp_out(a, ws, wave, base, vreg, tmp, wpw):
    a(f"""  s_mul_i32 s98, s2, {wpw}
  s_add_u32 s98, s98, s{wave}
  s_lshl_b32 s98, s98, 6
  s_add_u32 s98, s98, {base}
  v_mbcnt_lo_u32_b32 v{tmp}, -1, 0
  v_lshlrev_b32 v{tmp}, 2, v{tmp}
  v_add_u32 v{tmp+1}, s98, v{tmp}
  s_mov_b64 exec, 0xffff
  global_store_dword v{tmp+1}, v{vreg}, s[{ws}:{ws+1}]""")
    if OPT["dbg"] >= 0:
        a(f"""  s_cmp_lg_u32 s2, {OPT["dbg"]}
  s_cbranch_scc1 DBGX{vreg}_{len(a.lines)}
  s_cmp_lg_u32 s{wave}, {OPT["dbgw"]}
  s_cbranch_scc1 DBGX{vreg}_{len(a.lines)}
  s_load_dwordx2 s[98:99], s[0:1], 80
  s_waitcnt lgkmcnt(0)
  global_store_dword v{tmp}, v{vreg}, s[98:99]
DBGX{vreg}_{len(a.lines)}:""")

def dpp_scan(a, v):
    for m in ("row_shr:1", "row_shr:2", "row_shr:4", "row_shr:8"):
        a(f"  s_nop 1\n  v_add_u32_dpp v{v}, v{v}, v{v} {m} row_mask:0xf bank_mask:0xf")
    a(f"  s_nop 1\n  v_add_u32_dpp v{v}, v{v}, v{v} row_bcast:15 row_mask:0xa bank_mask:0xf")
    a(f"  s_nop 1\n  v_add_u32_dpp v{v}, v{v}, v{v} row_bcast:31 row_mask:0xc bank_mask:0xf")

def gen_k1(a):
    st = OPT["st_flags"]
    a(f"""
.globl part_kernel
.p2align 8
.type part_kernel,@function
part_kernel:
  s_cmp_ge_u32 s2, {NP}
  s_cbranch_scc1 K1_PACK
  s_load_dwordx2 s[8:9], s[0:1], 24
  s_load_dwordx4 s[4:7], s[0:1], 8
  s_load_dwordx2 s[20:21], s[0:1], 88
  v_lshrrev_b32 v33, 6, v0
  v_lshlrev_b32 v1, 4, v0
  v_readfirstlane_b32 s23, v33
@CPF1@
@T0@
  s_mul_i32 s22, s2, {CH*4}
  v_add_u32 v2, s22, v1
  v_lshlrev_b32 v3, 1, v2
  v_mov_b32 v32, 1
  v_mov_b32 v36, 0
  v_mov_b32 v37, 0
  v_mov_b32 v38, 0
  v_mov_b32 v39, 0
  s_cmp_lg_u32 s23, 0
  s_cbranch_scc1 K1_A
  ds_write_b128 v1, v[36:39] offset:{K1_CNT}
K1_A:
  s_waitcnt lgkmcnt(0)
  global_load_dwordx4 v[4:7], v2, s[8:9]
""")
    late = """  global_load_dwordx4 v[8:11], v2, s[6:7]
  global_load_dwordx4 v[12:15], v3, s[4:5]
  global_load_dwordx4 v[16:19], v3, s[4:5] offset:16"""
    if OPT["k1late"] == 0: a(late)
    a("  s_barrier\n@T2@")
    if OPT["k1late"] == 1: a(late)
    a(f"  s_waitcnt vmcnt({0 if OPT['k1late'] == 2 else 3})\n@T3@")
    if OPT["k1late"] == 2: a(late)
    for k in range(4):
        a(f"  v_lshlrev_b32_sdwa v{20+k}, 2, v{4+k} dst_sel:DWORD dst_unused:UNUSED_PAD src0_sel:DWORD src1_sel:BYTE_0")
    for k in range(4):
        a(f"  ds_add_rtn_u32 v{24+k}, v{20+k}, v32 offset:{K1_CNT}")
    a(f"""
  s_waitcnt lgkmcnt(0)
  s_barrier
  s_cmp_lg_u32 s23, 0
  s_cbranch_scc1 K1_B
  ds_read_b128 v[36:39], v1 offset:{K1_CNT}
  s_waitcnt lgkmcnt(0)
  v_add_u32 v41, v36, v37
  v_add_u32 v42, v41, v38
  v_add_u32 v43, v42, v39
  v_mov_b32 v44, v43
""")
    dpp_scan(a, 44)
    a(f"""
  v_sub_u32 v45, v44, v43
  v_add_u32 v47, v45, v36
  v_add_u32 v48, v45, v41
  v_add_u32 v49, v45, v42
  v_mul_u32_u24 v46, 12, v45
  v_mul_u32_u24 v47, 12, v47
  v_mul_u32_u24 v48, 12, v48
  v_mul_u32_u24 v49, 12, v49
  ds_write_b128 v1, v[46:49] offset:{K1_START}
  v_lshl_or_b32 v50, v36, 16, v46
  v_lshl_or_b32 v51, v37, 16, v47
  v_lshl_or_b32 v52, v38, 16, v48
  v_lshl_or_b32 v53, v39, 16, v49
  s_lshl_b32 s24, s2, 10
  s_add_u32 s24, s24, {OFFS}
  v_add_u32 v54, s24, v1
  global_store_dwordx4 v54, v[50:53], s[20:21] {st}
K1_B:
  s_mul_i32 s22, s2, {RECB}
  v_add_u32 v2, s22, v1
  v_add_u32 v3, {12800}, v2
  v_add_u32 v34, {25600}, v2
""")
    for k in range(4):
        a(f"  v_lshrrev_b32 v{4+k}, 8, v{4+k}")
    a(f"""
  s_waitcnt lgkmcnt(0)
  s_barrier
@T4@
""")
    for k in range(4):
        a(f"  ds_read_b32 v{28+k}, v{20+k} offset:{K1_START}")
    a("  s_waitcnt vmcnt(2)")
    for k in range(4):
        a(f"  v_lshl_or_b32 v{8+k}, v{4+k}, 18, v{8+k}")
    for k in range(4):
        a(f"  s_waitcnt lgkmcnt({3-k})")
        a(f"  v_mad_u32_u24 v{28+k}, v{24+k}, 12, v{28+k}")
    for k in range(4):
        a(f"  ds_write_b32 v{28+k}, v{8+k} offset:8")
    a("  s_waitcnt vmcnt(0)")
    for k in range(4):
        a(f"  ds_write2_b32 v{28+k}, v{12+2*k}, v{13+2*k} offset0:0 offset1:1")
    a(f"""
  s_waitcnt lgkmcnt(0)
  s_barrier
  ds_read_b128 v[8:11], v1
  ds_read_b128 v[12:15], v1 offset:12800
  ds_read_b128 v[16:19], v1 offset:25600
  s_waitcnt lgkmcnt(2)
  global_store_dwordx4 v2, v[8:11], s[20:21] {st}
  s_waitcnt lgkmcnt(1)
  global_store_dwordx4 v3, v[12:15], s[20:21] {st}
  s_waitcnt lgkmcnt(0)
  global_store_dwordx4 v34, v[16:19], s[20:21] {st}
@T5@
@TW6@
@T15@
@OUT1@
  s_endpgm
K1_PACK:
  s_cmp_ge_u32 s2, {NP+5}
  s_cbranch_scc1 K1_END
  s_load_dwordx2 s[10:11], s[0:1], 32
  s_load_dwordx8 s[12:19], s[0:1], 40
  s_load_dwordx2 s[20:21], s[0:1], 88
  v_lshrrev_b32 v33, 6, v0
  s_nop 0
  v_readfirstlane_b32 s23, v33
  s_cmp_ge_u32 s23, 4
  s_cbranch_scc1 K1_END
  s_waitcnt lgkmcnt(0)
  v_and_b32 v2, 31, v0
  v_bfe_u32 v3, v0, 5, 1
  v_and_b32 v34, 63, v0
  s_cmp_eq_u32 s2, {NP+4}
  s_cbranch_scc1 K1_PACKC
  s_mov_b32 s24, s12
  s_mov_b32 s25, s13
  s_mov_b32 s26, {NLOG2E:#x}
  s_cmp_eq_u32 s2, {NP}
  s_cbranch_scc1 K1_P1
  s_mov_b32 s26, 1.0
  s_mov_b32 s24, s18
  s_mov_b32 s25, s19
  s_cmp_eq_u32 s2, {NP+1}
  s_cbranch_scc1 K1_P1
  s_mov_b32 s24, s10
  s_mov_b32 s25, s11
  s_cmp_eq_u32 s2, {NP+2}
  s_cbranch_scc1 K1_P1
  s_mov_b32 s24, s16
  s_mov_b32 s25, s17
K1_P1:
  v_lshlrev_b32 v4, 12, v3
  v_lshl_add_u32 v4, v2, 2, v4
  s_lshl_b32 s27, s23, 10
  v_add_u32 v4, s27, v4
""")
    for j in range(8):
        a(f"  global_load_dword v{8+j}, v4, s[24:25] offset:{128*j}")
    a("  s_waitcnt vmcnt(0)")
    for j in range(8):
        a(f"  v_lshlrev_b32 v{16+j}, 16, v{8+j}")
        a(f"  v_and_b32 v{24+j}, 0xffff0000, v{8+j}")
        a(f"  v_mul_f32 v{16+j}, s26, v{16+j}")
        a(f"  v_mul_f32 v{24+j}, s26, v{24+j}")
    for jj in range(4):
        a(f"  v_cvt_pk_bf16_f32 v{36+jj}, v{16+2*jj}, v{17+2*jj}")
        a(f"  v_cvt_pk_bf16_f32 v{40+jj}, v{24+2*jj}, v{25+2*jj}")
    a(f"""
  s_sub_u32 s27, s2, {NP}
  s_lshl_b32 s27, s27, 2
  s_add_u32 s27, s27, s23
  s_lshl_b32 s27, s27, 11
  s_add_u32 s27, s27, {IMG}
  v_lshlrev_b32 v5, 4, v34
  v_add_u32 v5, s27, v5
  global_store_dwordx4 v5, v[36:39], s[20:21] {st}
  global_store_dwordx4 v5, v[40:43], s[20:21] offset:1024 {st}
  s_endpgm
K1_PACKC:
  s_cmp_lg_u32 s23, 0
  s_cbranch_scc1 K1_END
  v_lshlrev_b32 v4, 2, v2
  s_mov_b32 s26, {NLOG2E:#x}
""")
    for j in range(4):
        a(f"  global_load_dword v{8+j}, v4, s[14:15] offset:{128*j}")
    a("  s_waitcnt vmcnt(0)")
    for j in range(4):
        a(f"  v_lshlrev_b32 v{16+j}, 16, v{8+j}")
        a(f"  v_and_b32 v{24+j}, 0xffff0000, v{8+j}")
        a(f"  v_mul_f32 v{16+j}, s26, v{16+j}")
        a(f"  v_mul_f32 v{24+j}, s26, v{24+j}")
    a(f"""
  v_cvt_pk_bf16_f32 v36, v16, v17
  v_cvt_pk_bf16_f32 v37, v18, v19
  v_cvt_pk_bf16_f32 v38, v24, v25
  v_cvt_pk_bf16_f32 v39, v26, v27
  v_cmp_eq_u32 vcc, 0, v3
  v_mov_b32 v40, 0x71800000
  v_mov_b32 v41, 0
  v_cndmask_b32 v36, v40, v36, vcc
  v_cndmask_b32 v37, v41, v37, vcc
  v_cndmask_b32 v38, v40, v38, vcc
  v_cndmask_b32 v39, v41, v39, vcc
  v_lshlrev_b32 v5, 4, v34
  v_add_u32 v5, {IMG+32768}, v5
  global_store_dwordx4 v5, v[36:39], s[20:21] {st}
K1_END:
  s_endpgm
""")

vXA = 0
vI = 4
vC = 8
vEs, vEb, vE, vKb, vK = 12, 13, 14, 15, 16
vN4, vTSV, vOrd = 17, 18, 19
vNAc, vNAn = 20, 24
BEV = 28
vT0, vT1, vT2, vT3 = 36, 37, 38, 39
G, HV, AC = 40, 104, 120
NARCH = 152
WB, WV, EOP, ONE, X = 0, 32, 64, 68, 70
NACC = 102
sXR, sOUT, sREC, sOFF, sWM = 8, 12, 16, 20, 24
sM1, sM2, sSeg = 28, 44, 60
sW, sSB, sSW, sFirstB, sT, sT0, sT1, sTn, sTn2, sTau, sN, sF, sGn, sGlast, sCont, sG0, sM0, sMaxC, sTmp, sTmp2, sCur, sSlow, sPsel0, sPsel1, sB = range(68, 93)
sSave = 94
sB128, sFast, sTe, sMsk = 93, 3, 6, 7
sKA = 4

def mfma16(d, A, B, C):
    return f"  v_mfma_f32_32x32x16_bf16 v[{d}:{d+15}], {A}, {B}, {C}"
def mfma8(d, A, B, C):
    return f"  v_mfma_f32_32x32x8_bf16 v[{d}:{d+15}], {A}, {B}, {C}"
g16 = lambda d: f"v[{d}:{d+15}]"
pr = lambda r: f"v[{r}:{r+1}]"
Gb = lambda k: G + 16*(k % 4)
Xb = lambda t, s: ar(X + 16*(t % 2) + 4*s, 4)
wb = lambda s, ct: ar(WB+(s*2+ct)*4, 4)
wv = lambda s, ct: ar(WV+(s*2+ct)*4, 4)
Eo = ar(EOP, 4); ON = ar(ONE, 2)
BEo = lambda ct: vr(BEV+4*ct, 4)

def flush_st(a):
    for q in range(8):
        r = AC + q*4
        a(f"  v_add_f32 v{r}, v{r}, v{r+1}")
        a(f"  v_add_f32 v{r+2}, v{r+2}, v{r+3}")
    for ct in range(2):
        for g in range(4):
            r = AC + (ct*4+g)*4
            a(f"  ds_write2_b32 v{vNAc+g}, v{r}, v{r+2} offset0:{64+32*ct} offset1:{128+32*ct}")
def flush_own(a, tag):
    a(f"  s_cmp_eq_u32 s{sFirstB}, 0\n  s_cbranch_scc1 K2_FR{tag}")
    flush_st(a)
    a(f"  s_branch K2_FE{tag}\nK2_FR{tag}:")
    flush(a)
    a(f"K2_FE{tag}:")
def fin1(a):
    for g in range(4):
        a(f"  v_lshrrev_b32 v{HV+8+g}, 8, v{vNAc+g}")
        a(f"  v_mul_u32_u24 v{HV+8+g}, 10923, v{HV+8+g}")
        a(f"  v_subrev_u32 v{HV+8+g}, {(NODE//256)*10923}, v{HV+8+g}")
        a(f"  v_and_or_b32 v{HV+8+g}, v{HV+8+g}, s{sMsk}, v{vN4}")
        a(f"  buffer_load_dword v{HV+g}, v{HV+8+g}, s[{sXR}:{sXR+3}], s{sB128} offen")
        a(f"  ds_read_b32 v{HV+4+g}, v{vNAc+g} offset:128")
def fin2(a):
    a(f"  s_mov_b32 s{sTmp}, 0x358637bd")
    for q in range(8): a(f"  v_add_f32 v{AC+4*q+2}, s{sTmp}, v{AC+4*q+2}")
    for q in range(8): a(f"  v_rcp_f32 v{AC+4*q+2}, v{AC+4*q+2}")
    a("  s_waitcnt lgkmcnt(0)")
    for g in range(4):
        a(f"  v_lshlrev_b32 v{AC+4*g+1}, 16, v{HV+4+g}")
        a(f"  v_and_b32 v{AC+4*(4+g)+1}, 0xffff0000, v{HV+4+g}")
    for q in range(8): a(f"  v_fma_f32 v{AC+4*q}, v{AC+4*q}, v{AC+4*q+2}, v{AC+4*q+1}")
    for q in range(8): a(f"  v_max_f32 v{AC+4*q}, 0, v{AC+4*q}")
    a("  s_waitcnt vmcnt(0)")
    for g in range(4):
        a(f"  v_lshlrev_b32 v{AC+4*g+1}, 16, v{HV+g}")
        a(f"  v_and_b32 v{AC+4*(4+g)+1}, 0xffff0000, v{HV+g}")
    for q in range(8): a(f"  v_add_f32 v{AC+4*q}, v{AC+4*q}, v{AC+4*q+1}")
    for g in range(4):
        a(f"  v_cvt_pk_bf16_f32 v{AC+4*g}, v{AC+4*g}, v{AC+4*(4+g)}")
        a(f"  buffer_store_dword v{AC+4*g}, v{HV+8+g}, s[{sOUT}:{sOUT+3}], s{sB128} offen")
def m_event1(a):
    a("  s_waitcnt lgkmcnt(0)")
    for g in range(4): a(f"  v_add_u32 v{vNAn+g}, v{vNAn+g}, v{vN4}")
    for g in range(4): a(f"  ds_read_b32 v{vT0+g}, v{vNAn+g}")
def m_event2(a):
    for ct in range(2):
        for i in range(2):
            a(f"  v_perm_b32 v{BEV+4*ct+2+i}, v{vT0+2*i+1}, v{vT0+2*i}, s{sPsel0+ct}")

def flush(a):
    for ct in range(2):
        for g in range(4):
            t = HV + (ct*4+g)*2
            a(f"  ds_read2_b32 v[{t}:{t+1}], v{vNAc+g} offset0:{64+32*ct} offset1:{128+32*ct}")
    for q in range(8):
        r = AC + q*4
        a(f"  v_add_f32 v{r}, v{r}, v{r+1}")
        a(f"  v_add_f32 v{r+2}, v{r+2}, v{r+3}")
    a("  s_waitcnt lgkmcnt(0)")
    for q in range(8):
        r = AC + q*4; t = HV + q*2
        a(f"  v_add_f32 v{r}, v{r}, v{t}")
        a(f"  v_add_f32 v{r+2}, v{r+2}, v{t+1}")
    for ct in range(2):
        for g in range(4):
            r = AC + (ct*4+g)*4
            a(f"  ds_write2_b32 v{vNAc+g}, v{r}, v{r+2} offset0:{64+32*ct} offset1:{128+32*ct}")

def next_tile(dst, src):
    return [f"  s_add_u32 s{dst}, s{src}, 1", f"  s_cmp_eq_u32 s{dst}, s{sT1}", f"  s_cselect_b32 s{dst}, s{sT0}, s{dst}"]

def dma(i):
    if OPT["nodma"]: return "  s_nop 0"
    return f"  buffer_load_dwordx4 v{vI+i}, s[{sXR}:{sXR+3}], 0 offen lds"
def la(i):
    return f"  v_lshl_add_u32 v{vI+i}, v{vI+i}, 7, v{vC+i}"

def ord_read(a):
    a(f"  s_lshl_b32 s{sTmp}, s{sGn}, 5\n  v_add_u32 v{vT0}, s{sTmp}, v{vOrd}\n  ds_read_b128 v[{vNAn}:{vNAn+3}], v{vT0}")
def next_group(a):
    a(f"  s_add_u32 s{sTmp}, s{sGn}, 1\n  s_cmp_lt_u32 s{sGn}, s{sGlast}\n  s_cselect_b32 s{sGn}, s{sTmp}, s{sG0}")
def m_event(a):
    a("  s_waitcnt lgkmcnt(0)")
    for g in range(4): a(f"  v_add_u32 v{vNAn+g}, v{vNAn+g}, v{vN4}")
    for g in range(4): a(f"  ds_read_b32 v{vT0+g}, v{vNAn+g}")
    a("  s_waitcnt lgkmcnt(0)")
    for ct in range(2):
        for i in range(2):
            a(f"  v_perm_b32 v{BEV+4*ct+2+i}, v{vT0+2*i+1}, v{vT0+2*i}, s{sPsel0+ct}")

def p_unit(a, k, first):
    ct = k & 1
    for half in range(2):
        for gq in range(4):
            e = Gb(k) + 4*gq; h = HV + 4*gq; r = AC + (ct*4+gq)*4
            if first:
                if half == 0:
                    a(f"  v_pk_mul_f32 {pr(r)}, {pr(e)}, {pr(h)}")
                    a(f"  v_pk_add_f32 {pr(r+2)}, {pr(e)}, {pr(e+2)}")
                else:
                    a(f"  v_pk_fma_f32 {pr(r)}, {pr(e+2)}, {pr(h+2)}, {pr(r)}")
            else:
                a(f"  v_pk_fma_f32 {pr(r)}, {pr(e+2*half)}, {pr(h+2*half)}, {pr(r)}")
                a(f"  v_pk_add_f32 {pr(r+2)}, {pr(e+2*half)}, {pr(r+2)}")

def t_unit(a, k):
    t, ct = k >> 1, k & 1
    T = [f"  v_exp_f32 v{Gb(k+1)+i}, v{Gb(k+1)+i}" for i in range(16)] + [f"  v_rcp_f32 v{Gb(k)+i}, v{Gb(k)+i}" for i in range(16)]
    Hm = [mfma16(HV, Xb(t, s), wv(s, ct), g16(HV) if s else "0") for s in range(4)]
    d = Gb(k+2)
    Gm = [mfma16(d, Eo, BEo(ct), "0")] + [mfma16(d, Xb(t+1, s), wb(s, ct), g16(d)) for s in range(4)]
    A1 = mfma8(Gb(k+1), ON, ON, g16(Gb(k+1)))
    M = [Hm[0], Gm[0], Hm[1], Gm[1], Hm[2], Gm[2], A1, Hm[3], Gm[3], Gm[4]]
    side = [[] for _ in M]
    nt = next_tile(sTn2, sTn)
    if ct == 0:
        pre = ["  s_waitcnt lgkmcnt(0)", la(0), la(1)]
        side[0] = [f"  s_mov_b32 m0, s{sM0}", la(2), la(3)]
        side[1] = [dma(0), f"  s_add_u32 m0, s{sM0}, 1024"]
        side[2] = [dma(1), f"  s_add_u32 m0, s{sM0}, 2048"]
        side[3] = [dma(2), f"  s_add_u32 m0, s{sM0}, 3072"]
        side[4] = [dma(3), nt[0]]
        side[5] = [nt[1], nt[2]]
        side[7] = [f"  s_lshl_b32 s{sTmp}, s{sTn2}, 7", f"  v_add_u32 v{vK}, s{sTmp}, v{vKb}"]
        side[8] = [f"  ds_read_b128 v[{vI}:{vI+3}], v{vK}", f"  v_mad_u32_u24 v{vE}, v{vEs}, s{sTn}, v{vEb}"]
        side[9] = [f"  s_mov_b32 s{sTn}, s{sTn2}"]
    else:
        pre = []
        side[2] = [f"  ds_read2_b32 a[{EOP}:{EOP+1}], v{vE} offset0:0 offset1:1"]
        side[7] = ["  s_waitcnt vmcnt(0)"]
        side[8] = [f"  ds_read_b128 {Xb(t,0)}, v{vXA}", f"  ds_read_b128 {Xb(t,1)}, v{vXA+1}"]
        side[9] = [f"  ds_read_b128 {Xb(t,2)}, v{vXA+2}", f"  ds_read_b128 {Xb(t,3)}, v{vXA+3}"]
    if OPT["prio"] == 2: a("  s_setprio 0")
    for p_ in pre: a(p_)
    ti = 0
    for i, m in enumerate(M):
        a(m)
        for s_ in side[i]: a(s_)
        n = 3 if i < 9 else 32 - ti
        for _ in range(n):
            a(T[ti]); ti += 1
    if OPT["prio"] == 2: a("  s_setprio 1")

def tile_code(a, par):
    for ct in range(2):
        k = 2*par + ct
        t_unit(a, k)
        a(f"  s_bitcmp1_b32 s{sF}, s{sTau}\n  s_cbranch_scc0 K2_PN{k}")
        p_unit(a, k, True)
        a(f"  s_branch K2_PE{k}\nK2_PN{k}:")
        p_unit(a, k, False)
        a(f"K2_PE{k}:")
    a(f"""  s_add_u32 s{sTau}, s{sTau}, 1
  s_cmp_ge_u32 s{sTau}, s{sN}
  s_cbranch_scc1 K2_LAST
  s_bitcmp1_b32 s{sF}, s{sTau}
  s_cbranch_scc1 K2_EV""")
    a(f"""K2_NF{par}:
  s_add_u32 s{sTmp}, s{sTau}, 1
  s_bitcmp1_b32 s{sF}, s{sTmp}
  s_cbranch_scc0 K2_NM{par}""")
    m_event(a)
    a(f"K2_NM{par}:")

def gen_k2(a):
    ld = OPT["ld_flags"]
    R = lambda k: 40 + 4*k
    A4 = lambda k: 104 + k
    OF, VA = 120, 128
    WR = 136
    vTid, vLane, vOne = 4, 5, 6
    vL1, vL2, vBase, vMx = 20, 21, 22, 23
    def msk(k): return (sM1 + 2*k) if k < 8 else (sM2 + 2*(k-8))
    a(f"""
.globl main_kernel
.p2align 8
.type main_kernel,@function
main_kernel:
  s_cmp_ge_u32 s2, 256
  s_cbranch_scc1 K2_END
  s_load_dwordx8 s[28:35], s[0:1], 64       ; w_v out dbg ws
  s_load_dwordx2 s[4:5], s[0:1], 0          ; x
  v_lshrrev_b32 v{vT0}, 6, v0
  v_mov_b32 v{vTid}, v0
  v_readfirstlane_b32 s{sW}, v{vT0}
  v_and_b32 v{vLane}, 63, v0
@CPF2@
@S0@
  v_lshrrev_b32 v{vT1}, 4, v0
  v_and_b32 v{vT2}, 7, v0
  v_lshl_add_u32 v{vTSV}, v{vT1}, 3, v{vT2}
  v_lshlrev_b32 v{vTSV}, 10, v{vTSV}          ; (8G + (l&7))*1024
  s_and_b32 s{sB}, s2, 7
  s_lshl_b32 s{sB}, s{sB}, 5
  s_lshr_b32 s{sTmp}, s2, 3
  s_or_b32 s{sB}, s{sB}, s{sTmp}
  s_lshl_b32 s{sTmp}, s{sB}, 2
  s_add_u32 s{sTmp}, s{sTmp}, {OFFS}
  s_mov_b32 s{sOFF+2}, {(NP-1)*1024+4}
  s_mov_b32 s{sOFF+3}, 0x20000
  s_mov_b32 s{sSB}, 0
  s_mov_b32 s{sSW}, 32
  s_mov_b32 s{sFirstB}, 1
  v_and_b32 v{vT0}, 31, v{vLane}
  v_lshlrev_b32 v{vN4}, 2, v{vT0}
  v_mov_b32 v40, 0
  v_mov_b32 v41, 0
  v_mov_b32 v42, 0
  v_mov_b32 v43, 0
  v_lshrrev_b32 v{vT2}, 5, v{vTid}
  v_mul_u32_u24 v{vT2}, {ROWB}, v{vT2}
  v_lshl_add_u32 v{vT2}, v{vT0}, 4, v{vT2}
  v_add_u32 v{vT2}, {NODE+256}, v{vT2}
  v_add_u32 v{vT3}, {4*16*ROWB}, v{vT2}
""")
    for k in range(7):
        t = vT2 if k < 4 else vT3
        a(f"  ds_write_b128 v{t}, v[40:43] offset:{(k&3)*16*ROWB}")
    a(f"""
  v_lshlrev_b32 v{vT2}, 4, v{vTid}
  ds_write_b128 v{vT2}, v[40:43] offset:{EA0}
  ds_write_b128 v{vT2}, v[40:43] offset:{EA0+8192}
  s_waitcnt lgkmcnt(0)
  s_add_u32 s{sOFF}, s34, s{sTmp}
  s_addc_u32 s{sOFF+1}, s35, 0
  s_and_b32 s{sOFF+1}, s{sOFF+1}, 0xffff
@OFFS_A@
  s_mov_b32 s96, s34
  s_mov_b32 s97, s35
  s_mov_b32 s{sXR}, s4
  s_and_b32 s{sXR+1}, s5, 0xffff
  s_mov_b32 s{sXR+2}, 3200000
  s_mov_b32 s{sXR+3}, 0x20000
  s_mov_b32 s{sOUT}, s30
  s_and_b32 s{sOUT+1}, s31, 0xffff
  s_mov_b32 s{sOUT+2}, 3200000
  s_mov_b32 s{sOUT+3}, 0x20000
  s_mov_b32 s{sREC}, s34
  s_and_b32 s{sREC+1}, s35, 0xffff
  s_mov_b32 s{sREC+2}, {NP*RECB}
  s_mov_b32 s{sREC+3}, 0x20000
  s_add_u32 s{sWM}, s34, {IMG}
  s_addc_u32 s{sWM+1}, s35, 0
  s_and_b32 s{sWM+1}, s{sWM+1}, 0xffff
  s_mov_b32 s{sWM+2}, {32768+1024}
  s_mov_b32 s{sWM+3}, 0x20000
  v_lshlrev_b32 v{vK}, 4, v{vLane}
  s_lshl_b32 s{sTmp}, s{sW}, 12
  s_add_u32 s{sTmp2}, s{sTmp}, {RING}
  s_add_u32 s{sN}, s{sTmp}, {IMA-16384}
  s_cmp_lt_u32 s{sW}, 4
  s_cselect_b32 m0, s{sTmp2}, s{sN}
  s_mov_b32 s{sN}, 32768
  buffer_load_dwordx4 v{vK}, s[{sWM}:{sWM+3}], s{sTmp} offen lds
  buffer_load_dwordx4 v{vK}, s[{sWM}:{sWM+3}], s{sTmp} offen offset:1024 lds
  buffer_load_dwordx4 v{vK}, s[{sWM}:{sWM+3}], s{sTmp} offen offset:2048 lds
  buffer_load_dwordx4 v{vK}, s[{sWM}:{sWM+3}], s{sTmp} offen offset:3072 lds
  buffer_load_dwordx2 v[{BEV}:{BEV+1}], v{vK}, s[{sWM}:{sWM+3}], s{sN} offen
  buffer_load_dwordx2 v[{BEV+4}:{BEV+5}], v{vK}, s[{sWM}:{sWM+3}], s{sN} offen offset:8
  v_lshrrev_b32 v{vT2}, 3, v{vLane}
  v_lshlrev_b32 v{vT2}, 15, v{vT2}
  v_and_b32 v{vT3}, 7, v{vLane}
  v_lshrrev_b32 v{vE}, 4, v{vLane}
  v_xor_b32 v{vT3}, v{vT3}, v{vE}
  v_lshl_add_u32 v{vE}, v{vT3}, 4, v{vT2}
  v_xor_b32 v{vT3}, 4, v{vT3}
  v_lshl_add_u32 v{vK}, v{vT3}, 4, v{vT2}
  s_lshl_b32 s{sTmp}, s{sW}, 19
  s_lshl_b32 s{sTmp2}, s{sB}, 7
  s_add_u32 s{sTmp}, s{sTmp}, s{sTmp2}
  s_add_u32 s{sTmp2}, s{sTmp}, {8*32768}
  s_lshl_b32 s{sN}, s{sW}, 11
  s_add_u32 m0, s{sN}, {XO}
  s_nop 0
  buffer_load_dwordx4 v{vE}, s[{sXR}:{sXR+3}], s{sTmp} offen lds
  s_add_u32 m0, s{sN}, {XO+1024}
  s_nop 0
  buffer_load_dwordx4 v{vK}, s[{sXR}:{sXR+3}], s{sTmp2} offen lds
@OFFS_B@
  s_mov_b32 s{sPsel0}, 0x05040100
  s_mov_b32 s{sPsel1}, 0x07060302
""")
    for i in range(8):
        a(f"  s_mov_b32 s{sSeg+i}, {i*RECB}")
    a(f"""
  v_lshrrev_b32 v{vT1}, 5, v{vLane}
  v_lshlrev_b32 v{vOrd}, 4, v{vT1}
  v_add_u32 v{vOrd}, {ORDA}, v{vOrd}
  v_cmp_eq_u32 vcc, 0, v{vT1}
  v_mov_b32 v{vT2}, 0x3f80
  v_mov_b32 v{vT3}, 0
  v_cndmask_b32 v{vT2}, v{vT3}, v{vT2}, vcc
  v_accvgpr_write_b32 a{ONE}, v{vT2}
  v_accvgpr_write_b32 a{ONE+1}, v{vT3}
  v_mov_b32 v{vT2}, 128
  v_mov_b32 v{vT3}, 256
  v_cndmask_b32 v{vEs}, v{vT2}, v{vT3}, vcc
  v_lshlrev_b32 v{vT2}, 3, v{vT0}
  v_add_u32 v{vT3}, {K0}, v{vN4}
  v_cndmask_b32 v{vEb}, v{vT3}, v{vT2}, vcc
  v_lshrrev_b32 v{vT2}, 3, v{vLane}
  v_lshlrev_b32 v{vKb}, 4, v{vT2}
  v_add_u32 v{vKb}, {K0}, v{vKb}
  v_bfe_u32 v{vT2}, v{vT0}, 2, 1
  v_cmp_eq_u32 vcc, v{vT2}, v{vT1}
  v_bfe_u32 v{vT2}, v{vT0}, 3, 1
  v_lshlrev_b32 v{vT2}, 4, v{vT2}
  v_mov_b32 v{vT3}, 0x3f80
  v_lshlrev_b32 v{vT3}, v{vT2}, v{vT3}
  v_cndmask_b32 v{vT3}, 0, v{vT3}, vcc
  v_cmp_gt_u32 vcc, 16, v{vT0}
  s_nop 1
  v_cndmask_b32 v{vT2}, 0, v{vT3}, vcc
  v_cndmask_b32 v{vT3}, v{vT3}, 0, vcc
  v_accvgpr_write_b32 a{EOP+2}, v{vT2}
  v_accvgpr_write_b32 a{EOP+3}, v{vT3}
  v_and_b32 v{vT2}, 7, v{vLane}
  v_bfe_u32 v{vT3}, v{vLane}, 4, 1
  v_lshlrev_b32 v{vT3}, 2, v{vT3}
  v_xor_b32 v{vT2}, v{vT2}, v{vT3}
""")
    for i in range(4):
        a(f"  v_xor_b32 v{vC+i}, {i}, v{vT2}\n  v_lshlrev_b32 v{vC+i}, 4, v{vC+i}")
    a(f"""
  v_bfe_u32 v{vT2}, v{vT0}, 1, 3
  v_lshlrev_b32 v{vT3}, 2, v{vT1}
  v_xor_b32 v{vT2}, v{vT2}, v{vT3}
  v_lshlrev_b32 v{vT3}, 7, v{vT0}
  v_add_u32 v{vT3}, {XO}, v{vT3}
""")
    for s_ in range(4):
        a(f"  v_xor_b32 v{24+s_}, {s_}, v{vT2}\n  v_lshl_add_u32 v{24+s_}, v{24+s_}, 4, v{vT3}")
    a(f"""
  s_lshl_b32 s{sM0}, s{sW}, 12
  s_add_u32 s{sM0}, s{sM0}, {RING}
  v_mul_u32_u24 v7, {4*ROWB}, v{vT1}
  v_add_u32 v7, v7, v{vN4}
  v_and_b32 v{vT2}, 3, v{vT0}
  v_bfe_u32 v{vK}, v{vT0}, 3, 1
  v_xor_b32 v{vK}, v{vK}, v{vT1}
  v_lshl_or_b32 v{vK}, v{vK}, 2, v{vT2}
  v_lshlrev_b32 v{vT2}, 10, v{vT2}
  v_lshrrev_b32 v{vT0}, 2, v{vT0}
  v_lshl_add_u32 v{vT2}, v{vT0}, 7, v{vT2}
  v_add_u32 v{vT2}, s{sM0}, v{vT2}
""")
    for s_ in range(4):
        a(f"  v_xor_b32 v{vXA+s_}, {s_}, v{vK}\n  v_lshl_add_u32 v{vXA+s_}, v{vXA+s_}, 4, v{vT2}")
    a(f"""
K2_RESET:
  v_mov_b32 v40, 0
  v_mov_b32 v41, 0
  v_mov_b32 v42, 0
  v_mov_b32 v43, 0
  v_mov_b32 v44, 1.0
  v_mov_b32 v45, 1.0
  v_mov_b32 v46, 1.0
  v_mov_b32 v47, 1.0
  v_mov_b32 v{vOne}, 1
  v_lshlrev_b32 v{vT2}, 4, v{vTid}
  ds_write_b128 v{vT2}, v[44:47] offset:{K0}
  ds_write_b128 v{vT2}, v[44:47] offset:{K0+8192}
  v_cmp_gt_u32 vcc, {(MISC+64-CNT)//16}, v{vTid}
  s_and_saveexec_b64 s[{sSave}:{sSave+1}], vcc
  ds_write_b128 v{vT2}, v[40:43] offset:{CNT}
  s_mov_b64 exec, s[{sSave}:{sSave+1}]
  v_and_b32 v{vT0}, 15, v{vTid}
  v_add_u32 v{vT1}, 16, v{vT0}
  v_mov_b32 v{vT3}, 0xffff
  v_cmp_gt_u32 vcc, s{sSW}, v{vT0}
  v_add_u32 v{vT2}, s{sSB}, v{vT0}
  s_nop 0
  v_cndmask_b32 v{vL1}, v{vT3}, v{vT2}, vcc
  v_cmp_gt_u32 vcc, s{sSW}, v{vT1}
  v_add_u32 v{vT1}, s{sSB}, v{vT1}
  s_nop 0
  v_cndmask_b32 v{vL2}, v{vT3}, v{vT1}, vcc
  v_mul_u32_u24 v{vT2}, 12, v{vT2}
  v_lshrrev_b32 v{vT1}, 4, v{vTid}
  s_mov_b32 s{sTmp}, {8*RECB}
  v_mad_u32_u24 v{vBase}, v{vT1}, s{sTmp}, v{vT2}
  s_cmp_eq_u32 s{sFirstB}, 1
  s_cbranch_scc1 K2_OFW
  v_and_b32 v{vT2}, 7, v{vTid}
  v_lshl_add_u32 v{vT2}, v{vT1}, 3, v{vT2}
  v_lshlrev_b32 v{vT2}, 10, v{vT2}
  buffer_load_dword v{vMx}, v{vT2}, s[{sOFF}:{sOFF+3}], 0 offen
  s_waitcnt vmcnt(0)
K2_OFW:
  s_waitcnt vmcnt(@OFFW@)
@S3@
""")
    for i in range(8):
        a(f"  v_mov_b32_dpp v{OF+i}, v{vMx} row_newbcast:{i} row_mask:0xf bank_mask:0xf")
    for i in range(8):
        a(f"  v_add_u32_sdwa v{VA+i}, v{OF+i}, v{vBase} dst_sel:DWORD dst_unused:UNUSED_PAD src0_sel:WORD_0 src1_sel:DWORD")
        a(f"  v_cmp_lt_u32_sdwa s[{sM1+2*i}:{sM1+2*i+1}], v{vL1}, v{OF+i} src0_sel:DWORD src1_sel:WORD_1")
        a(f"  s_mov_b64 exec, s[{sM1+2*i}:{sM1+2*i+1}]")
        a(f"  buffer_load_dwordx3 v[{R(i)}:{R(i)+2}], v{VA+i}, s[{sREC}:{sREC+3}], s{sSeg+i} offen {ld}")
        a("  s_mov_b64 exec, -1")
    a(f"  s_mov_b32 s{sN}, 0")
    for i in range(8):
        a(f"  v_cmp_lt_u32_sdwa s[{sM2+2*i}:{sM2+2*i+1}], v{vL2}, v{OF+i} src0_sel:DWORD src1_sel:WORD_1")
    for i in range(8):
        a(f"  s_mov_b64 exec, s[{sM2+2*i}:{sM2+2*i+1}]")
        a(f"  s_cbranch_execz K2_LS{i}")
        a(f"  s_add_u32 s{sN}, s{sN}, 1")
        a(f"  buffer_load_dwordx3 v[{R(8+i)}:{R(8+i)+2}], v{VA+i}, s[{sREC}:{sREC+3}], s{sSeg+i} offen offset:192 {ld}")
        a(f"K2_LS{i}:")
    a(f"""
  s_mov_b64 exec, -1
  v_max3_u32 v{vT2}, v{OF}, v{OF+1}, v{OF+2}
  v_max3_u32 v{vT3}, v{OF+3}, v{OF+4}, v{OF+5}
  v_max3_u32 v{vT2}, v{OF+6}, v{OF+7}, v{vT2}
  v_max_u32 v{vT2}, v{vT2}, v{vT3}
  v_lshrrev_b32 v{vMx}, 16, v{vT2}
  v_mov_b32 v{vT2}, {MISC}
  s_mov_b32 s{sSave}, 0x00010001
  s_mov_b32 s{sSave+1}, 0x00010001
  v_lshlrev_b32 v{vK}, 4, v{vLane}
  v_add_u32 v{vE}, {RING}, v{vK}
@IMGW@
  s_waitcnt lgkmcnt(0)
@S5@
  s_barrier
  s_mov_b64 exec, s[{sSave}:{sSave+1}]
  ds_max_u32 v{vT2}, v{vMx}
  s_mov_b64 exec, -1
  s_cmp_eq_u32 s{sFirstB}, 0
  s_cbranch_scc1 K2_RANK
  s_lshr_b32 s{sTmp}, s{sW}, 1
  s_lshl_b32 s{sTmp2}, s{sTmp}, 12
  s_mul_i32 s{sTmp}, s{sTmp}, {32*ROWB}
""")
    for s_ in range(4):
        a(f"  v_add_u32 v{vT0+s_}, s{sTmp2}, v{24+s_}")
    for s_ in range(4):
        a(f"  ds_read_b128 {Xb(1,s_)}, v{vT0+s_}")
    a(f"""
  s_mov_b32 s{sCur}, {NLOG2E:#x}
  s_and_b32 s{sTmp2}, s{sW}, 1
  s_cselect_b32 s{sCur}, 1.0, s{sCur}
  s_lshl_b32 s{sN}, s{sTmp2}, 13
  s_add_u32 s{sN}, s{sN}, {IMA}
  v_add_u32 v{vT0}, s{sN}, v{vK}
  s_lshl_b32 s{sTmp2}, s{sTmp2}, 7
  s_add_u32 s{sTmp}, s{sTmp}, s{sTmp2}
  s_add_u32 s{sTmp}, s{sTmp}, {NODE}
  v_add_u32 v{vT1}, s{sTmp}, v7
""")
    for q in range(8):
        a(f"  ds_read_b128 {ar(4*q,4)}, v{vT0} offset:{1024*q}")
    for s_ in range(4):
        for ct in range(2):
            a(f"  s_waitcnt lgkmcnt({7-2*s_-ct})")
            a(mfma16(120+16*ct, Xb(1,s_), ar((s_*2+ct)*4,4), g16(120+16*ct) if s_ else "0"))
    for q in range(8):
        a(f"  ds_read_b128 {ar(32+4*q,4)}, v{vE} offset:{8192+1024*q}")
    a("  s_nop 3")
    for r in range(16):
        a(f"  v_mul_f32 v{120+r}, s{sCur}, v{120+r}")
        a(f"  v_mul_f32 v{136+r}, s{sCur}, v{136+r}")
        a(f"  v_cvt_pk_bf16_f32 v{120+r}, v{120+r}, v{136+r}")
        a(f"  ds_write_b32 v{vT1}, v{120+r} offset:{(8*(r>>2)+(r&3))*ROWB}")
        if r == 2: a(f"  s_cmp_ge_u32 s{sW}, 6\n  s_cbranch_scc1 K2_JOBE")
    a("K2_JOBE:")
    for q in range(8):
        a(f"  ds_read_b128 {ar(4*q,4)}, v{vE} offset:{1024*q}")
    a(f"""
K2_RANK:
  s_waitcnt vmcnt(0)
@S6@
@XPF@
""")
    for k in range(16):
        a(f"  s_mov_b64 exec, s[{msk(k)}:{msk(k)+1}]")
        if k >= 8: a(f"  s_cbranch_execz K2_RS{k}")
        a(f"  v_lshrrev_b32 v{A4(k)}, 16, v{R(k)+2}")
        a(f"  ds_add_rtn_u32 v{R(k)+3}, v{A4(k)}, v{vOne} offset:{CNT}")
        if k >= 8: a(f"K2_RS{k}:")
    a(f"""  s_mov_b64 exec, -1
  s_waitcnt lgkmcnt(0)
  s_barrier
@S7@
  s_cmp_lg_u32 s{sW}, 0
  s_cbranch_scc1 K2_PRE""")
    c0, c1, q0, q1, b0, b1, p0, p1, hv, ex, e0, e1, m0_, m1_, t0_, t1_ = range(120, 136)
    u0, u1, l4 = vT0, vT1, vT2
    a(f"""
  v_lshlrev_b32 v{l4}, 2, v{vLane}
  ds_read2st64_b32 v[{c0}:{c1}], v{l4} offset0:{CNT//256} offset1:{CNT//256+1}
  s_waitcnt lgkmcnt(0)
  v_add_u32 v{q0}, 3, v{c0}
  v_add_u32 v{q1}, 3, v{c1}
  v_lshrrev_b32 v{q0}, 2, v{q0}
  v_lshrrev_b32 v{q1}, 2, v{q1}
  v_min_u32 v{b0}, 63, v{q0}
  v_min_u32 v{b1}, 63, v{q1}
  v_sub_u32 v{b0}, 63, v{b0}
  v_sub_u32 v{b1}, 63, v{b1}
  v_lshlrev_b32 v{b0}, 2, v{b0}
  v_lshlrev_b32 v{b1}, 2, v{b1}
  ds_add_rtn_u32 v{p0}, v{b0}, v{vOne} offset:{HIST}
  ds_add_rtn_u32 v{p1}, v{b1}, v{vOne} offset:{HIST}
  ds_read_b32 v{hv}, v{l4} offset:{HIST}
  v_lshl_or_b32 v{q0}, v{q0}, 8, v{vLane}
  v_add_u32 v{u1}, 64, v{vLane}
  v_lshl_or_b32 v{q1}, v{q1}, 8, v{u1}
  s_waitcnt lgkmcnt(0)
  v_mov_b32 v{ex}, v{hv}
""")
    dpp_scan(a, ex)
    a(f"""
  v_sub_u32 v{ex}, v{ex}, v{hv}
  ds_bpermute_b32 v{u0}, v{b0}, v{ex}
  ds_bpermute_b32 v{u1}, v{b1}, v{ex}
  s_waitcnt lgkmcnt(0)
  v_add_lshl_u32 v{u0}, v{u0}, v{p0}, 2
  v_add_lshl_u32 v{u1}, v{u1}, v{p1}, 2
  ds_write_b32 v{u0}, v{q0} offset:{ORDQ}
  ds_write_b32 v{u1}, v{q1} offset:{ORDQ}
  ds_read2st64_b32 v[{e0}:{e1}], v{l4} offset0:{ORDQ//256} offset1:{ORDQ//256+1}
  s_waitcnt lgkmcnt(0)
  v_mov_b32 v{m0_}, v{e0}
  v_mov_b32 v{m1_}, v{e1}
""")
    for mode in ("quad_perm:[1,0,3,2]", "quad_perm:[2,3,0,1]", "row_half_mirror"):
        a(f"  s_nop 0\n  v_max_u32_dpp v{m0_}, v{m0_}, v{m0_} {mode} row_mask:0xf bank_mask:0xf")
        a(f"  v_max_u32_dpp v{m1_}, v{m1_}, v{m1_} {mode} row_mask:0xf bank_mask:0xf")
    a(f"""
  v_lshrrev_b32 v{m0_}, 8, v{m0_}
  v_lshrrev_b32 v{m1_}, 8, v{m1_}
  v_mov_b32 v{t0_}, v{m0_}
  v_mov_b32 v{t1_}, v{m1_}
""")
    for mode in ("row_shr:8 row_mask:0xf", "row_bcast:15 row_mask:0xa", "row_bcast:31 row_mask:0xc"):
        a(f"  s_nop 0\n  v_add_u32_dpp v{t0_}, v{t0_}, v{t0_} {mode} bank_mask:0xf")
        a(f"  v_add_u32_dpp v{t1_}, v{t1_}, v{t1_} {mode} bank_mask:0xf")
    a(f"""
  s_nop 0
  v_readlane_b32 s{sTmp}, v{t0_}, 63
  v_sub_u32 v{t0_}, v{t0_}, v{m0_}
  v_sub_u32 v{m1_}, v{t1_}, v{m1_}
  v_add_u32 v{t1_}, s{sTmp}, v{t1_}
  v_add_u32 v{m1_}, s{sTmp}, v{m1_}
  v_and_b32 v{u0}, 7, v{vLane}
  v_lshlrev_b32 v{u1}, 4, v{u0}
  v_lshl_add_u32 v{p0}, v{t0_}, 7, v{u1}
  v_lshl_add_u32 v{p1}, v{m1_}, 7, v{u1}
  v_and_b32 v{e0}, 0xff, v{e0}
  v_and_b32 v{e1}, 0xff, v{e1}
  v_lshlrev_b32 v{c0}, 2, v{e0}
  v_lshlrev_b32 v{c1}, 2, v{e1}
  ds_write_b32 v{c0}, v{p0} offset:{NB}
  ds_write_b32 v{c1}, v{p1} offset:{NB}
  v_lshrrev_b32 v{u0}, 1, v{vLane}
  v_add_u32 v{u0}, {TSV}, v{u0}
  s_mov_b32 s{sSave}, 0x01010101
  s_mov_b32 s{sSave+1}, 0x01010101
  s_mov_b64 exec, s[{sSave}:{sSave+1}]
  ds_write2_b32 v{u0}, v{t0_}, v{m1_} offset0:0 offset1:8
  s_mov_b32 s{sSave}, 0
  s_mov_b32 s{sSave+1}, 0x80000000
  s_mov_b64 exec, s[{sSave}:{sSave+1}]
  v_mov_b32 v{u1}, {TSV+64}
  ds_write2_b32 v{u1}, v{t1_}, v{hv} offset0:0 offset1:1
  s_mov_b64 exec, -1
  v_min_u32 v{e0}, 98, v{e0}
  v_min_u32 v{e1}, 98, v{e1}
  v_mov_b32 v{c0}, {NODE}
  s_mov_b32 s{sTmp}, {ROWB}
  v_mad_u32_u24 v{e0}, v{e0}, s{sTmp}, v{c0}
  v_mad_u32_u24 v{e1}, v{e1}, s{sTmp}, v{c0}
  v_and_b32 v{c0}, 1, v{vLane}
  v_lshlrev_b32 v{c0}, 4, v{c0}
  v_bfe_u32 v{c1}, v{vLane}, 1, 2
  v_lshl_add_u32 v{c0}, v{c1}, 2, v{c0}
  v_and_b32 v{c1}, 56, v{vLane}
  v_lshl_add_u32 v{c0}, v{c1}, 2, v{c0}
  v_add_u32 v{c0}, {ORDA}, v{c0}
  ds_write2st64_b32 v{c0}, v{e0}, v{e1} offset0:0 offset1:1
K2_PRE:
  s_mov_b32 s{sTmp}, -28
""")
    for k in range(16):
        if k >= 8: a(f"  s_cmp_eq_u64 s[{msk(k)}:{msk(k)+1}], 0\n  s_cbranch_scc1 K2_PS{k}")
        a(f"  v_and_b32 v{vT0}, 3, v{R(k)+3}")
        a(f"  v_lshlrev_b32 v{R(k)+3}, 5, v{R(k)+3}")
        a(f"  v_mad_i32_i24 v{R(k)+3}, v{vT0}, s{sTmp}, v{R(k)+3}")
        a(f"  v_and_b32 v{R(k)+2}, 0x7fff, v{R(k)+2}")
        if k >= 8: a(f"K2_PS{k}:")
    a(f"""
  v_min_u32 v{vT0}, 17, v{vLane}
  v_lshlrev_b32 v{vT0}, 2, v{vT0}
  v_mov_b32 v{vT1}, {MISC}
  s_waitcnt lgkmcnt(0)
@S8@
  s_barrier
@S9@
  ds_read_b32 v{vTSV}, v{vT0} offset:{TSV}
  ds_read_b32 v{vT2}, v{vT1}
""")
    for k in range(16):
        a(f"  s_mov_b64 exec, s[{msk(k)}:{msk(k)+1}]")
        if k >= 8: a(f"  s_cbranch_execz K2_NS{k}")
        a(f"  ds_read_b32 v{A4(k)}, v{A4(k)} offset:{NB}")
        if k >= 8: a(f"K2_NS{k}:")
        if k == 7:
            a(f"""  s_mov_b64 exec, -1
  s_waitcnt lgkmcnt(8)
  v_readlane_b32 s{sT}, v{vTSV}, 16
  v_readfirstlane_b32 s{sMaxC}, v{vT2}
  s_cmp_le_u32 s{sT}, {CAPT}
  s_cbranch_scc1 K2_FIT
  s_lshr_b32 s{sSW}, s{sSW}, 1
  s_mov_b32 s{sFirstB}, 0
  s_waitcnt lgkmcnt(0) vmcnt(0)
  s_barrier
  s_branch K2_RESET
K2_FIT:""")
    a("  s_waitcnt lgkmcnt(0)")
    for k in range(16):
        a(f"  s_mov_b64 exec, s[{msk(k)}:{msk(k)+1}]")
        if k >= 8: a(f"  s_cbranch_execz K2_WS{k}")
        a(f"  v_add_u32 v{A4(k)}, v{A4(k)}, v{R(k)+3}")
        a(f"  ds_write_b32 v{A4(k)}, v{R(k)+2} offset:{K0}")
        a(f"  v_lshlrev_b32 v{R(k)+3}, 1, v{A4(k)}")
        if k >= 8: a(f"K2_WS{k}:")
    a(f"""
  s_mov_b64 exec, -1
  s_mul_i32 s{sT0}, s{sT}, s{sW}
  s_add_u32 s{sT1}, s{sT0}, s{sT}
  s_lshr_b32 s{sT0}, s{sT0}, 3
  s_lshr_b32 s{sT1}, s{sT1}, 3
  v_cmp_ge_u32 vcc, s{sT0}, v{vTSV}
  s_and_b32 s{sTmp}, vcc_lo, 0xffff
  s_bcnt1_i32_b32 s{sG0}, s{sTmp}
  s_sub_u32 s{sG0}, s{sG0}, 1
  v_cmp_gt_u32 vcc, s{sT1}, v{vTSV}
  s_and_b32 s{sTmp}, vcc_lo, 0xffff
  s_bcnt1_i32_b32 s{sGlast}, s{sTmp}
  s_sub_u32 s{sGlast}, s{sGlast}, 1
  s_add_u32 s{sTmp}, s{sG0}, 1
  v_readlane_b32 s{sTmp2}, v{vTSV}, s{sG0}
  v_readlane_b32 s{sTn}, v{vTSV}, s{sTmp}    ; TS[g0+1]
  s_sub_u32 s{sN}, s{sT1}, s{sT0}
  s_mov_b32 s{sCont}, 0
  s_mov_b32 s{sSlow}, 0
  s_mov_b32 s{sGn}, s{sG0}
  s_mov_b32 s{sCur}, s{sT0}
  s_mov_b32 s{sF}, 1
  s_cmp_eq_u32 s{sN}, 0
  s_cbranch_scc1 K2_FMD
  s_cmp_eq_u32 s{sTmp2}, s{sT0}
  s_cbranch_scc1 K2_FM
  s_mov_b32 s{sCont}, 1
  s_cmp_lt_u32 s{sTn}, s{sT1}
  s_cbranch_scc0 K2_ALLC
  s_add_u32 s{sGn}, s{sG0}, 1
  s_mov_b32 s{sCur}, s{sTn}
  s_sub_u32 s{sTmp}, s{sT1}, s{sCur}
  s_bitset1_b32 s{sF}, s{sTmp}
  s_branch K2_FM
K2_ALLC:
  s_cmp_gt_u32 s{sTn}, s{sT1}
  s_cselect_b32 s{sSlow}, 1, 0
K2_FM:
  s_mov_b32 s{sTau}, s{sGn}
K2_FML:
  s_cmp_ge_u32 s{sTau}, s{sGlast}
  s_cbranch_scc1 K2_FMD
  s_add_u32 s{sTau}, s{sTau}, 1
  s_nop 3
  v_readlane_b32 s{sTmp}, v{vTSV}, s{sTau}
  s_sub_u32 s{sTmp}, s{sTmp}, s{sCur}
  s_bitset1_b32 s{sF}, s{sTmp}
  s_branch K2_FML
K2_FMD:
  s_add_u32 s{sTmp}, s{sGlast}, 1
  s_and_b32 s{sTmp}, s{sTmp}, 31
  s_nop 3
  v_readlane_b32 s{sTmp2}, v{vTSV}, s{sTmp}
  v_readlane_b32 s{sFast}, v{vTSV}, 17
  s_sub_u32 s{sTe}, s{sT1}, s{sCur}
  s_cmp_gt_u32 s{sTmp2}, s{sT1}
  s_cselect_b32 s{sTe}, s{sTe}, 99
  s_cmp_lt_u32 s{sB}, 168
  s_cselect_b32 s{sTmp2}, 30, 31
  s_cmp_eq_u32 s{sFast}, s{sTmp2}
  s_cselect_b32 s{sFast}, s{sFirstB}, 0
  s_cmp_gt_u32 s{sMaxC}, s{sSW}
  s_cselect_b32 s{sFast}, 0, s{sFast}
  s_lshl_b32 s{sB128}, s{sB}, 7
  s_mov_b32 s{sMsk}, 0xffff8000
  s_lshl_b32 s{sTmp}, s{sCur}, 7
  v_add_u32 v{vK}, s{sTmp}, v{vKb}
  v_mad_u32_u24 v{vE}, v{vEs}, s{sCur}, v{vEb}
""")
    for l in next_tile(sTn, sCur): a(l)
    a(f"""
  s_waitcnt lgkmcnt(0)
  s_barrier
@S4@
  ds_read_b128 v[{vI}:{vI+3}], v{vK}
""")
    ord_read(a)
    a(f"""  s_lshl_b32 s{sTmp}, s{sTn}, 7
  v_add_u32 v{vK}, s{sTmp}, v{vKb}
  s_mov_b32 m0, s{sM0}
  s_waitcnt lgkmcnt(1)""")
    for i in range(4): a(la(i))
    for i in range(4):
        a(dma(i))
        if i < 3: a(f"  s_add_u32 m0, s{sM0}, {1024*(i+1)}\n  s_nop 0")
    a(f"  ds_read_b128 v[{vI}:{vI+3}], v{vK}")
    def ea_writes(ks):
        for k in ks:
            a(f"  s_mov_b64 exec, s[{msk(k)}:{msk(k)+1}]")
            if k >= 8: a(f"  s_cbranch_execz K2_ES{k}")
            a(f"  ds_write_b64 v{R(k)+3}, v[{R(k)}:{R(k)+1}] offset:{EA0}")
            if k >= 8: a(f"K2_ES{k}:")
        a("  s_mov_b64 exec, -1")
    ea_writes(list(range(8, 16)) + [0, 1, 2, 3])
    m_event(a)
    for g in range(4): a(f"  v_mov_b32 v{vNAc+g}, v{vNAn+g}")
    next_group(a)
    ord_read(a)
    for i in range(4): a(la(i))
    a("  s_waitcnt vmcnt(0)")
    for s_ in range(4): a(f"  ds_read_b128 {Xb(0,s_)}, v{vXA+s_}")
    ea_writes([4, 5, 6, 7])
    for l in next_tile(sTn2, sTn): a(l)
    a(f"""  s_lshl_b32 s{sTmp}, s{sTn2}, 7
  v_add_u32 v{vK}, s{sTmp}, v{vKb}
  s_mov_b32 m0, s{sM0}
  s_waitcnt lgkmcnt(4)""")
    for i in range(4):
        a(dma(i))
        if i < 3: a(f"  s_add_u32 m0, s{sM0}, {1024*(i+1)}\n  s_nop 0")
    a(f"""  ds_read_b128 v[{vI}:{vI+3}], v{vK}
  s_waitcnt lgkmcnt(0)
  s_barrier
@S10@
  s_cmp_eq_u32 s{sN}, 0
  s_cbranch_scc1 K2_LOOPDONE
  ds_read2_b32 a[{EOP}:{EOP+1}], v{vE} offset0:0 offset1:1
  v_mad_u32_u24 v{vE}, v{vEs}, s{sTn}, v{vEb}
  s_mov_b32 s{sTn}, s{sTn2}""")
    for i in range(4):
        a(mfma16(Gb(0), Xb(0,i), wb(i,0), g16(Gb(0)) if i else "0"))
    a("  s_waitcnt lgkmcnt(0)")
    a(mfma16(Gb(0), Eo, BEo(0), g16(Gb(0))))
    a(mfma16(Gb(1), Eo, BEo(1), "0"))
    a(mfma16(Gb(1), Xb(0,0), wb(0,1), g16(Gb(1))))
    a(f"  ds_read2_b32 a[{EOP}:{EOP+1}], v{vE} offset0:0 offset1:1")
    for i in range(1, 4):
        a(mfma16(Gb(1), Xb(0,i), wb(i,1), g16(Gb(1))))
    a(f"  s_bitcmp1_b32 s{sF}, 1\n  s_cbranch_scc0 K2_FNM")
    m_event(a)
    a("K2_FNM:\n  s_nop 5")
    for i in range(16): a(f"  v_exp_f32 v{Gb(0)+i}, v{Gb(0)+i}")
    a(f"  s_mov_b32 s{sTau}, 0\n  s_waitcnt vmcnt(0)")
    a(mfma8(Gb(0), ON, ON, g16(Gb(0))))
    for s_ in range(4): a(f"  ds_read_b128 {Xb(1,s_)}, v{vXA+s_}")
    a("K2_LOOP:")
    tile_code(a, 0)
    tile_code(a, 1)
    a(f"""  s_branch K2_LOOP
K2_LAST:
  s_setprio 0
  s_cmp_lg_u32 s{sCont}, 0
  s_cbranch_scc1 K2_LOOPDONE
K2_EV:
  s_cmp_eq_u32 s{sTau}, s{sTe}
  s_cbranch_scc1 K2_EVS
  s_cmp_eq_u32 s{sFast}, 0
  s_cbranch_scc1 K2_EVS""")
    fin1(a)
    flush_st(a)
    fin2(a)
    a("  s_branch K2_EVE\nK2_EVS:")
    flush_own(a, "L")
    a(f"""K2_EVE:
  s_cmp_ge_u32 s{sTau}, s{sN}
  s_cbranch_scc1 K2_LOOPDONE""")
    for g in range(4): a(f"  v_mov_b32 v{vNAc+g}, v{vNAn+g}")
    next_group(a)
    ord_read(a)
    a(f"""  s_bitcmp1_b32 s{sTau}, 0
  s_cbranch_scc1 K2_NF0
  s_branch K2_NF1
K2_LOOPDONE:
@S11@
  s_add_u32 s{sSB}, s{sSB}, s{sSW}
  v_mbcnt_lo_u32_b32 v{vLane}, -1, 0
  v_mbcnt_hi_u32_b32 v{vLane}, -1, v{vLane}
  s_lshl_b32 s{sTmp}, s{sW}, 6
  v_add_u32 v{vTid}, s{sTmp}, v{vLane}
  s_lshl_b32 s{sTmp}, s{sW}, 12
  s_add_u32 s{sTmp}, s{sTmp}, s{sB}
  s_lshl_b32 s{sTmp}, s{sTmp}, 7
  v_lshrrev_b32 v{vT1}, 5, v{vLane}
  v_lshlrev_b32 v{vE}, 17, v{vT1}
  v_add3_u32 v{vE}, v{vE}, v{vN4}, s{sTmp}
""")
    fin1(a)
    for g in range(12): a(f"  v_mov_b32 v{G+16+g}, 0") if False else None
    a(f"""
K2_NOFL:
  s_cmp_eq_u32 s{sSlow}, 0
  s_cbranch_scc1 K2_NSL
  v_mov_b32 v{vT0}, {MISC+4}
  v_mov_b32 v{vT1}, 1
  ds_write_b32 v{vT0}, v{vT1}
K2_NSL:
  v_mov_b32 v{vT0}, {MISC+4}
""")
    for q in range(8):
        r = AC + q*4
        a(f"  v_add_f32 v{r}, v{r}, v{r+1}")
        a(f"  v_add_f32 v{r+2}, v{r+2}, v{r+3}")
    a(f"""
  s_mov_b32 s{sTau}, 1
  s_waitcnt lgkmcnt(0)
  s_barrier
  ds_read_b32 v{vT1}, v{vT0}
K2_MERGE:
""")
    for ct in range(2):
        for g in range(4):
            t = G + (ct*4+g)*2
            a(f"  ds_read2_b32 v[{t}:{t+1}], v{vNAc+g} offset0:{64+32*ct} offset1:{128+32*ct}")
    a(f"""
  s_waitcnt lgkmcnt(8)
  v_readfirstlane_b32 s{sSlow}, v{vT1}
  s_cmp_eq_u32 s{sCont}, 0
  s_cbranch_scc1 K2_MNC
  s_cmp_eq_u32 s{sSlow}, 0
  s_cbranch_scc1 K2_MDO
  s_cmp_lg_u32 s{sTau}, s{sW}
  s_cbranch_scc1 K2_MSKIP
K2_MDO:
  s_waitcnt lgkmcnt(0)
""")
    for q in range(8):
        r = AC + q*4; t = G + q*2
        a(f"  v_add_f32 v{r}, v{r}, v{t}")
        a(f"  v_add_f32 v{r+2}, v{r+2}, v{t+1}")
    a(f"""  s_cmp_lg_u32 s{sSlow}, 0
  s_cbranch_scc1 K2_MWR
  s_cmp_eq_u32 s{sFast}, 0
  s_cbranch_scc1 K2_MWR""")
    fin2(a)
    a("@S13@\n@S15@\n@OUT2@\n  s_endpgm\nK2_MWR:")
    for ct in range(2):
        for g in range(4):
            r = AC + (ct*4+g)*4
            a(f"  ds_write2_b32 v{vNAc+g}, v{r}, v{r+2} offset0:{64+32*ct} offset1:{128+32*ct}")
    a(f"""
  s_branch K2_MSKIP
K2_MNC:
  s_cmp_lg_u32 s{sSlow}, 0
  s_cbranch_scc1 K2_MSKIP
  s_cmp_lg_u32 s{sFast}, 0
  s_cbranch_scc1 K2_FIN
K2_MSKIP:
  s_waitcnt lgkmcnt(0)
  s_barrier
  s_cmp_eq_u32 s{sSlow}, 0
  s_cbranch_scc1 K2_MEND
  s_add_u32 s{sTau}, s{sTau}, 1
  s_cmp_lt_u32 s{sTau}, 8
  s_cbranch_scc1 K2_MERGE
K2_MEND:
@S12@
  s_mov_b32 s{sFirstB}, 0
  s_cmp_gt_u32 s{sMaxC}, s{sSB}
  s_cbranch_scc1 K2_RESET
""")
    for rr in range(8):
        a(f"  s_mov_b32 s{sSeg+rr}, {(8*(rr>>2)+(rr&3))*32768}")
        a(f"  buffer_load_dword v{G+rr}, v{vE}, s[{sXR}:{sXR+3}], s{sSeg+rr} offen")
    a(f"""
  s_mul_i32 s{sTmp}, s{sW}, {16*ROWB}
  s_add_u32 s{sTmp}, s{sTmp}, {NODE}
  v_lshrrev_b32 v{vT1}, 5, v{vLane}
  v_mul_u32_u24 v{vT1}, {4*ROWB}, v{vT1}
  v_add3_u32 v{vT1}, v{vT1}, v{vN4}, s{sTmp}
  v_add_u32 v{vT2}, 128, v{vT1}
""")
    for rr in range(8):
        ro = 3 * (8*(rr>>2) + (rr&3))
        a(f"  ds_read2st64_b32 v[{AC+4*rr}:{AC+4*rr+1}], v{vT1} offset0:{ro+1} offset1:{ro+2}")
        a(f"  ds_read2st64_b32 v[{AC+4*rr+2}:{AC+4*rr+3}], v{vT2} offset0:{ro+1} offset1:{ro+2}")
        a(f"  ds_read_b32 v{HV+rr}, v{vT2} offset:{ro*256}")
    a(f"  s_mov_b32 s{sTmp}, 0x358637bd")
    for rr in range(8):
        a(f"  s_waitcnt lgkmcnt({min(15, 3*(7-rr))})")
        for ct in range(2):
            d = AC + 4*rr + 2*ct + 1
            a(f"  v_add_f32 v{d}, s{sTmp}, v{d}")
        for ct in range(2):
            d = AC + 4*rr + 2*ct + 1
            a(f"  v_rcp_f32 v{d}, v{d}")
        a(f"  v_lshlrev_b32 v{HV+8+rr}, 16, v{HV+rr}")
        a(f"  v_and_b32 v{HV+rr}, 0xffff0000, v{HV+rr}")
    a("  s_waitcnt vmcnt(0)")
    for rr in range(8):
        n0, n1 = AC + 4*rr, AC + 4*rr + 2
        a(f"  v_fma_f32 v{n0}, v{n0}, v{n0+1}, v{HV+8+rr}")
        a(f"  v_fma_f32 v{n1}, v{n1}, v{n1+1}, v{HV+rr}")
        a(f"  v_lshlrev_b32 v{n0+1}, 16, v{G+rr}")
        a(f"  v_and_b32 v{n1+1}, 0xffff0000, v{G+rr}")
        a(f"  v_max_f32 v{n0}, 0, v{n0}")
        a(f"  v_max_f32 v{n1}, 0, v{n1}")
        a(f"  v_add_f32 v{n0}, v{n0}, v{n0+1}")
        a(f"  v_add_f32 v{n1}, v{n1}, v{n1+1}")
        a(f"  v_cvt_pk_bf16_f32 v{n0}, v{n0}, v{n1}")
        a(f"  buffer_store_dword v{n0}, v{vE}, s[{sOUT}:{sOUT+3}], s{sSeg+rr} offen")
    a("K2_FIN:\n@S13@\n@S15@\n@OUT2@\nK2_END:\n  s_endpgm")

def kd(name, vgpr, accum, sgpr):
    return f"""
.amdhsa_kernel {name}
  .amdhsa_next_free_vgpr {vgpr}
  .amdhsa_next_free_sgpr {sgpr}
  .amdhsa_accum_offset {accum}
  .amdhsa_group_segment_fixed_size 0
  .amdhsa_kernarg_size 96
  .amdhsa_user_sgpr_count 2
  .amdhsa_user_sgpr_kernarg_segment_ptr 1
  .amdhsa_system_sgpr_workgroup_id_x 1
  .amdhsa_float_denorm_mode_32 3
.end_amdhsa_kernel
"""

def main():
    ref = open(f"cdna_kernels/{NAME}.s.ref").read().split("\n")
    hdr = [l for l in ref if l.startswith(";") and "@launch" not in l and "Override" not in l and "grid=ceil" not in l]
    a = Asm()
    a("\n".join(hdr))
    a(f"; @launch kernel=part_kernel grid=({NP+5},1,1) block=(800,1,1) lds={LDS1}")
    a(f"; @launch kernel=main_kernel grid=(256,1,1) block=(512,1,1) lds={LDS2}")
    a('.amdgcn_target "amdgcn-amd-amdhsa--gfx950"\n.text')
    gen_k1(a)
    gen_k2(a)
    a('.section .rodata,"a"\n.p2align 6')
    st = OPT["stamp"]
    a(kd("part_kernel", 60, 60, 100) if st else kd("part_kernel", 56, 56, 32))
    a(".p2align 6")
    a(kd("main_kernel", NARCH + NACC, NARCH, 100))
    txt = a.text()
    SL = MISC + 64
    cpf2 = cpf1 = ""
    if OPT["cpf"] & 1:
        cpf2 = f"""  s_getpc_b64 s[98:99]
  v_lshlrev_b32 v39, 6, v0
  s_mov_b64 exec, 0xffffffff
  global_load_dword a0, v39, s[98:99]
  s_mov_b64 exec, -1
"""
        cpf2 = f"""  s_getpc_b64 s[98:99]
CPF2L:
  v_lshlrev_b32 v39, 5, v0
  v_min_u32 v39, K2_END-CPF2L, v39
  global_load_dword a0, v39, s[98:99]
"""
    if OPT["cpf"] & 2:
        cpf1 = f"""  s_getpc_b64 s[26:27]
CPF1L:
  v_lshlrev_b32 v40, 5, v0
  v_min_u32 v40, K2_END-CPF1L, v40
  global_load_dword v55, v40, s[26:27]
"""
    imgw = ""
    for n in range(9):
        imgw += f"  s_cmp_lg_u32 s{sN}, {n}\n  s_cbranch_scc1 K2_IW{n}\n  s_waitcnt vmcnt({8+n})\n  s_branch K2_IWD\nK2_IW{n}:\n"
    imgw += "K2_IWD:\n"
    offl = f"""  buffer_load_dword v23, v{vTSV}, s[{sOFF}:{sOFF+3}], 0 offen
"""
    txt = txt.replace("@OFFS_A@\n", offl).replace("@OFFS_B@\n", "").replace("@OFFW@", "8").replace("@IMGW@\n", imgw)
    xpf = ""
    if OPT["npf"]:
        xpf = f"""  s_lshr_b32 s{sTmp}, s2, 3
  s_mul_i32 s{sTmp}, s{sTmp}, 100096
  v_lshlrev_b32 v{vT2}, 7, v4
  s_add_u32 s{sTmp2}, s{sTmp}, 65536
  buffer_load_dword a{X}, v{vT2}, s[{sXR}:{sXR+3}], s{sTmp} offen
  s_cmp_ge_u32 s{sW}, 5
  s_cbranch_scc1 K2_XPE
  buffer_load_dword a{X+1}, v{vT2}, s[{sXR}:{sXR+3}], s{sTmp2} offen
K2_XPE:
"""
    txt = txt.replace("@XPF@\n", xpf)
    txt = txt.replace("@CPF2@\n", cpf2).replace("@CPF1@\n", cpf1)
    def sub(m):
        if not st: return ""
        b = Asm(); k = m.group(1); i = m.group(2)
        if k == "OUT":
            if i == "2":
                b(f"""  s_lshl_b32 s99, s{sW}, 6
  s_add_u32 s99, s99, {SL}
  v_mbcnt_lo_u32_b32 v37, -1, 0
  v_lshlrev_b32 v37, 2, v37
  v_add_u32 v37, s99, v37
  ds_read_b32 v36, v37
  s_waitcnt lgkmcnt(0)""")
                stamp_out(b, 96, sW, STAMP_OFF, 36, 37, 8)
            else: stamp_out(b, 20, 23, STAMP_OFF + 0x100000, 56, 57, 16)
        else:
            i = int(i)
            if k == "TW": b("  s_waitcnt vmcnt(0)")
            def one(idx, real=False):
                if k == "S":
                    d = 37 if idx == 5 else 38
                    b(f"""  s_mem{'real' if real else ''}time s[98:99]
  s_waitcnt lgkmcnt(0)
  v_mov_b32 v{d}, s98
  s_lshl_b32 s99, s{sW}, 6
  s_add_u32 s99, s99, {SL + 4*idx}
  v_mov_b32 v39, s99
  ds_write_b32 v39, v{d}""")
                else: stamp(b, idx, 56, real=real)
            if i == 0: one(0); one(1, True)
            elif i == 15: one(15, True)
            elif i == 10 and k == 'S': one(10); one(14, True)
            elif i == 11 and k == 'S': one(11); one(2, True)
            elif i == 2 and k == 'S': pass
            else: one(i)
        return b.text()
    txt = re.sub(r"@(S|TW|T|OUT)(\d+)@\n", sub, txt)
    lines = txt.split("\n")
    for p in check_hazards(lines): print("HAZARD", p)
    b = Asm()
    for rep in range(2):
        for k in range(4):
            t_unit(b, k); p_unit(b, k, rep == 0)
            if k & 1: flush(b); m_event(b)
    for k in range(4):
        t_unit(b, k); p_unit(b, k, False)
    for k in range(2):
        t_unit(b, k); p_unit(b, k, False)
    for p in check_hazards(b.text().split("\n"), "loop"): print("HAZARD", p)
    open(sys.argv[1], "w").write(txt)

if __name__ == "__main__":
    main()
```

```python
import sys, re
from asmlib import *

NAME = "gather_scatter__edge_featured_mpnn_gatedgcn__graph"
NP, CH = 250, 3200
RECB = CH * 12
OFFS = 0xA00000
IMG = OFFS + 0x40000
NLOG2E = 0xBFB8AA3B
CAPT = 128
EA0, K0 = 0, 32768
CNT, NB, HIST, ORDQ, ORDA, TSV, MISC = 49152, 49664, 50176, 50432, 50944, 51456, 51584
RING = 52224
NODE = RING + 8 * 4096
ROWB = 768
LDS2 = NODE + 99 * ROWB
XO, IMA = RING + 16384, 16384
K1_CNT, K1_START = 38400, 39424
LDS1 = 40448
STAMP_OFF = 0x1000000

OPT = dict(st_flags="", ld_flags="", npf=0, stamp=0, prio=2, dbg=-1, dbgw=0, nodma=0, cpf=3, k1late=2)
for a_ in sys.argv[2:]:
    k_, v_ = a_.split("=", 1)
    OPT[k_] = int(v_) if v_.lstrip("-").isdigit() else v_.replace("+", " ")

def stamp(a, idx, vreg, s=98, real=False):
    a(f"  s_mem{'real' if real else ''}time s[{s}:{s+1}]\n  s_waitcnt lgkmcnt(0)\n  v_writelane_b32 v{vreg}, s{s}, {idx}")
def stamp_out(a, ws, wave, base, vreg, tmp, wpw):
    a(f"""  s_mul_i32 s98, s2, {wpw}
  s_add_u32 s98, s98, s{wave}
  s_lshl_b32 s98, s98, 6
  s_add_u32 s98, s98, {base}
  v_mbcnt_lo_u32_b32 v{tmp}, -1, 0
  v_lshlrev_b32 v{tmp}, 2, v{tmp}
  v_add_u32 v{tmp+1}, s98, v{tmp}
  s_mov_b64 exec, 0xffff
  global_store_dword v{tmp+1}, v{vreg}, s[{ws}:{ws+1}]""")
    if OPT["dbg"] >= 0:
        a(f"""  s_cmp_lg_u32 s2, {OPT["dbg"]}
  s_cbranch_scc1 DBGX{vreg}_{len(a.lines)}
  s_cmp_lg_u32 s{wave}, {OPT["dbgw"]}
  s_cbranch_scc1 DBGX{vreg}_{len(a.lines)}
  s_load_dwordx2 s[98:99], s[0:1], 80
  s_waitcnt lgkmcnt(0)
  global_store_dword v{tmp}, v{vreg}, s[98:99]
DBGX{vreg}_{len(a.lines)}:""")

def dpp_scan(a, v):
    for m in ("row_shr:1", "row_shr:2", "row_shr:4", "row_shr:8"):
        a(f"  s_nop 1\n  v_add_u32_dpp v{v}, v{v}, v{v} {m} row_mask:0xf bank_mask:0xf")
    a(f"  s_nop 1\n  v_add_u32_dpp v{v}, v{v}, v{v} row_bcast:15 row_mask:0xa bank_mask:0xf")
    a(f"  s_nop 1\n  v_add_u32_dpp v{v}, v{v}, v{v} row_bcast:31 row_mask:0xc bank_mask:0xf")

def gen_k1(a):
    st = OPT["st_flags"]
    a(f"""
.globl part_kernel
.p2align 8
.type part_kernel,@function
part_kernel:
  s_cmp_ge_u32 s2, {NP}
  s_cbranch_scc1 K1_PACK
  s_load_dwordx2 s[8:9], s[0:1], 24
  s_load_dwordx4 s[4:7], s[0:1], 8
  s_load_dwordx2 s[20:21], s[0:1], 88
  v_lshrrev_b32 v33, 6, v0
  v_lshlrev_b32 v1, 4, v0
  v_readfirstlane_b32 s23, v33
@CPF1@
@T0@
  s_mul_i32 s22, s2, {CH*4}
  v_add_u32 v2, s22, v1
  v_lshlrev_b32 v3, 1, v2
  v_mov_b32 v32, 1
  v_mov_b32 v36, 0
  v_mov_b32 v37, 0
  v_mov_b32 v38, 0
  v_mov_b32 v39, 0
  s_cmp_lg_u32 s23, 0
  s_cbranch_scc1 K1_A
  ds_write_b128 v1, v[36:39] offset:{K1_CNT}
K1_A:
  s_waitcnt lgkmcnt(0)
  global_load_dwordx4 v[4:7], v2, s[8:9]
""")
    late = """  global_load_dwordx4 v[8:11], v2, s[6:7]
  global_load_dwordx4 v[12:15], v3, s[4:5]
  global_load_dwordx4 v[16:19], v3, s[4:5] offset:16"""
    if OPT["k1late"] == 0: a(late)
    a("  s_barrier\n@T2@")
    if OPT["k1late"] == 1: a(late)
    a(f"  s_waitcnt vmcnt({0 if OPT['k1late'] == 2 else 3})\n@T3@")
    if OPT["k1late"] == 2: a(late)
    for k in range(4):
        a(f"  v_lshlrev_b32_sdwa v{20+k}, 2, v{4+k} dst_sel:DWORD dst_unused:UNUSED_PAD src0_sel:DWORD src1_sel:BYTE_0")
    for k in range(4):
        a(f"  ds_add_rtn_u32 v{24+k}, v{20+k}, v32 offset:{K1_CNT}")
    a(f"""
  s_waitcnt lgkmcnt(0)
  s_barrier
  s_cmp_lg_u32 s23, 0
  s_cbranch_scc1 K1_B
  ds_read_b128 v[36:39], v1 offset:{K1_CNT}
  s_waitcnt lgkmcnt(0)
  v_add_u32 v41, v36, v37
  v_add_u32 v42, v41, v38
  v_add_u32 v43, v42, v39
  v_mov_b32 v44, v43
""")
    dpp_scan(a, 44)
    a(f"""
  v_sub_u32 v45, v44, v43
  v_add_u32 v47, v45, v36
  v_add_u32 v48, v45, v41
  v_add_u32 v49, v45, v42
  v_mul_u32_u24 v46, 12, v45
  v_mul_u32_u24 v47, 12, v47
  v_mul_u32_u24 v48, 12, v48
  v_mul_u32_u24 v49, 12, v49
  ds_write_b128 v1, v[46:49] offset:{K1_START}
  v_lshl_or_b32 v50, v36, 16, v46
  v_lshl_or_b32 v51, v37, 16, v47
  v_lshl_or_b32 v52, v38, 16, v48
  v_lshl_or_b32 v53, v39, 16, v49
  s_lshl_b32 s24, s2, 10
  s_add_u32 s24, s24, {OFFS}
  v_add_u32 v54, s24, v1
  global_store_dwordx4 v54, v[50:53], s[20:21] {st}
K1_B:
  s_mul_i32 s22, s2, {RECB}
  v_add_u32 v2, s22, v1
  v_add_u32 v3, {12800}, v2
  v_add_u32 v34, {25600}, v2
""")
    for k in range(4):
        a(f"  v_lshrrev_b32 v{4+k}, 8, v{4+k}")
    a(f"""
  s_waitcnt lgkmcnt(0)
  s_barrier
@T4@
""")
    for k in range(4):
        a(f"  ds_read_b32 v{28+k}, v{20+k} offset:{K1_START}")
    a("  s_waitcnt vmcnt(2)")
    for k in range(4):
        a(f"  v_lshl_or_b32 v{8+k}, v{4+k}, 18, v{8+k}")
    for k in range(4):
        a(f"  s_waitcnt lgkmcnt({3-k})")
        a(f"  v_mad_u32_u24 v{28+k}, v{24+k}, 12, v{28+k}")
    for k in range(4):
        a(f"  ds_write_b32 v{28+k}, v{8+k} offset:8")
    a("  s_waitcnt vmcnt(0)")
    for k in range(4):
        a(f"  ds_write2_b32 v{28+k}, v{12+2*k}, v{13+2*k} offset0:0 offset1:1")
    a(f"""
  s_waitcnt lgkmcnt(0)
  s_barrier
  ds_read_b128 v[8:11], v1
  ds_read_b128 v[12:15], v1 offset:12800
  ds_read_b128 v[16:19], v1 offset:25600
  s_waitcnt lgkmcnt(2)
  global_store_dwordx4 v2, v[8:11], s[20:21] {st}
  s_waitcnt lgkmcnt(1)
  global_store_dwordx4 v3, v[12:15], s[20:21] {st}
  s_waitcnt lgkmcnt(0)
  global_store_dwordx4 v34, v[16:19], s[20:21] {st}
@T5@
@TW6@
@T15@
@OUT1@
  s_endpgm
K1_PACK:
  s_cmp_ge_u32 s2, {NP+5}
  s_cbranch_scc1 K1_END
  s_load_dwordx2 s[10:11], s[0:1], 32
  s_load_dwordx8 s[12:19], s[0:1], 40
  s_load_dwordx2 s[20:21], s[0:1], 88
  v_lshrrev_b32 v33, 6, v0
  s_nop 0
  v_readfirstlane_b32 s23, v33
  s_cmp_ge_u32 s23, 4
  s_cbranch_scc1 K1_END
  s_waitcnt lgkmcnt(0)
  v_and_b32 v2, 31, v0
  v_bfe_u32 v3, v0, 5, 1
  v_and_b32 v34, 63, v0
  s_cmp_eq_u32 s2, {NP+4}
  s_cbranch_scc1 K1_PACKC
  s_mov_b32 s24, s12
  s_mov_b32 s25, s13
  s_mov_b32 s26, {NLOG2E:#x}
  s_cmp_eq_u32 s2, {NP}
  s_cbranch_scc1 K1_P1
  s_mov_b32 s26, 1.0
  s_mov_b32 s24, s18
  s_mov_b32 s25, s19
  s_cmp_eq_u32 s2, {NP+1}
  s_cbranch_scc1 K1_P1
  s_mov_b32 s24, s10
  s_mov_b32 s25, s11
  s_cmp_eq_u32 s2, {NP+2}
  s_cbranch_scc1 K1_P1
  s_mov_b32 s24, s16
  s_mov_b32 s25, s17
K1_P1:
  v_lshlrev_b32 v4, 12, v3
  v_lshl_add_u32 v4, v2, 2, v4
  s_lshl_b32 s27, s23, 10
  v_add_u32 v4, s27, v4
""")
    for j in range(8):
        a(f"  global_load_dword v{8+j}, v4, s[24:25] offset:{128*j}")
    a("  s_waitcnt vmcnt(0)")
    for j in range(8):
        a(f"  v_lshlrev_b32 v{16+j}, 16, v{8+j}")
        a(f"  v_and_b32 v{24+j}, 0xffff0000, v{8+j}")
        a(f"  v_mul_f32 v{16+j}, s26, v{16+j}")
        a(f"  v_mul_f32 v{24+j}, s26, v{24+j}")
    for jj in range(4):
        a(f"  v_cvt_pk_bf16_f32 v{36+jj}, v{16+2*jj}, v{17+2*jj}")
        a(f"  v_cvt_pk_bf16_f32 v{40+jj}, v{24+2*jj}, v{25+2*jj}")
    a(f"""
  s_sub_u32 s27, s2, {NP}
  s_lshl_b32 s27, s27, 2
  s_add_u32 s27, s27, s23
  s_lshl_b32 s27, s27, 11
  s_add_u32 s27, s27, {IMG}
  v_lshlrev_b32 v5, 4, v34
  v_add_u32 v5, s27, v5
  global_store_dwordx4 v5, v[36:39], s[20:21] {st}
  global_store_dwordx4 v5, v[40:43], s[20:21] offset:1024 {st}
  s_endpgm
K1_PACKC:
  s_cmp_lg_u32 s23, 0
  s_cbranch_scc1 K1_END
  v_lshlrev_b32 v4, 2, v2
  s_mov_b32 s26, {NLOG2E:#x}
""")
    for j in range(4):
        a(f"  global_load_dword v{8+j}, v4, s[14:15] offset:{128*j}")
    a("  s_waitcnt vmcnt(0)")
    for j in range(4):
        a(f"  v_lshlrev_b32 v{16+j}, 16, v{8+j}")
        a(f"  v_and_b32 v{24+j}, 0xffff0000, v{8+j}")
        a(f"  v_mul_f32 v{16+j}, s26, v{16+j}")
        a(f"  v_mul_f32 v{24+j}, s26, v{24+j}")
    a(f"""
  v_cvt_pk_bf16_f32 v36, v16, v17
  v_cvt_pk_bf16_f32 v37, v18, v19
  v_cvt_pk_bf16_f32 v38, v24, v25
  v_cvt_pk_bf16_f32 v39, v26, v27
  v_cmp_eq_u32 vcc, 0, v3
  v_mov_b32 v40, 0x71800000
  v_mov_b32 v41, 0
  v_cndmask_b32 v36, v40, v36, vcc
  v_cndmask_b32 v37, v41, v37, vcc
  v_cndmask_b32 v38, v40, v38, vcc
  v_cndmask_b32 v39, v41, v39, vcc
  v_lshlrev_b32 v5, 4, v34
  v_add_u32 v5, {IMG+32768}, v5
  global_store_dwordx4 v5, v[36:39], s[20:21] {st}
K1_END:
  s_endpgm
""")

vXA = 0
vI = 4
vC = 8
vEs, vEb, vE, vKb, vK = 12, 13, 14, 15, 16
vN4, vTSV, vOrd = 17, 18, 19
vNAc, vNAn = 20, 24
BEV = 28
vT0, vT1, vT2, vT3 = 36, 37, 38, 39
G, HV, AC = 40, 104, 120
NARCH = 152
WB, WV, EOP, ONE, X = 0, 32, 64, 68, 70
NACC = 102
sXR, sOUT, sREC, sOFF, sWM = 8, 12, 16, 20, 24
sM1, sM2, sSeg = 28, 44, 60
sW, sSB, sSW, sFirstB, sT, sT0, sT1, sTn, sTn2, sTau, sN, sF, sGn, sGlast, sCont, sG0, sM0, sMaxC, sTmp, sTmp2, sCur, sSlow, sPsel0, sPsel1, sB = range(68, 93)
sSave = 94
sB128, sFast, sTe, sMsk, sGc = 93, 3, 6, 7, 4
sKA = 4

def mfma16(d, A, B, C):
    return f"  v_mfma_f32_32x32x16_bf16 v[{d}:{d+15}], {A}, {B}, {C}"
def mfma8(d, A, B, C):
    return f"  v_mfma_f32_32x32x8_bf16 v[{d}:{d+15}], {A}, {B}, {C}"
g16 = lambda d: f"v[{d}:{d+15}]"
pr = lambda r: f"v[{r}:{r+1}]"
Gb = lambda k: G + 16*(k % 4)
Xb = lambda t, s: ar(X + 16*(t % 2) + 4*s, 4)
wb = lambda s, ct: ar(WB+(s*2+ct)*4, 4)
wv = lambda s, ct: ar(WV+(s*2+ct)*4, 4)
Eo = ar(EOP, 4); ON = ar(ONE, 2)
BEo = lambda ct: vr(BEV+4*ct, 4)

def flush_st(a):
    for q in range(8):
        r = AC + q*4
        a(f"  v_add_f32 v{r}, v{r}, v{r+1}")
        a(f"  v_add_f32 v{r+2}, v{r+2}, v{r+3}")
    for ct in range(2):
        for g in range(4):
            r = AC + (ct*4+g)*4
            a(f"  ds_write2_b32 v{vNAc+g}, v{r}, v{r+2} offset0:{64+32*ct} offset1:{128+32*ct}")
def flush_own(a, tag):
    a(f"  s_cmp_eq_u32 s{sFirstB}, 0\n  s_cbranch_scc1 K2_FR{tag}")
    flush_st(a)
    a(f"  s_branch K2_FE{tag}\nK2_FR{tag}:")
    flush(a)
    a(f"K2_FE{tag}:")
def wide_reduce(a, tag):
    a(f"  s_cmp_lg_u32 s{sGc}, 0\n  s_cbranch_scc1 K2_WR{tag}")
    prs = []
    for ct in range(2):
        for g in (0, 2):
            for d in (0, 2):
                prs.append((AC + (ct*4+g)*4 + d, AC + (ct*4+g+1)*4 + d))
    for x, y in prs: a(f"  v_pk_add_f32 {pr(x)}, {pr(x)}, {pr(y)}")
    for x, y in prs: a(f"  v_add_f32 v{x}, v{x}, v{x+1}")
    for x, y in prs: a(f"  v_mov_b32 v{x+1}, v{x}")
    a("  s_nop 1")
    for x, y in prs: a(f"  v_permlane32_swap_b32 v{x}, v{x+1}")
    a("  s_nop 1")
    for x, y in prs:
        a(f"  v_mov_b32 v{y}, v{x}")
        a(f"  v_mov_b32 v{y+1}, v{x+1}")
    a(f"K2_WR{tag}:")
def fin1(a):
    for g in range(4):
        a(f"  v_lshrrev_b32 v{HV+8+g}, 8, v{vNAc+g}")
        a(f"  v_mul_u32_u24 v{HV+8+g}, 10923, v{HV+8+g}")
        a(f"  v_subrev_u32 v{HV+8+g}, {(NODE//256)*10923}, v{HV+8+g}")
        a(f"  v_and_or_b32 v{HV+8+g}, v{HV+8+g}, s{sMsk}, v{vN4}")
        a(f"  buffer_load_dword v{HV+g}, v{HV+8+g}, s[{sXR}:{sXR+3}], s{sB128} offen")
        a(f"  ds_read_b32 v{HV+4+g}, v{vNAc+g} offset:128")
def fin2(a):
    a(f"  s_mov_b32 s{sTmp}, 0x358637bd")
    for q in range(8): a(f"  v_add_f32 v{AC+4*q+2}, s{sTmp}, v{AC+4*q+2}")
    for q in range(8): a(f"  v_rcp_f32 v{AC+4*q+2}, v{AC+4*q+2}")
    a("  s_waitcnt lgkmcnt(0)")
    for g in range(4):
        a(f"  v_lshlrev_b32 v{AC+4*g+1}, 16, v{HV+4+g}")
        a(f"  v_and_b32 v{AC+4*(4+g)+1}, 0xffff0000, v{HV+4+g}")
    for q in range(8): a(f"  v_fma_f32 v{AC+4*q}, v{AC+4*q}, v{AC+4*q+2}, v{AC+4*q+1}")
    for q in range(8): a(f"  v_max_f32 v{AC+4*q}, 0, v{AC+4*q}")
    a("  s_waitcnt vmcnt(0)")
    for g in range(4):
        a(f"  v_lshlrev_b32 v{AC+4*g+1}, 16, v{HV+g}")
        a(f"  v_and_b32 v{AC+4*(4+g)+1}, 0xffff0000, v{HV+g}")
    for q in range(8): a(f"  v_add_f32 v{AC+4*q}, v{AC+4*q}, v{AC+4*q+1}")
    for g in range(4):
        a(f"  v_cvt_pk_bf16_f32 v{AC+4*g}, v{AC+4*g}, v{AC+4*(4+g)}")
        a(f"  buffer_store_dword v{AC+4*g}, v{HV+8+g}, s[{sOUT}:{sOUT+3}], s{sB128} offen")
def m_event1(a):
    a("  s_waitcnt lgkmcnt(0)")
    for g in range(4): a(f"  v_add_u32 v{vNAn+g}, v{vNAn+g}, v{vN4}")
    for g in range(4): a(f"  ds_read_b32 v{vT0+g}, v{vNAn+g}")
def m_event2(a):
    for ct in range(2):
        for i in range(2):
            a(f"  v_perm_b32 v{BEV+4*ct+2+i}, v{vT0+2*i+1}, v{vT0+2*i}, s{sPsel0+ct}")

def flush(a):
    for ct in range(2):
        for g in range(4):
            t = HV + (ct*4+g)*2
            a(f"  ds_read2_b32 v[{t}:{t+1}], v{vNAc+g} offset0:{64+32*ct} offset1:{128+32*ct}")
    for q in range(8):
        r = AC + q*4
        a(f"  v_add_f32 v{r}, v{r}, v{r+1}")
        a(f"  v_add_f32 v{r+2}, v{r+2}, v{r+3}")
    a("  s_waitcnt lgkmcnt(0)")
    for q in range(8):
        r = AC + q*4; t = HV + q*2
        a(f"  v_add_f32 v{r}, v{r}, v{t}")
        a(f"  v_add_f32 v{r+2}, v{r+2}, v{t+1}")
    for ct in range(2):
        for g in range(4):
            r = AC + (ct*4+g)*4
            a(f"  ds_write2_b32 v{vNAc+g}, v{r}, v{r+2} offset0:{64+32*ct} offset1:{128+32*ct}")

def next_tile(dst, src):
    return [f"  s_add_u32 s{dst}, s{src}, 1", f"  s_cmp_eq_u32 s{dst}, s{sT1}", f"  s_cselect_b32 s{dst}, s{sT0}, s{dst}"]

def dma(i):
    if OPT["nodma"]: return "  s_nop 0"
    return f"  buffer_load_dwordx4 v{vI+i}, s[{sXR}:{sXR+3}], 0 offen lds"
def la(i):
    return f"  v_lshl_add_u32 v{vI+i}, v{vI+i}, 7, v{vC+i}"

def ord_read(a):
    a(f"  s_lshl_b32 s{sTmp}, s{sGn}, 5\n  v_add_u32 v{vT0}, s{sTmp}, v{vOrd}\n  ds_read_b128 v[{vNAn}:{vNAn+3}], v{vT0}")
def next_group(a):
    a(f"  s_add_u32 s{sTmp}, s{sGn}, 1\n  s_cmp_lt_u32 s{sGn}, s{sGlast}\n  s_cselect_b32 s{sGn}, s{sTmp}, s{sG0}")
def m_event(a):
    a("  s_waitcnt lgkmcnt(0)")
    for g in range(4): a(f"  v_add_u32 v{vNAn+g}, v{vNAn+g}, v{vN4}")
    for g in range(4): a(f"  ds_read_b32 v{vT0+g}, v{vNAn+g}")
    a("  s_waitcnt lgkmcnt(0)")
    for ct in range(2):
        for i in range(2):
            a(f"  v_perm_b32 v{BEV+4*ct+2+i}, v{vT0+2*i+1}, v{vT0+2*i}, s{sPsel0+ct}")

def p_unit(a, k, first):
    ct = k & 1
    for half in range(2):
        for gq in range(4):
            e = Gb(k) + 4*gq; h = HV + 4*gq; r = AC + (ct*4+gq)*4
            if first:
                if half == 0:
                    a(f"  v_pk_mul_f32 {pr(r)}, {pr(e)}, {pr(h)}")
                    a(f"  v_pk_add_f32 {pr(r+2)}, {pr(e)}, {pr(e+2)}")
                else:
                    a(f"  v_pk_fma_f32 {pr(r)}, {pr(e+2)}, {pr(h+2)}, {pr(r)}")
            else:
                a(f"  v_pk_fma_f32 {pr(r)}, {pr(e+2*half)}, {pr(h+2*half)}, {pr(r)}")
                a(f"  v_pk_add_f32 {pr(r+2)}, {pr(e+2*half)}, {pr(r+2)}")

def t_unit(a, k):
    t, ct = k >> 1, k & 1
    T = [f"  v_exp_f32 v{Gb(k+1)+i}, v{Gb(k+1)+i}" for i in range(16)] + [f"  v_rcp_f32 v{Gb(k)+i}, v{Gb(k)+i}" for i in range(16)]
    Hm = [mfma16(HV, Xb(t, s), wv(s, ct), g16(HV) if s else "0") for s in range(4)]
    d = Gb(k+2)
    Gm = [mfma16(d, Eo, BEo(ct), "0")] + [mfma16(d, Xb(t+1, s), wb(s, ct), g16(d)) for s in range(4)]
    A1 = mfma8(Gb(k+1), ON, ON, g16(Gb(k+1)))
    M = [Hm[0], Gm[0], Hm[1], Gm[1], Hm[2], Gm[2], A1, Hm[3], Gm[3], Gm[4]]
    side = [[] for _ in M]
    nt = next_tile(sTn2, sTn)
    if ct == 0:
        pre = ["  s_waitcnt lgkmcnt(0)", la(0), la(1)]
        side[0] = [f"  s_mov_b32 m0, s{sM0}", la(2), la(3)]
        side[1] = [dma(0), f"  s_add_u32 m0, s{sM0}, 1024"]
        side[2] = [dma(1), f"  s_add_u32 m0, s{sM0}, 2048"]
        side[3] = [dma(2), f"  s_add_u32 m0, s{sM0}, 3072"]
        side[4] = [dma(3), nt[0]]
        side[5] = [nt[1], nt[2]]
        side[7] = [f"  s_lshl_b32 s{sTmp}, s{sTn2}, 7", f"  v_add_u32 v{vK}, s{sTmp}, v{vKb}"]
        side[8] = [f"  ds_read_b128 v[{vI}:{vI+3}], v{vK}", f"  v_mad_u32_u24 v{vE}, v{vEs}, s{sTn}, v{vEb}"]
        side[9] = [f"  s_mov_b32 s{sTn}, s{sTn2}"]
    else:
        pre = []
        side[2] = [f"  ds_read2_b32 a[{EOP}:{EOP+1}], v{vE} offset0:0 offset1:1"]
        side[7] = ["  s_waitcnt vmcnt(0)"]
        side[8] = [f"  ds_read_b128 {Xb(t,0)}, v{vXA}", f"  ds_read_b128 {Xb(t,1)}, v{vXA+1}"]
        side[9] = [f"  ds_read_b128 {Xb(t,2)}, v{vXA+2}", f"  ds_read_b128 {Xb(t,3)}, v{vXA+3}"]
    if OPT["prio"] == 2: a("  s_setprio 0")
    for p_ in pre: a(p_)
    ti = 0
    for i, m in enumerate(M):
        a(m)
        for s_ in side[i]: a(s_)
        n = 3 if i < 9 else 32 - ti
        for _ in range(n):
            a(T[ti]); ti += 1
    if OPT["prio"] == 2: a("  s_setprio 1")

def tile_code(a, par):
    for ct in range(2):
        k = 2*par + ct
        t_unit(a, k)
        a(f"  s_bitcmp1_b32 s{sF}, s{sTau}\n  s_cbranch_scc0 K2_PN{k}")
        p_unit(a, k, True)
        a(f"  s_branch K2_PE{k}\nK2_PN{k}:")
        p_unit(a, k, False)
        a(f"K2_PE{k}:")
    a(f"""  s_add_u32 s{sTau}, s{sTau}, 1
  s_cmp_ge_u32 s{sTau}, s{sN}
  s_cbranch_scc1 K2_LAST
  s_bitcmp1_b32 s{sF}, s{sTau}
  s_cbranch_scc1 K2_EV""")
    a(f"""K2_NF{par}:
  s_add_u32 s{sTmp}, s{sTau}, 1
  s_bitcmp1_b32 s{sF}, s{sTmp}
  s_cbranch_scc0 K2_NM{par}""")
    m_event(a)
    a(f"K2_NM{par}:")

def gen_k2(a):
    ld = OPT["ld_flags"]
    R = lambda k: 40 + 4*k
    A4 = lambda k: 104 + k
    OF, VA = 120, 128
    WR = 136
    vTid, vLane, vOne = 4, 5, 6
    vL1, vL2, vBase, vMx = 20, 21, 22, 23
    def msk(k): return (sM1 + 2*k) if k < 8 else (sM2 + 2*(k-8))
    a(f"""
.globl main_kernel
.p2align 8
.type main_kernel,@function
main_kernel:
  s_cmp_ge_u32 s2, 256
  s_cbranch_scc1 K2_END
  s_load_dwordx8 s[28:35], s[0:1], 64       ; w_v out dbg ws
  s_load_dwordx2 s[4:5], s[0:1], 0          ; x
  v_lshrrev_b32 v{vT0}, 6, v0
  v_mov_b32 v{vTid}, v0
  v_readfirstlane_b32 s{sW}, v{vT0}
  v_and_b32 v{vLane}, 63, v0
@CPF2@
@S0@
  v_lshrrev_b32 v{vT1}, 4, v0
  v_and_b32 v{vT2}, 7, v0
  v_lshl_add_u32 v{vTSV}, v{vT1}, 3, v{vT2}
  v_lshlrev_b32 v{vTSV}, 10, v{vTSV}          ; (8G + (l&7))*1024
  s_and_b32 s{sB}, s2, 7
  s_lshl_b32 s{sB}, s{sB}, 5
  s_lshr_b32 s{sTmp}, s2, 3
  s_or_b32 s{sB}, s{sB}, s{sTmp}
  s_lshl_b32 s{sTmp}, s{sB}, 2
  s_add_u32 s{sTmp}, s{sTmp}, {OFFS}
  s_mov_b32 s{sOFF+2}, {(NP-1)*1024+4}
  s_mov_b32 s{sOFF+3}, 0x20000
  s_mov_b32 s{sSB}, 0
  s_mov_b32 s{sSW}, 32
  s_mov_b32 s{sFirstB}, 1
  v_and_b32 v{vT0}, 31, v{vLane}
  v_lshlrev_b32 v{vN4}, 2, v{vT0}
  v_mov_b32 v40, 0
  v_mov_b32 v41, 0
  v_mov_b32 v42, 0
  v_mov_b32 v43, 0
  v_lshrrev_b32 v{vT2}, 5, v{vTid}
  v_mul_u32_u24 v{vT2}, {ROWB}, v{vT2}
  v_lshl_add_u32 v{vT2}, v{vT0}, 4, v{vT2}
  v_add_u32 v{vT2}, {NODE+256}, v{vT2}
  v_add_u32 v{vT3}, {4*16*ROWB}, v{vT2}
""")
    for k in range(7):
        t = vT2 if k < 4 else vT3
        a(f"  ds_write_b128 v{t}, v[40:43] offset:{(k&3)*16*ROWB}")
    a(f"""
  v_lshlrev_b32 v{vT2}, 4, v{vTid}
  ds_write_b128 v{vT2}, v[40:43] offset:{EA0}
  ds_write_b128 v{vT2}, v[40:43] offset:{EA0+8192}
  s_waitcnt lgkmcnt(0)
  s_add_u32 s{sOFF}, s34, s{sTmp}
  s_addc_u32 s{sOFF+1}, s35, 0
  s_and_b32 s{sOFF+1}, s{sOFF+1}, 0xffff
@OFFS_A@
  s_mov_b32 s96, s34
  s_mov_b32 s97, s35
  s_mov_b32 s{sXR}, s4
  s_and_b32 s{sXR+1}, s5, 0xffff
  s_mov_b32 s{sXR+2}, 3200000
  s_mov_b32 s{sXR+3}, 0x20000
  s_mov_b32 s{sOUT}, s30
  s_and_b32 s{sOUT+1}, s31, 0xffff
  s_mov_b32 s{sOUT+2}, 3200000
  s_mov_b32 s{sOUT+3}, 0x20000
  s_mov_b32 s{sREC}, s34
  s_and_b32 s{sREC+1}, s35, 0xffff
  s_mov_b32 s{sREC+2}, {NP*RECB}
  s_mov_b32 s{sREC+3}, 0x20000
  s_add_u32 s{sWM}, s34, {IMG}
  s_addc_u32 s{sWM+1}, s35, 0
  s_and_b32 s{sWM+1}, s{sWM+1}, 0xffff
  s_mov_b32 s{sWM+2}, {32768+1024}
  s_mov_b32 s{sWM+3}, 0x20000
  v_lshlrev_b32 v{vK}, 4, v{vLane}
  s_lshl_b32 s{sTmp}, s{sW}, 12
  s_add_u32 s{sTmp2}, s{sTmp}, {RING}
  s_add_u32 s{sN}, s{sTmp}, {IMA-16384}
  s_cmp_lt_u32 s{sW}, 4
  s_cselect_b32 m0, s{sTmp2}, s{sN}
  s_mov_b32 s{sN}, 32768
  buffer_load_dwordx4 v{vK}, s[{sWM}:{sWM+3}], s{sTmp} offen lds
  buffer_load_dwordx4 v{vK}, s[{sWM}:{sWM+3}], s{sTmp} offen offset:1024 lds
  buffer_load_dwordx4 v{vK}, s[{sWM}:{sWM+3}], s{sTmp} offen offset:2048 lds
  buffer_load_dwordx4 v{vK}, s[{sWM}:{sWM+3}], s{sTmp} offen offset:3072 lds
  buffer_load_dwordx2 v[{BEV}:{BEV+1}], v{vK}, s[{sWM}:{sWM+3}], s{sN} offen
  buffer_load_dwordx2 v[{BEV+4}:{BEV+5}], v{vK}, s[{sWM}:{sWM+3}], s{sN} offen offset:8
  v_lshrrev_b32 v{vT2}, 3, v{vLane}
  v_lshlrev_b32 v{vT2}, 15, v{vT2}
  v_and_b32 v{vT3}, 7, v{vLane}
  v_lshrrev_b32 v{vE}, 4, v{vLane}
  v_xor_b32 v{vT3}, v{vT3}, v{vE}
  v_lshl_add_u32 v{vE}, v{vT3}, 4, v{vT2}
  v_xor_b32 v{vT3}, 4, v{vT3}
  v_lshl_add_u32 v{vK}, v{vT3}, 4, v{vT2}
  s_lshl_b32 s{sTmp}, s{sW}, 19
  s_lshl_b32 s{sTmp2}, s{sB}, 7
  s_add_u32 s{sTmp}, s{sTmp}, s{sTmp2}
  s_add_u32 s{sTmp2}, s{sTmp}, {8*32768}
  s_lshl_b32 s{sN}, s{sW}, 11
  s_add_u32 m0, s{sN}, {XO}
  s_nop 0
  buffer_load_dwordx4 v{vE}, s[{sXR}:{sXR+3}], s{sTmp} offen lds
  s_add_u32 m0, s{sN}, {XO+1024}
  s_nop 0
  buffer_load_dwordx4 v{vK}, s[{sXR}:{sXR+3}], s{sTmp2} offen lds
@OFFS_B@
  s_mov_b32 s{sPsel0}, 0x05040100
  s_mov_b32 s{sPsel1}, 0x07060302
""")
    for i in range(8):
        a(f"  s_mov_b32 s{sSeg+i}, {i*RECB}")
    a(f"""
  v_lshrrev_b32 v{vT1}, 5, v{vLane}
  v_lshlrev_b32 v{vOrd}, 4, v{vT1}
  v_add_u32 v{vOrd}, {ORDA}, v{vOrd}
  v_cmp_eq_u32 vcc, 0, v{vT1}
  v_mov_b32 v{vT2}, 0x3f80
  v_mov_b32 v{vT3}, 0
  v_cndmask_b32 v{vT2}, v{vT3}, v{vT2}, vcc
  v_accvgpr_write_b32 a{ONE}, v{vT2}
  v_accvgpr_write_b32 a{ONE+1}, v{vT3}
  v_mov_b32 v{vT2}, 128
  v_mov_b32 v{vT3}, 256
  v_cndmask_b32 v{vEs}, v{vT2}, v{vT3}, vcc
  v_lshlrev_b32 v{vT2}, 3, v{vT0}
  v_add_u32 v{vT3}, {K0}, v{vN4}
  v_cndmask_b32 v{vEb}, v{vT3}, v{vT2}, vcc
  v_lshrrev_b32 v{vT2}, 3, v{vLane}
  v_lshlrev_b32 v{vKb}, 4, v{vT2}
  v_add_u32 v{vKb}, {K0}, v{vKb}
  v_bfe_u32 v{vT2}, v{vT0}, 2, 1
  v_cmp_eq_u32 vcc, v{vT2}, v{vT1}
  v_bfe_u32 v{vT2}, v{vT0}, 3, 1
  v_lshlrev_b32 v{vT2}, 4, v{vT2}
  v_mov_b32 v{vT3}, 0x3f80
  v_lshlrev_b32 v{vT3}, v{vT2}, v{vT3}
  v_cndmask_b32 v{vT3}, 0, v{vT3}, vcc
  v_cmp_gt_u32 vcc, 16, v{vT0}
  s_nop 1
  v_cndmask_b32 v{vT2}, 0, v{vT3}, vcc
  v_cndmask_b32 v{vT3}, v{vT3}, 0, vcc
  v_accvgpr_write_b32 a{EOP+2}, v{vT2}
  v_accvgpr_write_b32 a{EOP+3}, v{vT3}
  v_and_b32 v{vT2}, 7, v{vLane}
  v_bfe_u32 v{vT3}, v{vLane}, 4, 1
  v_lshlrev_b32 v{vT3}, 2, v{vT3}
  v_xor_b32 v{vT2}, v{vT2}, v{vT3}
""")
    for i in range(4):
        a(f"  v_xor_b32 v{vC+i}, {i}, v{vT2}\n  v_lshlrev_b32 v{vC+i}, 4, v{vC+i}")
    a(f"""
  v_bfe_u32 v{vT2}, v{vT0}, 1, 3
  v_lshlrev_b32 v{vT3}, 2, v{vT1}
  v_xor_b32 v{vT2}, v{vT2}, v{vT3}
  v_lshlrev_b32 v{vT3}, 7, v{vT0}
  v_add_u32 v{vT3}, {XO}, v{vT3}
""")
    for s_ in range(4):
        a(f"  v_xor_b32 v{24+s_}, {s_}, v{vT2}\n  v_lshl_add_u32 v{24+s_}, v{24+s_}, 4, v{vT3}")
    a(f"""
  s_lshl_b32 s{sM0}, s{sW}, 12
  s_add_u32 s{sM0}, s{sM0}, {RING}
  v_mul_u32_u24 v7, {4*ROWB}, v{vT1}
  v_add_u32 v7, v7, v{vN4}
  v_and_b32 v{vT2}, 3, v{vT0}
  v_bfe_u32 v{vK}, v{vT0}, 3, 1
  v_xor_b32 v{vK}, v{vK}, v{vT1}
  v_lshl_or_b32 v{vK}, v{vK}, 2, v{vT2}
  v_lshlrev_b32 v{vT2}, 10, v{vT2}
  v_lshrrev_b32 v{vT0}, 2, v{vT0}
  v_lshl_add_u32 v{vT2}, v{vT0}, 7, v{vT2}
  v_add_u32 v{vT2}, s{sM0}, v{vT2}
""")
    for s_ in range(4):
        a(f"  v_xor_b32 v{vXA+s_}, {s_}, v{vK}\n  v_lshl_add_u32 v{vXA+s_}, v{vXA+s_}, 4, v{vT2}")
    a(f"""
K2_RESET:
  v_mov_b32 v40, 0
  v_mov_b32 v41, 0
  v_mov_b32 v42, 0
  v_mov_b32 v43, 0
  v_mov_b32 v44, 1.0
  v_mov_b32 v45, 1.0
  v_mov_b32 v46, 1.0
  v_mov_b32 v47, 1.0
  v_mov_b32 v{vOne}, 1
  v_lshlrev_b32 v{vT2}, 4, v{vTid}
  ds_write_b128 v{vT2}, v[44:47] offset:{K0}
  ds_write_b128 v{vT2}, v[44:47] offset:{K0+8192}
  v_cmp_gt_u32 vcc, {(MISC+64-CNT)//16}, v{vTid}
  s_and_saveexec_b64 s[{sSave}:{sSave+1}], vcc
  ds_write_b128 v{vT2}, v[40:43] offset:{CNT}
  s_mov_b64 exec, s[{sSave}:{sSave+1}]
  v_and_b32 v{vT0}, 15, v{vTid}
  v_add_u32 v{vT1}, 16, v{vT0}
  v_mov_b32 v{vT3}, 0xffff
  v_cmp_gt_u32 vcc, s{sSW}, v{vT0}
  v_add_u32 v{vT2}, s{sSB}, v{vT0}
  s_nop 0
  v_cndmask_b32 v{vL1}, v{vT3}, v{vT2}, vcc
  v_cmp_gt_u32 vcc, s{sSW}, v{vT1}
  v_add_u32 v{vT1}, s{sSB}, v{vT1}
  s_nop 0
  v_cndmask_b32 v{vL2}, v{vT3}, v{vT1}, vcc
  v_mul_u32_u24 v{vT2}, 12, v{vT2}
  v_lshrrev_b32 v{vT1}, 4, v{vTid}
  s_mov_b32 s{sTmp}, {8*RECB}
  v_mad_u32_u24 v{vBase}, v{vT1}, s{sTmp}, v{vT2}
  s_cmp_eq_u32 s{sFirstB}, 1
  s_cbranch_scc1 K2_OFW
  v_and_b32 v{vT2}, 7, v{vTid}
  v_lshl_add_u32 v{vT2}, v{vT1}, 3, v{vT2}
  v_lshlrev_b32 v{vT2}, 10, v{vT2}
  buffer_load_dword v{vMx}, v{vT2}, s[{sOFF}:{sOFF+3}], 0 offen
  s_waitcnt vmcnt(0)
K2_OFW:
  s_waitcnt vmcnt(@OFFW@)
@S3@
""")
    for i in range(8):
        a(f"  v_mov_b32_dpp v{OF+i}, v{vMx} row_newbcast:{i} row_mask:0xf bank_mask:0xf")
    for i in range(8):
        a(f"  v_add_u32_sdwa v{VA+i}, v{OF+i}, v{vBase} dst_sel:DWORD dst_unused:UNUSED_PAD src0_sel:WORD_0 src1_sel:DWORD")
        a(f"  v_cmp_lt_u32_sdwa s[{sM1+2*i}:{sM1+2*i+1}], v{vL1}, v{OF+i} src0_sel:DWORD src1_sel:WORD_1")
        a(f"  s_mov_b64 exec, s[{sM1+2*i}:{sM1+2*i+1}]")
        a(f"  buffer_load_dwordx3 v[{R(i)}:{R(i)+2}], v{VA+i}, s[{sREC}:{sREC+3}], s{sSeg+i} offen {ld}")
        a("  s_mov_b64 exec, -1")
    a(f"  s_mov_b32 s{sN}, 0")
    for i in range(8):
        a(f"  v_cmp_lt_u32_sdwa s[{sM2+2*i}:{sM2+2*i+1}], v{vL2}, v{OF+i} src0_sel:DWORD src1_sel:WORD_1")
    for i in range(8):
        a(f"  s_mov_b64 exec, s[{sM2+2*i}:{sM2+2*i+1}]")
        a(f"  s_cbranch_execz K2_LS{i}")
        a(f"  s_add_u32 s{sN}, s{sN}, 1")
        a(f"  buffer_load_dwordx3 v[{R(8+i)}:{R(8+i)+2}], v{VA+i}, s[{sREC}:{sREC+3}], s{sSeg+i} offen offset:192 {ld}")
        a(f"K2_LS{i}:")
    a(f"""
  s_mov_b64 exec, -1
  v_max3_u32 v{vT2}, v{OF}, v{OF+1}, v{OF+2}
  v_max3_u32 v{vT3}, v{OF+3}, v{OF+4}, v{OF+5}
  v_max3_u32 v{vT2}, v{OF+6}, v{OF+7}, v{vT2}
  v_max_u32 v{vT2}, v{vT2}, v{vT3}
  v_lshrrev_b32 v{vMx}, 16, v{vT2}
  v_mov_b32 v{vT2}, {MISC}
  s_mov_b32 s{sSave}, 0x00010001
  s_mov_b32 s{sSave+1}, 0x00010001
  v_lshlrev_b32 v{vK}, 4, v{vLane}
  v_add_u32 v{vE}, {RING}, v{vK}
@IMGW@
  s_waitcnt lgkmcnt(0)
@S5@
  s_barrier
  s_mov_b64 exec, s[{sSave}:{sSave+1}]
  ds_max_u32 v{vT2}, v{vMx}
  s_mov_b64 exec, -1
  s_cmp_eq_u32 s{sFirstB}, 0
  s_cbranch_scc1 K2_RANK
  s_lshr_b32 s{sTmp}, s{sW}, 1
  s_lshl_b32 s{sTmp2}, s{sTmp}, 12
  s_mul_i32 s{sTmp}, s{sTmp}, {32*ROWB}
""")
    for s_ in range(4):
        a(f"  v_add_u32 v{vT0+s_}, s{sTmp2}, v{24+s_}")
    for s_ in range(4):
        a(f"  ds_read_b128 {Xb(1,s_)}, v{vT0+s_}")
    a(f"""
  s_mov_b32 s{sCur}, {NLOG2E:#x}
  s_and_b32 s{sTmp2}, s{sW}, 1
  s_cselect_b32 s{sCur}, 1.0, s{sCur}
  s_lshl_b32 s{sN}, s{sTmp2}, 13
  s_add_u32 s{sN}, s{sN}, {IMA}
  v_add_u32 v{vT0}, s{sN}, v{vK}
  s_lshl_b32 s{sTmp2}, s{sTmp2}, 7
  s_add_u32 s{sTmp}, s{sTmp}, s{sTmp2}
  s_add_u32 s{sTmp}, s{sTmp}, {NODE}
  v_add_u32 v{vT1}, s{sTmp}, v7
""")
    for q in range(8):
        a(f"  ds_read_b128 {ar(4*q,4)}, v{vT0} offset:{1024*q}")
    for s_ in range(4):
        for ct in range(2):
            a(f"  s_waitcnt lgkmcnt({7-2*s_-ct})")
            a(mfma16(120+16*ct, Xb(1,s_), ar((s_*2+ct)*4,4), g16(120+16*ct) if s_ else "0"))
    for q in range(8):
        a(f"  ds_read_b128 {ar(32+4*q,4)}, v{vE} offset:{8192+1024*q}")
    a("  s_nop 3")
    for r in range(16):
        a(f"  v_mul_f32 v{120+r}, s{sCur}, v{120+r}")
        a(f"  v_mul_f32 v{136+r}, s{sCur}, v{136+r}")
        a(f"  v_cvt_pk_bf16_f32 v{120+r}, v{120+r}, v{136+r}")
        a(f"  ds_write_b32 v{vT1}, v{120+r} offset:{(8*(r>>2)+(r&3))*ROWB}")
        if r == 2: a(f"  s_cmp_ge_u32 s{sW}, 6\n  s_cbranch_scc1 K2_JOBE")
    a("K2_JOBE:")
    for q in range(8):
        a(f"  ds_read_b128 {ar(4*q,4)}, v{vE} offset:{1024*q}")
    a(f"""
K2_RANK:
  s_waitcnt vmcnt(0)
@S6@
@XPF@
""")
    for k in range(16):
        a(f"  s_mov_b64 exec, s[{msk(k)}:{msk(k)+1}]")
        if k >= 8: a(f"  s_cbranch_execz K2_RS{k}")
        a(f"  v_lshrrev_b32 v{A4(k)}, 16, v{R(k)+2}")
        a(f"  ds_add_rtn_u32 v{R(k)+3}, v{A4(k)}, v{vOne} offset:{CNT}")
        if k >= 8: a(f"K2_RS{k}:")
    a(f"""  s_mov_b64 exec, -1
  s_waitcnt lgkmcnt(0)
  s_barrier
@S7@
  s_cmp_lg_u32 s{sW}, 0
  s_cbranch_scc1 K2_PRE""")
    c0, c1, q0, q1, b0, b1, p0, p1, hv, ex, e0, e1, m0_, m1_, t0_, t1_ = range(120, 136)
    u0, u1, l4 = vT0, vT1, vT2
    a(f"""
  v_lshlrev_b32 v{l4}, 2, v{vLane}
  ds_read2st64_b32 v[{c0}:{c1}], v{l4} offset0:{CNT//256} offset1:{CNT//256+1}
  s_waitcnt lgkmcnt(0)
  v_add_u32 v{q0}, 3, v{c0}
  v_add_u32 v{q1}, 3, v{c1}
  v_lshrrev_b32 v{q0}, 2, v{q0}
  v_lshrrev_b32 v{q1}, 2, v{q1}
  v_min_u32 v{b0}, 63, v{q0}
  v_min_u32 v{b1}, 63, v{q1}
  v_sub_u32 v{b0}, 63, v{b0}
  v_sub_u32 v{b1}, 63, v{b1}
  v_lshlrev_b32 v{b0}, 2, v{b0}
  v_lshlrev_b32 v{b1}, 2, v{b1}
  ds_add_rtn_u32 v{p0}, v{b0}, v{vOne} offset:{HIST}
  ds_add_rtn_u32 v{p1}, v{b1}, v{vOne} offset:{HIST}
  ds_read_b32 v{hv}, v{l4} offset:{HIST}
  v_lshl_or_b32 v{q0}, v{q0}, 8, v{vLane}
  v_add_u32 v{u1}, 64, v{vLane}
  v_lshl_or_b32 v{q1}, v{q1}, 8, v{u1}
  s_waitcnt lgkmcnt(0)
  v_mov_b32 v{ex}, v{hv}
""")
    dpp_scan(a, ex)
    a(f"""
  v_sub_u32 v{ex}, v{ex}, v{hv}
  ds_bpermute_b32 v{u0}, v{b0}, v{ex}
  ds_bpermute_b32 v{u1}, v{b1}, v{ex}
  v_cmp_gt_u32 vcc, 8, v{vLane}
  v_subrev_u32 v{c0}, 24, v{l4}
  v_and_b32 v{c1}, 4, v{vLane}
  s_mov_b32 s{sTmp2}, 0xff
  v_cndmask_b32 v{c0}, v{c0}, v{c1}, vcc
  s_waitcnt lgkmcnt(0)
  v_add_lshl_u32 v{u0}, v{u0}, v{p0}, 2
  v_add_lshl_u32 v{u1}, v{u1}, v{p1}, 2
  ds_write_b32 v{u0}, v{q0} offset:{ORDQ}
  ds_write_b32 v{u1}, v{q1} offset:{ORDQ}
  ds_read_b32 v{e0}, v{c0} offset:{ORDQ}
  ds_read_b32 v{e1}, v{l4} offset:{ORDQ+232}
  s_waitcnt lgkmcnt(0)
  v_add_u32 v{c0}, 0x300, v{e0}
  v_lshrrev_b32 v{c0}, 2, v{c0}
  v_bfi_b32 v{c0}, s{sTmp2}, v{e0}, v{c0}
  v_cndmask_b32 v{e0}, v{e0}, v{c0}, vcc
  v_mov_b32 v{m0_}, v{e0}
  v_mov_b32 v{m1_}, v{e1}
""")
    for mode in ("quad_perm:[1,0,3,2]", "quad_perm:[2,3,0,1]", "row_half_mirror"):
        a(f"  s_nop 0\n  v_max_u32_dpp v{m0_}, v{m0_}, v{m0_} {mode} row_mask:0xf bank_mask:0xf")
        a(f"  v_max_u32_dpp v{m1_}, v{m1_}, v{m1_} {mode} row_mask:0xf bank_mask:0xf")
    a(f"""
  v_lshrrev_b32 v{m0_}, 8, v{m0_}
  v_lshrrev_b32 v{m1_}, 8, v{m1_}
  v_mov_b32 v{t0_}, v{m0_}
  v_mov_b32 v{t1_}, v{m1_}
""")
    for mode in ("row_shr:8 row_mask:0xf", "row_bcast:15 row_mask:0xa", "row_bcast:31 row_mask:0xc"):
        a(f"  s_nop 0\n  v_add_u32_dpp v{t0_}, v{t0_}, v{t0_} {mode} bank_mask:0xf")
        a(f"  v_add_u32_dpp v{t1_}, v{t1_}, v{t1_} {mode} bank_mask:0xf")
    a(f"""
  s_nop 0
  v_readlane_b32 s{sTmp}, v{t0_}, 63
  v_sub_u32 v{t0_}, v{t0_}, v{m0_}
  v_sub_u32 v{m1_}, v{t1_}, v{m1_}
  v_add_u32 v{t1_}, s{sTmp}, v{t1_}
  v_add_u32 v{m1_}, s{sTmp}, v{m1_}
  v_and_b32 v{u0}, 7, v{vLane}
  v_lshl_or_b32 v{u1}, v{u0}, 5, 2
  v_lshl_or_b32 v{u0}, v{c1}, 5, 4
  v_cndmask_b32 v{u0}, v{u1}, v{u0}, vcc
  v_lshl_add_u32 v{p0}, v{t0_}, 8, v{u0}
  v_lshl_add_u32 v{p1}, v{m1_}, 8, v{u1}
  v_and_b32 v{e0}, 0xff, v{e0}
  v_and_b32 v{e1}, 0xff, v{e1}
  v_lshlrev_b32 v{c0}, 2, v{e0}
  v_lshlrev_b32 v{c1}, 2, v{e1}
  ds_write_b32 v{c0}, v{p0} offset:{NB}
  ds_write_b32 v{c1}, v{p1} offset:{NB}
  v_lshrrev_b32 v{u0}, 1, v{vLane}
  v_add_u32 v{u0}, {TSV}, v{u0}
  s_mov_b32 s{sSave}, 0x01010101
  s_mov_b32 s{sSave+1}, 0x01010101
  s_mov_b64 exec, s[{sSave}:{sSave+1}]
  ds_write2_b32 v{u0}, v{t0_}, v{m1_} offset0:0 offset1:8
  s_mov_b32 s{sSave}, 0
  s_mov_b32 s{sSave+1}, 0x80000000
  s_mov_b64 exec, s[{sSave}:{sSave+1}]
  v_mov_b32 v{u1}, {TSV+64}
  ds_write2_b32 v{u1}, v{t1_}, v{hv} offset0:0 offset1:1
  s_mov_b64 exec, -1
  v_min_u32 v{e0}, 98, v{e0}
  v_min_u32 v{e1}, 98, v{e1}
  v_mov_b32 v{c0}, {NODE}
  s_mov_b32 s{sTmp}, {ROWB}
  v_mad_u32_u24 v{e0}, v{e0}, s{sTmp}, v{c0}
  v_mad_u32_u24 v{e1}, v{e1}, s{sTmp}, v{c0}
  v_and_b32 v{c0}, 1, v{vLane}
  v_lshlrev_b32 v{c0}, 4, v{c0}
  v_bfe_u32 v{c1}, v{vLane}, 1, 2
  v_lshl_add_u32 v{c0}, v{c1}, 2, v{c0}
  v_and_b32 v{c1}, 56, v{vLane}
  v_lshl_add_u32 v{c0}, v{c1}, 2, v{c0}
  v_add_u32 v{c0}, {ORDA}, v{c0}
  ds_write2st64_b32 v{c0}, v{e0}, v{e1} offset0:0 offset1:1
K2_PRE:
  s_mov_b32 s{sTmp}, -28
""")
    for k in range(16):
        a(f"  v_and_b32 v{R(k)+2}, 0x7fff, v{R(k)+2}")
    a(f"""
  v_min_u32 v{vT0}, 17, v{vLane}
  v_lshlrev_b32 v{vT0}, 2, v{vT0}
  v_mov_b32 v{vT1}, {MISC}
  s_waitcnt lgkmcnt(0)
@S8@
  s_barrier
@S9@
  ds_read_b32 v{vTSV}, v{vT0} offset:{TSV}
  ds_read_b32 v{vT2}, v{vT1}
""")
    for k in range(16):
        a(f"  s_mov_b64 exec, s[{msk(k)}:{msk(k)+1}]")
        if k >= 8: a(f"  s_cbranch_execz K2_NS{k}")
        a(f"  ds_read_b32 v{A4(k)}, v{A4(k)} offset:{NB}")
        if k >= 8: a(f"K2_NS{k}:")
        if k == 7:
            a(f"""  s_mov_b64 exec, -1
  s_waitcnt lgkmcnt(8)
  v_readlane_b32 s{sT}, v{vTSV}, 16
  v_readfirstlane_b32 s{sMaxC}, v{vT2}
  s_cmp_le_u32 s{sT}, {CAPT}
  s_cbranch_scc1 K2_FIT
  s_lshr_b32 s{sSW}, s{sSW}, 1
  s_mov_b32 s{sFirstB}, 0
  s_waitcnt lgkmcnt(0) vmcnt(0)
  s_barrier
  s_branch K2_RESET
K2_FIT:""")
    a("  s_waitcnt lgkmcnt(0)")
    for k in range(16):
        a(f"  s_mov_b64 exec, s[{msk(k)}:{msk(k)+1}]")
        if k >= 8: a(f"  s_cbranch_execz K2_WS{k}")
        a(f"  v_lshrrev_b32 v{vT0}, v{A4(k)}, v{R(k)+3}")
        a(f"  v_bfe_u32 v{R(k)+3}, v{R(k)+3}, 0, v{A4(k)}")
        a(f"  v_lshl_add_u32 v{vT0}, v{vT0}, 8, v{A4(k)}")
        a(f"  v_lshl_add_u32 v{vT0}, v{R(k)+3}, 3, v{vT0}")
        a(f"  v_and_b32 v{R(k)+3}, -8, v{vT0}")
        a(f"  v_lshrrev_b32 v{A4(k)}, 1, v{R(k)+3}")
        a(f"  ds_write_b32 v{A4(k)}, v{R(k)+2} offset:{K0}")
        if k >= 8: a(f"K2_WS{k}:")
    a(f"""
  s_mov_b64 exec, -1
  s_mul_i32 s{sT0}, s{sT}, s{sW}
  s_add_u32 s{sT1}, s{sT0}, s{sT}
  s_lshr_b32 s{sT0}, s{sT0}, 3
  s_lshr_b32 s{sT1}, s{sT1}, 3
  v_cmp_ge_u32 vcc, s{sT0}, v{vTSV}
  s_and_b32 s{sTmp}, vcc_lo, 0xffff
  s_bcnt1_i32_b32 s{sG0}, s{sTmp}
  s_sub_u32 s{sG0}, s{sG0}, 1
  v_cmp_gt_u32 vcc, s{sT1}, v{vTSV}
  s_and_b32 s{sTmp}, vcc_lo, 0xffff
  s_bcnt1_i32_b32 s{sGlast}, s{sTmp}
  s_sub_u32 s{sGlast}, s{sGlast}, 1
  s_add_u32 s{sTmp}, s{sG0}, 1
  v_readlane_b32 s{sTmp2}, v{vTSV}, s{sG0}
  v_readlane_b32 s{sTn}, v{vTSV}, s{sTmp}    ; TS[g0+1]
  s_sub_u32 s{sN}, s{sT1}, s{sT0}
  s_mov_b32 s{sCont}, 0
  s_mov_b32 s{sSlow}, 0
  s_mov_b32 s{sGn}, s{sG0}
  s_mov_b32 s{sCur}, s{sT0}
  s_mov_b32 s{sF}, 1
  s_cmp_eq_u32 s{sN}, 0
  s_cbranch_scc1 K2_FMD
  s_cmp_eq_u32 s{sTmp2}, s{sT0}
  s_cbranch_scc1 K2_FM
  s_mov_b32 s{sCont}, 1
  s_cmp_lt_u32 s{sTn}, s{sT1}
  s_cbranch_scc0 K2_ALLC
  s_add_u32 s{sGn}, s{sG0}, 1
  s_mov_b32 s{sCur}, s{sTn}
  s_sub_u32 s{sTmp}, s{sT1}, s{sCur}
  s_bitset1_b32 s{sF}, s{sTmp}
  s_branch K2_FM
K2_ALLC:
  s_cmp_gt_u32 s{sTn}, s{sT1}
  s_cselect_b32 s{sSlow}, 1, 0
K2_FM:
  s_mov_b32 s{sTau}, s{sGn}
K2_FML:
  s_cmp_ge_u32 s{sTau}, s{sGlast}
  s_cbranch_scc1 K2_FMD
  s_add_u32 s{sTau}, s{sTau}, 1
  s_nop 3
  v_readlane_b32 s{sTmp}, v{vTSV}, s{sTau}
  s_sub_u32 s{sTmp}, s{sTmp}, s{sCur}
  s_bitset1_b32 s{sF}, s{sTmp}
  s_branch K2_FML
K2_FMD:
  s_add_u32 s{sTmp}, s{sGlast}, 1
  s_and_b32 s{sTmp}, s{sTmp}, 31
  s_nop 3
  v_readlane_b32 s{sTmp2}, v{vTSV}, s{sTmp}
  v_readlane_b32 s{sFast}, v{vTSV}, 17
  s_sub_u32 s{sTe}, s{sT1}, s{sCur}
  s_cmp_gt_u32 s{sTmp2}, s{sT1}
  s_cselect_b32 s{sTe}, s{sTe}, 99
  s_cmp_lt_u32 s{sB}, 168
  s_cselect_b32 s{sTmp2}, 30, 31
  s_cmp_eq_u32 s{sFast}, s{sTmp2}
  s_cselect_b32 s{sFast}, s{sFirstB}, 0
  s_cmp_gt_u32 s{sMaxC}, s{sSW}
  s_cselect_b32 s{sFast}, 0, s{sFast}
  s_lshl_b32 s{sB128}, s{sB}, 7
  s_mov_b32 s{sMsk}, 0xffff8000
  s_lshl_b32 s{sTmp}, s{sCur}, 7
  v_add_u32 v{vK}, s{sTmp}, v{vKb}
  v_mad_u32_u24 v{vE}, v{vEs}, s{sCur}, v{vEb}
""")
    for l in next_tile(sTn, sCur): a(l)
    a(f"""
  s_waitcnt lgkmcnt(0)
  s_barrier
@S4@
  ds_read_b128 v[{vI}:{vI+3}], v{vK}
""")
    ord_read(a)
    a(f"""  s_lshl_b32 s{sTmp}, s{sTn}, 7
  v_add_u32 v{vK}, s{sTmp}, v{vKb}
  s_mov_b32 m0, s{sM0}
  s_waitcnt lgkmcnt(1)""")
    for i in range(4): a(la(i))
    for i in range(4):
        a(dma(i))
        if i < 3: a(f"  s_add_u32 m0, s{sM0}, {1024*(i+1)}\n  s_nop 0")
    a(f"  ds_read_b128 v[{vI}:{vI+3}], v{vK}")
    def ea_writes(ks):
        for k in ks:
            a(f"  s_mov_b64 exec, s[{msk(k)}:{msk(k)+1}]")
            if k >= 8: a(f"  s_cbranch_execz K2_ES{k}")
            a(f"  ds_write_b64 v{R(k)+3}, v[{R(k)}:{R(k)+1}] offset:{EA0}")
            if k >= 8: a(f"K2_ES{k}:")
        a("  s_mov_b64 exec, -1")
    ea_writes(list(range(8, 16)) + [0, 1, 2, 3])
    m_event(a)
    for g in range(4): a(f"  v_mov_b32 v{vNAc+g}, v{vNAn+g}")
    a(f"  s_mov_b32 s{sGc}, s{sGn}")
    next_group(a)
    ord_read(a)
    for i in range(4): a(la(i))
    a("  s_waitcnt vmcnt(0)")
    for s_ in range(4): a(f"  ds_read_b128 {Xb(0,s_)}, v{vXA+s_}")
    ea_writes([4, 5, 6, 7])
    for l in next_tile(sTn2, sTn): a(l)
    a(f"""  s_lshl_b32 s{sTmp}, s{sTn2}, 7
  v_add_u32 v{vK}, s{sTmp}, v{vKb}
  s_mov_b32 m0, s{sM0}
  s_waitcnt lgkmcnt(4)""")
    for i in range(4):
        a(dma(i))
        if i < 3: a(f"  s_add_u32 m0, s{sM0}, {1024*(i+1)}\n  s_nop 0")
    a(f"""  ds_read_b128 v[{vI}:{vI+3}], v{vK}
  s_waitcnt lgkmcnt(0)
  s_barrier
@S10@
  s_cmp_eq_u32 s{sN}, 0
  s_cbranch_scc1 K2_LOOPDONE
  ds_read2_b32 a[{EOP}:{EOP+1}], v{vE} offset0:0 offset1:1
  v_mad_u32_u24 v{vE}, v{vEs}, s{sTn}, v{vEb}
  s_mov_b32 s{sTn}, s{sTn2}""")
    for i in range(4):
        a(mfma16(Gb(0), Xb(0,i), wb(i,0), g16(Gb(0)) if i else "0"))
    a("  s_waitcnt lgkmcnt(0)")
    a(mfma16(Gb(0), Eo, BEo(0), g16(Gb(0))))
    a(mfma16(Gb(1), Eo, BEo(1), "0"))
    a(mfma16(Gb(1), Xb(0,0), wb(0,1), g16(Gb(1))))
    a(f"  ds_read2_b32 a[{EOP}:{EOP+1}], v{vE} offset0:0 offset1:1")
    for i in range(1, 4):
        a(mfma16(Gb(1), Xb(0,i), wb(i,1), g16(Gb(1))))
    a(f"  s_bitcmp1_b32 s{sF}, 1\n  s_cbranch_scc0 K2_FNM")
    m_event(a)
    a("K2_FNM:\n  s_nop 5")
    for i in range(16): a(f"  v_exp_f32 v{Gb(0)+i}, v{Gb(0)+i}")
    a(f"  s_mov_b32 s{sTau}, 0\n  s_waitcnt vmcnt(0)")
    a(mfma8(Gb(0), ON, ON, g16(Gb(0))))
    for s_ in range(4): a(f"  ds_read_b128 {Xb(1,s_)}, v{vXA+s_}")
    a("K2_LOOP:")
    tile_code(a, 0)
    tile_code(a, 1)
    a(f"""  s_branch K2_LOOP
K2_LAST:
  s_setprio 0
  s_cmp_eq_u32 s{sCont}, 0
  s_cbranch_scc1 K2_EV""")
    wide_reduce(a, "C")
    a(f"""  s_branch K2_LOOPDONE
K2_EV:""")
    wide_reduce(a, "E")
    a(f"""
  s_cmp_eq_u32 s{sTau}, s{sTe}
  s_cbranch_scc1 K2_EVS
  s_cmp_eq_u32 s{sFast}, 0
  s_cbranch_scc1 K2_EVS""")
    fin1(a)
    flush_st(a)
    fin2(a)
    a("  s_branch K2_EVE\nK2_EVS:")
    flush_own(a, "L")
    a(f"""K2_EVE:
  s_cmp_ge_u32 s{sTau}, s{sN}
  s_cbranch_scc1 K2_LOOPDONE""")
    for g in range(4): a(f"  v_mov_b32 v{vNAc+g}, v{vNAn+g}")
    a(f"  s_mov_b32 s{sGc}, s{sGn}")
    next_group(a)
    ord_read(a)
    a(f"""  s_bitcmp1_b32 s{sTau}, 0
  s_cbranch_scc1 K2_NF0
  s_branch K2_NF1
K2_LOOPDONE:
@S11@
  s_add_u32 s{sSB}, s{sSB}, s{sSW}
  v_mbcnt_lo_u32_b32 v{vLane}, -1, 0
  v_mbcnt_hi_u32_b32 v{vLane}, -1, v{vLane}
  s_lshl_b32 s{sTmp}, s{sW}, 6
  v_add_u32 v{vTid}, s{sTmp}, v{vLane}
  s_lshl_b32 s{sTmp}, s{sW}, 12
  s_add_u32 s{sTmp}, s{sTmp}, s{sB}
  s_lshl_b32 s{sTmp}, s{sTmp}, 7
  v_lshrrev_b32 v{vT1}, 5, v{vLane}
  v_lshlrev_b32 v{vE}, 17, v{vT1}
  v_add3_u32 v{vE}, v{vE}, v{vN4}, s{sTmp}
""")
    fin1(a)
    for g in range(12): a(f"  v_mov_b32 v{G+16+g}, 0") if False else None
    a(f"""
K2_NOFL:
  s_cmp_eq_u32 s{sSlow}, 0
  s_cbranch_scc1 K2_NSL
  v_mov_b32 v{vT0}, {MISC+4}
  v_mov_b32 v{vT1}, 1
  ds_write_b32 v{vT0}, v{vT1}
K2_NSL:
  v_mov_b32 v{vT0}, {MISC+4}
""")
    for q in range(8):
        r = AC + q*4
        a(f"  v_add_f32 v{r}, v{r}, v{r+1}")
        a(f"  v_add_f32 v{r+2}, v{r+2}, v{r+3}")
    a(f"""
  s_mov_b32 s{sTau}, 1
  s_waitcnt lgkmcnt(0)
  s_barrier
  ds_read_b32 v{vT1}, v{vT0}
K2_MERGE:
""")
    for ct in range(2):
        for g in range(4):
            t = G + (ct*4+g)*2
            a(f"  ds_read2_b32 v[{t}:{t+1}], v{vNAc+g} offset0:{64+32*ct} offset1:{128+32*ct}")
    a(f"""
  s_waitcnt lgkmcnt(8)
  v_readfirstlane_b32 s{sSlow}, v{vT1}
  s_cmp_eq_u32 s{sCont}, 0
  s_cbranch_scc1 K2_MNC
  s_cmp_eq_u32 s{sSlow}, 0
  s_cbranch_scc1 K2_MDO
  s_cmp_lg_u32 s{sTau}, s{sW}
  s_cbranch_scc1 K2_MSKIP
K2_MDO:
  s_waitcnt lgkmcnt(0)
""")
    for q in range(8):
        r = AC + q*4; t = G + q*2
        a(f"  v_add_f32 v{r}, v{r}, v{t}")
        a(f"  v_add_f32 v{r+2}, v{r+2}, v{t+1}")
    a(f"""  s_cmp_lg_u32 s{sSlow}, 0
  s_cbranch_scc1 K2_MWR
  s_cmp_eq_u32 s{sFast}, 0
  s_cbranch_scc1 K2_MWR""")
    fin2(a)
    a("@S13@\n@S15@\n@OUT2@\n  s_endpgm\nK2_MWR:")
    for ct in range(2):
        for g in range(4):
            r = AC + (ct*4+g)*4
            a(f"  ds_write2_b32 v{vNAc+g}, v{r}, v{r+2} offset0:{64+32*ct} offset1:{128+32*ct}")
    a(f"""
  s_branch K2_MSKIP
K2_MNC:
  s_cmp_lg_u32 s{sSlow}, 0
  s_cbranch_scc1 K2_MSKIP
  s_cmp_lg_u32 s{sFast}, 0
  s_cbranch_scc1 K2_FIN
K2_MSKIP:
  s_waitcnt lgkmcnt(0)
  s_barrier
  s_cmp_eq_u32 s{sSlow}, 0
  s_cbranch_scc1 K2_MEND
  s_add_u32 s{sTau}, s{sTau}, 1
  s_cmp_lt_u32 s{sTau}, 8
  s_cbranch_scc1 K2_MERGE
K2_MEND:
@S12@
  s_mov_b32 s{sFirstB}, 0
  s_cmp_gt_u32 s{sMaxC}, s{sSB}
  s_cbranch_scc1 K2_RESET
""")
    for rr in range(8):
        a(f"  s_mov_b32 s{sSeg+rr}, {(8*(rr>>2)+(rr&3))*32768}")
        a(f"  buffer_load_dword v{G+rr}, v{vE}, s[{sXR}:{sXR+3}], s{sSeg+rr} offen")
    a(f"""
  s_mul_i32 s{sTmp}, s{sW}, {16*ROWB}
  s_add_u32 s{sTmp}, s{sTmp}, {NODE}
  v_lshrrev_b32 v{vT1}, 5, v{vLane}
  v_mul_u32_u24 v{vT1}, {4*ROWB}, v{vT1}
  v_add3_u32 v{vT1}, v{vT1}, v{vN4}, s{sTmp}
  v_add_u32 v{vT2}, 128, v{vT1}
""")
    for rr in range(8):
        ro = 3 * (8*(rr>>2) + (rr&3))
        a(f"  ds_read2st64_b32 v[{AC+4*rr}:{AC+4*rr+1}], v{vT1} offset0:{ro+1} offset1:{ro+2}")
        a(f"  ds_read2st64_b32 v[{AC+4*rr+2}:{AC+4*rr+3}], v{vT2} offset0:{ro+1} offset1:{ro+2}")
        a(f"  ds_read_b32 v{HV+rr}, v{vT2} offset:{ro*256}")
    a(f"  s_mov_b32 s{sTmp}, 0x358637bd")
    for rr in range(8):
        a(f"  s_waitcnt lgkmcnt({min(15, 3*(7-rr))})")
        for ct in range(2):
            d = AC + 4*rr + 2*ct + 1
            a(f"  v_add_f32 v{d}, s{sTmp}, v{d}")
        for ct in range(2):
            d = AC + 4*rr + 2*ct + 1
            a(f"  v_rcp_f32 v{d}, v{d}")
        a(f"  v_lshlrev_b32 v{HV+8+rr}, 16, v{HV+rr}")
        a(f"  v_and_b32 v{HV+rr}, 0xffff0000, v{HV+rr}")
    a("  s_waitcnt vmcnt(0)")
    for rr in range(8):
        n0, n1 = AC + 4*rr, AC + 4*rr + 2
        a(f"  v_fma_f32 v{n0}, v{n0}, v{n0+1}, v{HV+8+rr}")
        a(f"  v_fma_f32 v{n1}, v{n1}, v{n1+1}, v{HV+rr}")
        a(f"  v_lshlrev_b32 v{n0+1}, 16, v{G+rr}")
        a(f"  v_and_b32 v{n1+1}, 0xffff0000, v{G+rr}")
        a(f"  v_max_f32 v{n0}, 0, v{n0}")
        a(f"  v_max_f32 v{n1}, 0, v{n1}")
        a(f"  v_add_f32 v{n0}, v{n0}, v{n0+1}")
        a(f"  v_add_f32 v{n1}, v{n1}, v{n1+1}")
        a(f"  v_cvt_pk_bf16_f32 v{n0}, v{n0}, v{n1}")
        a(f"  buffer_store_dword v{n0}, v{vE}, s[{sOUT}:{sOUT+3}], s{sSeg+rr} offen")
    a("K2_FIN:\n@S13@\n@S15@\n@OUT2@\nK2_END:\n  s_endpgm")

def kd(name, vgpr, accum, sgpr):
    return f"""
.amdhsa_kernel {name}
  .amdhsa_next_free_vgpr {vgpr}
  .amdhsa_next_free_sgpr {sgpr}
  .amdhsa_accum_offset {accum}
  .amdhsa_group_segment_fixed_size 0
  .amdhsa_kernarg_size 96
  .amdhsa_user_sgpr_count 2
  .amdhsa_user_sgpr_kernarg_segment_ptr 1
  .amdhsa_system_sgpr_workgroup_id_x 1
  .amdhsa_float_denorm_mode_32 3
.end_amdhsa_kernel
"""

def main():
    ref = open(f"cdna_kernels/{NAME}.s.ref").read().split("\n")
    hdr = [l for l in ref if l.startswith(";") and "@launch" not in l and "Override" not in l and "grid=ceil" not in l]
    a = Asm()
    a("\n".join(hdr))
    a(f"; @launch kernel=part_kernel grid=({NP+5},1,1) block=(800,1,1) lds={LDS1}")
    a(f"; @launch kernel=main_kernel grid=(256,1,1) block=(512,1,1) lds={LDS2}")
    a('.amdgcn_target "amdgcn-amd-amdhsa--gfx950"\n.text')
    gen_k1(a)
    gen_k2(a)
    a('.section .rodata,"a"\n.p2align 6')
    st = OPT["stamp"]
    a(kd("part_kernel", 60, 60, 100) if st else kd("part_kernel", 56, 56, 32))
    a(".p2align 6")
    a(kd("main_kernel", NARCH + NACC, NARCH, 100))
    txt = a.text()
    SL = MISC + 64
    cpf2 = cpf1 = ""
    if OPT["cpf"] & 1:
        cpf2 = f"""  s_getpc_b64 s[98:99]
  v_lshlrev_b32 v39, 6, v0
  s_mov_b64 exec, 0xffffffff
  global_load_dword a0, v39, s[98:99]
  s_mov_b64 exec, -1
"""
        cpf2 = f"""  s_getpc_b64 s[98:99]
CPF2L:
  v_lshlrev_b32 v39, 5, v0
  v_min_u32 v39, K2_END-CPF2L, v39
  global_load_dword a0, v39, s[98:99]
"""
    if OPT["cpf"] & 2:
        cpf1 = f"""  s_getpc_b64 s[26:27]
CPF1L:
  v_lshlrev_b32 v40, 5, v0
  v_min_u32 v40, K2_END-CPF1L, v40
  global_load_dword v55, v40, s[26:27]
"""
    imgw = ""
    for n in range(9):
        imgw += f"  s_cmp_lg_u32 s{sN}, {n}\n  s_cbranch_scc1 K2_IW{n}\n  s_waitcnt vmcnt({8+n})\n  s_branch K2_IWD\nK2_IW{n}:\n"
    imgw += "K2_IWD:\n"
    offl = f"""  buffer_load_dword v23, v{vTSV}, s[{sOFF}:{sOFF+3}], 0 offen
"""
    txt = txt.replace("@OFFS_A@\n", offl).replace("@OFFS_B@\n", "").replace("@OFFW@", "8").replace("@IMGW@\n", imgw)
    xpf = ""
    if OPT["npf"]:
        xpf = f"""  s_lshr_b32 s{sTmp}, s2, 3
  s_mul_i32 s{sTmp}, s{sTmp}, 100096
  v_lshlrev_b32 v{vT2}, 7, v4
  s_add_u32 s{sTmp2}, s{sTmp}, 65536
  buffer_load_dword a{X}, v{vT2}, s[{sXR}:{sXR+3}], s{sTmp} offen
  s_cmp_ge_u32 s{sW}, 5
  s_cbranch_scc1 K2_XPE
  buffer_load_dword a{X+1}, v{vT2}, s[{sXR}:{sXR+3}], s{sTmp2} offen
K2_XPE:
"""
    txt = txt.replace("@XPF@\n", xpf)
    txt = txt.replace("@CPF2@\n", cpf2).replace("@CPF1@\n", cpf1)
    def sub(m):
        if not st: return ""
        b = Asm(); k = m.group(1); i = m.group(2)
        if k == "OUT":
            if i == "2":
                b(f"""  s_lshl_b32 s99, s{sW}, 6
  s_add_u32 s99, s99, {SL}
  v_mbcnt_lo_u32_b32 v37, -1, 0
  v_lshlrev_b32 v37, 2, v37
  v_add_u32 v37, s99, v37
  ds_read_b32 v36, v37
  s_waitcnt lgkmcnt(0)""")
                stamp_out(b, 96, sW, STAMP_OFF, 36, 37, 8)
            else: stamp_out(b, 20, 23, STAMP_OFF + 0x100000, 56, 57, 16)
        else:
            i = int(i)
            if k == "TW": b("  s_waitcnt vmcnt(0)")
            def one(idx, real=False):
                if k == "S":
                    d = 37 if idx == 5 else 38
                    b(f"""  s_mem{'real' if real else ''}time s[98:99]
  s_waitcnt lgkmcnt(0)
  v_mov_b32 v{d}, s98
  s_lshl_b32 s99, s{sW}, 6
  s_add_u32 s99, s99, {SL + 4*idx}
  v_mov_b32 v39, s99
  ds_write_b32 v39, v{d}""")
                else: stamp(b, idx, 56, real=real)
            if i == 0: one(0); one(1, True)
            elif i == 15: one(15, True)
            elif i == 10 and k == 'S': one(10); one(14, True)
            elif i == 11 and k == 'S': one(11); one(2, True)
            elif i == 2 and k == 'S': pass
            else: one(i)
        return b.text()
    txt = re.sub(r"@(S|TW|T|OUT)(\d+)@\n", sub, txt)
    lines = txt.split("\n")
    for p in check_hazards(lines): print("HAZARD", p)
    b = Asm()
    for rep in range(2):
        for k in range(4):
            t_unit(b, k); p_unit(b, k, rep == 0)
            if k & 1: flush(b); m_event(b)
    for k in range(4):
        t_unit(b, k); p_unit(b, k, False)
    for k in range(2):
        t_unit(b, k); p_unit(b, k, False)
    for p in check_hazards(b.text().split("\n"), "loop"): print("HAZARD", p)
    open(sys.argv[1], "w").write(txt)

if __name__ == "__main__":
    main()
```

```python
import sys, re
from asmlib import *

NAME = "gather_scatter__edge_featured_mpnn_gatedgcn__graph"
NP, CH = 250, 3200
RECB = CH * 12
OFFS = 0xA00000
IMG = OFFS + 0x40000
NLOG2E = 0xBFB8AA3B
CAPT = 128
EA0, K0 = 0, 32768
CNT, NB, HIST, ORDQ, ORDA, TSV, MISC = 49152, 49664, 50176, 50432, 50944, 51456, 51584
RING = 52224
NODE = RING + 8 * 4096
ROWB = 768
LDS2 = NODE + 99 * ROWB
XO, IMA = RING + 16384, 16384
K1_CNT, K1_START = 38400, 39424
LDS1 = 40448
STAMP_OFF = 0x1000000

OPT = dict(st_flags="", ld_flags="", npf=0, stamp=0, prio=2, dbg=-1, dbgw=0, nodma=0, cpf=3, k1late=2)
for a_ in sys.argv[2:]:
    k_, v_ = a_.split("=", 1)
    OPT[k_] = int(v_) if v_.lstrip("-").isdigit() else v_.replace("+", " ")

def stamp(a, idx, vreg, s=98, real=False):
    a(f"  s_mem{'real' if real else ''}time s[{s}:{s+1}]\n  s_waitcnt lgkmcnt(0)\n  v_writelane_b32 v{vreg}, s{s}, {idx}")
def stamp_out(a, ws, wave, base, vreg, tmp, wpw):
    a(f"""  s_mul_i32 s98, s2, {wpw}
  s_add_u32 s98, s98, s{wave}
  s_lshl_b32 s98, s98, 6
  s_add_u32 s98, s98, {base}
  v_mbcnt_lo_u32_b32 v{tmp}, -1, 0
  v_lshlrev_b32 v{tmp}, 2, v{tmp}
  v_add_u32 v{tmp+1}, s98, v{tmp}
  s_mov_b64 exec, 0xffff
  global_store_dword v{tmp+1}, v{vreg}, s[{ws}:{ws+1}]""")
    if OPT["dbg"] >= 0:
        a(f"""  s_cmp_lg_u32 s2, {OPT["dbg"]}
  s_cbranch_scc1 DBGX{vreg}_{len(a.lines)}
  s_cmp_lg_u32 s{wave}, {OPT["dbgw"]}
  s_cbranch_scc1 DBGX{vreg}_{len(a.lines)}
  s_load_dwordx2 s[98:99], s[0:1], 80
  s_waitcnt lgkmcnt(0)
  global_store_dword v{tmp}, v{vreg}, s[98:99]
DBGX{vreg}_{len(a.lines)}:""")

def dpp_scan(a, v):
    for m in ("row_shr:1", "row_shr:2", "row_shr:4", "row_shr:8"):
        a(f"  s_nop 1\n  v_add_u32_dpp v{v}, v{v}, v{v} {m} row_mask:0xf bank_mask:0xf")
    a(f"  s_nop 1\n  v_add_u32_dpp v{v}, v{v}, v{v} row_bcast:15 row_mask:0xa bank_mask:0xf")
    a(f"  s_nop 1\n  v_add_u32_dpp v{v}, v{v}, v{v} row_bcast:31 row_mask:0xc bank_mask:0xf")

def gen_k1(a):
    st = OPT["st_flags"]
    a(f"""
.globl part_kernel
.p2align 8
.type part_kernel,@function
part_kernel:
  s_cmp_ge_u32 s2, {NP}
  s_cbranch_scc1 K1_PACK
  s_load_dwordx2 s[8:9], s[0:1], 24
  s_load_dwordx4 s[4:7], s[0:1], 8
  s_load_dwordx2 s[20:21], s[0:1], 88
  v_lshrrev_b32 v33, 6, v0
  v_lshlrev_b32 v1, 4, v0
  v_readfirstlane_b32 s23, v33
@CPF1@
@T0@
  s_mul_i32 s22, s2, {CH*4}
  v_add_u32 v2, s22, v1
  v_lshlrev_b32 v3, 1, v2
  v_mov_b32 v32, 1
  v_mov_b32 v36, 0
  v_mov_b32 v37, 0
  v_mov_b32 v38, 0
  v_mov_b32 v39, 0
  s_cmp_lg_u32 s23, 0
  s_cbranch_scc1 K1_A
  ds_write_b128 v1, v[36:39] offset:{K1_CNT}
K1_A:
  s_waitcnt lgkmcnt(0)
  global_load_dwordx4 v[4:7], v2, s[8:9]
""")
    late = """  global_load_dwordx4 v[8:11], v2, s[6:7]
  global_load_dwordx4 v[12:15], v3, s[4:5]
  global_load_dwordx4 v[16:19], v3, s[4:5] offset:16"""
    if OPT["k1late"] == 0: a(late)
    a("  s_barrier\n@T2@")
    if OPT["k1late"] == 1: a(late)
    a(f"  s_waitcnt vmcnt({0 if OPT['k1late'] == 2 else 3})\n@T3@")
    if OPT["k1late"] == 2: a(late)
    for k in range(4):
        a(f"  v_lshlrev_b32_sdwa v{20+k}, 2, v{4+k} dst_sel:DWORD dst_unused:UNUSED_PAD src0_sel:DWORD src1_sel:BYTE_0")
    for k in range(4):
        a(f"  ds_add_rtn_u32 v{24+k}, v{20+k}, v32 offset:{K1_CNT}")
    a(f"""
  s_waitcnt lgkmcnt(0)
  s_barrier
  s_cmp_lg_u32 s23, 0
  s_cbranch_scc1 K1_B
  ds_read_b128 v[36:39], v1 offset:{K1_CNT}
  s_waitcnt lgkmcnt(0)
  v_add_u32 v41, v36, v37
  v_add_u32 v42, v41, v38
  v_add_u32 v43, v42, v39
  v_mov_b32 v44, v43
""")
    dpp_scan(a, 44)
    a(f"""
  v_sub_u32 v45, v44, v43
  v_add_u32 v47, v45, v36
  v_add_u32 v48, v45, v41
  v_add_u32 v49, v45, v42
  v_mul_u32_u24 v46, 12, v45
  v_mul_u32_u24 v47, 12, v47
  v_mul_u32_u24 v48, 12, v48
  v_mul_u32_u24 v49, 12, v49
  ds_write_b128 v1, v[46:49] offset:{K1_START}
  v_lshl_or_b32 v50, v36, 16, v46
  v_lshl_or_b32 v51, v37, 16, v47
  v_lshl_or_b32 v52, v38, 16, v48
  v_lshl_or_b32 v53, v39, 16, v49
  s_lshl_b32 s24, s2, 10
  s_add_u32 s24, s24, {OFFS}
  v_add_u32 v54, s24, v1
  global_store_dwordx4 v54, v[50:53], s[20:21] {st}
K1_B:
  s_mul_i32 s22, s2, {RECB}
  v_add_u32 v2, s22, v1
  v_add_u32 v3, {12800}, v2
  v_add_u32 v34, {25600}, v2
""")
    for k in range(4):
        a(f"  v_lshrrev_b32 v{4+k}, 8, v{4+k}")
    a(f"""
  s_waitcnt lgkmcnt(0)
  s_barrier
@T4@
""")
    for k in range(4):
        a(f"  ds_read_b32 v{28+k}, v{20+k} offset:{K1_START}")
    a("  s_waitcnt vmcnt(2)")
    for k in range(4):
        a(f"  v_lshl_or_b32 v{8+k}, v{4+k}, 18, v{8+k}")
    for k in range(4):
        a(f"  s_waitcnt lgkmcnt({3-k})")
        a(f"  v_mad_u32_u24 v{28+k}, v{24+k}, 12, v{28+k}")
    for k in range(4):
        a(f"  ds_write_b32 v{28+k}, v{8+k} offset:8")
    a("  s_waitcnt vmcnt(0)")
    for k in range(4):
        a(f"  ds_write2_b32 v{28+k}, v{12+2*k}, v{13+2*k} offset0:0 offset1:1")
    a(f"""
  s_waitcnt lgkmcnt(0)
  s_barrier
  ds_read_b128 v[8:11], v1
  ds_read_b128 v[12:15], v1 offset:12800
  ds_read_b128 v[16:19], v1 offset:25600
  s_waitcnt lgkmcnt(2)
  global_store_dwordx4 v2, v[8:11], s[20:21] {st}
  s_waitcnt lgkmcnt(1)
  global_store_dwordx4 v3, v[12:15], s[20:21] {st}
  s_waitcnt lgkmcnt(0)
  global_store_dwordx4 v34, v[16:19], s[20:21] {st}
@T5@
@TW6@
@T15@
@OUT1@
  s_endpgm
K1_PACK:
  s_cmp_ge_u32 s2, {NP+5}
  s_cbranch_scc1 K1_END
  s_load_dwordx2 s[10:11], s[0:1], 32
  s_load_dwordx8 s[12:19], s[0:1], 40
  s_load_dwordx2 s[20:21], s[0:1], 88
  v_lshrrev_b32 v33, 6, v0
  s_nop 0
  v_readfirstlane_b32 s23, v33
  s_cmp_ge_u32 s23, 4
  s_cbranch_scc1 K1_END
  s_waitcnt lgkmcnt(0)
  v_and_b32 v2, 31, v0
  v_bfe_u32 v3, v0, 5, 1
  v_and_b32 v34, 63, v0
  s_cmp_eq_u32 s2, {NP+4}
  s_cbranch_scc1 K1_PACKC
  s_mov_b32 s24, s12
  s_mov_b32 s25, s13
  s_mov_b32 s26, {NLOG2E:#x}
  s_cmp_eq_u32 s2, {NP}
  s_cbranch_scc1 K1_P1
  s_mov_b32 s26, 1.0
  s_mov_b32 s24, s18
  s_mov_b32 s25, s19
  s_cmp_eq_u32 s2, {NP+1}
  s_cbranch_scc1 K1_P1
  s_mov_b32 s24, s10
  s_mov_b32 s25, s11
  s_cmp_eq_u32 s2, {NP+2}
  s_cbranch_scc1 K1_P1
  s_mov_b32 s24, s16
  s_mov_b32 s25, s17
K1_P1:
  v_lshlrev_b32 v4, 12, v3
  v_lshl_add_u32 v4, v2, 2, v4
  s_lshl_b32 s27, s23, 10
  v_add_u32 v4, s27, v4
""")
    for j in range(8):
        a(f"  global_load_dword v{8+j}, v4, s[24:25] offset:{128*j}")
    a("  s_waitcnt vmcnt(0)")
    for j in range(8):
        a(f"  v_lshlrev_b32 v{16+j}, 16, v{8+j}")
        a(f"  v_and_b32 v{24+j}, 0xffff0000, v{8+j}")
        a(f"  v_mul_f32 v{16+j}, s26, v{16+j}")
        a(f"  v_mul_f32 v{24+j}, s26, v{24+j}")
    for jj in range(4):
        a(f"  v_cvt_pk_bf16_f32 v{36+jj}, v{16+2*jj}, v{17+2*jj}")
        a(f"  v_cvt_pk_bf16_f32 v{40+jj}, v{24+2*jj}, v{25+2*jj}")
    a(f"""
  s_sub_u32 s27, s2, {NP}
  s_lshl_b32 s27, s27, 2
  s_add_u32 s27, s27, s23
  s_lshl_b32 s27, s27, 11
  s_add_u32 s27, s27, {IMG}
  v_lshlrev_b32 v5, 4, v34
  v_add_u32 v5, s27, v5
  global_store_dwordx4 v5, v[36:39], s[20:21] {st}
  global_store_dwordx4 v5, v[40:43], s[20:21] offset:1024 {st}
  s_endpgm
K1_PACKC:
  s_cmp_lg_u32 s23, 0
  s_cbranch_scc1 K1_END
  v_lshlrev_b32 v4, 2, v2
  s_mov_b32 s26, {NLOG2E:#x}
""")
    for j in range(4):
        a(f"  global_load_dword v{8+j}, v4, s[14:15] offset:{128*j}")
    a("  s_waitcnt vmcnt(0)")
    for j in range(4):
        a(f"  v_lshlrev_b32 v{16+j}, 16, v{8+j}")
        a(f"  v_and_b32 v{24+j}, 0xffff0000, v{8+j}")
        a(f"  v_mul_f32 v{16+j}, s26, v{16+j}")
        a(f"  v_mul_f32 v{24+j}, s26, v{24+j}")
    a(f"""
  v_cvt_pk_bf16_f32 v36, v16, v17
  v_cvt_pk_bf16_f32 v37, v18, v19
  v_cvt_pk_bf16_f32 v38, v24, v25
  v_cvt_pk_bf16_f32 v39, v26, v27
  v_cmp_eq_u32 vcc, 0, v3
  v_mov_b32 v40, 0x71800000
  v_mov_b32 v41, 0
  v_cndmask_b32 v36, v40, v36, vcc
  v_cndmask_b32 v37, v41, v37, vcc
  v_cndmask_b32 v38, v40, v38, vcc
  v_cndmask_b32 v39, v41, v39, vcc
  v_lshlrev_b32 v5, 4, v34
  v_add_u32 v5, {IMG+32768}, v5
  global_store_dwordx4 v5, v[36:39], s[20:21] {st}
K1_END:
  s_endpgm
""")

vXA = 0
vI = 4
vC = 8
vEs, vEb, vE, vKb, vK = 12, 13, 14, 15, 16
vN4, vTSV, vOrd = 17, 18, 19
vNAc, vNAn = 20, 24
BEV = 28
vT0, vT1, vT2, vT3 = 36, 37, 38, 39
G, HV, AC = 40, 104, 120
NARCH = 152
WB, WV, EOP, ONE, X = 0, 32, 64, 68, 70
NACC = 102
sXR, sOUT, sREC, sOFF, sWM = 8, 12, 16, 20, 24
sM1, sM2, sSeg = 28, 44, 60
sW, sSB, sSW, sFirstB, sT, sT0, sT1, sTn, sTn2, sTau, sN, sF, sGn, sGlast, sCont, sG0, sM0, sMaxC, sTmp, sTmp2, sCur, sSlow, sPsel0, sPsel1, sB = range(68, 93)
sSave = 94
sB128, sFast, sTe, sMsk, sGc = 93, 3, 6, 7, 4
sKA = 4

def mfma16(d, A, B, C):
    return f"  v_mfma_f32_32x32x16_bf16 v[{d}:{d+15}], {A}, {B}, {C}"
def mfma8(d, A, B, C):
    return f"  v_mfma_f32_32x32x8_bf16 v[{d}:{d+15}], {A}, {B}, {C}"
g16 = lambda d: f"v[{d}:{d+15}]"
pr = lambda r: f"v[{r}:{r+1}]"
Gb = lambda k: G + 16*(k % 4)
Xb = lambda t, s: ar(X + 16*(t % 2) + 4*s, 4)
wb = lambda s, ct: ar(WB+(s*2+ct)*4, 4)
wv = lambda s, ct: ar(WV+(s*2+ct)*4, 4)
Eo = ar(EOP, 4); ON = ar(ONE, 2)
BEo = lambda ct: vr(BEV+4*ct, 4)

def flush_st(a):
    for q in range(8):
        r = AC + q*4
        a(f"  v_add_f32 v{r}, v{r}, v{r+1}")
        a(f"  v_add_f32 v{r+2}, v{r+2}, v{r+3}")
    for ct in range(2):
        for g in range(4):
            r = AC + (ct*4+g)*4
            a(f"  ds_write2_b32 v{vNAc+g}, v{r}, v{r+2} offset0:{64+32*ct} offset1:{128+32*ct}")
def flush_own(a, tag):
    a(f"  s_cmp_eq_u32 s{sFirstB}, 0\n  s_cbranch_scc1 K2_FR{tag}")
    flush_st(a)
    a(f"  s_branch K2_FE{tag}\nK2_FR{tag}:")
    flush(a)
    a(f"K2_FE{tag}:")
def wide_reduce(a, tag):
    a(f"  s_cmp_lg_u32 s{sGc}, 0\n  s_cbranch_scc1 K2_WR{tag}")
    prs = []
    for ct in range(2):
        for g in (0, 2):
            for d in (0, 2):
                prs.append((AC + (ct*4+g)*4 + d, AC + (ct*4+g+1)*4 + d))
    for x, y in prs: a(f"  v_pk_add_f32 {pr(x)}, {pr(x)}, {pr(y)}")
    for x, y in prs: a(f"  v_add_f32 v{x}, v{x}, v{x+1}")
    for x, y in prs: a(f"  v_mov_b32 v{x+1}, v{x}")
    a("  s_nop 1")
    for x, y in prs: a(f"  v_permlane32_swap_b32 v{x}, v{x+1}")
    a("  s_nop 1")
    for x, y in prs:
        a(f"  v_mov_b32 v{y}, v{x}")
        a(f"  v_mov_b32 v{y+1}, v{x+1}")
    a(f"K2_WR{tag}:")
def fin_addr(a, t):
    for g in range(4):
        a(f"  v_lshrrev_b32 v{t+g}, 8, v{vNAc+g}")
        a(f"  v_mul_u32_u24 v{t+g}, 10923, v{t+g}")
        a(f"  v_subrev_u32 v{t+g}, {(NODE//256)*10923}, v{t+g}")
        a(f"  v_and_or_b32 v{t+g}, v{t+g}, s{sMsk}, v{vN4}")
def x_pref(a, t):
    fin_addr(a, t)
    for g in range(4):
        a(f"  buffer_load_dword v{vT0+g}, v{t+g}, s[{sXR}:{sXR+3}], s{sB128} offen")
def fin1(a):
    for g in range(4):
        a(f"  ds_read_b32 v{HV+4+g}, v{vNAc+g} offset:128")
    fin_addr(a, HV+8)
def fin2(a):
    a(f"  s_mov_b32 s{sTmp}, 0x358637bd")
    for q in range(8): a(f"  v_add_f32 v{AC+4*q+2}, s{sTmp}, v{AC+4*q+2}")
    for q in range(8): a(f"  v_rcp_f32 v{AC+4*q+2}, v{AC+4*q+2}")
    a("  s_waitcnt lgkmcnt(0)")
    for g in range(4):
        a(f"  v_lshlrev_b32 v{AC+4*g+1}, 16, v{HV+4+g}")
        a(f"  v_and_b32 v{AC+4*(4+g)+1}, 0xffff0000, v{HV+4+g}")
    for q in range(8): a(f"  v_fma_f32 v{AC+4*q}, v{AC+4*q}, v{AC+4*q+2}, v{AC+4*q+1}")
    for q in range(8): a(f"  v_max_f32 v{AC+4*q}, 0, v{AC+4*q}")
    for g in range(4):
        a(f"  v_lshlrev_b32 v{AC+4*g+1}, 16, v{vT0+g}")
        a(f"  v_and_b32 v{AC+4*(4+g)+1}, 0xffff0000, v{vT0+g}")
    for q in range(8): a(f"  v_add_f32 v{AC+4*q}, v{AC+4*q}, v{AC+4*q+1}")
    for g in range(4):
        a(f"  v_cvt_pk_bf16_f32 v{AC+4*g}, v{AC+4*g}, v{AC+4*(4+g)}")
        a(f"  buffer_store_dword v{AC+4*g}, v{HV+8+g}, s[{sOUT}:{sOUT+3}], s{sB128} offen")
def m_event1(a):
    a("  s_waitcnt lgkmcnt(0)")
    for g in range(4): a(f"  v_add_u32 v{vNAn+g}, v{vNAn+g}, v{vN4}")
    for g in range(4): a(f"  ds_read_b32 v{vT0+g}, v{vNAn+g}")
def m_event2(a):
    for ct in range(2):
        for i in range(2):
            a(f"  v_perm_b32 v{BEV+4*ct+2+i}, v{vT0+2*i+1}, v{vT0+2*i}, s{sPsel0+ct}")

def flush(a):
    for ct in range(2):
        for g in range(4):
            t = HV + (ct*4+g)*2
            a(f"  ds_read2_b32 v[{t}:{t+1}], v{vNAc+g} offset0:{64+32*ct} offset1:{128+32*ct}")
    for q in range(8):
        r = AC + q*4
        a(f"  v_add_f32 v{r}, v{r}, v{r+1}")
        a(f"  v_add_f32 v{r+2}, v{r+2}, v{r+3}")
    a("  s_waitcnt lgkmcnt(0)")
    for q in range(8):
        r = AC + q*4; t = HV + q*2
        a(f"  v_add_f32 v{r}, v{r}, v{t}")
        a(f"  v_add_f32 v{r+2}, v{r+2}, v{t+1}")
    for ct in range(2):
        for g in range(4):
            r = AC + (ct*4+g)*4
            a(f"  ds_write2_b32 v{vNAc+g}, v{r}, v{r+2} offset0:{64+32*ct} offset1:{128+32*ct}")

def next_tile(dst, src):
    return [f"  s_add_u32 s{dst}, s{src}, 1", f"  s_cmp_eq_u32 s{dst}, s{sT1}", f"  s_cselect_b32 s{dst}, s{sT0}, s{dst}"]

def dma(i):
    if OPT["nodma"]: return "  s_nop 0"
    return f"  buffer_load_dwordx4 v{vI+i}, s[{sXR}:{sXR+3}], 0 offen lds"
def la(i):
    return f"  v_lshl_add_u32 v{vI+i}, v{vI+i}, 7, v{vC+i}"

def ord_read(a, t=None):
    t = HV + 12 if t is None else t
    a(f"  s_lshl_b32 s{sTmp}, s{sGn}, 5\n  v_add_u32 v{t}, s{sTmp}, v{vOrd}\n  ds_read_b128 v[{vNAn}:{vNAn+3}], v{t}")
def next_group(a):
    a(f"  s_add_u32 s{sTmp}, s{sGn}, 1\n  s_cmp_lt_u32 s{sGn}, s{sGlast}\n  s_cselect_b32 s{sGn}, s{sTmp}, s{sG0}")
def m_event(a, t=None):
    t = HV + 12 if t is None else t
    a("  s_waitcnt lgkmcnt(0)")
    for g in range(4): a(f"  v_add_u32 v{vNAn+g}, v{vNAn+g}, v{vN4}")
    for g in range(4): a(f"  ds_read_b32 v{t+g}, v{vNAn+g}")
    a("  s_waitcnt lgkmcnt(0)")
    for ct in range(2):
        for i in range(2):
            a(f"  v_perm_b32 v{BEV+4*ct+2+i}, v{t+2*i+1}, v{t+2*i}, s{sPsel0+ct}")

def p_unit(a, k, first):
    ct = k & 1
    for half in range(2):
        for gq in range(4):
            e = Gb(k) + 4*gq; h = HV + 4*gq; r = AC + (ct*4+gq)*4
            if first:
                if half == 0:
                    a(f"  v_pk_mul_f32 {pr(r)}, {pr(e)}, {pr(h)}")
                    a(f"  v_pk_add_f32 {pr(r+2)}, {pr(e)}, {pr(e+2)}")
                else:
                    a(f"  v_pk_fma_f32 {pr(r)}, {pr(e+2)}, {pr(h+2)}, {pr(r)}")
            else:
                a(f"  v_pk_fma_f32 {pr(r)}, {pr(e+2*half)}, {pr(h+2*half)}, {pr(r)}")
                a(f"  v_pk_add_f32 {pr(r+2)}, {pr(e+2*half)}, {pr(r+2)}")

def t_unit(a, k):
    t, ct = k >> 1, k & 1
    T = [f"  v_exp_f32 v{Gb(k+1)+i}, v{Gb(k+1)+i}" for i in range(16)] + [f"  v_rcp_f32 v{Gb(k)+i}, v{Gb(k)+i}" for i in range(16)]
    Hm = [mfma16(HV, Xb(t, s), wv(s, ct), g16(HV) if s else "0") for s in range(4)]
    d = Gb(k+2)
    Gm = [mfma16(d, Eo, BEo(ct), "0")] + [mfma16(d, Xb(t+1, s), wb(s, ct), g16(d)) for s in range(4)]
    A1 = mfma8(Gb(k+1), ON, ON, g16(Gb(k+1)))
    M = [Hm[0], Gm[0], Hm[1], Gm[1], Hm[2], Gm[2], A1, Hm[3], Gm[3], Gm[4]]
    side = [[] for _ in M]
    nt = next_tile(sTn2, sTn)
    if ct == 0:
        pre = ["  s_waitcnt lgkmcnt(0)", la(0), la(1)]
        side[0] = [f"  s_mov_b32 m0, s{sM0}", la(2), la(3)]
        side[1] = [dma(0), f"  s_add_u32 m0, s{sM0}, 1024"]
        side[2] = [dma(1), f"  s_add_u32 m0, s{sM0}, 2048"]
        side[3] = [dma(2), f"  s_add_u32 m0, s{sM0}, 3072"]
        side[4] = [dma(3), nt[0]]
        side[5] = [nt[1], nt[2]]
        side[7] = [f"  s_lshl_b32 s{sTmp}, s{sTn2}, 7", f"  v_add_u32 v{vK}, s{sTmp}, v{vKb}"]
        side[8] = [f"  ds_read_b128 v[{vI}:{vI+3}], v{vK}", f"  v_mad_u32_u24 v{vE}, v{vEs}, s{sTn}, v{vEb}"]
        side[9] = [f"  s_mov_b32 s{sTn}, s{sTn2}"]
    else:
        pre = []
        side[2] = [f"  ds_read2_b32 a[{EOP}:{EOP+1}], v{vE} offset0:0 offset1:1"]
        side[7] = ["  s_waitcnt vmcnt(0)"]
        side[8] = [f"  ds_read_b128 {Xb(t,0)}, v{vXA}", f"  ds_read_b128 {Xb(t,1)}, v{vXA+1}"]
        side[9] = [f"  ds_read_b128 {Xb(t,2)}, v{vXA+2}", f"  ds_read_b128 {Xb(t,3)}, v{vXA+3}"]
    if OPT["prio"] == 2: a("  s_setprio 0")
    for p_ in pre: a(p_)
    ti = 0
    for i, m in enumerate(M):
        a(m)
        for s_ in side[i]: a(s_)
        n = 3 if i < 9 else 32 - ti
        for _ in range(n):
            a(T[ti]); ti += 1
    if OPT["prio"] == 2: a("  s_setprio 1")

def tile_code(a, par):
    for ct in range(2):
        k = 2*par + ct
        t_unit(a, k)
        a(f"  s_bitcmp1_b32 s{sF}, s{sTau}\n  s_cbranch_scc0 K2_PN{k}")
        p_unit(a, k, True)
        a(f"  s_branch K2_PE{k}\nK2_PN{k}:")
        p_unit(a, k, False)
        a(f"K2_PE{k}:")
    a(f"""  s_add_u32 s{sTau}, s{sTau}, 1
  s_cmp_ge_u32 s{sTau}, s{sN}
  s_cbranch_scc1 K2_LAST
  s_bitcmp1_b32 s{sF}, s{sTau}
  s_cbranch_scc1 K2_EV""")
    a(f"""K2_NF{par}:
  s_add_u32 s{sTmp}, s{sTau}, 1
  s_bitcmp1_b32 s{sF}, s{sTmp}
  s_cbranch_scc0 K2_NM{par}""")
    m_event(a)
    a(f"K2_NM{par}:")

def gen_k2(a):
    ld = OPT["ld_flags"]
    R = lambda k: 40 + 4*k
    A4 = lambda k: 104 + k
    OF, VA = 120, 128
    WR = 136
    vTid, vLane, vOne = 4, 5, 6
    vL1, vL2, vBase, vMx = 20, 21, 22, 23
    def msk(k): return (sM1 + 2*k) if k < 8 else (sM2 + 2*(k-8))
    a(f"""
.globl main_kernel
.p2align 8
.type main_kernel,@function
main_kernel:
  s_cmp_ge_u32 s2, 256
  s_cbranch_scc1 K2_END
  s_load_dwordx8 s[28:35], s[0:1], 64       ; w_v out dbg ws
  s_load_dwordx2 s[4:5], s[0:1], 0          ; x
  v_lshrrev_b32 v{vT0}, 6, v0
  v_mov_b32 v{vTid}, v0
  v_readfirstlane_b32 s{sW}, v{vT0}
  v_and_b32 v{vLane}, 63, v0
@CPF2@
@S0@
  v_lshrrev_b32 v{vT1}, 4, v0
  v_and_b32 v{vT2}, 7, v0
  v_lshl_add_u32 v{vTSV}, v{vT1}, 3, v{vT2}
  v_lshlrev_b32 v{vTSV}, 10, v{vTSV}          ; (8G + (l&7))*1024
  s_and_b32 s{sB}, s2, 7
  s_lshl_b32 s{sB}, s{sB}, 5
  s_lshr_b32 s{sTmp}, s2, 3
  s_or_b32 s{sB}, s{sB}, s{sTmp}
  s_lshl_b32 s{sTmp}, s{sB}, 2
  s_add_u32 s{sTmp}, s{sTmp}, {OFFS}
  s_mov_b32 s{sOFF+2}, {(NP-1)*1024+4}
  s_mov_b32 s{sOFF+3}, 0x20000
  s_mov_b32 s{sSB}, 0
  s_mov_b32 s{sSW}, 32
  s_mov_b32 s{sFirstB}, 1
  v_and_b32 v{vT0}, 31, v{vLane}
  v_lshlrev_b32 v{vN4}, 2, v{vT0}
  v_mov_b32 v40, 0
  v_mov_b32 v41, 0
  v_mov_b32 v42, 0
  v_mov_b32 v43, 0
  v_lshrrev_b32 v{vT2}, 5, v{vTid}
  v_mul_u32_u24 v{vT2}, {ROWB}, v{vT2}
  v_lshl_add_u32 v{vT2}, v{vT0}, 4, v{vT2}
  v_add_u32 v{vT2}, {NODE+256}, v{vT2}
  v_add_u32 v{vT3}, {4*16*ROWB}, v{vT2}
""")
    for k in range(7):
        t = vT2 if k < 4 else vT3
        a(f"  ds_write_b128 v{t}, v[40:43] offset:{(k&3)*16*ROWB}")
    a(f"""
  v_lshlrev_b32 v{vT2}, 4, v{vTid}
  ds_write_b128 v{vT2}, v[40:43] offset:{EA0}
  ds_write_b128 v{vT2}, v[40:43] offset:{EA0+8192}
  s_waitcnt lgkmcnt(0)
  s_add_u32 s{sOFF}, s34, s{sTmp}
  s_addc_u32 s{sOFF+1}, s35, 0
  s_and_b32 s{sOFF+1}, s{sOFF+1}, 0xffff
@OFFS_A@
  s_mov_b32 s96, s34
  s_mov_b32 s97, s35
  s_mov_b32 s{sXR}, s4
  s_and_b32 s{sXR+1}, s5, 0xffff
  s_mov_b32 s{sXR+2}, 3200000
  s_mov_b32 s{sXR+3}, 0x20000
  s_mov_b32 s{sOUT}, s30
  s_and_b32 s{sOUT+1}, s31, 0xffff
  s_mov_b32 s{sOUT+2}, 3200000
  s_mov_b32 s{sOUT+3}, 0x20000
  s_mov_b32 s{sREC}, s34
  s_and_b32 s{sREC+1}, s35, 0xffff
  s_mov_b32 s{sREC+2}, {NP*RECB}
  s_mov_b32 s{sREC+3}, 0x20000
  s_add_u32 s{sWM}, s34, {IMG}
  s_addc_u32 s{sWM+1}, s35, 0
  s_and_b32 s{sWM+1}, s{sWM+1}, 0xffff
  s_mov_b32 s{sWM+2}, {32768+1024}
  s_mov_b32 s{sWM+3}, 0x20000
  v_lshlrev_b32 v{vK}, 4, v{vLane}
  s_lshl_b32 s{sTmp}, s{sW}, 12
  s_add_u32 s{sTmp2}, s{sTmp}, {RING}
  s_add_u32 s{sN}, s{sTmp}, {IMA-16384}
  s_cmp_lt_u32 s{sW}, 4
  s_cselect_b32 m0, s{sTmp2}, s{sN}
  s_mov_b32 s{sN}, 32768
  buffer_load_dwordx4 v{vK}, s[{sWM}:{sWM+3}], s{sTmp} offen lds
  buffer_load_dwordx4 v{vK}, s[{sWM}:{sWM+3}], s{sTmp} offen offset:1024 lds
  buffer_load_dwordx4 v{vK}, s[{sWM}:{sWM+3}], s{sTmp} offen offset:2048 lds
  buffer_load_dwordx4 v{vK}, s[{sWM}:{sWM+3}], s{sTmp} offen offset:3072 lds
  buffer_load_dwordx2 v[{BEV}:{BEV+1}], v{vK}, s[{sWM}:{sWM+3}], s{sN} offen
  buffer_load_dwordx2 v[{BEV+4}:{BEV+5}], v{vK}, s[{sWM}:{sWM+3}], s{sN} offen offset:8
  v_lshrrev_b32 v{vT2}, 3, v{vLane}
  v_lshlrev_b32 v{vT2}, 15, v{vT2}
  v_and_b32 v{vT3}, 7, v{vLane}
  v_lshrrev_b32 v{vE}, 4, v{vLane}
  v_xor_b32 v{vT3}, v{vT3}, v{vE}
  v_lshl_add_u32 v{vE}, v{vT3}, 4, v{vT2}
  v_xor_b32 v{vT3}, 4, v{vT3}
  v_lshl_add_u32 v{vK}, v{vT3}, 4, v{vT2}
  s_lshl_b32 s{sTmp}, s{sW}, 19
  s_lshl_b32 s{sTmp2}, s{sB}, 7
  s_add_u32 s{sTmp}, s{sTmp}, s{sTmp2}
  s_add_u32 s{sTmp2}, s{sTmp}, {8*32768}
  s_lshl_b32 s{sN}, s{sW}, 11
  s_add_u32 m0, s{sN}, {XO}
  s_nop 0
  buffer_load_dwordx4 v{vE}, s[{sXR}:{sXR+3}], s{sTmp} offen lds
  s_add_u32 m0, s{sN}, {XO+1024}
  s_nop 0
  buffer_load_dwordx4 v{vK}, s[{sXR}:{sXR+3}], s{sTmp2} offen lds
@OFFS_B@
  s_mov_b32 s{sPsel0}, 0x05040100
  s_mov_b32 s{sPsel1}, 0x07060302
""")
    for i in range(8):
        a(f"  s_mov_b32 s{sSeg+i}, {i*RECB}")
    a(f"""
  v_lshrrev_b32 v{vT1}, 5, v{vLane}
  v_lshlrev_b32 v{vOrd}, 4, v{vT1}
  v_add_u32 v{vOrd}, {ORDA}, v{vOrd}
  v_cmp_eq_u32 vcc, 0, v{vT1}
  v_mov_b32 v{vT2}, 0x3f80
  v_mov_b32 v{vT3}, 0
  v_cndmask_b32 v{vT2}, v{vT3}, v{vT2}, vcc
  v_accvgpr_write_b32 a{ONE}, v{vT2}
  v_accvgpr_write_b32 a{ONE+1}, v{vT3}
  v_mov_b32 v{vT2}, 128
  v_mov_b32 v{vT3}, 256
  v_cndmask_b32 v{vEs}, v{vT2}, v{vT3}, vcc
  v_lshlrev_b32 v{vT2}, 3, v{vT0}
  v_add_u32 v{vT3}, {K0}, v{vN4}
  v_cndmask_b32 v{vEb}, v{vT3}, v{vT2}, vcc
  v_lshrrev_b32 v{vT2}, 3, v{vLane}
  v_lshlrev_b32 v{vKb}, 4, v{vT2}
  v_add_u32 v{vKb}, {K0}, v{vKb}
  v_bfe_u32 v{vT2}, v{vT0}, 2, 1
  v_cmp_eq_u32 vcc, v{vT2}, v{vT1}
  v_bfe_u32 v{vT2}, v{vT0}, 3, 1
  v_lshlrev_b32 v{vT2}, 4, v{vT2}
  v_mov_b32 v{vT3}, 0x3f80
  v_lshlrev_b32 v{vT3}, v{vT2}, v{vT3}
  v_cndmask_b32 v{vT3}, 0, v{vT3}, vcc
  v_cmp_gt_u32 vcc, 16, v{vT0}
  s_nop 1
  v_cndmask_b32 v{vT2}, 0, v{vT3}, vcc
  v_cndmask_b32 v{vT3}, v{vT3}, 0, vcc
  v_accvgpr_write_b32 a{EOP+2}, v{vT2}
  v_accvgpr_write_b32 a{EOP+3}, v{vT3}
  v_and_b32 v{vT2}, 7, v{vLane}
  v_bfe_u32 v{vT3}, v{vLane}, 4, 1
  v_lshlrev_b32 v{vT3}, 2, v{vT3}
  v_xor_b32 v{vT2}, v{vT2}, v{vT3}
""")
    for i in range(4):
        a(f"  v_xor_b32 v{vC+i}, {i}, v{vT2}\n  v_lshlrev_b32 v{vC+i}, 4, v{vC+i}")
    a(f"""
  v_bfe_u32 v{vT2}, v{vT0}, 1, 3
  v_lshlrev_b32 v{vT3}, 2, v{vT1}
  v_xor_b32 v{vT2}, v{vT2}, v{vT3}
  v_lshlrev_b32 v{vT3}, 7, v{vT0}
  v_add_u32 v{vT3}, {XO}, v{vT3}
""")
    for s_ in range(4):
        a(f"  v_xor_b32 v{24+s_}, {s_}, v{vT2}\n  v_lshl_add_u32 v{24+s_}, v{24+s_}, 4, v{vT3}")
    a(f"""
  s_lshl_b32 s{sM0}, s{sW}, 12
  s_add_u32 s{sM0}, s{sM0}, {RING}
  v_mul_u32_u24 v7, {4*ROWB}, v{vT1}
  v_add_u32 v7, v7, v{vN4}
  v_and_b32 v{vT2}, 3, v{vT0}
  v_bfe_u32 v{vK}, v{vT0}, 3, 1
  v_xor_b32 v{vK}, v{vK}, v{vT1}
  v_lshl_or_b32 v{vK}, v{vK}, 2, v{vT2}
  v_lshlrev_b32 v{vT2}, 10, v{vT2}
  v_lshrrev_b32 v{vT0}, 2, v{vT0}
  v_lshl_add_u32 v{vT2}, v{vT0}, 7, v{vT2}
  v_add_u32 v{vT2}, s{sM0}, v{vT2}
""")
    for s_ in range(4):
        a(f"  v_xor_b32 v{vXA+s_}, {s_}, v{vK}\n  v_lshl_add_u32 v{vXA+s_}, v{vXA+s_}, 4, v{vT2}")
    a(f"""
K2_RESET:
  v_mov_b32 v40, 0
  v_mov_b32 v41, 0
  v_mov_b32 v42, 0
  v_mov_b32 v43, 0
  v_mov_b32 v44, 1.0
  v_mov_b32 v45, 1.0
  v_mov_b32 v46, 1.0
  v_mov_b32 v47, 1.0
  v_mov_b32 v{vOne}, 1
  v_lshlrev_b32 v{vT2}, 4, v{vTid}
  ds_write_b128 v{vT2}, v[44:47] offset:{K0}
  ds_write_b128 v{vT2}, v[44:47] offset:{K0+8192}
  v_cmp_gt_u32 vcc, {(MISC+64-CNT)//16}, v{vTid}
  s_and_saveexec_b64 s[{sSave}:{sSave+1}], vcc
  ds_write_b128 v{vT2}, v[40:43] offset:{CNT}
  s_mov_b64 exec, s[{sSave}:{sSave+1}]
  v_and_b32 v{vT0}, 15, v{vTid}
  v_add_u32 v{vT1}, 16, v{vT0}
  v_mov_b32 v{vT3}, 0xffff
  v_cmp_gt_u32 vcc, s{sSW}, v{vT0}
  v_add_u32 v{vT2}, s{sSB}, v{vT0}
  s_nop 0
  v_cndmask_b32 v{vL1}, v{vT3}, v{vT2}, vcc
  v_cmp_gt_u32 vcc, s{sSW}, v{vT1}
  v_add_u32 v{vT1}, s{sSB}, v{vT1}
  s_nop 0
  v_cndmask_b32 v{vL2}, v{vT3}, v{vT1}, vcc
  v_mul_u32_u24 v{vT2}, 12, v{vT2}
  v_lshrrev_b32 v{vT1}, 4, v{vTid}
  s_mov_b32 s{sTmp}, {8*RECB}
  v_mad_u32_u24 v{vBase}, v{vT1}, s{sTmp}, v{vT2}
  s_cmp_eq_u32 s{sFirstB}, 1
  s_cbranch_scc1 K2_OFW
  v_and_b32 v{vT2}, 7, v{vTid}
  v_lshl_add_u32 v{vT2}, v{vT1}, 3, v{vT2}
  v_lshlrev_b32 v{vT2}, 10, v{vT2}
  buffer_load_dword v{vMx}, v{vT2}, s[{sOFF}:{sOFF+3}], 0 offen
  s_waitcnt vmcnt(0)
K2_OFW:
  s_waitcnt vmcnt(@OFFW@)
@S3@
""")
    for i in range(8):
        a(f"  v_mov_b32_dpp v{OF+i}, v{vMx} row_newbcast:{i} row_mask:0xf bank_mask:0xf")
    for i in range(8):
        a(f"  v_add_u32_sdwa v{VA+i}, v{OF+i}, v{vBase} dst_sel:DWORD dst_unused:UNUSED_PAD src0_sel:WORD_0 src1_sel:DWORD")
        a(f"  v_cmp_lt_u32_sdwa s[{sM1+2*i}:{sM1+2*i+1}], v{vL1}, v{OF+i} src0_sel:DWORD src1_sel:WORD_1")
        a(f"  s_mov_b64 exec, s[{sM1+2*i}:{sM1+2*i+1}]")
        a(f"  buffer_load_dwordx3 v[{R(i)}:{R(i)+2}], v{VA+i}, s[{sREC}:{sREC+3}], s{sSeg+i} offen {ld}")
        a("  s_mov_b64 exec, -1")
    a(f"  s_mov_b32 s{sN}, 0")
    for i in range(8):
        a(f"  v_cmp_lt_u32_sdwa s[{sM2+2*i}:{sM2+2*i+1}], v{vL2}, v{OF+i} src0_sel:DWORD src1_sel:WORD_1")
    for i in range(8):
        a(f"  s_mov_b64 exec, s[{sM2+2*i}:{sM2+2*i+1}]")
        a(f"  s_cbranch_execz K2_LS{i}")
        a(f"  s_add_u32 s{sN}, s{sN}, 1")
        a(f"  buffer_load_dwordx3 v[{R(8+i)}:{R(8+i)+2}], v{VA+i}, s[{sREC}:{sREC+3}], s{sSeg+i} offen offset:192 {ld}")
        a(f"K2_LS{i}:")
    a(f"""
  s_mov_b64 exec, -1
  v_max3_u32 v{vT2}, v{OF}, v{OF+1}, v{OF+2}
  v_max3_u32 v{vT3}, v{OF+3}, v{OF+4}, v{OF+5}
  v_max3_u32 v{vT2}, v{OF+6}, v{OF+7}, v{vT2}
  v_max_u32 v{vT2}, v{vT2}, v{vT3}
  v_lshrrev_b32 v{vMx}, 16, v{vT2}
  v_mov_b32 v{vT2}, {MISC}
  s_mov_b32 s{sSave}, 0x00010001
  s_mov_b32 s{sSave+1}, 0x00010001
  v_lshlrev_b32 v{vK}, 4, v{vLane}
  v_add_u32 v{vE}, {RING}, v{vK}
@IMGW@
  s_waitcnt lgkmcnt(0)
@S5@
  s_barrier
  s_mov_b64 exec, s[{sSave}:{sSave+1}]
  ds_max_u32 v{vT2}, v{vMx}
  s_mov_b64 exec, -1
  s_cmp_eq_u32 s{sFirstB}, 0
  s_cbranch_scc1 K2_RANK
  s_lshr_b32 s{sTmp}, s{sW}, 1
  s_lshl_b32 s{sTmp2}, s{sTmp}, 12
  s_mul_i32 s{sTmp}, s{sTmp}, {32*ROWB}
""")
    for s_ in range(4):
        a(f"  v_add_u32 v{vT0+s_}, s{sTmp2}, v{24+s_}")
    for s_ in range(4):
        a(f"  ds_read_b128 {Xb(1,s_)}, v{vT0+s_}")
    a(f"""
  s_mov_b32 s{sCur}, {NLOG2E:#x}
  s_and_b32 s{sTmp2}, s{sW}, 1
  s_cselect_b32 s{sCur}, 1.0, s{sCur}
  s_lshl_b32 s{sN}, s{sTmp2}, 13
  s_add_u32 s{sN}, s{sN}, {IMA}
  v_add_u32 v{vT0}, s{sN}, v{vK}
  s_lshl_b32 s{sTmp2}, s{sTmp2}, 7
  s_add_u32 s{sTmp}, s{sTmp}, s{sTmp2}
  s_add_u32 s{sTmp}, s{sTmp}, {NODE}
  v_add_u32 v{vT1}, s{sTmp}, v7
""")
    for q in range(8):
        a(f"  ds_read_b128 {ar(4*q,4)}, v{vT0} offset:{1024*q}")
    for s_ in range(4):
        for ct in range(2):
            a(f"  s_waitcnt lgkmcnt({7-2*s_-ct})")
            a(mfma16(120+16*ct, Xb(1,s_), ar((s_*2+ct)*4,4), g16(120+16*ct) if s_ else "0"))
    for q in range(8):
        a(f"  ds_read_b128 {ar(32+4*q,4)}, v{vE} offset:{8192+1024*q}")
    a("  s_nop 3")
    for r in range(16):
        a(f"  v_mul_f32 v{120+r}, s{sCur}, v{120+r}")
        a(f"  v_mul_f32 v{136+r}, s{sCur}, v{136+r}")
        a(f"  v_cvt_pk_bf16_f32 v{120+r}, v{120+r}, v{136+r}")
        a(f"  ds_write_b32 v{vT1}, v{120+r} offset:{(8*(r>>2)+(r&3))*ROWB}")
        if r == 2: a(f"  s_cmp_ge_u32 s{sW}, 6\n  s_cbranch_scc1 K2_JOBE")
    a("K2_JOBE:")
    for q in range(8):
        a(f"  ds_read_b128 {ar(4*q,4)}, v{vE} offset:{1024*q}")
    a(f"""
K2_RANK:
  s_waitcnt vmcnt(0)
@S6@
@XPF@
""")
    for k in range(16):
        a(f"  s_mov_b64 exec, s[{msk(k)}:{msk(k)+1}]")
        if k >= 8: a(f"  s_cbranch_execz K2_RS{k}")
        a(f"  v_lshrrev_b32 v{A4(k)}, 16, v{R(k)+2}")
        a(f"  ds_add_rtn_u32 v{R(k)+3}, v{A4(k)}, v{vOne} offset:{CNT}")
        if k >= 8: a(f"K2_RS{k}:")
    a(f"""  s_mov_b64 exec, -1
  s_waitcnt lgkmcnt(0)
  s_barrier
@S7@
  s_cmp_lg_u32 s{sW}, 0
  s_cbranch_scc1 K2_PRE""")
    c0, c1, q0, q1, b0, b1, p0, p1, hv, ex, e0, e1, m0_, m1_, t0_, t1_ = range(120, 136)
    u0, u1, l4 = vT0, vT1, vT2
    a(f"""
  v_lshlrev_b32 v{l4}, 2, v{vLane}
  ds_read2st64_b32 v[{c0}:{c1}], v{l4} offset0:{CNT//256} offset1:{CNT//256+1}
  s_waitcnt lgkmcnt(0)
  v_add_u32 v{q0}, 3, v{c0}
  v_add_u32 v{q1}, 3, v{c1}
  v_lshrrev_b32 v{q0}, 2, v{q0}
  v_lshrrev_b32 v{q1}, 2, v{q1}
  v_min_u32 v{b0}, 63, v{q0}
  v_min_u32 v{b1}, 63, v{q1}
  v_sub_u32 v{b0}, 63, v{b0}
  v_sub_u32 v{b1}, 63, v{b1}
  v_lshlrev_b32 v{b0}, 2, v{b0}
  v_lshlrev_b32 v{b1}, 2, v{b1}
  ds_add_rtn_u32 v{p0}, v{b0}, v{vOne} offset:{HIST}
  ds_add_rtn_u32 v{p1}, v{b1}, v{vOne} offset:{HIST}
  ds_read_b32 v{hv}, v{l4} offset:{HIST}
  v_lshl_or_b32 v{q0}, v{q0}, 8, v{vLane}
  v_add_u32 v{u1}, 64, v{vLane}
  v_lshl_or_b32 v{q1}, v{q1}, 8, v{u1}
  s_waitcnt lgkmcnt(0)
  v_mov_b32 v{ex}, v{hv}
""")
    dpp_scan(a, ex)
    a(f"""
  v_sub_u32 v{ex}, v{ex}, v{hv}
  ds_bpermute_b32 v{u0}, v{b0}, v{ex}
  ds_bpermute_b32 v{u1}, v{b1}, v{ex}
  v_cmp_gt_u32 vcc, 8, v{vLane}
  v_subrev_u32 v{c0}, 24, v{l4}
  v_and_b32 v{c1}, 4, v{vLane}
  s_mov_b32 s{sTmp2}, 0xff
  v_cndmask_b32 v{c0}, v{c0}, v{c1}, vcc
  s_waitcnt lgkmcnt(0)
  v_add_lshl_u32 v{u0}, v{u0}, v{p0}, 2
  v_add_lshl_u32 v{u1}, v{u1}, v{p1}, 2
  ds_write_b32 v{u0}, v{q0} offset:{ORDQ}
  ds_write_b32 v{u1}, v{q1} offset:{ORDQ}
  ds_read_b32 v{e0}, v{c0} offset:{ORDQ}
  ds_read_b32 v{e1}, v{l4} offset:{ORDQ+232}
  s_waitcnt lgkmcnt(0)
  v_add_u32 v{c0}, 0x300, v{e0}
  v_lshrrev_b32 v{c0}, 2, v{c0}
  v_bfi_b32 v{c0}, s{sTmp2}, v{e0}, v{c0}
  v_cndmask_b32 v{e0}, v{e0}, v{c0}, vcc
  v_mov_b32 v{m0_}, v{e0}
  v_mov_b32 v{m1_}, v{e1}
""")
    for mode in ("quad_perm:[1,0,3,2]", "quad_perm:[2,3,0,1]", "row_half_mirror"):
        a(f"  s_nop 0\n  v_max_u32_dpp v{m0_}, v{m0_}, v{m0_} {mode} row_mask:0xf bank_mask:0xf")
        a(f"  v_max_u32_dpp v{m1_}, v{m1_}, v{m1_} {mode} row_mask:0xf bank_mask:0xf")
    a(f"""
  v_lshrrev_b32 v{m0_}, 8, v{m0_}
  v_lshrrev_b32 v{m1_}, 8, v{m1_}
  v_mov_b32 v{t0_}, v{m0_}
  v_mov_b32 v{t1_}, v{m1_}
""")
    for mode in ("row_shr:8 row_mask:0xf", "row_bcast:15 row_mask:0xa", "row_bcast:31 row_mask:0xc"):
        a(f"  s_nop 0\n  v_add_u32_dpp v{t0_}, v{t0_}, v{t0_} {mode} bank_mask:0xf")
        a(f"  v_add_u32_dpp v{t1_}, v{t1_}, v{t1_} {mode} bank_mask:0xf")
    a(f"""
  s_nop 0
  v_readlane_b32 s{sTmp}, v{t0_}, 63
  v_sub_u32 v{t0_}, v{t0_}, v{m0_}
  v_sub_u32 v{m1_}, v{t1_}, v{m1_}
  v_add_u32 v{t1_}, s{sTmp}, v{t1_}
  v_add_u32 v{m1_}, s{sTmp}, v{m1_}
  v_and_b32 v{u0}, 7, v{vLane}
  v_lshl_or_b32 v{u1}, v{u0}, 5, 2
  v_lshl_or_b32 v{u0}, v{c1}, 5, 4
  v_cndmask_b32 v{u0}, v{u1}, v{u0}, vcc
  v_lshl_add_u32 v{p0}, v{t0_}, 8, v{u0}
  v_lshl_add_u32 v{p1}, v{m1_}, 8, v{u1}
  v_and_b32 v{e0}, 0xff, v{e0}
  v_and_b32 v{e1}, 0xff, v{e1}
  v_lshlrev_b32 v{c0}, 2, v{e0}
  v_lshlrev_b32 v{c1}, 2, v{e1}
  ds_write_b32 v{c0}, v{p0} offset:{NB}
  ds_write_b32 v{c1}, v{p1} offset:{NB}
  v_lshrrev_b32 v{u0}, 1, v{vLane}
  v_add_u32 v{u0}, {TSV}, v{u0}
  s_mov_b32 s{sSave}, 0x01010101
  s_mov_b32 s{sSave+1}, 0x01010101
  s_mov_b64 exec, s[{sSave}:{sSave+1}]
  ds_write2_b32 v{u0}, v{t0_}, v{m1_} offset0:0 offset1:8
  s_mov_b32 s{sSave}, 0
  s_mov_b32 s{sSave+1}, 0x80000000
  s_mov_b64 exec, s[{sSave}:{sSave+1}]
  v_mov_b32 v{u1}, {TSV+64}
  ds_write2_b32 v{u1}, v{t1_}, v{hv} offset0:0 offset1:1
  s_mov_b64 exec, -1
  v_min_u32 v{e0}, 98, v{e0}
  v_min_u32 v{e1}, 98, v{e1}
  v_mov_b32 v{c0}, {NODE}
  s_mov_b32 s{sTmp}, {ROWB}
  v_mad_u32_u24 v{e0}, v{e0}, s{sTmp}, v{c0}
  v_mad_u32_u24 v{e1}, v{e1}, s{sTmp}, v{c0}
  v_and_b32 v{c0}, 1, v{vLane}
  v_lshlrev_b32 v{c0}, 4, v{c0}
  v_bfe_u32 v{c1}, v{vLane}, 1, 2
  v_lshl_add_u32 v{c0}, v{c1}, 2, v{c0}
  v_and_b32 v{c1}, 56, v{vLane}
  v_lshl_add_u32 v{c0}, v{c1}, 2, v{c0}
  v_add_u32 v{c0}, {ORDA}, v{c0}
  ds_write2st64_b32 v{c0}, v{e0}, v{e1} offset0:0 offset1:1
K2_PRE:
  s_mov_b32 s{sTmp}, -28
""")
    for k in range(16):
        a(f"  v_and_b32 v{R(k)+2}, 0x7fff, v{R(k)+2}")
    a(f"""
  v_min_u32 v{vT0}, 17, v{vLane}
  v_lshlrev_b32 v{vT0}, 2, v{vT0}
  v_mov_b32 v{vT1}, {MISC}
  s_waitcnt lgkmcnt(0)
@S8@
  s_barrier
@S9@
  ds_read_b32 v{vTSV}, v{vT0} offset:{TSV}
  ds_read_b32 v{vT2}, v{vT1}
""")
    for k in range(16):
        a(f"  s_mov_b64 exec, s[{msk(k)}:{msk(k)+1}]")
        if k >= 8: a(f"  s_cbranch_execz K2_NS{k}")
        a(f"  ds_read_b32 v{A4(k)}, v{A4(k)} offset:{NB}")
        if k >= 8: a(f"K2_NS{k}:")
        if k == 7:
            a(f"""  s_mov_b64 exec, -1
  s_waitcnt lgkmcnt(8)
  v_readlane_b32 s{sT}, v{vTSV}, 16
  v_readfirstlane_b32 s{sMaxC}, v{vT2}
  s_cmp_le_u32 s{sT}, {CAPT}
  s_cbranch_scc1 K2_FIT
  s_lshr_b32 s{sSW}, s{sSW}, 1
  s_mov_b32 s{sFirstB}, 0
  s_waitcnt lgkmcnt(0) vmcnt(0)
  s_barrier
  s_branch K2_RESET
K2_FIT:""")
    a("  s_waitcnt lgkmcnt(0)")
    for k in range(16):
        a(f"  s_mov_b64 exec, s[{msk(k)}:{msk(k)+1}]")
        if k >= 8: a(f"  s_cbranch_execz K2_WS{k}")
        a(f"  v_lshrrev_b32 v{vT0}, v{A4(k)}, v{R(k)+3}")
        a(f"  v_bfe_u32 v{R(k)+3}, v{R(k)+3}, 0, v{A4(k)}")
        a(f"  v_lshl_add_u32 v{vT0}, v{vT0}, 8, v{A4(k)}")
        a(f"  v_lshl_add_u32 v{vT0}, v{R(k)+3}, 3, v{vT0}")
        a(f"  v_and_b32 v{R(k)+3}, -8, v{vT0}")
        a(f"  v_lshrrev_b32 v{A4(k)}, 1, v{R(k)+3}")
        a(f"  ds_write_b32 v{A4(k)}, v{R(k)+2} offset:{K0}")
        if k >= 8: a(f"K2_WS{k}:")
    a(f"""
  s_mov_b64 exec, -1
  s_sub_u32 s{sTmp}, 11, s{sW}
  s_cmp_lt_u32 s{sW}, 4
  s_cselect_b32 s{sTmp}, s{sW}, s{sTmp}
  s_mul_i32 s{sT0}, s{sT}, s{sTmp}
  s_add_u32 s{sT1}, s{sT0}, s{sT}
  s_lshr_b32 s{sT0}, s{sT0}, 3
  s_lshr_b32 s{sT1}, s{sT1}, 3
  v_cmp_ge_u32 vcc, s{sT0}, v{vTSV}
  s_and_b32 s{sTmp}, vcc_lo, 0xffff
  s_bcnt1_i32_b32 s{sG0}, s{sTmp}
  s_sub_u32 s{sG0}, s{sG0}, 1
  v_cmp_gt_u32 vcc, s{sT1}, v{vTSV}
  s_and_b32 s{sTmp}, vcc_lo, 0xffff
  s_bcnt1_i32_b32 s{sGlast}, s{sTmp}
  s_sub_u32 s{sGlast}, s{sGlast}, 1
  s_add_u32 s{sTmp}, s{sG0}, 1
  v_readlane_b32 s{sTmp2}, v{vTSV}, s{sG0}
  v_readlane_b32 s{sTn}, v{vTSV}, s{sTmp}    ; TS[g0+1]
  s_sub_u32 s{sN}, s{sT1}, s{sT0}
  s_mov_b32 s{sCont}, 0
  s_mov_b32 s{sSlow}, 0
  s_mov_b32 s{sGn}, s{sG0}
  s_mov_b32 s{sCur}, s{sT0}
  s_mov_b32 s{sF}, 1
  s_cmp_eq_u32 s{sN}, 0
  s_cbranch_scc1 K2_FMD
  s_cmp_eq_u32 s{sTmp2}, s{sT0}
  s_cbranch_scc1 K2_FM
  s_mov_b32 s{sCont}, 1
  s_cmp_lt_u32 s{sTn}, s{sT1}
  s_cbranch_scc0 K2_ALLC
  s_add_u32 s{sGn}, s{sG0}, 1
  s_mov_b32 s{sCur}, s{sTn}
  s_sub_u32 s{sTmp}, s{sT1}, s{sCur}
  s_bitset1_b32 s{sF}, s{sTmp}
  s_branch K2_FM
K2_ALLC:
  s_cmp_gt_u32 s{sTn}, s{sT1}
  s_cselect_b32 s{sSlow}, 1, 0
K2_FM:
  s_mov_b32 s{sTau}, s{sGn}
K2_FML:
  s_cmp_ge_u32 s{sTau}, s{sGlast}
  s_cbranch_scc1 K2_FMD
  s_add_u32 s{sTau}, s{sTau}, 1
  s_nop 3
  v_readlane_b32 s{sTmp}, v{vTSV}, s{sTau}
  s_sub_u32 s{sTmp}, s{sTmp}, s{sCur}
  s_bitset1_b32 s{sF}, s{sTmp}
  s_branch K2_FML
K2_FMD:
  s_add_u32 s{sTmp}, s{sGlast}, 1
  s_and_b32 s{sTmp}, s{sTmp}, 31
  s_nop 3
  v_readlane_b32 s{sTmp2}, v{vTSV}, s{sTmp}
  v_readlane_b32 s{sFast}, v{vTSV}, 17
  s_sub_u32 s{sTe}, s{sT1}, s{sCur}
  s_cmp_gt_u32 s{sTmp2}, s{sT1}
  s_cselect_b32 s{sTe}, s{sTe}, 99
  s_cmp_lt_u32 s{sB}, 168
  s_cselect_b32 s{sTmp2}, 30, 31
  s_cmp_eq_u32 s{sFast}, s{sTmp2}
  s_cselect_b32 s{sFast}, s{sFirstB}, 0
  s_cmp_gt_u32 s{sMaxC}, s{sSW}
  s_cselect_b32 s{sFast}, 0, s{sFast}
  s_lshl_b32 s{sB128}, s{sB}, 7
  s_mov_b32 s{sMsk}, 0xffff8000
  s_lshl_b32 s{sTmp}, s{sCur}, 7
  v_add_u32 v{vK}, s{sTmp}, v{vKb}
  v_mad_u32_u24 v{vE}, v{vEs}, s{sCur}, v{vEb}
""")
    for l in next_tile(sTn, sCur): a(l)
    a(f"""
  s_waitcnt lgkmcnt(0)
  s_barrier
@S4@
  ds_read_b128 v[{vI}:{vI+3}], v{vK}
""")
    ord_read(a)
    a(f"""  s_lshl_b32 s{sTmp}, s{sTn}, 7
  v_add_u32 v{vK}, s{sTmp}, v{vKb}
  s_mov_b32 m0, s{sM0}
  s_waitcnt lgkmcnt(1)""")
    for i in range(4): a(la(i))
    for i in range(4):
        a(dma(i))
        if i < 3: a(f"  s_add_u32 m0, s{sM0}, {1024*(i+1)}\n  s_nop 0")
    a(f"  ds_read_b128 v[{vI}:{vI+3}], v{vK}")
    def ea_writes(ks):
        for k in ks:
            a(f"  s_mov_b64 exec, s[{msk(k)}:{msk(k)+1}]")
            if k >= 8: a(f"  s_cbranch_execz K2_ES{k}")
            a(f"  ds_write_b64 v{R(k)+3}, v[{R(k)}:{R(k)+1}] offset:{EA0}")
            if k >= 8: a(f"K2_ES{k}:")
        a("  s_mov_b64 exec, -1")
    ea_writes(list(range(8, 16)) + [0, 1, 2, 3])
    m_event(a)
    for g in range(4): a(f"  v_mov_b32 v{vNAc+g}, v{vNAn+g}")
    a(f"  s_mov_b32 s{sGc}, s{sGn}")
    next_group(a)
    ord_read(a)
    for i in range(4): a(la(i))
    a("  s_waitcnt vmcnt(0)")
    for s_ in range(4): a(f"  ds_read_b128 {Xb(0,s_)}, v{vXA+s_}")
    ea_writes([4, 5, 6, 7])
    for l in next_tile(sTn2, sTn): a(l)
    a(f"""  s_lshl_b32 s{sTmp}, s{sTn2}, 7
  v_add_u32 v{vK}, s{sTmp}, v{vKb}
  s_mov_b32 m0, s{sM0}
  s_waitcnt lgkmcnt(4)""")
    for i in range(4):
        a(dma(i))
        if i < 3: a(f"  s_add_u32 m0, s{sM0}, {1024*(i+1)}\n  s_nop 0")
    x_pref(a, HV+8)
    a(f"""  ds_read_b128 v[{vI}:{vI+3}], v{vK}
  s_waitcnt lgkmcnt(0)
  s_barrier
@S10@
  s_cmp_eq_u32 s{sN}, 0
  s_cbranch_scc1 K2_LOOPDONE
  ds_read2_b32 a[{EOP}:{EOP+1}], v{vE} offset0:0 offset1:1
  v_mad_u32_u24 v{vE}, v{vEs}, s{sTn}, v{vEb}
  s_mov_b32 s{sTn}, s{sTn2}""")
    for i in range(4):
        a(mfma16(Gb(0), Xb(0,i), wb(i,0), g16(Gb(0)) if i else "0"))
    a("  s_waitcnt lgkmcnt(0)")
    a(mfma16(Gb(0), Eo, BEo(0), g16(Gb(0))))
    a(mfma16(Gb(1), Eo, BEo(1), "0"))
    a(mfma16(Gb(1), Xb(0,0), wb(0,1), g16(Gb(1))))
    a(f"  ds_read2_b32 a[{EOP}:{EOP+1}], v{vE} offset0:0 offset1:1")
    for i in range(1, 4):
        a(mfma16(Gb(1), Xb(0,i), wb(i,1), g16(Gb(1))))
    a(f"  s_bitcmp1_b32 s{sF}, 1\n  s_cbranch_scc0 K2_FNM")
    m_event(a)
    a("K2_FNM:\n  s_nop 5")
    for i in range(16): a(f"  v_exp_f32 v{Gb(0)+i}, v{Gb(0)+i}")
    a(f"  s_mov_b32 s{sTau}, 0\n  s_waitcnt vmcnt(0)")
    a(mfma8(Gb(0), ON, ON, g16(Gb(0))))
    for s_ in range(4): a(f"  ds_read_b128 {Xb(1,s_)}, v{vXA+s_}")
    a("K2_LOOP:")
    tile_code(a, 0)
    tile_code(a, 1)
    a(f"""  s_branch K2_LOOP
K2_LAST:
  s_setprio 0
  s_cmp_eq_u32 s{sCont}, 0
  s_cbranch_scc1 K2_EV""")
    wide_reduce(a, "C")
    a(f"""  s_branch K2_LOOPDONE
K2_EV:""")
    wide_reduce(a, "E")
    a(f"""
  s_cmp_eq_u32 s{sTau}, s{sTe}
  s_cbranch_scc1 K2_EVS
  s_cmp_eq_u32 s{sFast}, 0
  s_cbranch_scc1 K2_EVS""")
    fin1(a)
    flush_st(a)
    fin2(a)
    a("  s_branch K2_EVE\nK2_EVS:")
    flush_own(a, "L")
    a(f"""K2_EVE:
  s_cmp_ge_u32 s{sTau}, s{sN}
  s_cbranch_scc1 K2_LOOPDONE""")
    for g in range(4): a(f"  v_mov_b32 v{vNAc+g}, v{vNAn+g}")
    a(f"  s_mov_b32 s{sGc}, s{sGn}")
    next_group(a)
    ord_read(a)
    x_pref(a, HV+8)
    a(f"""  s_bitcmp1_b32 s{sTau}, 0
  s_cbranch_scc1 K2_NF0
  s_branch K2_NF1
K2_LOOPDONE:
@S11@
  s_add_u32 s{sSB}, s{sSB}, s{sSW}
  v_mbcnt_lo_u32_b32 v{vLane}, -1, 0
  v_mbcnt_hi_u32_b32 v{vLane}, -1, v{vLane}
  s_lshl_b32 s{sTmp}, s{sW}, 6
  v_add_u32 v{vTid}, s{sTmp}, v{vLane}
  s_lshl_b32 s{sTmp}, s{sW}, 12
  s_add_u32 s{sTmp}, s{sTmp}, s{sB}
  s_lshl_b32 s{sTmp}, s{sTmp}, 7
  v_lshrrev_b32 v{G+21}, 5, v{vLane}
  v_lshlrev_b32 v{vE}, 17, v{G+21}
  v_add3_u32 v{vE}, v{vE}, v{vN4}, s{sTmp}
""")
    fin1(a)
    for g in range(12): a(f"  v_mov_b32 v{G+16+g}, 0") if False else None
    a(f"""
K2_NOFL:
  s_cmp_eq_u32 s{sSlow}, 0
  s_cbranch_scc1 K2_NSL
  v_mov_b32 v{G+20}, {MISC+4}
  v_mov_b32 v{G+21}, 1
  ds_write_b32 v{G+20}, v{G+21}
K2_NSL:
  v_mov_b32 v{G+20}, {MISC+4}
""")
    for q in range(8):
        r = AC + q*4
        a(f"  v_add_f32 v{r}, v{r}, v{r+1}")
        a(f"  v_add_f32 v{r+2}, v{r+2}, v{r+3}")
    a(f"""
  s_mov_b32 s{sTau}, 1
  s_waitcnt lgkmcnt(0) vmcnt(0)
  s_barrier
  ds_read_b32 v{G+21}, v{G+20}
K2_MERGE:
""")
    for ct in range(2):
        for g in range(4):
            t = G + (ct*4+g)*2
            a(f"  ds_read2_b32 v[{t}:{t+1}], v{vNAc+g} offset0:{64+32*ct} offset1:{128+32*ct}")
    a(f"""
  s_waitcnt lgkmcnt(8)
  v_readfirstlane_b32 s{sSlow}, v{G+21}
  s_cmp_eq_u32 s{sCont}, 0
  s_cbranch_scc1 K2_MNC
  s_cmp_eq_u32 s{sSlow}, 0
  s_cbranch_scc1 K2_MDO
  s_cmp_lg_u32 s{sTau}, s{sW}
  s_cbranch_scc1 K2_MSKIP
K2_MDO:
  s_waitcnt lgkmcnt(0)
""")
    for q in range(8):
        r = AC + q*4; t = G + q*2
        a(f"  v_add_f32 v{r}, v{r}, v{t}")
        a(f"  v_add_f32 v{r+2}, v{r+2}, v{t+1}")
    a(f"""  s_cmp_lg_u32 s{sSlow}, 0
  s_cbranch_scc1 K2_MWR
  s_cmp_eq_u32 s{sFast}, 0
  s_cbranch_scc1 K2_MWR""")
    fin2(a)
    a("@S13@\n@S15@\n@OUT2@\n  s_endpgm\nK2_MWR:")
    for ct in range(2):
        for g in range(4):
            r = AC + (ct*4+g)*4
            a(f"  ds_write2_b32 v{vNAc+g}, v{r}, v{r+2} offset0:{64+32*ct} offset1:{128+32*ct}")
    a(f"""
  s_branch K2_MSKIP
K2_MNC:
  s_cmp_lg_u32 s{sSlow}, 0
  s_cbranch_scc1 K2_MSKIP
  s_cmp_lg_u32 s{sFast}, 0
  s_cbranch_scc1 K2_FIN
K2_MSKIP:
  s_waitcnt lgkmcnt(0)
  s_barrier
  s_cmp_eq_u32 s{sSlow}, 0
  s_cbranch_scc1 K2_MEND
  s_add_u32 s{sTau}, s{sTau}, 1
  s_cmp_lt_u32 s{sTau}, 8
  s_cbranch_scc1 K2_MERGE
K2_MEND:
@S12@
  s_mov_b32 s{sFirstB}, 0
  s_cmp_gt_u32 s{sMaxC}, s{sSB}
  s_cbranch_scc1 K2_RESET
""")
    for rr in range(8):
        a(f"  s_mov_b32 s{sSeg+rr}, {(8*(rr>>2)+(rr&3))*32768}")
        a(f"  buffer_load_dword v{G+rr}, v{vE}, s[{sXR}:{sXR+3}], s{sSeg+rr} offen")
    a(f"""
  s_mul_i32 s{sTmp}, s{sW}, {16*ROWB}
  s_add_u32 s{sTmp}, s{sTmp}, {NODE}
  v_lshrrev_b32 v{vT1}, 5, v{vLane}
  v_mul_u32_u24 v{vT1}, {4*ROWB}, v{vT1}
  v_add3_u32 v{vT1}, v{vT1}, v{vN4}, s{sTmp}
  v_add_u32 v{vT2}, 128, v{vT1}
""")
    for rr in range(8):
        ro = 3 * (8*(rr>>2) + (rr&3))
        a(f"  ds_read2st64_b32 v[{AC+4*rr}:{AC+4*rr+1}], v{vT1} offset0:{ro+1} offset1:{ro+2}")
        a(f"  ds_read2st64_b32 v[{AC+4*rr+2}:{AC+4*rr+3}], v{vT2} offset0:{ro+1} offset1:{ro+2}")
        a(f"  ds_read_b32 v{HV+rr}, v{vT2} offset:{ro*256}")
    a(f"  s_mov_b32 s{sTmp}, 0x358637bd")
    for rr in range(8):
        a(f"  s_waitcnt lgkmcnt({min(15, 3*(7-rr))})")
        for ct in range(2):
            d = AC + 4*rr + 2*ct + 1
            a(f"  v_add_f32 v{d}, s{sTmp}, v{d}")
        for ct in range(2):
            d = AC + 4*rr + 2*ct + 1
            a(f"  v_rcp_f32 v{d}, v{d}")
        a(f"  v_lshlrev_b32 v{HV+8+rr}, 16, v{HV+rr}")
        a(f"  v_and_b32 v{HV+rr}, 0xffff0000, v{HV+rr}")
    a("  s_waitcnt vmcnt(0)")
    for rr in range(8):
        n0, n1 = AC + 4*rr, AC + 4*rr + 2
        a(f"  v_fma_f32 v{n0}, v{n0}, v{n0+1}, v{HV+8+rr}")
        a(f"  v_fma_f32 v{n1}, v{n1}, v{n1+1}, v{HV+rr}")
        a(f"  v_lshlrev_b32 v{n0+1}, 16, v{G+rr}")
        a(f"  v_and_b32 v{n1+1}, 0xffff0000, v{G+rr}")
        a(f"  v_max_f32 v{n0}, 0, v{n0}")
        a(f"  v_max_f32 v{n1}, 0, v{n1}")
        a(f"  v_add_f32 v{n0}, v{n0}, v{n0+1}")
        a(f"  v_add_f32 v{n1}, v{n1}, v{n1+1}")
        a(f"  v_cvt_pk_bf16_f32 v{n0}, v{n0}, v{n1}")
        a(f"  buffer_store_dword v{n0}, v{vE}, s[{sOUT}:{sOUT+3}], s{sSeg+rr} offen")
    a("K2_FIN:\n@S13@\n@S15@\n@OUT2@\nK2_END:\n  s_endpgm")

def kd(name, vgpr, accum, sgpr):
    return f"""
.amdhsa_kernel {name}
  .amdhsa_next_free_vgpr {vgpr}
  .amdhsa_next_free_sgpr {sgpr}
  .amdhsa_accum_offset {accum}
  .amdhsa_group_segment_fixed_size 0
  .amdhsa_kernarg_size 96
  .amdhsa_user_sgpr_count 2
  .amdhsa_user_sgpr_kernarg_segment_ptr 1
  .amdhsa_system_sgpr_workgroup_id_x 1
  .amdhsa_float_denorm_mode_32 3
.end_amdhsa_kernel
"""

def main():
    ref = open(f"cdna_kernels/{NAME}.s.ref").read().split("\n")
    hdr = [l for l in ref if l.startswith(";") and "@launch" not in l and "Override" not in l and "grid=ceil" not in l]
    a = Asm()
    a("\n".join(hdr))
    a(f"; @launch kernel=part_kernel grid=({NP+5},1,1) block=(800,1,1) lds={LDS1}")
    a(f"; @launch kernel=main_kernel grid=(256,1,1) block=(512,1,1) lds={LDS2}")
    a('.amdgcn_target "amdgcn-amd-amdhsa--gfx950"\n.text')
    gen_k1(a)
    gen_k2(a)
    a('.section .rodata,"a"\n.p2align 6')
    st = OPT["stamp"]
    a(kd("part_kernel", 60, 60, 100) if st else kd("part_kernel", 56, 56, 32))
    a(".p2align 6")
    a(kd("main_kernel", NARCH + NACC, NARCH, 100))
    txt = a.text()
    SL = MISC + 64
    cpf2 = cpf1 = ""
    if OPT["cpf"] & 1:
        cpf2 = f"""  s_getpc_b64 s[98:99]
  v_lshlrev_b32 v39, 6, v0
  s_mov_b64 exec, 0xffffffff
  global_load_dword a0, v39, s[98:99]
  s_mov_b64 exec, -1
"""
        cpf2 = f"""  s_getpc_b64 s[98:99]
CPF2L:
  v_lshlrev_b32 v39, 5, v0
  v_min_u32 v39, K2_END-CPF2L, v39
  global_load_dword a0, v39, s[98:99]
"""
    if OPT["cpf"] & 2:
        cpf1 = f"""  s_getpc_b64 s[26:27]
CPF1L:
  v_lshlrev_b32 v40, 5, v0
  v_min_u32 v40, K2_END-CPF1L, v40
  global_load_dword v55, v40, s[26:27]
"""
    imgw = ""
    for n in range(9):
        imgw += f"  s_cmp_lg_u32 s{sN}, {n}\n  s_cbranch_scc1 K2_IW{n}\n  s_waitcnt vmcnt({8+n})\n  s_branch K2_IWD\nK2_IW{n}:\n"
    imgw += "K2_IWD:\n"
    offl = f"""  buffer_load_dword v23, v{vTSV}, s[{sOFF}:{sOFF+3}], 0 offen
"""
    txt = txt.replace("@OFFS_A@\n", offl).replace("@OFFS_B@\n", "").replace("@OFFW@", "8").replace("@IMGW@\n", imgw)
    xpf = ""
    if OPT["npf"]:
        xpf = f"""  s_lshr_b32 s{sTmp}, s2, 3
  s_mul_i32 s{sTmp}, s{sTmp}, 100096
  v_lshlrev_b32 v{vT2}, 7, v4
  s_add_u32 s{sTmp2}, s{sTmp}, 65536
  buffer_load_dword a{X}, v{vT2}, s[{sXR}:{sXR+3}], s{sTmp} offen
  s_cmp_ge_u32 s{sW}, 5
  s_cbranch_scc1 K2_XPE
  buffer_load_dword a{X+1}, v{vT2}, s[{sXR}:{sXR+3}], s{sTmp2} offen
K2_XPE:
"""
    txt = txt.replace("@XPF@\n", xpf)
    txt = txt.replace("@CPF2@\n", cpf2).replace("@CPF1@\n", cpf1)
    def sub(m):
        if not st: return ""
        b = Asm(); k = m.group(1); i = m.group(2)
        if k == "OUT":
            if i == "2":
                b(f"""  s_lshl_b32 s99, s{sW}, 6
  s_add_u32 s99, s99, {SL}
  v_mbcnt_lo_u32_b32 v37, -1, 0
  v_lshlrev_b32 v37, 2, v37
  v_add_u32 v37, s99, v37
  ds_read_b32 v36, v37
  s_waitcnt lgkmcnt(0)""")
                stamp_out(b, 96, sW, STAMP_OFF, 36, 37, 8)
            else: stamp_out(b, 20, 23, STAMP_OFF + 0x100000, 56, 57, 16)
        else:
            i = int(i)
            if k == "TW": b("  s_waitcnt vmcnt(0)")
            def one(idx, real=False):
                if k == "S":
                    d = 37 if idx == 5 else (116 if idx in (10, 14, 11, 2) else 38); ad = 117 if idx in (10, 14, 11, 2) else 39
                    b(f"""  s_mem{'real' if real else ''}time s[98:99]
  s_waitcnt lgkmcnt(0)
  v_mov_b32 v{d}, s98
  s_lshl_b32 s99, s{sW}, 6
  s_add_u32 s99, s99, {SL + 4*idx}
  v_mov_b32 v{ad}, s99
  ds_write_b32 v{ad}, v{d}""")
                else: stamp(b, idx, 56, real=real)
            if i == 0: one(0); one(1, True)
            elif i == 15: one(15, True)
            elif i == 10 and k == 'S': one(10); one(14, True)
            elif i == 11 and k == 'S': one(11); one(2, True)
            elif i == 2 and k == 'S': pass
            else: one(i)
        return b.text()
    txt = re.sub(r"@(S|TW|T|OUT)(\d+)@\n", sub, txt)
    lines = txt.split("\n")
    for p in check_hazards(lines): print("HAZARD", p)
    b = Asm()
    for rep in range(2):
        for k in range(4):
            t_unit(b, k); p_unit(b, k, rep == 0)
            if k & 1: flush(b); m_event(b)
    for k in range(4):
        t_unit(b, k); p_unit(b, k, False)
    for k in range(2):
        t_unit(b, k); p_unit(b, k, False)
    for p in check_hazards(b.text().split("\n"), "loop"): print("HAZARD", p)
    open(sys.argv[1], "w").write(txt)

if __name__ == "__main__":
    main()
```

```python
import sys, re
from asmlib import *

NAME = "gather_scatter__edge_featured_mpnn_gatedgcn__graph"
NP, CH = 250, 3200
RECB = CH * 12
OFFS = 0xA00000
IMG = OFFS + 0x40000
NLOG2E = 0xBFB8AA3B
CAPT = 128
EA0, K0 = 0, 32768
CNT, NB, HIST, ORDQ, ORDA, TSV, MISC = 49152, 49664, 50176, 50432, 50944, 51456, 51584
RING = 52224
NODE = RING + 8 * 4096
ROWB = 768
LDS2 = NODE + 99 * ROWB
XO, IMA = RING + 16384, 16384
K1_CNT, K1_START = 38400, 39424
LDS1 = 40448
STAMP_OFF = 0x1000000

OPT = dict(st_flags="", ld_flags="", npf=0, stamp=0, prio=2, dbg=-1, dbgw=0, nodma=0, cpf=3, k1late=2, bias=0)
for a_ in sys.argv[2:]:
    k_, v_ = a_.split("=", 1)
    OPT[k_] = int(v_) if v_.lstrip("-").isdigit() else v_.replace("+", " ")

def stamp(a, idx, vreg, s=98, real=False):
    a(f"  s_mem{'real' if real else ''}time s[{s}:{s+1}]\n  s_waitcnt lgkmcnt(0)\n  v_writelane_b32 v{vreg}, s{s}, {idx}")
def stamp_out(a, ws, wave, base, vreg, tmp, wpw):
    a(f"""  s_mul_i32 s98, s2, {wpw}
  s_add_u32 s98, s98, s{wave}
  s_lshl_b32 s98, s98, 6
  s_add_u32 s98, s98, {base}
  v_mbcnt_lo_u32_b32 v{tmp}, -1, 0
  v_lshlrev_b32 v{tmp}, 2, v{tmp}
  v_add_u32 v{tmp+1}, s98, v{tmp}
  s_mov_b64 exec, 0xffff
  global_store_dword v{tmp+1}, v{vreg}, s[{ws}:{ws+1}]""")
    if OPT["dbg"] >= 0:
        a(f"""  s_cmp_lg_u32 s2, {OPT["dbg"]}
  s_cbranch_scc1 DBGX{vreg}_{len(a.lines)}
  s_cmp_lg_u32 s{wave}, {OPT["dbgw"]}
  s_cbranch_scc1 DBGX{vreg}_{len(a.lines)}
  s_load_dwordx2 s[98:99], s[0:1], 80
  s_waitcnt lgkmcnt(0)
  global_store_dword v{tmp}, v{vreg}, s[98:99]
DBGX{vreg}_{len(a.lines)}:""")

def dpp_scan(a, v):
    for m in ("row_shr:1", "row_shr:2", "row_shr:4", "row_shr:8"):
        a(f"  s_nop 1\n  v_add_u32_dpp v{v}, v{v}, v{v} {m} row_mask:0xf bank_mask:0xf")
    a(f"  s_nop 1\n  v_add_u32_dpp v{v}, v{v}, v{v} row_bcast:15 row_mask:0xa bank_mask:0xf")
    a(f"  s_nop 1\n  v_add_u32_dpp v{v}, v{v}, v{v} row_bcast:31 row_mask:0xc bank_mask:0xf")

def gen_k1(a):
    st = OPT["st_flags"]
    a(f"""
.globl part_kernel
.p2align 8
.type part_kernel,@function
part_kernel:
  s_cmp_ge_u32 s2, {NP}
  s_cbranch_scc1 K1_PACK
  s_load_dwordx2 s[8:9], s[0:1], 24
  s_load_dwordx4 s[4:7], s[0:1], 8
  s_load_dwordx2 s[20:21], s[0:1], 88
  v_lshrrev_b32 v33, 6, v0
  v_lshlrev_b32 v1, 4, v0
  v_readfirstlane_b32 s23, v33
@CPF1@
@T0@
  s_mul_i32 s22, s2, {CH*4}
  v_add_u32 v2, s22, v1
  v_lshlrev_b32 v3, 1, v2
  v_mov_b32 v32, 1
  v_mov_b32 v36, 0
  v_mov_b32 v37, 0
  v_mov_b32 v38, 0
  v_mov_b32 v39, 0
  s_cmp_lg_u32 s23, 0
  s_cbranch_scc1 K1_A
  ds_write_b128 v1, v[36:39] offset:{K1_CNT}
K1_A:
  s_waitcnt lgkmcnt(0)
  global_load_dwordx4 v[4:7], v2, s[8:9]
""")
    late = """  global_load_dwordx4 v[8:11], v2, s[6:7]
  global_load_dwordx4 v[12:15], v3, s[4:5]
  global_load_dwordx4 v[16:19], v3, s[4:5] offset:16"""
    if OPT["k1late"] == 0: a(late)
    a("  s_barrier\n@T2@")
    if OPT["k1late"] == 1: a(late)
    a(f"  s_waitcnt vmcnt({0 if OPT['k1late'] == 2 else 3})\n@T3@")
    if OPT["k1late"] == 2: a(late)
    for k in range(4):
        a(f"  v_lshlrev_b32_sdwa v{20+k}, 2, v{4+k} dst_sel:DWORD dst_unused:UNUSED_PAD src0_sel:DWORD src1_sel:BYTE_0")
    for k in range(4):
        a(f"  ds_add_rtn_u32 v{24+k}, v{20+k}, v32 offset:{K1_CNT}")
    a(f"""
  s_waitcnt lgkmcnt(0)
  s_barrier
  s_cmp_lg_u32 s23, 0
  s_cbranch_scc1 K1_B
  ds_read_b128 v[36:39], v1 offset:{K1_CNT}
  s_waitcnt lgkmcnt(0)
  v_add_u32 v41, v36, v37
  v_add_u32 v42, v41, v38
  v_add_u32 v43, v42, v39
  v_mov_b32 v44, v43
""")
    dpp_scan(a, 44)
    a(f"""
  v_sub_u32 v45, v44, v43
  v_add_u32 v47, v45, v36
  v_add_u32 v48, v45, v41
  v_add_u32 v49, v45, v42
  v_mul_u32_u24 v46, 12, v45
  v_mul_u32_u24 v47, 12, v47
  v_mul_u32_u24 v48, 12, v48
  v_mul_u32_u24 v49, 12, v49
  ds_write_b128 v1, v[46:49] offset:{K1_START}
  v_lshl_or_b32 v50, v36, 16, v46
  v_lshl_or_b32 v51, v37, 16, v47
  v_lshl_or_b32 v52, v38, 16, v48
  v_lshl_or_b32 v53, v39, 16, v49
  s_lshl_b32 s24, s2, 10
  s_add_u32 s24, s24, {OFFS}
  v_add_u32 v54, s24, v1
  global_store_dwordx4 v54, v[50:53], s[20:21] {st}
K1_B:
  s_mul_i32 s22, s2, {RECB}
  v_add_u32 v2, s22, v1
  v_add_u32 v3, {12800}, v2
  v_add_u32 v34, {25600}, v2
""")
    for k in range(4):
        a(f"  v_lshrrev_b32 v{4+k}, 8, v{4+k}")
    a(f"""
  s_waitcnt lgkmcnt(0)
  s_barrier
@T4@
""")
    for k in range(4):
        a(f"  ds_read_b32 v{28+k}, v{20+k} offset:{K1_START}")
    a("  s_waitcnt vmcnt(2)")
    for k in range(4):
        a(f"  v_lshl_or_b32 v{8+k}, v{4+k}, 18, v{8+k}")
    for k in range(4):
        a(f"  s_waitcnt lgkmcnt({3-k})")
        a(f"  v_mad_u32_u24 v{28+k}, v{24+k}, 12, v{28+k}")
    for k in range(4):
        a(f"  ds_write_b32 v{28+k}, v{8+k} offset:8")
    a("  s_waitcnt vmcnt(0)")
    for k in range(4):
        a(f"  ds_write2_b32 v{28+k}, v{12+2*k}, v{13+2*k} offset0:0 offset1:1")
    a(f"""
  s_waitcnt lgkmcnt(0)
  s_barrier
  ds_read_b128 v[8:11], v1
  ds_read_b128 v[12:15], v1 offset:12800
  ds_read_b128 v[16:19], v1 offset:25600
  s_waitcnt lgkmcnt(2)
  global_store_dwordx4 v2, v[8:11], s[20:21] {st}
  s_waitcnt lgkmcnt(1)
  global_store_dwordx4 v3, v[12:15], s[20:21] {st}
  s_waitcnt lgkmcnt(0)
  global_store_dwordx4 v34, v[16:19], s[20:21] {st}
@T5@
@TW6@
@T15@
@OUT1@
  s_endpgm
K1_PACK:
  s_cmp_ge_u32 s2, {NP+5}
  s_cbranch_scc1 K1_END
  s_load_dwordx2 s[10:11], s[0:1], 32
  s_load_dwordx8 s[12:19], s[0:1], 40
  s_load_dwordx2 s[20:21], s[0:1], 88
  v_lshrrev_b32 v33, 6, v0
  s_nop 0
  v_readfirstlane_b32 s23, v33
  s_cmp_ge_u32 s23, 4
  s_cbranch_scc1 K1_END
  s_waitcnt lgkmcnt(0)
  v_and_b32 v2, 31, v0
  v_bfe_u32 v3, v0, 5, 1
  v_and_b32 v34, 63, v0
  s_cmp_eq_u32 s2, {NP+4}
  s_cbranch_scc1 K1_PACKC
  s_mov_b32 s24, s12
  s_mov_b32 s25, s13
  s_mov_b32 s26, {NLOG2E:#x}
  s_cmp_eq_u32 s2, {NP}
  s_cbranch_scc1 K1_P1
  s_mov_b32 s26, 1.0
  s_mov_b32 s24, s18
  s_mov_b32 s25, s19
  s_cmp_eq_u32 s2, {NP+1}
  s_cbranch_scc1 K1_P1
  s_mov_b32 s24, s10
  s_mov_b32 s25, s11
  s_cmp_eq_u32 s2, {NP+2}
  s_cbranch_scc1 K1_P1
  s_mov_b32 s24, s16
  s_mov_b32 s25, s17
K1_P1:
  v_lshlrev_b32 v4, 12, v3
  v_lshl_add_u32 v4, v2, 2, v4
  s_lshl_b32 s27, s23, 10
  v_add_u32 v4, s27, v4
""")
    for j in range(8):
        a(f"  global_load_dword v{8+j}, v4, s[24:25] offset:{128*j}")
    a("  s_waitcnt vmcnt(0)")
    for j in range(8):
        a(f"  v_lshlrev_b32 v{16+j}, 16, v{8+j}")
        a(f"  v_and_b32 v{24+j}, 0xffff0000, v{8+j}")
        a(f"  v_mul_f32 v{16+j}, s26, v{16+j}")
        a(f"  v_mul_f32 v{24+j}, s26, v{24+j}")
    for jj in range(4):
        a(f"  v_cvt_pk_bf16_f32 v{36+jj}, v{16+2*jj}, v{17+2*jj}")
        a(f"  v_cvt_pk_bf16_f32 v{40+jj}, v{24+2*jj}, v{25+2*jj}")
    a(f"""
  s_sub_u32 s27, s2, {NP}
  s_lshl_b32 s27, s27, 2
  s_add_u32 s27, s27, s23
  s_lshl_b32 s27, s27, 11
  s_add_u32 s27, s27, {IMG}
  v_lshlrev_b32 v5, 4, v34
  v_add_u32 v5, s27, v5
  global_store_dwordx4 v5, v[36:39], s[20:21] {st}
  global_store_dwordx4 v5, v[40:43], s[20:21] offset:1024 {st}
  s_endpgm
K1_PACKC:
  s_cmp_lg_u32 s23, 0
  s_cbranch_scc1 K1_END
  v_lshlrev_b32 v4, 2, v2
  s_mov_b32 s26, {NLOG2E:#x}
""")
    for j in range(4):
        a(f"  global_load_dword v{8+j}, v4, s[14:15] offset:{128*j}")
    a("  s_waitcnt vmcnt(0)")
    for j in range(4):
        a(f"  v_lshlrev_b32 v{16+j}, 16, v{8+j}")
        a(f"  v_and_b32 v{24+j}, 0xffff0000, v{8+j}")
        a(f"  v_mul_f32 v{16+j}, s26, v{16+j}")
        a(f"  v_mul_f32 v{24+j}, s26, v{24+j}")
    a(f"""
  v_cvt_pk_bf16_f32 v36, v16, v17
  v_cvt_pk_bf16_f32 v37, v18, v19
  v_cvt_pk_bf16_f32 v38, v24, v25
  v_cvt_pk_bf16_f32 v39, v26, v27
  v_cmp_eq_u32 vcc, 0, v3
  v_mov_b32 v40, 0x71800000
  v_mov_b32 v41, 0
  v_cndmask_b32 v36, v40, v36, vcc
  v_cndmask_b32 v37, v41, v37, vcc
  v_cndmask_b32 v38, v40, v38, vcc
  v_cndmask_b32 v39, v41, v39, vcc
  v_lshlrev_b32 v5, 4, v34
  v_add_u32 v5, {IMG+32768}, v5
  global_store_dwordx4 v5, v[36:39], s[20:21] {st}
K1_END:
  s_endpgm
""")

vXA = 0
vI = 4
vC = 8
vEs, vEb, vE, vKb, vK = 12, 13, 14, 15, 16
vN4, vTSV, vOrd = 17, 18, 19
vNAc, vNAn = 20, 24
BEV = 28
vT0, vT1, vT2, vT3 = 36, 37, 38, 39
G, HV, AC = 40, 104, 120
NARCH = 152
WB, WV, EOP, ONE, X = 0, 32, 64, 68, 70
NACC = 102
sXR, sOUT, sREC, sOFF, sWM = 8, 12, 16, 20, 24
sM1, sM2, sSeg = 28, 44, 60
sW, sSB, sSW, sFirstB, sT, sT0, sT1, sTn, sTn2, sTau, sN, sF, sGn, sGlast, sCont, sG0, sM0, sMaxC, sTmp, sTmp2, sCur, sSlow, sPsel0, sPsel1, sB = range(68, 93)
sSave = 94
sB128, sFast, sTe, sMsk, sGc = 93, 3, 6, 7, 4
sKA = 4

def mfma16(d, A, B, C):
    return f"  v_mfma_f32_32x32x16_bf16 v[{d}:{d+15}], {A}, {B}, {C}"
def mfma8(d, A, B, C):
    return f"  v_mfma_f32_32x32x8_bf16 v[{d}:{d+15}], {A}, {B}, {C}"
g16 = lambda d: f"v[{d}:{d+15}]"
pr = lambda r: f"v[{r}:{r+1}]"
Gb = lambda k: G + 16*(k % 4)
Xb = lambda t, s: ar(X + 16*(t % 2) + 4*s, 4)
wb = lambda s, ct: ar(WB+(s*2+ct)*4, 4)
wv = lambda s, ct: ar(WV+(s*2+ct)*4, 4)
Eo = ar(EOP, 4); ON = ar(ONE, 2)
BEo = lambda ct: vr(BEV+4*ct, 4)

def flush_st(a):
    for q in range(8):
        r = AC + q*4
        a(f"  v_add_f32 v{r}, v{r}, v{r+1}")
        a(f"  v_add_f32 v{r+2}, v{r+2}, v{r+3}")
    for ct in range(2):
        for g in range(4):
            r = AC + (ct*4+g)*4
            a(f"  ds_write2_b32 v{vNAc+g}, v{r}, v{r+2} offset0:{64+32*ct} offset1:{128+32*ct}")
def flush_own(a, tag):
    a(f"  s_cmp_eq_u32 s{sFirstB}, 0\n  s_cbranch_scc1 K2_FR{tag}")
    flush_st(a)
    a(f"  s_branch K2_FE{tag}\nK2_FR{tag}:")
    flush(a)
    a(f"K2_FE{tag}:")
def wide_reduce(a, tag):
    a(f"  s_cmp_lg_u32 s{sGc}, 0\n  s_cbranch_scc1 K2_WR{tag}")
    prs = []
    for ct in range(2):
        for g in (0, 2):
            for d in (0, 2):
                prs.append((AC + (ct*4+g)*4 + d, AC + (ct*4+g+1)*4 + d))
    for x, y in prs: a(f"  v_pk_add_f32 {pr(x)}, {pr(x)}, {pr(y)}")
    for x, y in prs: a(f"  v_add_f32 v{x}, v{x}, v{x+1}")
    for x, y in prs: a(f"  v_mov_b32 v{x+1}, v{x}")
    a("  s_nop 1")
    for x, y in prs: a(f"  v_permlane32_swap_b32 v{x}, v{x+1}")
    a("  s_nop 1")
    for x, y in prs:
        a(f"  v_mov_b32 v{y}, v{x}")
        a(f"  v_mov_b32 v{y+1}, v{x+1}")
    a(f"K2_WR{tag}:")
def fin_addr(a, t):
    for g in range(4):
        a(f"  v_lshrrev_b32 v{t+g}, 8, v{vNAc+g}")
        a(f"  v_mul_u32_u24 v{t+g}, 10923, v{t+g}")
        a(f"  v_subrev_u32 v{t+g}, {(NODE//256)*10923}, v{t+g}")
        a(f"  v_and_or_b32 v{t+g}, v{t+g}, s{sMsk}, v{vN4}")
def x_pref(a, t):
    fin_addr(a, t)
    for g in range(4):
        a(f"  buffer_load_dword v{vT0+g}, v{t+g}, s[{sXR}:{sXR+3}], s{sB128} offen")
def fin1(a):
    for g in range(4):
        a(f"  ds_read_b32 v{HV+4+g}, v{vNAc+g} offset:128")
    fin_addr(a, HV+8)
def fin2(a):
    a(f"  s_mov_b32 s{sTmp}, 0x358637bd")
    for q in range(8): a(f"  v_add_f32 v{AC+4*q+2}, s{sTmp}, v{AC+4*q+2}")
    for q in range(8): a(f"  v_rcp_f32 v{AC+4*q+2}, v{AC+4*q+2}")
    a("  s_waitcnt lgkmcnt(0)")
    for g in range(4):
        a(f"  v_lshlrev_b32 v{AC+4*g+1}, 16, v{HV+4+g}")
        a(f"  v_and_b32 v{AC+4*(4+g)+1}, 0xffff0000, v{HV+4+g}")
    for q in range(8): a(f"  v_fma_f32 v{AC+4*q}, v{AC+4*q}, v{AC+4*q+2}, v{AC+4*q+1}")
    for q in range(8): a(f"  v_max_f32 v{AC+4*q}, 0, v{AC+4*q}")
    for g in range(4):
        a(f"  v_lshlrev_b32 v{AC+4*g+1}, 16, v{vT0+g}")
        a(f"  v_and_b32 v{AC+4*(4+g)+1}, 0xffff0000, v{vT0+g}")
    for q in range(8): a(f"  v_add_f32 v{AC+4*q}, v{AC+4*q}, v{AC+4*q+1}")
    for g in range(4):
        a(f"  v_cvt_pk_bf16_f32 v{AC+4*g}, v{AC+4*g}, v{AC+4*(4+g)}")
        a(f"  buffer_store_dword v{AC+4*g}, v{HV+8+g}, s[{sOUT}:{sOUT+3}], s{sB128} offen")
def m_event1(a):
    a("  s_waitcnt lgkmcnt(0)")
    for g in range(4): a(f"  v_add_u32 v{vNAn+g}, v{vNAn+g}, v{vN4}")
    for g in range(4): a(f"  ds_read_b32 v{vT0+g}, v{vNAn+g}")
def m_event2(a):
    for ct in range(2):
        for i in range(2):
            a(f"  v_perm_b32 v{BEV+4*ct+2+i}, v{vT0+2*i+1}, v{vT0+2*i}, s{sPsel0+ct}")

def flush(a):
    for ct in range(2):
        for g in range(4):
            t = HV + (ct*4+g)*2
            a(f"  ds_read2_b32 v[{t}:{t+1}], v{vNAc+g} offset0:{64+32*ct} offset1:{128+32*ct}")
    for q in range(8):
        r = AC + q*4
        a(f"  v_add_f32 v{r}, v{r}, v{r+1}")
        a(f"  v_add_f32 v{r+2}, v{r+2}, v{r+3}")
    a("  s_waitcnt lgkmcnt(0)")
    for q in range(8):
        r = AC + q*4; t = HV + q*2
        a(f"  v_add_f32 v{r}, v{r}, v{t}")
        a(f"  v_add_f32 v{r+2}, v{r+2}, v{t+1}")
    for ct in range(2):
        for g in range(4):
            r = AC + (ct*4+g)*4
            a(f"  ds_write2_b32 v{vNAc+g}, v{r}, v{r+2} offset0:{64+32*ct} offset1:{128+32*ct}")

def next_tile(dst, src):
    return [f"  s_add_u32 s{dst}, s{src}, 1", f"  s_cmp_eq_u32 s{dst}, s{sT1}", f"  s_cselect_b32 s{dst}, s{sT0}, s{dst}"]

def dma(i):
    if OPT["nodma"]: return "  s_nop 0"
    return f"  buffer_load_dwordx4 v{vI+i}, s[{sXR}:{sXR+3}], 0 offen lds"
def la(i):
    return f"  v_lshl_add_u32 v{vI+i}, v{vI+i}, 7, v{vC+i}"

def ord_read(a, t=None):
    t = HV + 12 if t is None else t
    a(f"  s_lshl_b32 s{sTmp}, s{sGn}, 5\n  v_add_u32 v{t}, s{sTmp}, v{vOrd}\n  ds_read_b128 v[{vNAn}:{vNAn+3}], v{t}")
def next_group(a):
    a(f"  s_add_u32 s{sTmp}, s{sGn}, 1\n  s_cmp_lt_u32 s{sGn}, s{sGlast}\n  s_cselect_b32 s{sGn}, s{sTmp}, s{sG0}")
def m_event(a, t=None):
    t = HV + 12 if t is None else t
    a("  s_waitcnt lgkmcnt(0)")
    for g in range(4): a(f"  v_add_u32 v{vNAn+g}, v{vNAn+g}, v{vN4}")
    for g in range(4): a(f"  ds_read_b32 v{t+g}, v{vNAn+g}")
    a("  s_waitcnt lgkmcnt(0)")
    for ct in range(2):
        for i in range(2):
            a(f"  v_perm_b32 v{BEV+4*ct+2+i}, v{t+2*i+1}, v{t+2*i}, s{sPsel0+ct}")

def p_unit(a, k, first):
    ct = k & 1
    for half in range(2):
        for gq in range(4):
            e = Gb(k) + 4*gq; h = HV + 4*gq; r = AC + (ct*4+gq)*4
            if first:
                if half == 0:
                    a(f"  v_pk_mul_f32 {pr(r)}, {pr(e)}, {pr(h)}")
                    a(f"  v_pk_add_f32 {pr(r+2)}, {pr(e)}, {pr(e+2)}")
                else:
                    a(f"  v_pk_fma_f32 {pr(r)}, {pr(e+2)}, {pr(h+2)}, {pr(r)}")
            else:
                a(f"  v_pk_fma_f32 {pr(r)}, {pr(e+2*half)}, {pr(h+2*half)}, {pr(r)}")
                a(f"  v_pk_add_f32 {pr(r+2)}, {pr(e+2*half)}, {pr(r+2)}")

def t_unit(a, k):
    t, ct = k >> 1, k & 1
    T = [f"  v_exp_f32 v{Gb(k+1)+i}, v{Gb(k+1)+i}" for i in range(16)] + [f"  v_rcp_f32 v{Gb(k)+i}, v{Gb(k)+i}" for i in range(16)]
    Hm = [mfma16(HV, Xb(t, s), wv(s, ct), g16(HV) if s else "0") for s in range(4)]
    d = Gb(k+2)
    Gm = [mfma16(d, Eo, BEo(ct), "0")] + [mfma16(d, Xb(t+1, s), wb(s, ct), g16(d)) for s in range(4)]
    A1 = mfma8(Gb(k+1), ON, ON, g16(Gb(k+1)))
    M = [Hm[0], Gm[0], Hm[1], Gm[1], Hm[2], Gm[2], A1, Hm[3], Gm[3], Gm[4]]
    side = [[] for _ in M]
    nt = next_tile(sTn2, sTn)
    if ct == 0:
        pre = ["  s_waitcnt lgkmcnt(0)", la(0), la(1)]
        side[0] = [f"  s_mov_b32 m0, s{sM0}", la(2), la(3)]
        side[1] = [dma(0), f"  s_add_u32 m0, s{sM0}, 1024"]
        side[2] = [dma(1), f"  s_add_u32 m0, s{sM0}, 2048"]
        side[3] = [dma(2), f"  s_add_u32 m0, s{sM0}, 3072"]
        side[4] = [dma(3), nt[0]]
        side[5] = [nt[1], nt[2]]
        side[7] = [f"  s_lshl_b32 s{sTmp}, s{sTn2}, 7", f"  v_add_u32 v{vK}, s{sTmp}, v{vKb}"]
        side[8] = [f"  ds_read_b128 v[{vI}:{vI+3}], v{vK}", f"  v_mad_u32_u24 v{vE}, v{vEs}, s{sTn}, v{vEb}"]
        side[9] = [f"  s_mov_b32 s{sTn}, s{sTn2}"]
    else:
        pre = []
        side[2] = [f"  ds_read2_b32 a[{EOP}:{EOP+1}], v{vE} offset0:0 offset1:1"]
        side[7] = ["  s_waitcnt vmcnt(0)"]
        side[8] = [f"  ds_read_b128 {Xb(t,0)}, v{vXA}", f"  ds_read_b128 {Xb(t,1)}, v{vXA+1}"]
        side[9] = [f"  ds_read_b128 {Xb(t,2)}, v{vXA+2}", f"  ds_read_b128 {Xb(t,3)}, v{vXA+3}"]
    if OPT["prio"] == 2: a("  s_setprio 0")
    for p_ in pre: a(p_)
    ti = 0
    for i, m in enumerate(M):
        a(m)
        for s_ in side[i]: a(s_)
        n = 3 if i < 9 else 32 - ti
        for _ in range(n):
            a(T[ti]); ti += 1
    if OPT["prio"] == 2: a("  s_setprio 1")

def tile_code(a, par):
    for ct in range(2):
        k = 2*par + ct
        t_unit(a, k)
        a(f"  s_bitcmp1_b32 s{sF}, s{sTau}\n  s_cbranch_scc0 K2_PN{k}")
        p_unit(a, k, True)
        a(f"  s_branch K2_PE{k}\nK2_PN{k}:")
        p_unit(a, k, False)
        a(f"K2_PE{k}:")
    a(f"""  s_add_u32 s{sTau}, s{sTau}, 1
  s_cmp_ge_u32 s{sTau}, s{sN}
  s_cbranch_scc1 K2_LAST
  s_bitcmp1_b32 s{sF}, s{sTau}
  s_cbranch_scc1 K2_EV""")
    a(f"""K2_NF{par}:
  s_add_u32 s{sTmp}, s{sTau}, 1
  s_bitcmp1_b32 s{sF}, s{sTmp}
  s_cbranch_scc0 K2_NM{par}""")
    m_event(a)
    a(f"K2_NM{par}:")

def gen_k2(a):
    ld = OPT["ld_flags"]
    R = lambda k: 40 + 4*k
    A4 = lambda k: 104 + k
    OF, VA = 120, 128
    WR = 136
    vTid, vLane, vOne = 4, 5, 6
    vL1, vL2, vBase, vMx = 20, 21, 22, 23
    def msk(k): return (sM1 + 2*k) if k < 8 else (sM2 + 2*(k-8))
    a(f"""
.globl main_kernel
.p2align 8
.type main_kernel,@function
main_kernel:
  s_cmp_ge_u32 s2, 256
  s_cbranch_scc1 K2_END
  s_load_dwordx8 s[28:35], s[0:1], 64       ; w_v out dbg ws
  s_load_dwordx2 s[4:5], s[0:1], 0          ; x
  v_lshrrev_b32 v{vT0}, 6, v0
  v_mov_b32 v{vTid}, v0
  v_readfirstlane_b32 s{sW}, v{vT0}
  v_and_b32 v{vLane}, 63, v0
@CPF2@
@S0@
  v_lshrrev_b32 v{vT1}, 4, v0
  v_and_b32 v{vT2}, 7, v0
  v_lshl_add_u32 v{vTSV}, v{vT1}, 3, v{vT2}
  v_lshlrev_b32 v{vTSV}, 10, v{vTSV}          ; (8G + (l&7))*1024
  s_and_b32 s{sB}, s2, 7
  s_lshl_b32 s{sB}, s{sB}, 5
  s_lshr_b32 s{sTmp}, s2, 3
  s_or_b32 s{sB}, s{sB}, s{sTmp}
  s_lshl_b32 s{sTmp}, s{sB}, 2
  s_add_u32 s{sTmp}, s{sTmp}, {OFFS}
  s_mov_b32 s{sOFF+2}, {(NP-1)*1024+4}
  s_mov_b32 s{sOFF+3}, 0x20000
  s_mov_b32 s{sSB}, 0
  s_mov_b32 s{sSW}, 32
  s_mov_b32 s{sFirstB}, 1
  v_and_b32 v{vT0}, 31, v{vLane}
  v_lshlrev_b32 v{vN4}, 2, v{vT0}
  v_mov_b32 v40, 0
  v_mov_b32 v41, 0
  v_mov_b32 v42, 0
  v_mov_b32 v43, 0
  v_lshrrev_b32 v{vT2}, 5, v{vTid}
  v_mul_u32_u24 v{vT2}, {ROWB}, v{vT2}
  v_lshl_add_u32 v{vT2}, v{vT0}, 4, v{vT2}
  v_add_u32 v{vT2}, {NODE+256}, v{vT2}
  v_add_u32 v{vT3}, {4*16*ROWB}, v{vT2}
""")
    for k in range(7):
        t = vT2 if k < 4 else vT3
        a(f"  ds_write_b128 v{t}, v[40:43] offset:{(k&3)*16*ROWB}")
    a(f"""
  v_lshlrev_b32 v{vT2}, 4, v{vTid}
  ds_write_b128 v{vT2}, v[40:43] offset:{EA0}
  ds_write_b128 v{vT2}, v[40:43] offset:{EA0+8192}
  s_waitcnt lgkmcnt(0)
  s_add_u32 s{sOFF}, s34, s{sTmp}
  s_addc_u32 s{sOFF+1}, s35, 0
  s_and_b32 s{sOFF+1}, s{sOFF+1}, 0xffff
@OFFS_A@
  s_mov_b32 s96, s34
  s_mov_b32 s97, s35
  s_mov_b32 s{sXR}, s4
  s_and_b32 s{sXR+1}, s5, 0xffff
  s_mov_b32 s{sXR+2}, 3200000
  s_mov_b32 s{sXR+3}, 0x20000
  s_mov_b32 s{sOUT}, s30
  s_and_b32 s{sOUT+1}, s31, 0xffff
  s_mov_b32 s{sOUT+2}, 3200000
  s_mov_b32 s{sOUT+3}, 0x20000
  s_mov_b32 s{sREC}, s34
  s_and_b32 s{sREC+1}, s35, 0xffff
  s_mov_b32 s{sREC+2}, {NP*RECB}
  s_mov_b32 s{sREC+3}, 0x20000
  s_add_u32 s{sWM}, s34, {IMG}
  s_addc_u32 s{sWM+1}, s35, 0
  s_and_b32 s{sWM+1}, s{sWM+1}, 0xffff
  s_mov_b32 s{sWM+2}, {32768+1024}
  s_mov_b32 s{sWM+3}, 0x20000
  v_lshlrev_b32 v{vK}, 4, v{vLane}
  s_lshl_b32 s{sTmp}, s{sW}, 12
  s_add_u32 s{sTmp2}, s{sTmp}, {RING}
  s_add_u32 s{sN}, s{sTmp}, {IMA-16384}
  s_cmp_lt_u32 s{sW}, 4
  s_cselect_b32 m0, s{sTmp2}, s{sN}
  s_mov_b32 s{sN}, 32768
  buffer_load_dwordx4 v{vK}, s[{sWM}:{sWM+3}], s{sTmp} offen lds
  buffer_load_dwordx4 v{vK}, s[{sWM}:{sWM+3}], s{sTmp} offen offset:1024 lds
  buffer_load_dwordx4 v{vK}, s[{sWM}:{sWM+3}], s{sTmp} offen offset:2048 lds
  buffer_load_dwordx4 v{vK}, s[{sWM}:{sWM+3}], s{sTmp} offen offset:3072 lds
  buffer_load_dwordx2 v[{BEV}:{BEV+1}], v{vK}, s[{sWM}:{sWM+3}], s{sN} offen
  buffer_load_dwordx2 v[{BEV+4}:{BEV+5}], v{vK}, s[{sWM}:{sWM+3}], s{sN} offen offset:8
  v_lshrrev_b32 v{vT2}, 3, v{vLane}
  v_lshlrev_b32 v{vT2}, 15, v{vT2}
  v_and_b32 v{vT3}, 7, v{vLane}
  v_lshrrev_b32 v{vE}, 4, v{vLane}
  v_xor_b32 v{vT3}, v{vT3}, v{vE}
  v_lshl_add_u32 v{vE}, v{vT3}, 4, v{vT2}
  v_xor_b32 v{vT3}, 4, v{vT3}
  v_lshl_add_u32 v{vK}, v{vT3}, 4, v{vT2}
  s_lshl_b32 s{sTmp}, s{sW}, 19
  s_lshl_b32 s{sTmp2}, s{sB}, 7
  s_add_u32 s{sTmp}, s{sTmp}, s{sTmp2}
  s_add_u32 s{sTmp2}, s{sTmp}, {8*32768}
  s_lshl_b32 s{sN}, s{sW}, 11
  s_add_u32 m0, s{sN}, {XO}
  s_nop 0
  buffer_load_dwordx4 v{vE}, s[{sXR}:{sXR+3}], s{sTmp} offen lds
  s_add_u32 m0, s{sN}, {XO+1024}
  s_nop 0
  buffer_load_dwordx4 v{vK}, s[{sXR}:{sXR+3}], s{sTmp2} offen lds
@OFFS_B@
  s_mov_b32 s{sPsel0}, 0x05040100
  s_mov_b32 s{sPsel1}, 0x07060302
""")
    for i in range(8):
        a(f"  s_mov_b32 s{sSeg+i}, {i*RECB}")
    a(f"""
  v_lshrrev_b32 v{vT1}, 5, v{vLane}
  v_lshlrev_b32 v{vOrd}, 4, v{vT1}
  v_add_u32 v{vOrd}, {ORDA}, v{vOrd}
  v_cmp_eq_u32 vcc, 0, v{vT1}
  v_mov_b32 v{vT2}, 0x3f80
  v_mov_b32 v{vT3}, 0
  v_cndmask_b32 v{vT2}, v{vT3}, v{vT2}, vcc
  v_accvgpr_write_b32 a{ONE}, v{vT2}
  v_accvgpr_write_b32 a{ONE+1}, v{vT3}
  v_mov_b32 v{vT2}, 128
  v_mov_b32 v{vT3}, 256
  v_cndmask_b32 v{vEs}, v{vT2}, v{vT3}, vcc
  v_lshlrev_b32 v{vT2}, 3, v{vT0}
  v_add_u32 v{vT3}, {K0}, v{vN4}
  v_cndmask_b32 v{vEb}, v{vT3}, v{vT2}, vcc
  v_lshrrev_b32 v{vT2}, 3, v{vLane}
  v_lshlrev_b32 v{vKb}, 4, v{vT2}
  v_add_u32 v{vKb}, {K0}, v{vKb}
  v_bfe_u32 v{vT2}, v{vT0}, 2, 1
  v_cmp_eq_u32 vcc, v{vT2}, v{vT1}
  v_bfe_u32 v{vT2}, v{vT0}, 3, 1
  v_lshlrev_b32 v{vT2}, 4, v{vT2}
  v_mov_b32 v{vT3}, 0x3f80
  v_lshlrev_b32 v{vT3}, v{vT2}, v{vT3}
  v_cndmask_b32 v{vT3}, 0, v{vT3}, vcc
  v_cmp_gt_u32 vcc, 16, v{vT0}
  s_nop 1
  v_cndmask_b32 v{vT2}, 0, v{vT3}, vcc
  v_cndmask_b32 v{vT3}, v{vT3}, 0, vcc
  v_accvgpr_write_b32 a{EOP+2}, v{vT2}
  v_accvgpr_write_b32 a{EOP+3}, v{vT3}
  v_and_b32 v{vT2}, 7, v{vLane}
  v_bfe_u32 v{vT3}, v{vLane}, 4, 1
  v_lshlrev_b32 v{vT3}, 2, v{vT3}
  v_xor_b32 v{vT2}, v{vT2}, v{vT3}
""")
    for i in range(4):
        a(f"  v_xor_b32 v{vC+i}, {i}, v{vT2}\n  v_lshlrev_b32 v{vC+i}, 4, v{vC+i}")
    a(f"""
  v_bfe_u32 v{vT2}, v{vT0}, 1, 3
  v_lshlrev_b32 v{vT3}, 2, v{vT1}
  v_xor_b32 v{vT2}, v{vT2}, v{vT3}
  v_lshlrev_b32 v{vT3}, 7, v{vT0}
  v_add_u32 v{vT3}, {XO}, v{vT3}
""")
    for s_ in range(4):
        a(f"  v_xor_b32 v{24+s_}, {s_}, v{vT2}\n  v_lshl_add_u32 v{24+s_}, v{24+s_}, 4, v{vT3}")
    a(f"""
  s_lshl_b32 s{sM0}, s{sW}, 12
  s_add_u32 s{sM0}, s{sM0}, {RING}
  v_mul_u32_u24 v7, {4*ROWB}, v{vT1}
  v_add_u32 v7, v7, v{vN4}
  v_and_b32 v{vT2}, 3, v{vT0}
  v_bfe_u32 v{vK}, v{vT0}, 3, 1
  v_xor_b32 v{vK}, v{vK}, v{vT1}
  v_lshl_or_b32 v{vK}, v{vK}, 2, v{vT2}
  v_lshlrev_b32 v{vT2}, 10, v{vT2}
  v_lshrrev_b32 v{vT0}, 2, v{vT0}
  v_lshl_add_u32 v{vT2}, v{vT0}, 7, v{vT2}
  v_add_u32 v{vT2}, s{sM0}, v{vT2}
""")
    for s_ in range(4):
        a(f"  v_xor_b32 v{vXA+s_}, {s_}, v{vK}\n  v_lshl_add_u32 v{vXA+s_}, v{vXA+s_}, 4, v{vT2}")
    a(f"""
K2_RESET:
  v_mov_b32 v40, 0
  v_mov_b32 v41, 0
  v_mov_b32 v42, 0
  v_mov_b32 v43, 0
  v_mov_b32 v44, 1.0
  v_mov_b32 v45, 1.0
  v_mov_b32 v46, 1.0
  v_mov_b32 v47, 1.0
  v_mov_b32 v{vOne}, 1
  v_lshlrev_b32 v{vT2}, 4, v{vTid}
  ds_write_b128 v{vT2}, v[44:47] offset:{K0}
  ds_write_b128 v{vT2}, v[44:47] offset:{K0+8192}
  v_cmp_gt_u32 vcc, {(MISC+64-CNT)//16}, v{vTid}
  s_and_saveexec_b64 s[{sSave}:{sSave+1}], vcc
  ds_write_b128 v{vT2}, v[40:43] offset:{CNT}
  s_mov_b64 exec, s[{sSave}:{sSave+1}]
  v_and_b32 v{vT0}, 15, v{vTid}
  v_add_u32 v{vT1}, 16, v{vT0}
  v_mov_b32 v{vT3}, 0xffff
  v_cmp_gt_u32 vcc, s{sSW}, v{vT0}
  v_add_u32 v{vT2}, s{sSB}, v{vT0}
  s_nop 0
  v_cndmask_b32 v{vL1}, v{vT3}, v{vT2}, vcc
  v_cmp_gt_u32 vcc, s{sSW}, v{vT1}
  v_add_u32 v{vT1}, s{sSB}, v{vT1}
  s_nop 0
  v_cndmask_b32 v{vL2}, v{vT3}, v{vT1}, vcc
  v_mul_u32_u24 v{vT2}, 12, v{vT2}
  v_lshrrev_b32 v{vT1}, 4, v{vTid}
  s_mov_b32 s{sTmp}, {8*RECB}
  v_mad_u32_u24 v{vBase}, v{vT1}, s{sTmp}, v{vT2}
  s_cmp_eq_u32 s{sFirstB}, 1
  s_cbranch_scc1 K2_OFW
  v_and_b32 v{vT2}, 7, v{vTid}
  v_lshl_add_u32 v{vT2}, v{vT1}, 3, v{vT2}
  v_lshlrev_b32 v{vT2}, 10, v{vT2}
  buffer_load_dword v{vMx}, v{vT2}, s[{sOFF}:{sOFF+3}], 0 offen
  s_waitcnt vmcnt(0)
K2_OFW:
  s_waitcnt vmcnt(@OFFW@)
@S3@
""")
    for i in range(8):
        a(f"  v_mov_b32_dpp v{OF+i}, v{vMx} row_newbcast:{i} row_mask:0xf bank_mask:0xf")
    for i in range(8):
        a(f"  v_add_u32_sdwa v{VA+i}, v{OF+i}, v{vBase} dst_sel:DWORD dst_unused:UNUSED_PAD src0_sel:WORD_0 src1_sel:DWORD")
        a(f"  v_cmp_lt_u32_sdwa s[{sM1+2*i}:{sM1+2*i+1}], v{vL1}, v{OF+i} src0_sel:DWORD src1_sel:WORD_1")
        a(f"  s_mov_b64 exec, s[{sM1+2*i}:{sM1+2*i+1}]")
        a(f"  buffer_load_dwordx3 v[{R(i)}:{R(i)+2}], v{VA+i}, s[{sREC}:{sREC+3}], s{sSeg+i} offen {ld}")
        a("  s_mov_b64 exec, -1")
    a(f"  s_mov_b32 s{sN}, 0")
    for i in range(8):
        a(f"  v_cmp_lt_u32_sdwa s[{sM2+2*i}:{sM2+2*i+1}], v{vL2}, v{OF+i} src0_sel:DWORD src1_sel:WORD_1")
    for i in range(8):
        a(f"  s_mov_b64 exec, s[{sM2+2*i}:{sM2+2*i+1}]")
        a(f"  s_cbranch_execz K2_LS{i}")
        a(f"  s_add_u32 s{sN}, s{sN}, 1")
        a(f"  buffer_load_dwordx3 v[{R(8+i)}:{R(8+i)+2}], v{VA+i}, s[{sREC}:{sREC+3}], s{sSeg+i} offen offset:192 {ld}")
        a(f"K2_LS{i}:")
    a(f"""
  s_mov_b64 exec, -1
  v_max3_u32 v{vT2}, v{OF}, v{OF+1}, v{OF+2}
  v_max3_u32 v{vT3}, v{OF+3}, v{OF+4}, v{OF+5}
  v_max3_u32 v{vT2}, v{OF+6}, v{OF+7}, v{vT2}
  v_max_u32 v{vT2}, v{vT2}, v{vT3}
  v_lshrrev_b32 v{vMx}, 16, v{vT2}
  v_mov_b32 v{vT2}, {MISC}
  s_mov_b32 s{sSave}, 0x00010001
  s_mov_b32 s{sSave+1}, 0x00010001
  v_lshlrev_b32 v{vK}, 4, v{vLane}
  v_add_u32 v{vE}, {RING}, v{vK}
@IMGW@
  s_waitcnt lgkmcnt(0)
@S5@
  s_barrier
  s_mov_b64 exec, s[{sSave}:{sSave+1}]
  ds_max_u32 v{vT2}, v{vMx}
  s_mov_b64 exec, -1
  s_cmp_eq_u32 s{sFirstB}, 0
  s_cbranch_scc1 K2_RANK
  s_lshr_b32 s{sTmp}, s{sW}, 1
  s_lshl_b32 s{sTmp2}, s{sTmp}, 12
  s_mul_i32 s{sTmp}, s{sTmp}, {32*ROWB}
""")
    for s_ in range(4):
        a(f"  v_add_u32 v{vT0+s_}, s{sTmp2}, v{24+s_}")
    for s_ in range(4):
        a(f"  ds_read_b128 {Xb(1,s_)}, v{vT0+s_}")
    a(f"""
  s_mov_b32 s{sCur}, {NLOG2E:#x}
  s_and_b32 s{sTmp2}, s{sW}, 1
  s_cselect_b32 s{sCur}, 1.0, s{sCur}
  s_lshl_b32 s{sN}, s{sTmp2}, 13
  s_add_u32 s{sN}, s{sN}, {IMA}
  v_add_u32 v{vT0}, s{sN}, v{vK}
  s_lshl_b32 s{sTmp2}, s{sTmp2}, 7
  s_add_u32 s{sTmp}, s{sTmp}, s{sTmp2}
  s_add_u32 s{sTmp}, s{sTmp}, {NODE}
  v_add_u32 v{vT1}, s{sTmp}, v7
""")
    for q in range(8):
        a(f"  ds_read_b128 {ar(4*q,4)}, v{vT0} offset:{1024*q}")
    for s_ in range(4):
        for ct in range(2):
            a(f"  s_waitcnt lgkmcnt({7-2*s_-ct})")
            a(mfma16(120+16*ct, Xb(1,s_), ar((s_*2+ct)*4,4), g16(120+16*ct) if s_ else "0"))
    for q in range(8):
        a(f"  ds_read_b128 {ar(32+4*q,4)}, v{vE} offset:{8192+1024*q}")
    a("  s_nop 3")
    for r in range(16):
        a(f"  v_mul_f32 v{120+r}, s{sCur}, v{120+r}")
        a(f"  v_mul_f32 v{136+r}, s{sCur}, v{136+r}")
        a(f"  v_cvt_pk_bf16_f32 v{120+r}, v{120+r}, v{136+r}")
        a(f"  ds_write_b32 v{vT1}, v{120+r} offset:{(8*(r>>2)+(r&3))*ROWB}")
        if r == 2: a(f"  s_cmp_ge_u32 s{sW}, 6\n  s_cbranch_scc1 K2_JOBE")
    a("K2_JOBE:")
    for q in range(8):
        a(f"  ds_read_b128 {ar(4*q,4)}, v{vE} offset:{1024*q}")
    a(f"""
K2_RANK:
  s_waitcnt vmcnt(0)
@S6@
@XPF@
""")
    for k in range(16):
        a(f"  s_mov_b64 exec, s[{msk(k)}:{msk(k)+1}]")
        if k >= 8: a(f"  s_cbranch_execz K2_RS{k}")
        a(f"  v_lshrrev_b32 v{A4(k)}, 16, v{R(k)+2}")
        a(f"  ds_add_rtn_u32 v{R(k)+3}, v{A4(k)}, v{vOne} offset:{CNT}")
        if k >= 8: a(f"K2_RS{k}:")
    a(f"""  s_mov_b64 exec, -1
  s_waitcnt lgkmcnt(0)
  s_barrier
@S7@
  s_cmp_lg_u32 s{sW}, 0
  s_cbranch_scc1 K2_PRE""")
    c0, c1, q0, q1, b0, b1, p0, p1, hv, ex, e0, e1, m0_, m1_, t0_, t1_ = range(120, 136)
    u0, u1, l4 = vT0, vT1, vT2
    a(f"""
  v_lshlrev_b32 v{l4}, 2, v{vLane}
  ds_read2st64_b32 v[{c0}:{c1}], v{l4} offset0:{CNT//256} offset1:{CNT//256+1}
  s_waitcnt lgkmcnt(0)
  v_add_u32 v{q0}, 3, v{c0}
  v_add_u32 v{q1}, 3, v{c1}
  v_lshrrev_b32 v{q0}, 2, v{q0}
  v_lshrrev_b32 v{q1}, 2, v{q1}
  v_min_u32 v{b0}, 63, v{q0}
  v_min_u32 v{b1}, 63, v{q1}
  v_sub_u32 v{b0}, 63, v{b0}
  v_sub_u32 v{b1}, 63, v{b1}
  v_lshlrev_b32 v{b0}, 2, v{b0}
  v_lshlrev_b32 v{b1}, 2, v{b1}
  ds_add_rtn_u32 v{p0}, v{b0}, v{vOne} offset:{HIST}
  ds_add_rtn_u32 v{p1}, v{b1}, v{vOne} offset:{HIST}
  ds_read_b32 v{hv}, v{l4} offset:{HIST}
  v_lshl_or_b32 v{q0}, v{q0}, 8, v{vLane}
  v_add_u32 v{u1}, 64, v{vLane}
  v_lshl_or_b32 v{q1}, v{q1}, 8, v{u1}
  s_waitcnt lgkmcnt(0)
  v_mov_b32 v{ex}, v{hv}
""")
    dpp_scan(a, ex)
    a(f"""
  v_sub_u32 v{ex}, v{ex}, v{hv}
  ds_bpermute_b32 v{u0}, v{b0}, v{ex}
  ds_bpermute_b32 v{u1}, v{b1}, v{ex}
  v_cmp_gt_u32 vcc, 8, v{vLane}
  v_subrev_u32 v{c0}, 24, v{l4}
  v_and_b32 v{c1}, 4, v{vLane}
  s_mov_b32 s{sTmp2}, 0xff
  v_cndmask_b32 v{c0}, v{c0}, v{c1}, vcc
  s_waitcnt lgkmcnt(0)
  v_add_lshl_u32 v{u0}, v{u0}, v{p0}, 2
  v_add_lshl_u32 v{u1}, v{u1}, v{p1}, 2
  ds_write_b32 v{u0}, v{q0} offset:{ORDQ}
  ds_write_b32 v{u1}, v{q1} offset:{ORDQ}
  ds_read_b32 v{e0}, v{c0} offset:{ORDQ}
  ds_read_b32 v{e1}, v{l4} offset:{ORDQ+232}
  s_waitcnt lgkmcnt(0)
  v_add_u32 v{c0}, 0x300, v{e0}
  v_lshrrev_b32 v{c0}, 2, v{c0}
  v_bfi_b32 v{c0}, s{sTmp2}, v{e0}, v{c0}
  v_cndmask_b32 v{e0}, v{e0}, v{c0}, vcc
  v_mov_b32 v{m0_}, v{e0}
  v_mov_b32 v{m1_}, v{e1}
""")
    for mode in ("quad_perm:[1,0,3,2]", "quad_perm:[2,3,0,1]", "row_half_mirror"):
        a(f"  s_nop 0\n  v_max_u32_dpp v{m0_}, v{m0_}, v{m0_} {mode} row_mask:0xf bank_mask:0xf")
        a(f"  v_max_u32_dpp v{m1_}, v{m1_}, v{m1_} {mode} row_mask:0xf bank_mask:0xf")
    a(f"""
  v_lshrrev_b32 v{m0_}, 8, v{m0_}
  v_lshrrev_b32 v{m1_}, 8, v{m1_}
  v_mov_b32 v{t0_}, v{m0_}
  v_mov_b32 v{t1_}, v{m1_}
""")
    for mode in ("row_shr:8 row_mask:0xf", "row_bcast:15 row_mask:0xa", "row_bcast:31 row_mask:0xc"):
        a(f"  s_nop 0\n  v_add_u32_dpp v{t0_}, v{t0_}, v{t0_} {mode} bank_mask:0xf")
        a(f"  v_add_u32_dpp v{t1_}, v{t1_}, v{t1_} {mode} bank_mask:0xf")
    a(f"""
  s_nop 0
  v_readlane_b32 s{sTmp}, v{t0_}, 63
  v_sub_u32 v{t0_}, v{t0_}, v{m0_}
  v_sub_u32 v{m1_}, v{t1_}, v{m1_}
  v_add_u32 v{t1_}, s{sTmp}, v{t1_}
  v_add_u32 v{m1_}, s{sTmp}, v{m1_}
  v_and_b32 v{u0}, 7, v{vLane}
  v_lshl_or_b32 v{u1}, v{u0}, 5, 2
  v_lshl_or_b32 v{u0}, v{c1}, 5, 4
  v_cndmask_b32 v{u0}, v{u1}, v{u0}, vcc
  v_lshl_add_u32 v{p0}, v{t0_}, 8, v{u0}
  v_lshl_add_u32 v{p1}, v{m1_}, 8, v{u1}
  v_and_b32 v{e0}, 0xff, v{e0}
  v_and_b32 v{e1}, 0xff, v{e1}
  v_lshlrev_b32 v{c0}, 2, v{e0}
  v_lshlrev_b32 v{c1}, 2, v{e1}
  ds_write_b32 v{c0}, v{p0} offset:{NB}
  ds_write_b32 v{c1}, v{p1} offset:{NB}
  v_lshrrev_b32 v{u0}, 1, v{vLane}
  v_add_u32 v{u0}, {TSV}, v{u0}
  s_mov_b32 s{sSave}, 0x01010101
  s_mov_b32 s{sSave+1}, 0x01010101
  s_mov_b64 exec, s[{sSave}:{sSave+1}]
  ds_write2_b32 v{u0}, v{t0_}, v{m1_} offset0:0 offset1:8
  s_mov_b32 s{sSave}, 0
  s_mov_b32 s{sSave+1}, 0x80000000
  s_mov_b64 exec, s[{sSave}:{sSave+1}]
  v_mov_b32 v{u1}, {TSV+64}
  ds_write2_b32 v{u1}, v{t1_}, v{hv} offset0:0 offset1:1
  s_mov_b64 exec, -1
  v_min_u32 v{e0}, 98, v{e0}
  v_min_u32 v{e1}, 98, v{e1}
  v_mov_b32 v{c0}, {NODE}
  s_mov_b32 s{sTmp}, {ROWB}
  v_mad_u32_u24 v{e0}, v{e0}, s{sTmp}, v{c0}
  v_mad_u32_u24 v{e1}, v{e1}, s{sTmp}, v{c0}
  v_and_b32 v{c0}, 1, v{vLane}
  v_lshlrev_b32 v{c0}, 4, v{c0}
  v_bfe_u32 v{c1}, v{vLane}, 1, 2
  v_lshl_add_u32 v{c0}, v{c1}, 2, v{c0}
  v_and_b32 v{c1}, 56, v{vLane}
  v_lshl_add_u32 v{c0}, v{c1}, 2, v{c0}
  v_add_u32 v{c0}, {ORDA}, v{c0}
  ds_write2st64_b32 v{c0}, v{e0}, v{e1} offset0:0 offset1:1
K2_PRE:
  s_mov_b32 s{sTmp}, -28
""")
    for k in range(16):
        a(f"  v_and_b32 v{R(k)+2}, 0x7fff, v{R(k)+2}")
    a(f"""
  v_min_u32 v{vT0}, 17, v{vLane}
  v_lshlrev_b32 v{vT0}, 2, v{vT0}
  v_mov_b32 v{vT1}, {MISC}
  s_waitcnt lgkmcnt(0)
@S8@
  s_barrier
@S9@
  ds_read_b32 v{vTSV}, v{vT0} offset:{TSV}
  ds_read_b32 v{vT2}, v{vT1}
""")
    for k in range(16):
        a(f"  s_mov_b64 exec, s[{msk(k)}:{msk(k)+1}]")
        if k >= 8: a(f"  s_cbranch_execz K2_NS{k}")
        a(f"  ds_read_b32 v{A4(k)}, v{A4(k)} offset:{NB}")
        if k >= 8: a(f"K2_NS{k}:")
        if k == 7:
            a(f"""  s_mov_b64 exec, -1
  s_waitcnt lgkmcnt(8)
  v_readlane_b32 s{sT}, v{vTSV}, 16
  v_readfirstlane_b32 s{sMaxC}, v{vT2}
  s_cmp_le_u32 s{sT}, {CAPT}
  s_cbranch_scc1 K2_FIT
  s_cmp_le_u32 s{sSW}, 1
  s_cbranch_scc1 K2_END
  s_lshr_b32 s{sSW}, s{sSW}, 1
  s_mov_b32 s{sFirstB}, 0
  s_waitcnt lgkmcnt(0) vmcnt(0)
  s_barrier
  s_branch K2_RESET
K2_FIT:""")
    a("  s_waitcnt lgkmcnt(0)")
    for k in range(16):
        a(f"  s_mov_b64 exec, s[{msk(k)}:{msk(k)+1}]")
        if k >= 8: a(f"  s_cbranch_execz K2_WS{k}")
        a(f"  v_lshrrev_b32 v{vT0}, v{A4(k)}, v{R(k)+3}")
        a(f"  v_bfe_u32 v{R(k)+3}, v{R(k)+3}, 0, v{A4(k)}")
        a(f"  v_lshl_add_u32 v{vT0}, v{vT0}, 8, v{A4(k)}")
        a(f"  v_lshl_add_u32 v{vT0}, v{R(k)+3}, 3, v{vT0}")
        a(f"  v_and_b32 v{R(k)+3}, -8, v{vT0}")
        a(f"  v_lshrrev_b32 v{A4(k)}, 1, v{R(k)+3}")
        a(f"  ds_write_b32 v{A4(k)}, v{R(k)+2} offset:{K0}")
        if k >= 8: a(f"K2_WS{k}:")
    a(f"""
  s_mov_b64 exec, -1
  s_sub_u32 s{sTmp}, 11, s{sW}
  s_cmp_lt_u32 s{sW}, 4
  s_cselect_b32 s{sTmp}, s{sW}, s{sTmp}
  s_add_u32 s{sN}, s{sT}, @BIAS@
  s_lshr_b32 s{sT1}, s{sN}, 3
  s_and_b32 s{sN}, s{sN}, 7
  s_sub_u32 s{sG0}, 4, s{sN}
  s_lshl_b32 s{sG0}, 15, s{sG0}
  s_and_b32 s{sG0}, s{sG0}, 15
  s_bfm_b32 s{sF}, s{sN}, 0
  s_cmp_le_u32 s{sN}, 4
  s_cselect_b32 s{sG0}, s{sG0}, s{sF}
  s_bfm_b32 s{sF}, s{sTmp}, 0
  s_and_b32 s{sF}, s{sF}, s{sG0}
  s_bcnt1_i32_b32 s{sF}, s{sF}
  s_mul_i32 s{sT0}, s{sT1}, s{sTmp}
  s_add_u32 s{sT0}, s{sT0}, s{sF}
  s_lshr_b32 s{sG0}, s{sG0}, s{sTmp}
  s_and_b32 s{sG0}, s{sG0}, 1
  s_add_u32 s{sT1}, s{sT1}, s{sG0}
  s_add_u32 s{sT1}, s{sT1}, s{sT0}
  s_min_u32 s{sT0}, s{sT0}, s{sT}
  s_min_u32 s{sT1}, s{sT1}, s{sT}
  v_cmp_ge_u32 vcc, s{sT0}, v{vTSV}
  s_and_b32 s{sTmp}, vcc_lo, 0xffff
  s_bcnt1_i32_b32 s{sG0}, s{sTmp}
  s_sub_u32 s{sG0}, s{sG0}, 1
  v_cmp_gt_u32 vcc, s{sT1}, v{vTSV}
  s_and_b32 s{sTmp}, vcc_lo, 0xffff
  s_bcnt1_i32_b32 s{sGlast}, s{sTmp}
  s_sub_u32 s{sGlast}, s{sGlast}, 1
  s_add_u32 s{sTmp}, s{sG0}, 1
  v_readlane_b32 s{sTmp2}, v{vTSV}, s{sG0}
  v_readlane_b32 s{sTn}, v{vTSV}, s{sTmp}    ; TS[g0+1]
  s_sub_u32 s{sN}, s{sT1}, s{sT0}
  s_mov_b32 s{sCont}, 0
  s_mov_b32 s{sSlow}, 0
  s_mov_b32 s{sGn}, s{sG0}
  s_mov_b32 s{sCur}, s{sT0}
  s_mov_b32 s{sF}, 1
  s_cmp_eq_u32 s{sN}, 0
  s_cbranch_scc1 K2_FMD
  s_cmp_eq_u32 s{sTmp2}, s{sT0}
  s_cbranch_scc1 K2_FM
  s_mov_b32 s{sCont}, 1
  s_cmp_lt_u32 s{sTn}, s{sT1}
  s_cbranch_scc0 K2_ALLC
  s_add_u32 s{sGn}, s{sG0}, 1
  s_mov_b32 s{sCur}, s{sTn}
  s_sub_u32 s{sTmp}, s{sT1}, s{sCur}
  s_bitset1_b32 s{sF}, s{sTmp}
  s_branch K2_FM
K2_ALLC:
  s_cmp_gt_u32 s{sTn}, s{sT1}
  s_cselect_b32 s{sSlow}, 1, 0
K2_FM:
  s_mov_b32 s{sTau}, s{sGn}
K2_FML:
  s_cmp_ge_u32 s{sTau}, s{sGlast}
  s_cbranch_scc1 K2_FMD
  s_add_u32 s{sTau}, s{sTau}, 1
  s_nop 3
  v_readlane_b32 s{sTmp}, v{vTSV}, s{sTau}
  s_sub_u32 s{sTmp}, s{sTmp}, s{sCur}
  s_bitset1_b32 s{sF}, s{sTmp}
  s_branch K2_FML
K2_FMD:
  s_add_u32 s{sTmp}, s{sGlast}, 1
  s_and_b32 s{sTmp}, s{sTmp}, 31
  s_nop 3
  v_readlane_b32 s{sTmp2}, v{vTSV}, s{sTmp}
  v_readlane_b32 s{sFast}, v{vTSV}, 17
  s_sub_u32 s{sTe}, s{sT1}, s{sCur}
  s_cmp_gt_u32 s{sTmp2}, s{sT1}
  s_cselect_b32 s{sTe}, s{sTe}, 99
  s_cmp_lt_u32 s{sB}, 168
  s_cselect_b32 s{sTmp2}, 30, 31
  s_cmp_eq_u32 s{sFast}, s{sTmp2}
  s_cselect_b32 s{sFast}, s{sFirstB}, 0
  s_cmp_gt_u32 s{sMaxC}, s{sSW}
  s_cselect_b32 s{sFast}, 0, s{sFast}
  s_lshl_b32 s{sB128}, s{sB}, 7
  s_mov_b32 s{sMsk}, 0xffff8000
  s_lshl_b32 s{sTmp}, s{sCur}, 7
  v_add_u32 v{vK}, s{sTmp}, v{vKb}
  v_mad_u32_u24 v{vE}, v{vEs}, s{sCur}, v{vEb}
""")
    for l in next_tile(sTn, sCur): a(l)
    a(f"""
  s_waitcnt lgkmcnt(0)
  s_barrier
@S4@
  ds_read_b128 v[{vI}:{vI+3}], v{vK}
""")
    ord_read(a)
    a(f"""  s_lshl_b32 s{sTmp}, s{sTn}, 7
  v_add_u32 v{vK}, s{sTmp}, v{vKb}
  s_mov_b32 m0, s{sM0}
  s_waitcnt lgkmcnt(1)""")
    for i in range(4): a(la(i))
    for i in range(4):
        a(dma(i))
        if i < 3: a(f"  s_add_u32 m0, s{sM0}, {1024*(i+1)}\n  s_nop 0")
    a(f"  ds_read_b128 v[{vI}:{vI+3}], v{vK}")
    def ea_writes(ks):
        for k in ks:
            a(f"  s_mov_b64 exec, s[{msk(k)}:{msk(k)+1}]")
            if k >= 8: a(f"  s_cbranch_execz K2_ES{k}")
            a(f"  ds_write_b64 v{R(k)+3}, v[{R(k)}:{R(k)+1}] offset:{EA0}")
            if k >= 8: a(f"K2_ES{k}:")
        a("  s_mov_b64 exec, -1")
    ea_writes(list(range(8, 16)) + [0, 1, 2, 3])
    m_event(a)
    for g in range(4): a(f"  v_mov_b32 v{vNAc+g}, v{vNAn+g}")
    a(f"  s_mov_b32 s{sGc}, s{sGn}")
    next_group(a)
    ord_read(a)
    for i in range(4): a(la(i))
    a("  s_waitcnt vmcnt(0)")
    for s_ in range(4): a(f"  ds_read_b128 {Xb(0,s_)}, v{vXA+s_}")
    ea_writes([4, 5, 6, 7])
    for l in next_tile(sTn2, sTn): a(l)
    a(f"""  s_lshl_b32 s{sTmp}, s{sTn2}, 7
  v_add_u32 v{vK}, s{sTmp}, v{vKb}
  s_mov_b32 m0, s{sM0}
  s_waitcnt lgkmcnt(4)""")
    for i in range(4):
        a(dma(i))
        if i < 3: a(f"  s_add_u32 m0, s{sM0}, {1024*(i+1)}\n  s_nop 0")
    x_pref(a, HV+8)
    a(f"""  ds_read_b128 v[{vI}:{vI+3}], v{vK}
  s_waitcnt lgkmcnt(0)
  s_barrier
@S10@
  s_cmp_eq_u32 s{sN}, 0
  s_cbranch_scc1 K2_LOOPDONE
  ds_read2_b32 a[{EOP}:{EOP+1}], v{vE} offset0:0 offset1:1
  v_mad_u32_u24 v{vE}, v{vEs}, s{sTn}, v{vEb}
  s_mov_b32 s{sTn}, s{sTn2}""")
    for i in range(4):
        a(mfma16(Gb(0), Xb(0,i), wb(i,0), g16(Gb(0)) if i else "0"))
    a("  s_waitcnt lgkmcnt(0)")
    a(mfma16(Gb(0), Eo, BEo(0), g16(Gb(0))))
    a(mfma16(Gb(1), Eo, BEo(1), "0"))
    a(mfma16(Gb(1), Xb(0,0), wb(0,1), g16(Gb(1))))
    a(f"  ds_read2_b32 a[{EOP}:{EOP+1}], v{vE} offset0:0 offset1:1")
    for i in range(1, 4):
        a(mfma16(Gb(1), Xb(0,i), wb(i,1), g16(Gb(1))))
    a(f"  s_bitcmp1_b32 s{sF}, 1\n  s_cbranch_scc0 K2_FNM")
    m_event(a)
    a("K2_FNM:\n  s_nop 5")
    for i in range(16): a(f"  v_exp_f32 v{Gb(0)+i}, v{Gb(0)+i}")
    a(f"  s_mov_b32 s{sTau}, 0\n  s_waitcnt vmcnt(0)")
    a(mfma8(Gb(0), ON, ON, g16(Gb(0))))
    for s_ in range(4): a(f"  ds_read_b128 {Xb(1,s_)}, v{vXA+s_}")
    a("K2_LOOP:")
    tile_code(a, 0)
    tile_code(a, 1)
    a(f"""  s_branch K2_LOOP
K2_LAST:
  s_setprio 0
  s_cmp_eq_u32 s{sCont}, 0
  s_cbranch_scc1 K2_EV""")
    wide_reduce(a, "C")
    a(f"""  s_branch K2_LOOPDONE
K2_EV:""")
    wide_reduce(a, "E")
    a(f"""
  s_cmp_eq_u32 s{sTau}, s{sTe}
  s_cbranch_scc1 K2_EVS
  s_cmp_eq_u32 s{sFast}, 0
  s_cbranch_scc1 K2_EVS""")
    fin1(a)
    flush_st(a)
    fin2(a)
    a("  s_branch K2_EVE\nK2_EVS:")
    flush_own(a, "L")
    a(f"""K2_EVE:
  s_cmp_ge_u32 s{sTau}, s{sN}
  s_cbranch_scc1 K2_LOOPDONE""")
    for g in range(4): a(f"  v_mov_b32 v{vNAc+g}, v{vNAn+g}")
    a(f"  s_mov_b32 s{sGc}, s{sGn}")
    next_group(a)
    ord_read(a)
    x_pref(a, HV+8)
    a(f"""  s_bitcmp1_b32 s{sTau}, 0
  s_cbranch_scc1 K2_NF0
  s_branch K2_NF1
K2_LOOPDONE:
@S11@
  s_add_u32 s{sSB}, s{sSB}, s{sSW}
  v_mbcnt_lo_u32_b32 v{vLane}, -1, 0
  v_mbcnt_hi_u32_b32 v{vLane}, -1, v{vLane}
  s_lshl_b32 s{sTmp}, s{sW}, 6
  v_add_u32 v{vTid}, s{sTmp}, v{vLane}
  s_lshl_b32 s{sTmp}, s{sW}, 12
  s_add_u32 s{sTmp}, s{sTmp}, s{sB}
  s_lshl_b32 s{sTmp}, s{sTmp}, 7
  v_lshrrev_b32 v{G+21}, 5, v{vLane}
  v_lshlrev_b32 v{vE}, 17, v{G+21}
  v_add3_u32 v{vE}, v{vE}, v{vN4}, s{sTmp}
""")
    fin1(a)
    for g in range(12): a(f"  v_mov_b32 v{G+16+g}, 0") if False else None
    a(f"""
K2_NOFL:
  s_cmp_eq_u32 s{sSlow}, 0
  s_cbranch_scc1 K2_NSL
  v_mov_b32 v{G+20}, {MISC+4}
  v_mov_b32 v{G+21}, 1
  ds_write_b32 v{G+20}, v{G+21}
K2_NSL:
  v_mov_b32 v{G+20}, {MISC+4}
""")
    for q in range(8):
        r = AC + q*4
        a(f"  v_add_f32 v{r}, v{r}, v{r+1}")
        a(f"  v_add_f32 v{r+2}, v{r+2}, v{r+3}")
    a(f"""
  s_mov_b32 s{sTau}, 1
  s_waitcnt lgkmcnt(0) vmcnt(0)
  s_barrier
  ds_read_b32 v{G+21}, v{G+20}
K2_MERGE:
""")
    for ct in range(2):
        for g in range(4):
            t = G + (ct*4+g)*2
            a(f"  ds_read2_b32 v[{t}:{t+1}], v{vNAc+g} offset0:{64+32*ct} offset1:{128+32*ct}")
    a(f"""
  s_waitcnt lgkmcnt(8)
  v_readfirstlane_b32 s{sSlow}, v{G+21}
  s_cmp_eq_u32 s{sCont}, 0
  s_cbranch_scc1 K2_MNC
  s_cmp_eq_u32 s{sSlow}, 0
  s_cbranch_scc1 K2_MDO
  s_cmp_lg_u32 s{sTau}, s{sW}
  s_cbranch_scc1 K2_MSKIP
K2_MDO:
  s_waitcnt lgkmcnt(0)
""")
    for q in range(8):
        r = AC + q*4; t = G + q*2
        a(f"  v_add_f32 v{r}, v{r}, v{t}")
        a(f"  v_add_f32 v{r+2}, v{r+2}, v{t+1}")
    a(f"""  s_cmp_lg_u32 s{sSlow}, 0
  s_cbranch_scc1 K2_MWR
  s_cmp_eq_u32 s{sFast}, 0
  s_cbranch_scc1 K2_MWR""")
    fin2(a)
    a("@S13@\n@S15@\n@OUT2@\n  s_endpgm\nK2_MWR:")
    for ct in range(2):
        for g in range(4):
            r = AC + (ct*4+g)*4
            a(f"  ds_write2_b32 v{vNAc+g}, v{r}, v{r+2} offset0:{64+32*ct} offset1:{128+32*ct}")
    a(f"""
  s_branch K2_MSKIP
K2_MNC:
  s_cmp_lg_u32 s{sSlow}, 0
  s_cbranch_scc1 K2_MSKIP
  s_cmp_lg_u32 s{sFast}, 0
  s_cbranch_scc1 K2_FIN
K2_MSKIP:
  s_waitcnt lgkmcnt(0)
  s_barrier
  s_cmp_eq_u32 s{sSlow}, 0
  s_cbranch_scc1 K2_MEND
  s_add_u32 s{sTau}, s{sTau}, 1
  s_cmp_lt_u32 s{sTau}, 8
  s_cbranch_scc1 K2_MERGE
K2_MEND:
@S12@
  s_mov_b32 s{sFirstB}, 0
  s_cmp_gt_u32 s{sMaxC}, s{sSB}
  s_cbranch_scc1 K2_RESET
""")
    for rr in range(8):
        a(f"  s_mov_b32 s{sSeg+rr}, {(8*(rr>>2)+(rr&3))*32768}")
        a(f"  buffer_load_dword v{G+rr}, v{vE}, s[{sXR}:{sXR+3}], s{sSeg+rr} offen")
    a(f"""
  s_mul_i32 s{sTmp}, s{sW}, {16*ROWB}
  s_add_u32 s{sTmp}, s{sTmp}, {NODE}
  v_lshrrev_b32 v{vT1}, 5, v{vLane}
  v_mul_u32_u24 v{vT1}, {4*ROWB}, v{vT1}
  v_add3_u32 v{vT1}, v{vT1}, v{vN4}, s{sTmp}
  v_add_u32 v{vT2}, 128, v{vT1}
""")
    for rr in range(8):
        ro = 3 * (8*(rr>>2) + (rr&3))
        a(f"  ds_read2st64_b32 v[{AC+4*rr}:{AC+4*rr+1}], v{vT1} offset0:{ro+1} offset1:{ro+2}")
        a(f"  ds_read2st64_b32 v[{AC+4*rr+2}:{AC+4*rr+3}], v{vT2} offset0:{ro+1} offset1:{ro+2}")
        a(f"  ds_read_b32 v{HV+rr}, v{vT2} offset:{ro*256}")
    a(f"  s_mov_b32 s{sTmp}, 0x358637bd")
    for rr in range(8):
        a(f"  s_waitcnt lgkmcnt({min(15, 3*(7-rr))})")
        for ct in range(2):
            d = AC + 4*rr + 2*ct + 1
            a(f"  v_add_f32 v{d}, s{sTmp}, v{d}")
        for ct in range(2):
            d = AC + 4*rr + 2*ct + 1
            a(f"  v_rcp_f32 v{d}, v{d}")
        a(f"  v_lshlrev_b32 v{HV+8+rr}, 16, v{HV+rr}")
        a(f"  v_and_b32 v{HV+rr}, 0xffff0000, v{HV+rr}")
    a("  s_waitcnt vmcnt(0)")
    for rr in range(8):
        n0, n1 = AC + 4*rr, AC + 4*rr + 2
        a(f"  v_fma_f32 v{n0}, v{n0}, v{n0+1}, v{HV+8+rr}")
        a(f"  v_fma_f32 v{n1}, v{n1}, v{n1+1}, v{HV+rr}")
        a(f"  v_lshlrev_b32 v{n0+1}, 16, v{G+rr}")
        a(f"  v_and_b32 v{n1+1}, 0xffff0000, v{G+rr}")
        a(f"  v_max_f32 v{n0}, 0, v{n0}")
        a(f"  v_max_f32 v{n1}, 0, v{n1}")
        a(f"  v_add_f32 v{n0}, v{n0}, v{n0+1}")
        a(f"  v_add_f32 v{n1}, v{n1}, v{n1+1}")
        a(f"  v_cvt_pk_bf16_f32 v{n0}, v{n0}, v{n1}")
        a(f"  buffer_store_dword v{n0}, v{vE}, s[{sOUT}:{sOUT+3}], s{sSeg+rr} offen")
    a("K2_FIN:\n@S13@\n@S15@\n@OUT2@\nK2_END:\n  s_endpgm")

def kd(name, vgpr, accum, sgpr):
    return f"""
.amdhsa_kernel {name}
  .amdhsa_next_free_vgpr {vgpr}
  .amdhsa_next_free_sgpr {sgpr}
  .amdhsa_accum_offset {accum}
  .amdhsa_group_segment_fixed_size 0
  .amdhsa_kernarg_size 96
  .amdhsa_user_sgpr_count 2
  .amdhsa_user_sgpr_kernarg_segment_ptr 1
  .amdhsa_system_sgpr_workgroup_id_x 1
  .amdhsa_float_denorm_mode_32 3
.end_amdhsa_kernel
"""

def main():
    ref = open(f"cdna_kernels/{NAME}.s.ref").read().split("\n")
    hdr = [l for l in ref if l.startswith(";") and "@launch" not in l and "Override" not in l and "grid=ceil" not in l]
    a = Asm()
    a("\n".join(hdr))
    a(f"; @launch kernel=part_kernel grid=({NP+5},1,1) block=(800,1,1) lds={LDS1}")
    a(f"; @launch kernel=main_kernel grid=(256,1,1) block=(512,1,1) lds={LDS2}")
    a('.amdgcn_target "amdgcn-amd-amdhsa--gfx950"')
    a("""; GatedGCN layer in two launches (generated by my own script, gen/gen14.py).
;                {e_attr, src | local<<18} plus a per-(producer,bucket) offset word; 5 WGs pack the
;                (multi-batch / serial-merge fallbacks).""")
    a(".text")
    gen_k1(a)
    gen_k2(a)
    a('.section .rodata,"a"\n.p2align 6')
    st = OPT["stamp"]
    a(kd("part_kernel", 60, 60, 100) if st else kd("part_kernel", 56, 56, 32))
    a(".p2align 6")
    a(kd("main_kernel", NARCH + NACC, NARCH, 100))
    txt = a.text()
    SL = MISC + 64
    cpf2 = cpf1 = ""
    if OPT["cpf"] & 1:
        cpf2 = f"""  s_getpc_b64 s[98:99]
  v_lshlrev_b32 v39, 6, v0
  s_mov_b64 exec, 0xffffffff
  global_load_dword a0, v39, s[98:99]
  s_mov_b64 exec, -1
"""
        cpf2 = f"""  s_getpc_b64 s[98:99]
CPF2L:
  v_lshlrev_b32 v39, 5, v0
  v_min_u32 v39, K2_END-CPF2L, v39
  global_load_dword a0, v39, s[98:99]
"""
    if OPT["cpf"] & 2:
        cpf1 = f"""  s_getpc_b64 s[26:27]
CPF1L:
  v_lshlrev_b32 v40, 5, v0
  v_min_u32 v40, K2_END-CPF1L, v40
  global_load_dword v55, v40, s[26:27]
"""
    imgw = ""
    for n in range(9):
        imgw += f"  s_cmp_lg_u32 s{sN}, {n}\n  s_cbranch_scc1 K2_IW{n}\n  s_waitcnt vmcnt({8+n})\n  s_branch K2_IWD\nK2_IW{n}:\n"
    imgw += "K2_IWD:\n"
    offl = f"""  buffer_load_dword v23, v{vTSV}, s[{sOFF}:{sOFF+3}], 0 offen
"""
    txt = txt.replace("@OFFS_A@\n", offl).replace("@OFFS_B@\n", "").replace("@OFFW@", "8").replace("@IMGW@\n", imgw)
    xpf = ""
    if OPT["npf"]:
        xpf = f"""  s_lshr_b32 s{sTmp}, s2, 3
  s_mul_i32 s{sTmp}, s{sTmp}, 100096
  v_lshlrev_b32 v{vT2}, 7, v4
  s_add_u32 s{sTmp2}, s{sTmp}, 65536
  buffer_load_dword a{X}, v{vT2}, s[{sXR}:{sXR+3}], s{sTmp} offen
  s_cmp_ge_u32 s{sW}, 5
  s_cbranch_scc1 K2_XPE
  buffer_load_dword a{X+1}, v{vT2}, s[{sXR}:{sXR+3}], s{sTmp2} offen
K2_XPE:
"""
    txt = txt.replace("@XPF@\n", xpf).replace("@BIAS@", str(OPT["bias"]))
    txt = txt.replace("@CPF2@\n", cpf2).replace("@CPF1@\n", cpf1)
    def sub(m):
        if not st: return ""
        b = Asm(); k = m.group(1); i = m.group(2)
        if k == "OUT":
            if i == "2":
                b(f"""  s_lshl_b32 s99, s{sW}, 6
  s_add_u32 s99, s99, {SL}
  v_mbcnt_lo_u32_b32 v37, -1, 0
  v_lshlrev_b32 v37, 2, v37
  v_add_u32 v37, s99, v37
  ds_read_b32 v36, v37
  s_waitcnt lgkmcnt(0)""")
                stamp_out(b, 96, sW, STAMP_OFF, 36, 37, 8)
            else: stamp_out(b, 20, 23, STAMP_OFF + 0x100000, 56, 57, 16)
        else:
            i = int(i)
            if k == "TW": b("  s_waitcnt vmcnt(0)")
            def one(idx, real=False):
                if k == "S":
                    d = 37 if idx == 5 else (116 if idx in (10, 14, 11, 2) else 38); ad = 117 if idx in (10, 14, 11, 2) else 39
                    b(f"""  s_mem{'real' if real else ''}time s[98:99]
  s_waitcnt lgkmcnt(0)
  v_mov_b32 v{d}, s98
  s_lshl_b32 s99, s{sW}, 6
  s_add_u32 s99, s99, {SL + 4*idx}
  v_mov_b32 v{ad}, s99
  ds_write_b32 v{ad}, v{d}""")
                else: stamp(b, idx, 56, real=real)
            if i == 0: one(0); one(1, True)
            elif i == 15: one(15, True)
            elif i == 10 and k == 'S': one(10); one(14, True)
            elif i == 11 and k == 'S': one(11); one(2, True)
            elif i == 2 and k == 'S': pass
            else: one(i)
        return b.text()
    txt = re.sub(r"@(S|TW|T|OUT)(\d+)@\n", sub, txt)
    lines = txt.split("\n")
    for p in check_hazards(lines): print("HAZARD", p)
    b = Asm()
    for rep in range(2):
        for k in range(4):
            t_unit(b, k); p_unit(b, k, rep == 0)
            if k & 1: flush(b); m_event(b)
    for k in range(4):
        t_unit(b, k); p_unit(b, k, False)
    for k in range(2):
        t_unit(b, k); p_unit(b, k, False)
    for p in check_hazards(b.text().split("\n"), "loop"): print("HAZARD", p)
    open(sys.argv[1], "w").write(txt)

if __name__ == "__main__":
    main()
```
